```python
import torch

def _softmax(x, axis=-1):
    return torch.softmax(x, dim=axis)
def _gelu(x):
    return torch.nn.functional.gelu(x, approximate="tanh")
def _silu(x):
    return torch.nn.functional.silu(x)
def _sigmoid(x):
    return torch.sigmoid(x)
def _layernorm(x, axis=-1, eps=1e-5):
    m = x.mean(dim=axis, keepdim=True)
    v = x.var(dim=axis, keepdim=True, unbiased=False)
    return (x - m) / torch.sqrt(v + eps)
def _scatter_add(tgt, idx, src, axis=0):
    return tgt.clone().index_add_(axis, idx, src)
def _segment_sum(src, seg, n):
    out = torch.zeros((n,) + src.shape[1:], dtype=src.dtype)
    return out.index_add_(0, seg, src)
def _pad(x, pw):
    flat = tuple(v for pair in reversed(pw) for v in pair)
    return torch.nn.functional.pad(x, flat)

kernel_name = 'concat_heads__compressed_kv_cla__gqa_block_cached__decode'

def setup_inputs():

    _w = (lambda a: (lambda t: t.to(torch.bfloat16) if t.is_floating_point() else t)(torch.as_tensor(a)))
    def _A_setup():
        B, H, Sq, Sk, D, M = 1, 32, 1, 16384, 128, 512
        Dc = 4 * D
        return {
            "x": _w((lambda *s: torch.randn(*s, dtype=torch.bfloat16) * 3.2)(B, Sq, M)),
            "c_kv": _w((lambda *s: torch.randn(*s, dtype=torch.bfloat16) * 0.1)(B, Sk, Dc)),
            "w_q": _w((lambda *s: torch.randn(*s, dtype=torch.bfloat16) * 6.4)(M, H, D) * (M ** -0.5)),
            "w_uk": _w((lambda *s: torch.randn(*s, dtype=torch.bfloat16) * 6.4)(Dc, H, D) * (Dc ** -0.5)),
            "w_uv": _w((lambda *s: torch.randn(*s, dtype=torch.bfloat16) * 0.1)(Dc, H, D) * (Dc ** -0.5)),
            "w_o": _w((lambda *s: torch.randn(*s, dtype=torch.bfloat16) * 0.1)(H, D, M) * ((H * D) ** -0.5)),
        }
    _A_in = _A_setup()

    def _B_setup():
        B, Sq, D = 1, 1, 512
        Hq, Hkv, Sk, Dh = 32, 8, 16384, 128
        assert Hq % Hkv == 0, (Hq, Hkv)
        return {
            "x": _w((lambda *s: torch.randn(*s, dtype=torch.bfloat16) * 1.6)(B, Sq, D)),
            "k_cache": _w((lambda *s: torch.randn(*s, dtype=torch.bfloat16) * 1.6)(B, Hkv, Sk, Dh)),
            "v_cache": _w((lambda *s: torch.randn(*s, dtype=torch.bfloat16) * 0.05)(B, Hkv, Sk, Dh)),
            "wq": _w((lambda *s: torch.randn(*s, dtype=torch.bfloat16) * 1.6)(D, Hq * Dh) * (D ** -0.5)),
            "wo": _w((lambda *s: torch.randn(*s, dtype=torch.bfloat16) * 0.05)(Hq * Dh, D) * ((Hq * Dh) ** -0.5)),
        }
    _B_in = _B_setup()

    return {
        "A_x": _A_in["x"],
        "A_c_kv": _A_in["c_kv"],
        "A_w_q": _A_in["w_q"],
        "A_w_uk": _A_in["w_uk"],
        "A_w_uv": _A_in["w_uv"],
        "A_w_o": _A_in["w_o"],
        "B_x": _B_in["x"],
        "B_k_cache": _B_in["k_cache"],
        "B_v_cache": _B_in["v_cache"],
        "B_wq": _B_in["wq"],
        "B_wo": _B_in["wo"],
    }

def reference(A_x, A_c_kv, A_w_q, A_w_uk, A_w_uv, A_w_o, B_x, B_k_cache, B_v_cache, B_wq, B_wo):
    def _A_ref(x, c_kv, w_q, w_uk, w_uv, w_o):
        B, Sq, M = x.shape[0], x.shape[1], x.shape[2]
        Sk = c_kv.shape[1]
        H, D = w_q.shape[1], w_q.shape[2]
        q = torch.einsum("bqm,mhd->bhqd", x, w_q)
        k = torch.einsum("bkc,chd->bhkd", c_kv, w_uk)
        v = torch.einsum("bkc,chd->bhkd", c_kv, w_uv)
        scores = torch.einsum("bhqd,bhkd->bhqk", q, k) * (D ** -0.5)
        off = Sk - Sq
        qi = torch.arange(Sq)[:, None]
        kj = torch.arange(Sk)[None, :]
        cmask = kj <= (qi + off)
        scores = torch.where(cmask[None, None], scores, -1e9)
        p = _softmax(scores, axis=-1)
        ctx = torch.einsum("bhqk,bhkd->bhqd", p, v)
        return torch.einsum("bhqd,hdm->bqm", ctx, w_o)

    def _B_ref(x, k_cache, v_cache, wq, wo):
        B, Sq, D = x.shape
        Hq, Dh = 32, 128
        Hkv = k_cache.shape[1]
        rep = Hq // Hkv
        q = (lambda x, *d: x.permute(*d))((x @ wq).reshape(B, Sq, Hq, Dh), 0, 2, 1, 3)
        k = (lambda x, n, axis: torch.repeat_interleave(x, n, dim=axis))(k_cache, rep, axis=1)
        v = (lambda x, n, axis: torch.repeat_interleave(x, n, dim=axis))(v_cache, rep, axis=1)
        scores = torch.einsum("bhqd,bhkd->bhqk", q, k) * (Dh ** -0.5)
        p = _softmax(scores, axis=-1)
        o = torch.einsum("bhqk,bhkd->bhqd", p, v)
        return (lambda x, *d: x.permute(*d))(o, 0, 2, 1, 3).reshape(B, Sq, Hq * Dh) @ wo

    a = _A_ref(A_x, A_c_kv, A_w_q, A_w_uk, A_w_uv, A_w_o)
    b = _B_ref(B_x, B_k_cache, B_v_cache, B_wq, B_wo)
    return torch.concatenate([a, b], axis=-1)
```

```python
import re

TRANS = ("v_exp_f32", "v_log_f32", "v_rcp_f32", "v_rsq_f32", "v_sqrt_f32", "v_sin_f32", "v_cos_f32")
MFMA_PASSES = {"v_mfma_f32_16x16x32_bf16": 4, "v_mfma_f32_16x16x16_bf16": 4, "v_mfma_f32_32x32x16_bf16": 8}

def _regs(tok):
    tok = tok.strip()
    tok = tok.lstrip("-")
    m = re.fullmatch(r"(?:abs\()?([vsa])(\d+)\)?", tok)
    if m: return {(m.group(1), int(m.group(2)))}
    m = re.fullmatch(r"([vsa])\[(\d+):(\d+)\]", tok)
    if m: return {(m.group(1), i) for i in range(int(m.group(2)), int(m.group(3)) + 1)}
    if tok == "vcc": return {("s", "vcc")}
    if tok == "exec": return {("s", "exec")}
    if tok == "m0": return {("s", "m0")}
    return set()

class Ins:
    def __init__(self, text):
        self.text = text
        t = text.split(";")[0].strip()
        self.label = t.endswith(":")
        self.op = t.split()[0] if t and not self.label else ""
        rest = t[len(self.op):].strip() if not self.label else ""
        ops, depth, cur = [], 0, ""
        for ch in rest:
            if ch == "[": depth += 1
            if ch == "]": depth -= 1
            if ch == "," and depth == 0:
                ops.append(cur.strip()); cur = ""
            else: cur += ch
        if cur.strip(): ops.append(cur.strip())
        self.mods = ""
        if ops:
            parts = ops[-1].split(None, 1)
            ops[-1] = parts[0]
            if len(parts) > 1: self.mods = parts[1]
        self.ops = ops
        op = self.op
        self.mfma = op.startswith("v_mfma")
        self.valu = op.startswith("v_") and not self.mfma
        self.trans = op.replace("_e32", "").replace("_e64", "") in TRANS
        self.dpp = self.valu and ("quad_perm" in self.mods or "row_" in self.mods)
        self.permlane = op.startswith("v_permlane")
        self.readlane = op.startswith("v_readlane") or op.startswith("v_readfirstlane")
        self.vmem = op.startswith("buffer_") or op.startswith("global_")
        self.ds = op.startswith("ds_")
        self.salu = op.startswith("s_")
        R = [_regs(o) for o in ops]
        self.w, self.r = set(), set()
        self.srcC = set(); self.srcAB = set(); self.stdata = set()
        if self.mfma:
            self.w = R[0]; self.srcAB = R[1] | R[2]; self.srcC = R[3]; self.r = self.srcAB | self.srcC
            self.passes = MFMA_PASSES[op]
        elif self.valu:
            if self.permlane and "swap" in op:
                self.w = R[0] | R[1]; self.r = R[0] | R[1]
            elif op.startswith("v_cmp"):
                self.w = R[0]; self.r = set().union(*R[1:])
            elif op.startswith("v_add_co") or op.startswith("v_addc_co") or op.startswith("v_sub_co"):
                self.w = R[0] | R[1]; self.r = set().union(*R[2:])
            else:
                self.w = R[0]; self.r = set().union(*R[1:]) if len(R) > 1 else set()
                if op.startswith("v_fmac") or op.startswith("v_dot2c") or self.dpp or op.startswith("v_writelane"):
                    self.r |= R[0]
                if op.startswith("v_cndmask") and len(R) == 3: self.r |= {("s", "vcc")}
        elif self.vmem:
            if "store" in op or ("atomic" in op):
                if op.startswith("buffer_"):
                    self.stdata = R[0]; self.r = set().union(*R)
                else:
                    self.stdata = R[1]; self.r = set().union(*R)
                self.wide = ("x4" in op or "x3" in op)
            elif "lds" in self.mods.split() or "_lds_" in op:
                self.r = set().union(*R) | {("s", "m0")}
            else:
                self.w = R[0]; self.r = set().union(*R[1:])
        elif self.ds:
            if op.startswith("ds_read") or op.startswith("ds_bpermute") or op.startswith("ds_permute") or op.startswith("ds_swizzle"):
                self.w = R[0]; self.r = set().union(*R[1:])
            else:
                self.r = set().union(*R)
        elif self.salu:
            if op.startswith("s_cmp") or op.startswith("s_bitcmp") or op.startswith("s_cbranch") or op in ("s_waitcnt", "s_barrier", "s_nop", "s_branch", "s_endpgm", "s_sleep", "s_setprio"):
                self.r = set().union(*R) if R else set()
            else:
                self.w = R[0] if R else set(); self.r = set().union(*R[1:]) if len(R) > 1 else set()
                if "saveexec" in op: self.w = self.w | {("s", "exec")}
    def states(self):
        if self.label: return 0
        if self.op == "s_nop": return int(self.ops[0]) + 1
        return 1

def need(J, I):
    n = 0
    Jv = {x for x in J.w if x[0] in "va"}
    Js = {x for x in J.w if x[0] == "s"}
    if J.valu:
        if I.mfma and Jv & I.r: n = max(n, 2)
        if I.dpp and Jv & I.r: n = max(n, 2)
        if I.permlane and Jv & I.r: n = max(n, 2)
        if I.readlane and Jv & I.r: n = max(n, 1)
        if J.trans and (I.valu or I.mfma) and Jv & I.r: n = max(n, 1)
        if Js:
            if (I.valu or I.mfma) and Js & I.r: n = max(n, 4 if I.readlane else 2)
            if I.vmem and Js & I.r: n = max(n, 5)
            if I.salu and Js & I.r: n = max(n, 1)
    if J.mfma:
        p = J.passes
        big = {4: 8, 8: 12}[p]
        if I.mfma:
            if J.w & I.srcAB: n = max(n, big)
            if J.w & I.srcC and not (J.w == I.srcC and I.passes == p): n = max(n, p + 2)
            if J.w & I.w and not (J.w == I.srcC and I.passes == p): n = max(n, p + 2)
        elif I.valu:
            if J.w & (I.r | I.w): n = max(n, big)
            if J.srcC & I.w: n = max(n, p - 1)
        elif I.vmem or I.ds:
            if J.w & (I.r | I.w): n = max(n, big)
    if J.vmem and J.stdata and getattr(J, "wide", False):
        if J.stdata & I.w: n = max(n, 2)
    if J.salu and ("s", "m0") in J.w and I.vmem and ("s", "m0") in I.r: n = max(n, 1)
    return n

def pad_hazards(lines):
    out = []
    for t in lines:
        I = Ins(t)
        if not I.label and I.op and not I.op.startswith("."):
            dist, req = 0, 0
            for J in reversed(out):
                if dist >= 20: break
                if not J.label and J.op and not J.op.startswith("."):
                    nn = need(J, I)
                    if nn - dist > req: req = nn - dist
                    if J.op in ("s_branch", "s_endpgm"): break
                dist += J.states()
            while req > 0:
                k = min(req, 16)
                out.append(Ins(f"s_nop {k-1}"))
                req -= k
        out.append(I)
    return [i.text for i in out]

class Emit:
    def __init__(self):
        self.L = []
        self.vm = 0
        self.lg = 0
    def __call__(self, s):
        for l in s.split("\n"):
            l = l.strip()
            if l: self.L.append(l)
    def vmem(self, s):
        self(s); self.vm += 1; return self.vm
    def ds(self, s):
        self(s); self.lg += 1; return self.lg
    def wait_vm(self, tok):
        n = self.vm - tok
        assert 0 <= n <= 63, n
        self(f"s_waitcnt vmcnt({n})")
    def wait_lg(self, tok):
        n = self.lg - tok
        assert 0 <= n
        self(f"s_waitcnt lgkmcnt({min(n,15)})")
    def label(self, name):
        self.L.append(name + ":")
```

```python
import sys, struct
from asmlib import Emit, pad_hazards

NAME = "concat_heads__compressed_kv_cla__gqa_block_cached__decode"
DEF = dict(D_B=4, N1=28, BURST=3, PVK=3, D_A1=3, NA1=8, D_A2=6, QPOS=24, WPOS="qk", TIMING=False, MAXPOLL=400000,
           NT="nt")

def f32(x): return "0x%08x" % struct.unpack("<I", struct.pack("<f", x))[0]
CS = 1.4426950408889634 * 128 ** -0.5

WS_QP, WS_QABS, WS_QB, WS_BML, WS_AML = 0x10000, 0x90000, 0xA0000, 0xA8000, 0xB0000
WS_BO, WS_OUTB, WS_OUTA, WS_AO, WS_STAMP = 0xC0000, 0x120000, 0x140000, 0x200000, 0x400000
WS_SIZE = 0x800000
L_LQ = 114688
LB_Q, LB_MX, LB_LS, LB_F, LB_R4, LB_R5 = 0, 1024, 1152, 1280, 2048, 20480
LA_Q = 131072
LA_P, LA_MX, LA_LS = 131072, 147456, 148480
LA_F, LA_R1, LA_LAT, LA_R2, LA_CTX = 32768, 36864, 49152, 53248, 61440

vL, vC, vG = 1, 2, 3
SELA, SELB = 32, 36
sW, sX, sSLOT, sH1, sJ, sT = 6, 7, 8, 9, 10, 11
WS = "s[44:47]"
sHI = "s[62:63]"
sCS = "s60"

def fswz(k):
    k0, k1, k2, k3 = k & 1, (k >> 1) & 1, (k >> 2) & 1, (k >> 3) & 1
    return (k1 << 3) | (k0 << 2) | ((k1 ^ k3) << 1) | k2

def vr(a, n=4): return f"v[{a}:{a+n-1}]"

class K:
    def __init__(self, **kw):
        self.p = dict(DEF); self.p.update(kw)
        self.e = Emit()
        self.nlab = 0
        self.ool = []
    def lab(self, s):
        self.nlab += 1
        return f"L_{s}_{self.nlab}"
    def stamp(self, i):
        if self.p["TIMING"]:
            self.e(f"s_memrealtime s[{80+2*i}:{81+2*i}]\ns_waitcnt lgkmcnt(0)")
    def exit(self):
        self.e("s_branch L_exit" if self.p["TIMING"] else "s_endpgm")
    def srd(self, s, ptr, size):
        self.e(f"s_mov_b32 s{s}, s{ptr}\ns_mov_b32 s{s+1}, s{ptr+1}\ns_mov_b32 s{s+2}, {size}\ns_mov_b32 s{s+3}, 0x20000")
    def exec_full(self): self.e("s_mov_b64 exec, -1")
    def exec_mask(self, lo, hi): self.e(f"s_mov_b32 exec_lo, {lo:#x}\ns_mov_b32 exec_hi, {hi:#x}")
    def allred_G(self, vals, tmps, op, steps=(32, 16)):
        e = self.e
        for st in steps:
            for v, t in zip(vals, tmps): e(f"v_mov_b32 v{t}, v{v}")
            for v, t in zip(vals, tmps): e(f"v_permlane{st}_swap_b32 v{t}, v{v}")
            for v, t in zip(vals, tmps): e(f"{op} v{v}, v{t}, v{v}")
    def rowred(self, vals, op, rors):
        for r in rors:
            for v in vals: self.e(f"{op}_dpp v{v}, v{v}, v{v} row_ror:{r} row_mask:0xf bank_mask:0xf")
    def tagcheck(self, tags, acc):
        e = self.e
        e(f"v_xor_b32 v{acc}, s{sT}, v{tags[0]}")
        for t in tags[1:]: e(f"v_bitop3_b32 v{acc}, v{t}, s{sT}, v{acc} bitop3:0xbe")
        e(f"v_cmp_ne_u32 vcc, 0, v{acc}")
    def poll(self, issue, tags, acc, name):
        e = self.e
        L, D = self.lab(name), self.lab(name + "d")
        e("s_mov_b32 s13, 0")
        e.label(L)
        issue()
        e(f"s_add_u32 s13, s13, 1\ns_waitcnt vmcnt(0)")
        self.tagcheck(tags, acc)
        e(f"s_cmp_gt_u32 s13, {self.p['MAXPOLL']}\ns_cbranch_scc1 {D}\ns_cbranch_vccnz {L}")
        e.label(D)
    def expand4(self, dst, src, pi):
        for q in range(4): self.e(f"v_perm_b32 v{dst+q}, v{src}, v{src}, v{SELB+4*pi+q}")
    def gemv8(self, acc, frag, data, toks, E=(44, 48)):
        e = self.e
        self.expand4(E[0], frag, 0)
        for i in range(8):
            if i + 1 < 8: self.expand4(E[(i + 1) & 1], frag + ((i + 1) >> 1), (i + 1) & 1)
            if toks is not None and toks[i] is not None: e.wait_vm(toks[i])
            e(f"v_mfma_f32_16x16x32_bf16 {vr(acc)}, {vr(E[i&1])}, {vr(data+4*i)}, {'0' if i == 0 else vr(acc)}")

    def prologue(self):
        e = self.e
        e("s_cmp_ge_u32 s2, 256\ns_cbranch_scc1 L_end")
        e("s_load_dwordx16 s[16:31], s[0:1], 0\ns_load_dwordx8 s[32:39], s[0:1], 64\ns_load_dwordx4 s[40:43], s[0:1], 96")
        if self.p["TIMING"]:
            for i in range(82, 100): e(f"s_mov_b32 s{i}, 0")
            e("s_memrealtime s[80:81]")
        e("s_getpc_b64 s[4:5]")
        e.label("L_pc")
        e("v_lshlrev_b32 v4, 6, v0\nv_min_u32 v4, L_codeend-L_pc-4, v4")
        e.vmem("global_load_dword v5, v4, s[4:5]")
        e(f"v_lshrrev_b32 v6, 6, v0\nv_and_b32 v{vL}, 63, v0\nv_and_b32 v{vC}, 15, v0\nv_bfe_u32 v{vG}, v0, 4, 2")
        e(f"v_readfirstlane_b32 s{sW}, v6")
        e(f"s_and_b32 s{sX}, s2, 7\ns_lshr_b32 s{sSLOT}, s2, 3\ns_lshr_b32 s{sH1}, s2, 6\ns_lshl_b32 s3, s{sX}, 2\ns_add_u32 s{sH1}, s{sH1}, s3\ns_and_b32 s{sJ}, s{sSLOT}, 7")
        e(f"s_mov_b32 s62, 0\ns_mov_b32 s63, -1\ns_mov_b32 {sCS}, {f32(CS)}")
        e(f"s_lshl_b32 s3, s{sJ}, 19\ns_lshl_b32 s12, s{sH1}, 8\ns_add_u32 s3, s3, s12")
        e(f"v_lshlrev_b32 v4, 17, v{vG}\nv_lshl_add_u32 v4, v{vC}, 4, v4\nv_add_u32 v4, s3, v4")
        e(f"s_lshl_b32 s12, s{sJ}, 7\nv_lshlrev_b32 v6, 5, v{vG}\nv_add_u32 v6, s12, v6")
        e(f"v_bfe_u32 v7, v0, 3, 1\nv_lshlrev_b32 v7, 6, v7\nv_lshl_add_u32 v7, v{vG}, 4, v7\nv_and_b32 v8, 7, v0")
        e(f"v_lshl_add_u32 v9, v8, 13, v7\nv_add_u32 v9, s3, v9")
        e("v_and_b32 v10, 3, v0\nv_lshlrev_b32 v10, 4, v10\nv_mov_b32 v13, 0\nv_mov_b32 v11, 0x0c0c0c0c\nv_and_b32 v14, 4, v0\nv_cmp_ne_u32 vcc, 0, v14")
        for pi, d in ((0, 0x0d0c), (1, 0x0f0e)):
            a = SELA + 2 * pi
            e(f"v_mov_b32 v12, {d:#x}\nv_lshlrev_b64 v[{a}:{a+1}], v10, v[12:13]\nv_xor_b32 v{a}, v11, v{a}\nv_xor_b32 v{a+1}, v11, v{a+1}")
            b = SELB + 4 * pi
            e(f"v_cndmask_b32 v{b}, v{a}, v11, vcc\nv_cndmask_b32 v{b+1}, v{a+1}, v11, vcc\nv_cndmask_b32 v{b+2}, v11, v{a}, vcc\nv_cndmask_b32 v{b+3}, v11, v{a+1}, vcc")
        e(f"v_lshlrev_b32 v10, 4, v{vL}")
        e(f"s_cmp_eq_u32 s{sW}, 7\ns_waitcnt lgkmcnt(0)")
        e(f"s_load_dword s{sT}, s[42:43], 0")
        e("s_cbranch_scc0 L_notctrl")

    def tagmake(self):
        self.e(f"s_waitcnt lgkmcnt(0)\ns_mul_i32 s{sT}, s{sT}, 0x9e3779b1\ns_add_u32 s{sT}, s{sT}, 0x7f4a7c15")

    def phase1(self):
        e, nt = self.e, self.p["NT"]
        WQ, WB, WU = 64, 128, 192
        tx = []
        for (r, p) in ((16, 16), (24, 28)):
            e.vmem(f"global_load_dwordx4 {vr(r)}, v6, s[{p}:{p+1}]")
            tx.append(e.vmem(f"global_load_dwordx4 {vr(r+4)}, v6, s[{p}:{p+1}] offset:16"))
        self.srd(48, 20, 1 << 22)
        tq, tb, tu = [], [], []
        e("s_mov_b32 s12, 0")
        for i in range(16):
            tq.append(e.vmem(f"buffer_load_dwordx4 {vr(WQ+4*i)}, v4, s[48:51], s12 offen {nt}"))
            if i < 15: e("s_addk_i32 s12, 0x2000")
        self.srd(52, 34, 1 << 22)
        e("s_mov_b32 s12, 0")
        for i in range(16):
            tb.append(e.vmem(f"buffer_load_dwordx4 {vr(WB+4*i)}, v4, s[52:55], s12 offen {nt}"))
            if i < 15: e("s_addk_i32 s12, 0x2000")
        self.srd(56, 22, 1 << 22)
        e("s_mov_b32 s12, 0\ns_mov_b32 s14, 0x10000")
        for n in range(8):
            for ks in range(2):
                tu.append(e.vmem(f"buffer_load_dwordx4 {vr(WU+8*n+4*ks)}, v9, s[56:59], s12 offen offset:{128*ks} {nt}"))
            if n < 7: e("s_add_u32 s12, s12, s14")
        self.srd(44, 42, WS_SIZE)
        self.tagmake()
        e("s_barrier")
        self.stamp(1)
        e(f"s_lshl_b32 s14, s{sH1}, 14\ns_add_u32 s14, s14, {WS_QP}\ns_lshl_b32 s15, s{sJ}, 11\ns_add_u32 s15, s15, s14")
        e(f"v_mov_b32 v57, s{sT}\nv_mov_b32 v59, s{sT}")
        E = (44, 48)
        for mat, (X, W, toks, tX) in enumerate(((16, WQ, tq, tx[0]), (24, WB, tb, tx[1]))):
            acc = 52
            e.wait_vm(tX)
            self.expand4(E[0], X, 0)
            for i in range(16):
                if i + 1 < 16: self.expand4(E[(i + 1) & 1], X + ((i + 1) >> 1), (i + 1) & 1)
                e.wait_vm(toks[i])
                e(f"v_mfma_f32_16x16x32_bf16 {vr(acc)}, {vr(E[i&1])}, {vr(W+4*i)}, {'0' if i == 0 else vr(acc)}")
            e(f"v_cndmask_b32 v56, v{acc}, v{acc+2}, {sHI}\nv_cndmask_b32 v58, v{acc+1}, v{acc+3}, {sHI}")
            e.vmem(f"buffer_store_dwordx4 v[56:59], v10, {WS}, s15 offen offset:{1024*mat} sc1")
            if mat == 0: self.stamp(2)
        QF = [16, 24, 96, 104]
        for b in QF:
            for r in range(8): e(f"v_mov_b32 v{b+r}, 0")
        e(f"v_and_b32 v11, 1, v{vG}\nv_lshlrev_b32 v11, 3, v11\nv_lshl_add_u32 v11, v{vC}, 4, v11\nv_lshrrev_b32 v12, 1, v{vG}\nv_lshl_add_u32 v11, v12, 2, v11")
        e(f"v_bfe_u32 v12, v{vL}, 1, 1\nv_lshlrev_b32 v12, 6, v12\nv_lshl_add_u32 v12, v{vG}, 4, v12")
        e(f"v_add_u32 v13, {L_LQ}, v11\nv_add_u32 v14, {L_LQ}, v12")
        def gat(mat):
            def f():
                for jj in range(8):
                    if jj % 2 == 0: e(f"s_add_u32 s12, s14, {jj*2048}")
                    e.vmem(f"buffer_load_dwordx4 {vr(WQ+4*jj)}, v10, {WS}, s12 offen offset:{(jj&1)*2048+1024*mat} sc1")
            return f
        tags = [WQ + 4 * jj + k for jj in range(8) for k in (1, 3)]
        def sum8():
            for jj in range(1, 8):
                e(f"v_add_f32 v{WQ}, v{WQ}, v{WQ+4*jj}\nv_add_f32 v{WQ+2}, v{WQ+2}, v{WQ+4*jj+2}")
        self.poll(gat(0), tags, 60, "gqa")
        self.stamp(3)
        sum8()
        e(f"v_cvt_pk_bf16_f32 v60, v{WQ}, v{WQ+2}")
        e.ds(f"ds_write_b32 v13, v60")
        e("s_waitcnt lgkmcnt(0)")
        for t in range(4):
            m = 0x000f000f << (4 * t)
            self.exec_mask(m, m)
            e.ds(f"ds_read_b128 {vr(QF[t])}, v14")
            e.ds(f"ds_read_b128 {vr(QF[t]+4)}, v14 offset:128")
        self.exec_full()
        e("s_waitcnt lgkmcnt(0)")
        X, Y = 44, 48
        for t in range(4):
            for T in range(2):
                for ks in range(2):
                    acc = (X, Y)[T]
                    first = (t == 0 and ks == 0)
                    e(f"v_mfma_f32_16x16x32_bf16 {vr(acc)}, {vr(WU+16*t+8*T+4*ks)}, {vr(QF[t]+4*ks)}, {'0' if first else vr(acc)}")
        e(f"s_lshl_b32 s12, s{sH1}, 11\ns_lshl_b32 s15, s{sJ}, 8\ns_add_u32 s12, s12, s15\ns_add_u32 s12, s12, {WS_QABS}")
        e(f"v_lshrrev_b32 v15, 2, v{vC}\nv_lshlrev_b32 v15, 6, v15\nv_lshl_add_u32 v15, v{vG}, 4, v15")
        self.fixup(X, Y, 52)
        e("v_cvt_pk_bf16_f32 v56, v52, v53\nv_cvt_pk_bf16_f32 v58, v54, v55")
        self.exec_mask(0x11111111, 0x11111111)
        e.vmem(f"buffer_store_dwordx4 v[56:59], v15, {WS}, s12 offen sc1")
        self.exec_full()
        self.stamp(4)
        e(f"s_cmp_lg_u32 s{sJ}, 0\ns_cbranch_scc1 L_p1done")
        self.poll(gat(1), tags, 60, "gqb")
        sum8()
        e(f"v_cvt_pk_bf16_f32 v56, v{WQ}, v{WQ+2}\nv_lshlrev_b32 v15, 1, v11\ns_lshl_b32 s12, s{sH1}, 9\ns_add_u32 s12, s12, {WS_QB}")
        e.vmem(f"buffer_store_dwordx2 v[56:57], v15, {WS}, s12 offen sc1")
        e.label("L_p1done")
        e(f"s_cmp_lt_u32 s{sSLOT}, 8\ns_cbranch_scc1 L_actrl")

    def fixup(self, X, Y, S):
        e = self.e
        for r in range(4): e(f"v_permlane32_swap_b32 v{X+r}, v{Y+r}")
        for r in range(4): e(f"v_mov_b32_dpp v{S+r}, v{X+r} quad_perm:[0,1,0,1] row_mask:0xf bank_mask:0xf")
        for r in range(4): e(f"v_add_f32_dpp v{S+r}, v{Y+r}, v{S+r} quad_perm:[2,3,2,3] row_mask:0xf bank_mask:0xf")

    def b_ids(self):
        e = self.e
        e(f"s_sub_u32 s64, s{sSLOT}, 8\ns_lshr_b32 s65, s64, 2\ns_lshl_b32 s3, s{sX}, 2\ns_add_u32 s65, s65, s3\ns_and_b32 s66, s64, 3")
        e(f"v_lshl_add_u32 v6, v8, 8, v7")
        e(f"v_lshlrev_b32 v9, 10, v{vG}\nv_lshl_add_u32 v9, v{vC}, 4, v9")
        e(f"s_lshl_b32 s3, s65, 7\ns_and_b32 s12, s{sW}, 3\ns_lshl_b32 s12, s12, 5\ns_add_u32 s3, s3, s12\ns_lshr_b32 s12, s{sW}, 2\ns_lshl_b32 s12, s12, 2\ns_add_u32 s3, s3, s12")
        e(f"s_lshl_b32 s3, s3, 10\ns_lshl_b32 s12, s66, 8\ns_add_u32 s3, s3, s12")
        e(f"v_lshlrev_b32 v4, 13, v{vG}\nv_lshl_add_u32 v4, v{vC}, 4, v4\nv_add_u32 v4, s3, v4")
        self.srd(48, 30, 1 << 25); self.srd(52, 32, 1 << 25); self.srd(56, 36, 1 << 22)
        e("s_cmp_lt_u32 s64, 16\ns_cselect_b32 s58, s58, 0")
    def b_kload(self, KR, t, n):
        return self.e.vmem(f"buffer_load_dwordx4 {vr(KR+16*t+4*n)}, v6, s[48:51], s14 offen offset:{(n>>1)*2048+(n&1)*128} {self.p['NT']}")
    def b_vload(self, VR, t, n):
        return self.e.vmem(f"buffer_load_dwordx4 {vr(VR+16*t+4*n)}, v9, s[52:55], s15 offen offset:{n*256} {self.p['NT']}")
    def b_woload(self, KR, i):
        return self.e.vmem(f"buffer_load_dwordx4 {vr(self.WO[i])}, v4, s[56:59], 0 offen offset:{i*1024} {self.p['NT']}")
    def b_softmax(self, nt, KR, tokK, bias):
        e = self.e
        e(f"v_lshrrev_b32 v11, 2, v{vC}\nv_bfe_u32 v12, v{vL}, 1, 1\nv_lshlrev_b32 v12, 6, v12\nv_lshl_add_u32 v12, v{vG}, 4, v12\nv_lshl_add_u32 v12, v11, 8, v12")
        e(f"v_lshlrev_b32 v13, 5, v11\ns_lshl_b32 s3, s{sW}, 2\nv_add_u32 v14, s3, v13")
        e("s_barrier")
        self.stamp(5)
        e.ds(f"ds_read_b128 v[16:19], v12 offset:{LB_Q}")
        e.ds(f"ds_read_b128 v[20:23], v12 offset:{LB_Q+128}")
        e("s_waitcnt lgkmcnt(0)")
        XY = ((44, 48), (52, 56))
        for t in range(nt + 1):
            if t < nt:
                X, Y = XY[t & 1]
                e.wait_vm(tokK[t])
                b = KR + 16 * t
                e(f"v_mfma_f32_16x16x32_bf16 {vr(X)}, {vr(b)}, v[16:19], 0")
                e(f"v_mfma_f32_16x16x32_bf16 {vr(Y)}, {vr(b+8)}, v[16:19], 0")
                e(f"v_mfma_f32_16x16x32_bf16 {vr(X)}, {vr(b+4)}, v[20:23], {vr(X)}")
                e(f"v_mfma_f32_16x16x32_bf16 {vr(Y)}, {vr(b+12)}, v[20:23], {vr(Y)}")
            if t > 0:
                X, Y = XY[(t - 1) & 1]
                self.fixup(X, Y, KR + 16 * (t - 1))
        S = [KR + 16 * t + r for t in range(nt) for r in range(4)]
        e(f"v_max3_f32 v60, v{S[0]}, v{S[1]}, v{S[2]}")
        rest = S[3:]
        while len(rest) >= 2:
            e(f"v_max3_f32 v60, v60, v{rest[0]}, v{rest[1]}"); rest = rest[2:]
        if rest: e(f"v_max_f32 v60, v60, v{rest[0]}")
        if bias: e(f"v_add_f32 v60, {bias}, v60")
        self.allred_G([60], [61], "v_max_f32")
        self.exec_mask(0x1111, 0)
        e.ds(f"ds_write_b32 v14, v60 offset:{LB_MX}")
        self.exec_full()
        e("s_waitcnt lgkmcnt(0)\ns_barrier")
        e.ds(f"ds_read_b128 v[44:47], v13 offset:{LB_MX}")
        e.ds(f"ds_read_b128 v[48:51], v13 offset:{LB_MX+16}")
        e("s_waitcnt lgkmcnt(0)")
        e("v_max3_f32 v60, v44, v45, v46\nv_max3_f32 v60, v60, v47, v48\nv_max3_f32 v60, v60, v49, v50\nv_max_f32 v60, v60, v51")
        e(f"v_mul_f32 v62, {sCS}, v60")
        if bias: e(f"v_sub_f32 v61, {bias}, v62")
        else: e("v_sub_f32 v61, 0, v62")
        for s in S: e(f"v_fma_f32 v{s}, v{s}, {sCS}, v61")
        for s in S: e(f"v_exp_f32 v{s}, v{s}")
        e(f"v_add_f32 v63, v{S[0]}, v{S[1]}")
        for s in S[2:]: e(f"v_add_f32 v63, v63, v{s}")
        for t in range(nt):
            b = KR + 16 * t
            e(f"v_cvt_pk_bf16_f32 v{b+4}, v{b}, v{b+1}\nv_cvt_pk_bf16_f32 v{b+5}, v{b+2}, v{b+3}")
        self.allred_G([63], [61], "v_add_f32")
        self.exec_mask(0x1111, 0)
        e.ds(f"ds_write_b32 v14, v63 offset:{LB_LS}")
        self.exec_full()
        e("s_waitcnt lgkmcnt(0)\ns_barrier")
        self.stamp(6)
    def b_pv_prep(self, KR, n):
        t, i = n >> 2, n & 3
        E = 44 + 2 * (n & 3)
        for q in range(2): self.e(f"v_perm_b32 v{E+q}, v{KR+16*t+4+(i>>1)}, v{KR+16*t+4+(i>>1)}, v{SELA+2*(i&1)+q}")
    def b_pv_mma(self, VR, n):
        t, i = n >> 2, n & 3
        E = 44 + 2 * (n & 3)
        b = VR + 16 * t + 4 * i
        for h in range(2):
            acc = 24 + 4 * h
            self.e(f"v_mfma_f32_16x16x16_bf16 {vr(acc)}, v[{E}:{E+1}], v[{b+2*h}:{b+2*h+1}], {'0' if n == 0 else vr(acc)}")
    def b_owrite(self):
        e = self.e
        e(f"s_lshl_b32 s3, s{sW}, 11\nv_add_u32 v11, s3, v10")
        e.ds(f"ds_write_b128 v11, v[24:27] offset:{LB_R4}")
        e.ds(f"ds_write_b128 v11, v[28:31] offset:{LB_R4+1024}")
        e("s_waitcnt lgkmcnt(0)")
        e("s_branch L_btail")

    def b_ctrl(self):
        e = self.e
        KR, VR = 64, 160
        self.WO = [72, 88, 104, 120]
        self.b_ids()
        e("s_cselect_b32 s50, s50, 0\ns_cselect_b32 s54, s54, 0")
        e(f"s_cselect_b32 s61, 0, {f32(-1e30)}")
        e(f"s_lshl_b32 s14, s{sX}, 22\ns_add_u32 s3, s64, 1008\ns_lshl_b32 s3, s3, 12\ns_cmp_lt_u32 s64, 16\ns_cselect_b32 s3, s3, 0\ns_add_u32 s14, s14, s3\ns_mov_b32 s15, s14")
        for n in range(4): tk = self.b_kload(KR, 0, n)
        for n in range(4): self.b_vload(VR, 0, n)
        e(f"s_lshl_b32 s12, s{sX}, 11\ns_add_u32 s12, s12, {WS_QB}")
        def gq():
            for n in range(2): e.vmem(f"buffer_load_dwordx4 {vr(128+4*n)}, v10, {WS}, s12 offen offset:{1024*n} sc1")
        self.poll(gq, [129, 131, 133, 135], 60, "gqb2")
        e(f"v_mov_b32 v129, v130\nv_mov_b32 v133, v134\nv_lshlrev_b32 v11, 3, v{vL}")
        e.ds(f"ds_write_b64 v11, v[128:129] offset:{LB_Q}")
        e.ds(f"ds_write_b64 v11, v[132:133] offset:{LB_Q+512}")
        e("s_waitcnt lgkmcnt(0)")
        self.b_softmax(1, KR, [tk], "s61")
        e.ds(f"ds_read_b128 v[44:47], v13 offset:{LB_LS}")
        e.ds(f"ds_read_b128 v[48:51], v13 offset:{LB_LS+16}")
        e(f"s_lshl_b32 s12, s{sX}, 11\ns_lshl_b32 s3, s64, 4\ns_add_u32 s12, s12, s3\ns_add_u32 s12, s12, {WS_BML}")
        e(f"v_lshlrev_b32 v11, 4, v13\nv_mov_b32 v52, v62\nv_mov_b32 v53, s{sT}\nv_mov_b32 v55, s{sT}")
        e("s_waitcnt lgkmcnt(0)")
        e("v_add_f32 v54, v44, v45")
        for r in range(46, 52): e(f"v_add_f32 v54, v54, v{r}")
        self.exec_mask(0x1111, 0)
        e.vmem(f"buffer_store_dwordx4 v[52:55], v11, {WS}, s12 offen sc1")
        self.exec_full()
        for n in range(4):
            self.b_pv_prep(KR, n)
        for n in range(4):
            self.b_pv_mma(VR, n)
        e("s_cmp_lt_u32 s64, 16\ns_cbranch_scc0 L_bc_nod")
        for i in range(4): self.b_woload(KR, i)
        e(f"v_and_b32 v15, 31, v{vL}\nv_min_u32 v11, 23, v15\nv_lshlrev_b32 v11, 4, v11\ns_lshl_b32 s12, s65, 9\ns_add_u32 s12, s12, {WS_BML}")
        def gm(): e.vmem(f"buffer_load_dwordx4 v[52:55], v11, {WS}, s12 offen sc1")
        self.poll(gm, [53, 55], 60, "gml")
        e("v_mov_b32 v56, v52")
        self.rowred([56], "v_max_f32", (8, 4, 2, 1))
        self.allred_G([56], [57], "v_max_f32", steps=(16,))
        e("v_sub_f32 v52, v52, v56\nv_exp_f32 v52, v52\nv_cmp_gt_u32 vcc, 24, v15\nv_cndmask_b32 v52, 0, v52, vcc\nv_mul_f32 v54, v54, v52")
        self.rowred([54], "v_add_f32", (8, 4, 2, 1))
        self.allred_G([54], [57], "v_add_f32", steps=(16,))
        e("v_rcp_f32 v54, v54\nv_lshlrev_b32 v15, 2, v15\nv_mul_f32 v52, v52, v54")
        e.ds(f"ds_write_b32 v15, v52 offset:{LB_F}")
        e.label("L_bc_nod")
        self.b_owrite()

    def b_stream(self):
        e, p = self.e, self.p
        KR, VR, NT_ = 64, 160, 6
        self.WO = [72, 88, 104, 120]
        self.b_ids()
        e(f"s_mul_i32 s3, s64, 7\ns_add_u32 s3, s3, s{sW}\ns_mul_i32 s3, s3, {6*4096}\ns_lshl_b32 s14, s{sX}, 22\ns_add_u32 s14, s14, s3\ns_mov_b32 s15, s14")
        self.srd(44, 42, WS_SIZE)
        self.tagmake()
        e("s_barrier")
        self.stamp(1)
        D = p["D_B"]
        tok = []
        def issue(n, throttle=True):
            if throttle and n >= D: e.wait_vm(tok[n - D])
            if n < 24:
                if n and n % 4 == 0: e("s_addk_i32 s14, 0x1000")
                tok.append(self.b_kload(KR, n >> 2, n & 3))
            elif n < 48:
                m = n - 24
                if m and m % 4 == 0: e("s_addk_i32 s15, 0x1000")
                tok.append(self.b_vload(VR, m >> 2, m & 3))
            else:
                tok.append(self.b_woload(KR, n - 48))
        n = 0
        while n < p["N1"]: issue(n); n += 1
        for _ in range(p["BURST"]): issue(n, False); n += 1
        self.b_softmax(NT_, KR, [tok[4 * t + 3] for t in range(NT_)], None)
        done = 0
        while n < 52:
            issue(n)
            landed = min(n - D - 24 + 1, 24)
            k = 0
            while done < landed and k < p["PVK"]:
                self.b_pv_prep(KR, done); self.b_pv_mma(VR, done); done += 1; k += 1
            n += 1
        while done < 24:
            self.b_pv_prep(KR, done)
            e.wait_vm(tok[24 + done])
            self.b_pv_mma(VR, done); done += 1
        self.stamp(7)
        self.b_owrite()

    def b_tail(self):
        e = self.e
        e.label("L_btail")
        e("s_barrier")
        e(f"s_cmp_lt_u32 s{sW}, 2\ns_cbranch_scc0 L_bt_nored")
        e(f"s_lshl_b32 s3, s{sW}, 10\nv_add_u32 v11, s3, v10")
        tk = [e.ds(f"ds_read_b128 {vr(128+4*w)}, v11 offset:{LB_R4+2048*w}") for w in range(8)]
        e(f"s_mul_i32 s12, s{sX}, {4*24*512}\ns_lshl_b32 s3, s64, 9\ns_add_u32 s12, s12, s3\ns_lshl_b32 s3, s{sW}, 8\ns_add_u32 s12, s12, s3\ns_add_u32 s12, s12, {WS_BO}")
        e(f"v_mul_u32_u24 v12, {24*512}, v{vG}\nv_lshl_add_u32 v12, v{vC}, 4, v12\nv_mov_b32 v53, s{sT}\nv_mov_b32 v55, s{sT}")
        for w in range(1, 8):
            e.wait_lg(tk[w])
            e(f"v_pk_add_f32 v[128:129], v[128:129], v[{128+4*w}:{129+4*w}]\nv_pk_add_f32 v[130:131], v[130:131], v[{130+4*w}:{131+4*w}]")
        e("v_cvt_pk_bf16_f32 v52, v128, v129\nv_cvt_pk_bf16_f32 v54, v130, v131")
        e.vmem(f"buffer_store_dwordx4 v[52:55], v12, {WS}, s12 offen sc1")
        e.label("L_bt_nored")
        self.stamp(8)
        e("s_cmp_lt_u32 s64, 16\ns_cbranch_scc1 L_bt_duty")
        self.exit()
        e.label("L_bt_duty")
        e(f"v_lshlrev_b32 v11, 2, v{vC}")
        e.ds(f"ds_read_b32 v60, v11 offset:{LB_F}")
        e.ds(f"ds_read_b32 v61, v11 offset:{LB_F+64}")
        e(f"s_mul_i32 s12, s65, {24*512}\ns_lshl_b32 s3, s{sW}, 6\ns_add_u32 s12, s12, s3\ns_add_u32 s12, s12, {WS_BO}")
        e(f"v_lshlrev_b32 v12, 9, v{vC}\nv_lshl_add_u32 v12, v{vG}, 4, v12\nv_lshlrev_b32 v13, 9, v8\nv_lshl_add_u32 v13, v{vG}, 4, v13\nv_add_u32 v13, {16*512}, v13")
        def g():
            e.vmem(f"buffer_load_dwordx4 v[128:131], v12, {WS}, s12 offen sc1")
            e.vmem(f"buffer_load_dwordx4 v[132:135], v13, {WS}, s12 offen sc1")
        self.poll(g, [129, 131, 133, 135], 62, "gbo")
        e("s_waitcnt lgkmcnt(0)")
        for k, (src, f) in enumerate(((128, 60), (132, 61))):
            e(f"v_lshlrev_b32 v136, 16, v{src}\nv_and_b32 v137, 0xffff0000, v{src}\nv_lshlrev_b32 v138, 16, v{src+2}\nv_and_b32 v139, 0xffff0000, v{src+2}")
            for i in range(4):
                e(f"v_mul_f32 v{140+i}, v{f}, v{136+i}" if k == 0 else f"v_fmac_f32 v{140+i}, v{f}, v{136+i}")
        self.rowred([140, 141, 142, 143], "v_add_f32", (8, 4, 2, 1))
        e("v_cvt_pk_bf16_f32 v144, v140, v141\nv_cvt_pk_bf16_f32 v145, v142, v143")
        for i in range(4): self.expand4(148 + 4 * i, 144 + (i >> 1), i & 1)
        for i in range(4):
            e(f"v_mfma_f32_16x16x32_bf16 v[24:27], {vr(148+4*i)}, {vr(self.WO[i])}, {'0' if i == 0 else 'v[24:27]'}")
        e(f"s_lshl_b32 s3, s{sW}, 10\nv_add_u32 v11, s3, v10")
        e.ds(f"ds_write_b128 v11, v[24:27] offset:{LB_R5}")
        e("s_waitcnt lgkmcnt(0)\ns_barrier")
        e(f"s_cmp_eq_u32 s{sW}, 0\ns_cbranch_scc1 L_bt_fin")
        self.exit()
        e.label("L_bt_fin")
        e(f"v_and_b32 v11, 31, v{vL}\nv_lshlrev_b32 v11, 4, v11\nv_lshrrev_b32 v12, 5, v{vL}\nv_lshl_add_u32 v11, v12, 12, v11")
        tk = [e.ds(f"ds_read_b128 {vr(128+4*w)}, v11 offset:{LB_R5+1024*w}") for w in range(4)]
        e(f"s_lshl_b32 s12, s65, 12\ns_lshl_b32 s3, s66, 10\ns_add_u32 s12, s12, s3\ns_add_u32 s12, s12, {WS_OUTB}")
        e(f"v_and_b32 v13, 1, v{vG}\nv_lshlrev_b32 v13, 5, v13\nv_lshl_add_u32 v13, v{vC}, 6, v13\nv_lshl_add_u32 v13, v12, 4, v13\nv_mov_b32 v53, s{sT}\nv_mov_b32 v55, s{sT}")
        for w in range(1, 4):
            e.wait_lg(tk[w])
            e(f"v_pk_add_f32 v[128:129], v[128:129], v[{128+4*w}:{129+4*w}]\nv_pk_add_f32 v[130:131], v[130:131], v[{130+4*w}:{131+4*w}]")
        e("v_permlane32_swap_b32 v128, v130\nv_permlane32_swap_b32 v129, v131")
        e("v_add_f32 v52, v128, v130\nv_add_f32 v54, v129, v131")
        e.vmem(f"buffer_store_dwordx4 v[52:55], v13, {WS}, s12 offen sc1")
        self.stamp(9)
        e(f"s_lshl_b32 s3, s66, 7\ns_lshl_b32 s14, s65, 2\ns_add_u32 s14, s14, s3\ns_lshl_b32 s12, s14, 3\ns_add_u32 s12, s12, {WS_OUTB}")
        e(f"v_lshrrev_b32 v11, 1, v{vL}\nv_lshlrev_b32 v11, 12, v11\nv_and_b32 v12, 1, v{vL}\nv_lshl_add_u32 v11, v12, 4, v11")
        self.srd(48, 38, 2048)
        e(f"s_lshl_b32 s14, s14, 1\ns_add_u32 s14, s14, 1024\nv_lshlrev_b32 v12, 2, v12")
        def g2(): e.vmem(f"buffer_load_dwordx4 v[128:131], v11, {WS}, s12 offen sc1")
        self.poll(g2, [129, 131], 62, "gob")
        self.rowred([128, 130], "v_add_f32", (8, 4, 2))
        self.allred_G([128, 130], [132, 133], "v_add_f32")
        e("v_cvt_pk_bf16_f32 v128, v128, v130")
        self.exec_mask(3, 0)
        e.vmem("buffer_store_dword v128, v12, s[48:51], s14 offen")
        if self.p["TIMING"]: self.exec_full(); e("s_waitcnt vmcnt(0)")
        self.exit()

    def a_setup(self):
        e = self.e
        e(f"s_lshl_b32 s64, s{sSLOT}, 3\ns_add_u32 s64, s64, s{sX}\ns_lshr_b32 s65, s64, 1\ns_and_b32 s66, s64, 1")
        self.srd(48, 18, 1 << 24)
        e(f"s_lshl_b32 s14, s64, 18\ns_lshl_b32 s3, s{sW}, 15\ns_add_u32 s14, s14, s3")
        e(f"s_lshl_b32 s15, s{sW}, 13\ns_add_u32 s15, s15, {WS_QABS}")
        e(f"s_lshl_b32 s67, s{sW}, 14")
        e(f"v_and_b32 v11, 3, v{vC}\nv_lshlrev_b32 v11, 2, v11")
        e(f"v_lshrrev_b32 v12, 2, v{vC}\nv_and_b32 v13, 1, v12\nv_or_b32 v11, v11, v13")
        e(f"v_xor_b32 v12, v12, v{vC}\nv_and_b32 v12, 2, v12\nv_or_b32 v11, v11, v12")
        e(f"v_lshlrev_b32 v11, 4, v11\nv_lshl_add_u32 v11, v{vG}, 8, v11\nv_lshl_add_u32 v11, v{vC}, 10, v11")
        e(f"v_add_u32 v6, s67, v11\nv_add_u32 v7, {LA_Q}, v11")
        e(f"v_add_u32 v9, s67, v10")
    def a_issue(self, depthf):
        e, p = self.e, self.p
        T1, T0, QG = 64, 128, 192
        seq = [("t1", i) for i in range(16)] + [("t0", i) for i in range(16)]
        q = p["QPOS"]
        seq = seq[:q] + [("q", i) for i in range(8)] + seq[q:]
        tok, done = [], 0
        tokof = {}
        def landed_action(it):
            kind, i = it
            if kind == "t1":
                e(f"v_xor_b32 v12, {16*fswz(i)}, v9")
                e.ds(f"ds_write_b128 v12, {vr(T1+4*i)} offset:{1024*i}")
                if i == 15:
                    e("s_waitcnt lgkmcnt(0)")
                    for ks in range(16):
                        e(f"v_xor_b32 v12, {16*ks}, v6")
                        e.ds(f"ds_read_b128 {vr(T1+4*ks)}, v12")
            elif kind == "t0":
                e(f"v_xor_b32 v12, {16*fswz(i)}, v9")
                e.ds(f"ds_write_b128 v12, {vr(T0+4*i)} offset:{1024*i}")
        def qload(i):
            if i % 4 == 0: e(f"s_add_u32 s12, s15, {1024*i}")
            return e.vmem(f"buffer_load_dwordx4 {vr(QG+4*i)}, v10, {WS}, s12 offen offset:{1024*(i&3)} sc1")
        for n, it in enumerate(seq):
            D = depthf(n)
            if n >= D:
                e.wait_vm(tok[n - D])
            kind, i = it
            if kind == "q":
                t = qload(i)
            else:
                if i % 4 == 0: e(f"s_add_u32 s3, s14, {(16384 if kind == 't1' else 0) + 1024*i}")
                elif seq[n-1][0] == "q": e(f"s_add_u32 s3, s14, {(16384 if kind == 't1' else 0) + 1024*(i & ~3)}")
                t = e.vmem(f"buffer_load_dwordx4 {vr((T1 if kind == 't1' else T0)+4*i)}, v10, s[48:51], s3 offen offset:{1024*(i&3)} {p['NT']}")
            tok.append(t); tokof[it] = t
            while done <= n - D and done < len(seq) and n >= D:
                landed_action(seq[done]); done += 1
        e.wait_vm(tokof[("q", 7)])
        while done < len(seq) and tok[done] <= tokof[("q", 7)]:
            landed_action(seq[done]); done += 1
        self.stamp(2)
        tags = [QG + 4 * i + k for i in range(8) for k in (1, 3)]
        self.tagcheck(tags, 60)
        R, B = self.lab("aqr"), self.lab("aqb")
        e(f"s_cbranch_vccnz {R}")
        e.label(B)
        def ool():
            e.label(R)
            self.poll(lambda: [qload(i) for i in range(8)], tags, 60, "aqp")
            e(f"s_branch {B}")
        self.ool.append(ool)
        self.stamp(3)
        e(f"v_lshlrev_b32 v13, 3, v{vL}\ns_lshl_b32 s3, s{sW}, 12\ns_add_u32 s3, s3, {LA_Q}\nv_add_u32 v13, s3, v13")
        e(f"s_and_b32 s3, s{sW}, 3\ns_lshl_b32 s3, s3, 4\nv_xor_b32 v13, s3, v13")
        for i in range(8):
            e(f"v_mov_b32 v{QG+4*i+1}, v{QG+4*i+2}")
            if i % 2 == 0: e(f"v_xor_b32 v12, {16*fswz(i>>1)}, v13")
            e.ds(f"ds_write_b64 v12, v[{QG+4*i}:{QG+4*i+1}] offset:{1024*(i>>1)+512*(i&1)}")
        while done < len(seq):
            e.wait_vm(tok[done]); landed_action(seq[done]); done += 1
        e("s_waitcnt lgkmcnt(0)")

    def a_wloads(self):
        e, nt = self.e, self.p["NT"]
        UV, WO = 160, 192
        self.srd(52, 24, 1 << 22); self.srd(56, 26, 1 << 22)
        e(f"s_lshl_b32 s3, s{sW}, 19\ns_lshl_b32 s12, s65, 8\ns_add_u32 s3, s3, s12\ns_lshl_b32 s12, s66, 7\ns_add_u32 s3, s3, s12")
        e(f"v_bfe_u32 v14, v{vL}, 3, 1\nv_lshlrev_b32 v14, 16, v14\nv_lshl_add_u32 v14, v{vG}, 17, v14\nv_lshl_add_u32 v14, v8, 4, v14")
        self.tuv, self.two = [], []
        for i in range(8):
            self.tuv.append(e.vmem(f"buffer_load_dwordx4 {vr(UV+4*i)}, v14, s[52:55], s3 offen {nt}"))
            if i < 7: e("s_addk_i32 s3, 0x2000")
        e(f"s_lshl_b32 s3, s64, 16\ns_lshr_b32 s12, s{sW}, 2\ns_lshl_b32 s12, s12, 15\ns_add_u32 s3, s3, s12\ns_and_b32 s12, s{sW}, 3\ns_lshl_b32 s12, s12, 8\ns_add_u32 s3, s3, s12")
        e(f"v_lshlrev_b32 v15, 13, v{vG}\nv_lshl_add_u32 v15, v{vC}, 4, v15")
        for i in range(8):
            if i == 4: e("s_addk_i32 s3, 0x1000")
            self.two.append(e.vmem(f"buffer_load_dwordx4 {vr(WO+4*i)}, v15, s[56:59], s3 offen offset:{1024*(i&3)} {nt}"))

    def a_main(self):
        e, p = self.e, self.p
        T1 = 64
        FR = (224, 236, 44)
        e.label("L_amain")
        e("s_barrier")
        self.stamp(4)
        e(f"s_or_b32 s3, s64, s{sW}\ns_cmp_eq_u32 s3, 0\ns_cbranch_scc0 L_noep")
        e(f"v_mov_b32 v12, s{sT}\nv_mov_b32 v13, 0")
        self.exec_mask(1, 0)
        e(f"buffer_store_dword v12, v13, {WS}, 0 offen sc1")
        self.exec_full()
        e.label("L_noep")
        if p["WPOS"] == "qk": self.a_wloads()
        def rd(ks):
            f = FR[ks % 3]
            e(f"v_xor_b32 v12, {16*ks}, v6\nv_xor_b32 v13, {16*ks}, v7")
            e.ds(f"ds_read_b128 {vr(f)}, v13")
            e.ds(f"ds_read_b128 {vr(f+4)}, v13 offset:16384")
            return e.ds(f"ds_read_b128 {vr(f+8)}, v12")
        tk = {0: rd(0), 1: rd(1)}
        for ks in range(16):
            f = FR[ks % 3]
            e.wait_lg(tk[ks])
            c = lambda r: "0" if ks == 0 else vr(r)
            e(f"v_mfma_f32_16x16x32_bf16 {vr(24)}, {vr(T1+4*ks)}, {vr(f)}, {c(24)}")
            e(f"v_mfma_f32_16x16x32_bf16 {vr(28)}, {vr(T1+4*ks)}, {vr(f+4)}, {c(28)}")
            if ks + 2 < 16: tk[ks + 2] = rd(ks + 2)
            e(f"v_mfma_f32_16x16x32_bf16 {vr(16)}, {vr(f+8)}, {vr(f)}, {c(16)}")
            e(f"v_mfma_f32_16x16x32_bf16 {vr(20)}, {vr(f+8)}, {vr(f+4)}, {c(20)}")
        e(f"v_lshlrev_b32 v13, 5, v{vC}\ns_lshl_b32 s3, s{sW}, 2\nv_add_u32 v13, {LA_MX}, v13\nv_add_u32 v12, s3, v13")
        e("s_barrier")
        for hh in range(2):
            a, b = 16 + 4 * hh, 24 + 4 * hh
            e(f"v_max3_f32 v{56+hh}, v{a}, v{a+1}, v{a+2}\nv_max3_f32 v{56+hh}, v{56+hh}, v{a+3}, v{b}\nv_max3_f32 v{56+hh}, v{56+hh}, v{b+1}, v{b+2}\nv_max_f32 v{56+hh}, v{56+hh}, v{b+3}")
        self.allred_G([56, 57], [58, 59], "v_max_f32")
        self.exec_mask(0xffff, 0)
        e.ds("ds_write_b32 v12, v56")
        e.ds("ds_write_b32 v12, v57 offset:512")
        self.exec_full()
        e("s_waitcnt lgkmcnt(0)\ns_barrier")
        for hh in range(2):
            e.ds(f"ds_read_b128 {vr(224+8*hh)}, v13 offset:{512*hh}")
            e.ds(f"ds_read_b128 {vr(228+8*hh)}, v13 offset:{512*hh+16}")
        e(f"v_lshrrev_b32 v14, 1, v{vG}\ns_lshl_b32 s3, s{sW}, 1\nv_add_u32 v14, s3, v14\nv_xor_b32 v14, v14, v{vC}\nv_lshlrev_b32 v14, 4, v14\nv_lshl_add_u32 v14, v{vC}, 9, v14")
        e(f"v_and_b32 v15, 1, v{vG}\nv_lshl_add_u32 v14, v15, 3, v14\nv_add_u32 v14, {LA_P}, v14")
        e("s_waitcnt lgkmcnt(0)")
        for hh in range(2):
            m = 224 + 8 * hh
            e(f"v_max3_f32 v{56+hh}, v{m}, v{m+1}, v{m+2}\nv_max3_f32 v{56+hh}, v{56+hh}, v{m+3}, v{m+4}\nv_max3_f32 v{56+hh}, v{56+hh}, v{m+5}, v{m+6}\nv_max_f32 v{56+hh}, v{56+hh}, v{m+7}")
            e(f"v_mul_f32 v{56+hh}, {sCS}, v{56+hh}")
        for T in range(2):
            for hh in range(2):
                for r in range(4):
                    s = 16 + 8 * T + 4 * hh + r
                    e(f"v_fma_f32 v{s}, v{s}, {sCS}, -v{56+hh}")
        for s in range(16, 32): e(f"v_exp_f32 v{s}, v{s}")
        for hh in range(2):
            a, b = 16 + 4 * hh, 24 + 4 * hh
            e(f"v_add_f32 v{58+hh}, v{a}, v{a+1}")
            for s in (a + 2, a + 3, b, b + 1, b + 2, b + 3): e(f"v_add_f32 v{58+hh}, v{58+hh}, v{s}")
        for T in range(2):
            for hh in range(2):
                s = 16 + 8 * T + 4 * hh
                e(f"v_cvt_pk_bf16_f32 v{s}, v{s}, v{s+1}\nv_cvt_pk_bf16_f32 v{s+1}, v{s+2}, v{s+3}")
                e.ds(f"ds_write_b64 v14, v[{s}:{s+1}] offset:{256*T+8192*hh}")
        self.allred_G([58, 59], [56, 57], "v_add_f32")
        self.exec_mask(0xffff, 0)
        e.ds(f"ds_write_b32 v12, v58 offset:{LA_LS-LA_MX}")
        e.ds(f"ds_write_b32 v12, v59 offset:{LA_LS-LA_MX+512}")
        self.exec_full()
        e(f"v_and_b32 v21, 31, v{vL}\nv_lshrrev_b32 v22, 5, v{vL}")
        e(f"v_xor_b32 v20, v22, v{vC}\nv_lshlrev_b32 v20, 4, v20\nv_lshl_add_u32 v20, v21, 9, v20\nv_add_u32 v20, {LA_P}, v20")
        e(f"v_bfe_u32 v23, v{vL}, 2, 2\nv_lshlrev_b32 v24, 2, v23\nv_lshrrev_b32 v25, 1, v23\nv_xor_b32 v25, v25, v22\nv_lshl_add_u32 v24, v25, 1, v24")
        e(f"v_and_b32 v25, 1, v{vG}\nv_bfe_u32 v26, v{vL}, 1, 1\nv_lshl_add_u32 v25, v25, 1, v26\ns_and_b32 s3, s{sW}, 1\ns_lshl_b32 s3, s3, 3\nv_add_u32 v25, s3, v25\nv_xor_b32 v24, v24, v25")
        e(f"v_lshlrev_b32 v24, 4, v24\nv_and_b32 v26, 1, v{vL}\nv_lshl_add_u32 v24, v26, 3, v24\nv_lshl_add_u32 v24, v23, 10, v24\nv_lshl_add_u32 v24, v22, 13, v24")
        e(f"s_lshr_b32 s3, s{sW}, 1\ns_lshl_b32 s3, s3, 8\nv_add_u32 v16, s3, v24")
        e("v_xor_b32 v17, 16, v16\nv_add_u32 v17, 0x1000, v17\nv_xor_b32 v18, 64, v16\nv_xor_b32 v19, 64, v17")
        e("s_waitcnt lgkmcnt(0)\ns_barrier")
        self.stamp(5)
        ACC = (128, 144)
        for R in range(2):
            def rdp(n):
                f = FR[n % 3]
                if n == 4:
                    for k in range(16, 20): e(f"v_add_u32 v{k}, 0x10000, v{k}")
                e(f"v_xor_b32 v12, {32*n}, v20")
                e.ds(f"ds_read_b128 {vr(f)}, v12 offset:{256*R}")
                for t in range(2):
                    for nn in range(2):
                        tkk = e.ds(f"ds_read_b64_tr_b16 v[{f+4+4*t+2*nn}:{f+5+4*t+2*nn}], v{16+2*t+nn} offset:{16384*(n&3)}")
                return tkk
            tk = {0: rdp(0), 1: rdp(1)}
            for n in range(8):
                f = FR[n % 3]
                e.wait_lg(tk[n])
                first = (R == 0 and n == 0)
                e(f"v_mfma_f32_32x32x16_bf16 {vr(ACC[0],16)}, {vr(f+4)}, {vr(f)}, {'0' if first else vr(ACC[0],16)}")
                if n + 2 < 8: tk[n + 2] = rdp(n + 2)
                e(f"v_mfma_f32_32x32x16_bf16 {vr(ACC[1],16)}, {vr(f+8)}, {vr(f)}, {'0' if first else vr(ACC[1],16)}")
            e("s_barrier")
            if R == 0:
                for ks in range(16):
                    e(f"v_xor_b32 v12, {16*ks}, v6")
                    e.ds(f"ds_write_b128 v12, {vr(T1+4*ks)}")
                for k in range(16, 20): e(f"v_subrev_u32 v{k}, 0x10000, v{k}")
                e("s_waitcnt lgkmcnt(0)\ns_barrier")
        if p["WPOS"] == "pv": self.a_wloads()
        e(f"v_and_b32 v13, 7, v21\nv_lshlrev_b32 v13, 4, v13\nv_lshl_add_u32 v13, v21, 10, v13\nv_lshl_add_u32 v13, v22, 3, v13\ns_lshl_b32 s3, s{sW}, 7\nv_add_u32 v13, s3, v13")
        for t in range(2):
            for q in range(4):
                a = ACC[t] + 4 * q
                e(f"v_cvt_pk_bf16_f32 v{a}, v{a}, v{a+1}\nv_cvt_pk_bf16_f32 v{a+1}, v{a+2}, v{a+3}\nv_xor_b32 v12, {16*(4*t+q)}, v13")
                e.ds(f"ds_write_b64 v12, v[{a}:{a+1}]")
        e(f"s_and_b32 s3, s{sW}, 1\ns_lshl_b32 s3, s3, 6\nv_xor_b32 v13, s3, v10\ns_lshl_b32 s3, s{sW}, 12\nv_add_u32 v13, s3, v13")
        e(f"s_lshl_b32 s12, s{sW}, 18\ns_lshl_b32 s3, s64, 10\ns_add_u32 s12, s12, s3\ns_add_u32 s12, s12, {WS_AO}\ns_mov_b32 s15, 0x10000")
        e("s_waitcnt lgkmcnt(0)\ns_barrier")
        tk = []
        for i in range(4):
            e(f"v_xor_b32 v12, {16*i}, v13")
            tk.append(e.ds(f"ds_read_b128 {vr(64+4*i)}, v12 offset:{1024*i}"))
        for i in range(4):
            e.wait_lg(tk[i])
            e.vmem(f"buffer_store_dwordx4 {vr(64+4*i)}, v10, {WS}, s12 offen sc1")
            if i < 3: e("s_add_u32 s12, s12, s15")
        e("s_waitcnt vmcnt(0)\ns_barrier")
        self.stamp(6)
        if p["WPOS"] == "ao": self.a_wloads()
        e(f"s_cmp_eq_u32 s{sW}, 0\ns_cbranch_scc0 L_at_f")
        e(f"v_lshlrev_b32 v12, 5, v21\nv_add_u32 v12, {LA_MX}, v12")
        for k in range(2):
            e.ds(f"ds_read_b128 {vr(64+8*k)}, v12 offset:{1024*k}")
            e.ds(f"ds_read_b128 {vr(68+8*k)}, v12 offset:{1024*k+16}")
        e(f"v_lshlrev_b32 v13, 10, v21\ns_lshl_b32 s12, s64, 4\ns_add_u32 s12, s12, {WS_AML}\nv_mov_b32 v53, s{sT}\nv_mov_b32 v55, s{sT}")
        e("s_waitcnt lgkmcnt(0)")
        e("v_max3_f32 v52, v64, v65, v66\nv_max3_f32 v52, v52, v67, v68\nv_max3_f32 v52, v52, v69, v70\nv_max_f32 v52, v52, v71")
        e(f"v_mul_f32 v52, {sCS}, v52\nv_add_f32 v54, v72, v73")
        for r in range(74, 80): e(f"v_add_f32 v54, v54, v{r}")
        e("s_mov_b32 exec_hi, 0")
        e(f"buffer_store_dwordx4 v[52:55], v13, {WS}, s12 offen sc1")
        self.exec_full()
        e(f"s_lshl_b32 s12, s65, 10\ns_add_u32 s12, s12, {WS_AML}")
        self.poll(lambda: e(f"buffer_load_dwordx4 v[64:67], v10, {WS}, s12 offen sc1"), [65, 67], 60, "gaml")
        e("v_mov_b32 v56, v64")
        self.rowred([56], "v_max_f32", (8, 4, 2, 1))
        self.allred_G([56], [57], "v_max_f32")
        e("v_sub_f32 v64, v64, v56\nv_exp_f32 v64, v64\nv_mul_f32 v66, v66, v64")
        self.rowred([66], "v_add_f32", (8, 4, 2, 1))
        self.allred_G([66], [57], "v_add_f32")
        e("v_rcp_f32 v66, v66\nv_mul_f32 v64, v64, v66\nv_cvt_pk_bf16_f32 v65, v64, v64\nv_and_b32 v66, 0xffff0000, v65\nv_sub_f32 v66, v64, v66\nv_cvt_pk_bf16_f32 v66, v66, v66")
        e(f"v_lshlrev_b32 v12, 1, v{vL}")
        e.ds(f"ds_write_b16 v12, v65 offset:{LA_F}")
        e.ds(f"ds_write_b16 v12, v66 offset:{LA_F+128}")
        e("s_waitcnt lgkmcnt(0)")
        e.label("L_at_f")
        e(f"s_lshl_b32 s12, s65, 16\ns_lshr_b32 s3, s{sW}, 2\ns_lshl_b32 s3, s3, 15\ns_add_u32 s12, s12, s3\ns_and_b32 s3, s{sW}, 3\ns_lshl_b32 s3, s3, 8\ns_add_u32 s12, s12, s3\ns_add_u32 s12, s12, {WS_AO}")
        e(f"v_lshlrev_b32 v15, 13, v{vG}\nv_lshl_add_u32 v15, v{vC}, 4, v15")
        e(f"v_bfe_u32 v16, v{vL}, 3, 1\nv_lshlrev_b32 v17, 7, v16\nv_lshl_add_u32 v17, v{vG}, 4, v17\ns_lshr_b32 s3, s{sW}, 2\ns_lshl_b32 s3, s3, 6\nv_add_u32 v17, s3, v17")
        e(f"s_lshl_b32 s3, s{sW}, 10\nv_add_u32 v18, s3, v10")
        e("s_barrier")
        self.stamp(7)
        tk = []
        for i in range(8):
            if i == 4: e("s_addk_i32 s12, 0x1000")
            tk.append(e.vmem(f"buffer_load_dwordx4 {vr(64+4*i)}, v15, {WS}, s12 offen offset:{1024*(i&3)} sc1"))
        e.ds(f"ds_read_b128 v[28:31], v17 offset:{LA_F}")
        e("s_waitcnt lgkmcnt(0)")
        self.gemv8(24, 28, 64, tk)
        e.ds(f"ds_write_b128 v18, v[24:27] offset:{LA_R1}")
        e(f"v_lshlrev_b32 v17, 4, v16\nv_lshl_add_u32 v17, v{vG}, 5, v17\ns_lshl_b32 s3, s{sW}, 7\nv_add_u32 v17, s3, v17")
        e("s_waitcnt lgkmcnt(0)\ns_barrier")
        e(f"s_cmp_lt_u32 s{sW}, 2\ns_cbranch_scc0 L_at_l")
        e(f"v_lshrrev_b32 v12, 5, v0\nv_lshlrev_b32 v13, 4, v21\nv_lshl_add_u32 v13, v12, 10, v13")
        for k in range(4): e.ds(f"ds_read_b128 {vr(64+4*k)}, v13 offset:{LA_R1+4096*(k>>1)+512*(k&1)}")
        e(f"v_and_b32 v13, 1, v{vG}\nv_lshlrev_b32 v13, 3, v13\nv_lshl_add_u32 v13, v{vC}, 4, v13\nv_lshl_add_u32 v13, v12, 8, v13")
        e("s_waitcnt lgkmcnt(0)")
        for k in range(1, 4):
            e(f"v_pk_add_f32 v[64:65], v[64:65], v[{64+4*k}:{65+4*k}]\nv_pk_add_f32 v[66:67], v[66:67], v[{66+4*k}:{67+4*k}]")
        e("v_cvt_pk_bf16_f32 v64, v64, v65\nv_cvt_pk_bf16_f32 v65, v66, v67")
        e.ds(f"ds_write_b64 v13, v[64:65] offset:{LA_LAT}")
        e("s_waitcnt lgkmcnt(0)")
        e.label("L_at_l")
        e("s_barrier")
        e.ds(f"ds_read_b128 v[28:31], v17 offset:{LA_LAT}")
        e("s_waitcnt lgkmcnt(0)")
        self.gemv8(24, 28, 160, None)
        e.ds(f"ds_write_b128 v18, v[24:27] offset:{LA_R2}")
        e(f"v_lshlrev_b32 v13, 8, v16\nv_lshl_add_u32 v13, v8, 4, v13\nv_lshl_add_u32 v13, v{vG}, 11, v13")
        e(f"v_lshlrev_b32 v14, 3, v16\nv_lshl_add_u32 v14, v8, 4, v14\ns_lshl_b32 s3, s{sW}, 7\nv_add_u32 v14, s3, v14")
        e(f"s_lshr_b32 s12, s{sW}, 2\ns_lshl_b32 s12, s12, 6\ns_add_u32 s3, s3, s12\nv_lshlrev_b32 v17, 4, v{vG}\nv_add_u32 v17, s3, v17")
        e("s_waitcnt lgkmcnt(0)\ns_barrier")
        for k in range(4): e.ds(f"ds_read_b128 {vr(64+4*k)}, v13 offset:{LA_R2+1024*(k>>1)+(512+128)*(k&1)}")
        e("s_waitcnt lgkmcnt(0)")
        for k in range(1, 4):
            e(f"v_pk_add_f32 v[64:65], v[64:65], v[{64+4*k}:{65+4*k}]\nv_pk_add_f32 v[66:67], v[66:67], v[{66+4*k}:{67+4*k}]")
        self.allred_G([64, 65, 66, 67], [68, 69, 70, 71], "v_add_f32")
        e("v_cvt_pk_bf16_f32 v64, v64, v65\nv_cvt_pk_bf16_f32 v65, v66, v67")
        e.ds(f"ds_write_b64 v14, v[64:65] offset:{LA_CTX}")
        e("s_waitcnt lgkmcnt(0)")
        e.ds(f"ds_read_b128 v[28:31], v17 offset:{LA_CTX}")
        e("s_waitcnt lgkmcnt(0)")
        self.gemv8(24, 28, 192, None)
        e(f"s_cmp_lt_u32 s{sW}, 4\ns_cbranch_scc1 L_at_o")
        e.ds(f"ds_write_b128 v18, v[24:27] offset:{LA_R1}")
        e("s_waitcnt lgkmcnt(0)\ns_barrier")
        self.exit()
        e.label("L_at_o")
        e(f"s_lshl_b32 s12, s64, 12\ns_lshl_b32 s3, s{sW}, 10\ns_add_u32 s12, s12, s3\ns_add_u32 s12, s12, {WS_OUTA}")
        e(f"v_and_b32 v13, 1, v{vG}\nv_lshlrev_b32 v13, 5, v13\nv_lshl_add_u32 v13, v{vC}, 6, v13\nv_lshl_add_u32 v13, v22, 4, v13\nv_mov_b32 v53, s{sT}\nv_mov_b32 v55, s{sT}")
        e("s_barrier")
        e.ds(f"ds_read_b128 v[64:67], v18 offset:{LA_R1+4096}")
        e("s_waitcnt lgkmcnt(0)")
        e("v_pk_add_f32 v[24:25], v[24:25], v[64:65]\nv_pk_add_f32 v[26:27], v[26:27], v[66:67]")
        e(f"v_cndmask_b32 v52, v24, v26, {sHI}\nv_cndmask_b32 v54, v25, v27, {sHI}")
        e(f"buffer_store_dwordx4 v[52:55], v13, {WS}, s12 offen sc1")
        self.stamp(8)
        e(f"s_cmp_eq_u32 s{sW}, 0\ns_cbranch_scc1 L_at_fin")
        self.exit()
        e.label("L_at_fin")
        e(f"s_lshl_b32 s12, s64, 6\ns_add_u32 s12, s12, {WS_OUTA}\nv_lshrrev_b32 v11, 2, v{vL}\nv_lshlrev_b32 v11, 12, v11\nv_and_b32 v12, 3, v{vL}\nv_lshl_add_u32 v11, v12, 4, v11")
        self.srd(48, 38, 2048)
        e(f"s_lshl_b32 s14, s64, 4\nv_lshlrev_b32 v12, 2, v12\ns_mov_b32 s15, 0x10000")
        def g():
            e("s_mov_b32 s3, s12")
            for k in range(4):
                e(f"buffer_load_dwordx4 {vr(64+4*k)}, v11, {WS}, s3 offen sc1")
                if k < 3: e("s_add_u32 s3, s3, s15")
        self.poll(g, [65, 67, 69, 71, 73, 75, 77, 79], 60, "goa")
        for k in range(1, 4): e(f"v_add_f32 v64, v64, v{64+4*k}\nv_add_f32 v66, v66, v{66+4*k}")
        self.rowred([64, 66], "v_add_f32", (8, 4))
        self.allred_G([64, 66], [68, 69], "v_add_f32")
        e("v_cvt_pk_bf16_f32 v64, v64, v66")
        self.exec_mask(15, 0)
        e("buffer_store_dword v64, v12, s[48:51], s14 offen")
        if self.p["TIMING"]: self.exec_full(); e("s_waitcnt vmcnt(0)"); self.stamp(9)
        self.exit()

    def build(self):
        e, p = self.e, self.p
        self.prologue()
        vm0 = e.vm
        self.phase1()
        vmp = e.vm
        self.b_ctrl()
        e.label("L_actrl")
        e.vm = vmp
        self.a_setup()
        self.a_issue(lambda n: 40)
        e("s_branch L_amain")
        e.label("L_notctrl")
        e.vm = vm0
        e(f"s_cmp_lt_u32 s{sSLOT}, 8\ns_cbranch_scc1 L_astream")
        self.b_stream()
        self.b_tail()
        e.label("L_astream")
        e.vm = vm0
        self.a_setup()
        self.srd(44, 42, WS_SIZE)
        self.tagmake()
        e("s_barrier")
        self.stamp(1)
        self.a_issue(lambda n: p["D_A1"] if n < p["NA1"] else p["D_A2"])
        self.a_main()
        for f in list(self.ool): f()
        if p["TIMING"]:
            e.label("L_exit")
            e("s_mov_b64 exec, -1\ns_memrealtime s[68:69]\ns_getreg_b32 s70, hwreg(HW_REG_XCC_ID)\ns_waitcnt lgkmcnt(0)\nv_mov_b32 v44, 0")
            for i in range(10): e(f"v_writelane_b32 v44, s{80+2*i}, {i}")
            e("v_writelane_b32 v44, s68, 10\nv_writelane_b32 v44, s70, 11")
            e(f"s_lshl_b32 s3, s2, 3\ns_add_u32 s3, s3, s{sW}\ns_lshl_b32 s3, s3, 6\ns_add_u32 s3, s3, {WS_STAMP}\nv_lshlrev_b32 v45, 2, v{vL}\ns_mov_b64 exec, 0xffff")
            e(f"buffer_store_dword v44, v45, {WS}, s3 offen")
        e.label("L_end")
        e("s_endpgm")
        e.label("L_codeend")
        body = pad_hazards(e.L)
        ref = open(f"cdna_kernels/{NAME}.s.ref").read().split("\n")
        head = [l for l in ref if l.startswith(";") and "@launch" not in l]
        out = head + ["; @launch grid=(256,1,1) block=(512,1,1) lds=163840",
                      '.amdgcn_target "amdgcn-amd-amdhsa--gfx950"', ".text", f".globl {NAME}_kernel", ".p2align 8",
                      f".type {NAME}_kernel,@function", f"{NAME}_kernel:"]
        out += [("" if l.endswith(":") else "    ") + l for l in body]
        out += ['.section .rodata,"a"', ".p2align 6", f".amdhsa_kernel {NAME}_kernel", "  .amdhsa_next_free_vgpr 256",
                "  .amdhsa_next_free_sgpr 102", "  .amdhsa_accum_offset 256", "  .amdhsa_group_segment_fixed_size 0",
                "  .amdhsa_kernarg_size 112", "  .amdhsa_user_sgpr_count 2", "  .amdhsa_user_sgpr_kernarg_segment_ptr 1",
                "  .amdhsa_system_sgpr_workgroup_id_x 1", ".end_amdhsa_kernel", ""]
        return "\n".join(out)

if __name__ == "__main__":
    kw = {}
    for a in sys.argv[2:]:
        k, v = a.split("=")
        kw[k] = (v == "True") if v in ("True", "False") else (int(v) if v.lstrip("-").isdigit() else v)
    open(sys.argv[1], "w").write(K(**kw).build())
```

```python
import sys, struct
from asmlib import Emit, pad_hazards

NAME = "concat_heads__compressed_kv_cla__gqa_block_cached__decode"
DEF = dict(D_B=4, N1=28, BURST=3, PVK=3, D_A1=3, NA1=8, D_A2=6, QPOS=24, WPOS="qk", TIMING=False, MAXPOLL=400000,
           NT="nt", PAD=0)

def f32(x): return "0x%08x" % struct.unpack("<I", struct.pack("<f", x))[0]
CS = 1.4426950408889634 * 128 ** -0.5

WS_QP, WS_QABS, WS_QB, WS_BML, WS_AML = 0x10000, 0x90000, 0xA0000, 0xA8000, 0xB0000
WS_BO, WS_OUTB, WS_OUTA, WS_AO, WS_STAMP = 0xC0000, 0x120000, 0x140000, 0x200000, 0x400000
WS_SIZE = 0x800000
L_LQ = 114688
LB_Q, LB_MX, LB_LS, LB_F, LB_R4, LB_R5 = 0, 1024, 1152, 1280, 2048, 20480
LA_Q = 131072
LA_P, LA_MX, LA_LS = 131072, 147456, 148480
LA_F, LA_R1, LA_LAT, LA_R2, LA_CTX = 32768, 36864, 49152, 53248, 61440

vL, vC, vG = 1, 2, 3
SELA, SELB = 32, 36
sW, sX, sSLOT, sH1, sJ, sT = 6, 7, 8, 9, 10, 11
WS = "s[44:47]"
sHI = "s[62:63]"
sCS = "s60"

def fswz(k):
    k0, k1, k2, k3 = k & 1, (k >> 1) & 1, (k >> 2) & 1, (k >> 3) & 1
    return (k1 << 3) | (k0 << 2) | ((k1 ^ k3) << 1) | k2

def vr(a, n=4): return f"v[{a}:{a+n-1}]"

class K:
    def __init__(self, **kw):
        self.p = dict(DEF); self.p.update(kw)
        self.e = Emit()
        self.nlab = 0
        self.ool = []
    def lab(self, s):
        self.nlab += 1
        return f"L_{s}_{self.nlab}"
    def stamp(self, i):
        if self.p["TIMING"]:
            self.e(f"s_memrealtime s[{80+2*i}:{81+2*i}]\ns_waitcnt lgkmcnt(0)")
    def exit(self):
        self.e("s_branch L_exit" if self.p["TIMING"] or self.p["PAD"] else "s_endpgm")
    def srd(self, s, ptr, size):
        self.e(f"s_mov_b32 s{s}, s{ptr}\ns_mov_b32 s{s+1}, s{ptr+1}\ns_mov_b32 s{s+2}, {size}\ns_mov_b32 s{s+3}, 0x20000")
    def exec_full(self): self.e("s_mov_b64 exec, -1")
    def exec_mask(self, lo, hi): self.e(f"s_mov_b32 exec_lo, {lo:#x}\ns_mov_b32 exec_hi, {hi:#x}")
    def allred_G(self, vals, tmps, op, steps=(32, 16)):
        e = self.e
        for st in steps:
            for v, t in zip(vals, tmps): e(f"v_mov_b32 v{t}, v{v}")
            for v, t in zip(vals, tmps): e(f"v_permlane{st}_swap_b32 v{t}, v{v}")
            for v, t in zip(vals, tmps): e(f"{op} v{v}, v{t}, v{v}")
    def rowred(self, vals, op, rors):
        for r in rors:
            for v in vals: self.e(f"{op}_dpp v{v}, v{v}, v{v} row_ror:{r} row_mask:0xf bank_mask:0xf")
    def tagcheck(self, tags, acc):
        e = self.e
        e(f"v_xor_b32 v{acc}, s{sT}, v{tags[0]}")
        for t in tags[1:]: e(f"v_bitop3_b32 v{acc}, v{t}, s{sT}, v{acc} bitop3:0xbe")
        e(f"v_cmp_ne_u32 vcc, 0, v{acc}")
    def poll(self, issue, tags, acc, name):
        e = self.e
        L, D = self.lab(name), self.lab(name + "d")
        e("s_mov_b32 s13, 0")
        e.label(L)
        issue()
        e(f"s_add_u32 s13, s13, 1\ns_waitcnt vmcnt(0)")
        self.tagcheck(tags, acc)
        e(f"s_cmp_gt_u32 s13, {self.p['MAXPOLL']}\ns_cbranch_scc1 {D}\ns_cbranch_vccnz {L}")
        e.label(D)
    def expand4(self, dst, src, pi):
        for q in range(4): self.e(f"v_perm_b32 v{dst+q}, v{src}, v{src}, v{SELB+4*pi+q}")
    def gemv8(self, acc, frag, data, toks, E=(44, 48)):
        e = self.e
        self.expand4(E[0], frag, 0)
        for i in range(8):
            if i + 1 < 8: self.expand4(E[(i + 1) & 1], frag + ((i + 1) >> 1), (i + 1) & 1)
            if toks is not None and toks[i] is not None: e.wait_vm(toks[i])
            e(f"v_mfma_f32_16x16x32_bf16 {vr(acc)}, {vr(E[i&1])}, {vr(data+4*i)}, {'0' if i == 0 else vr(acc)}")

    def prologue(self):
        e = self.e
        e("s_cmp_ge_u32 s2, 256\ns_cbranch_scc1 L_end")
        e("s_load_dwordx16 s[16:31], s[0:1], 0\ns_load_dwordx8 s[32:39], s[0:1], 64\ns_load_dwordx4 s[40:43], s[0:1], 96")
        if self.p["TIMING"]:
            for i in range(82, 100): e(f"s_mov_b32 s{i}, 0")
            e("s_memrealtime s[80:81]")
        if self.p["PAD"]: e("s_memrealtime s[80:81]")
        e("s_getpc_b64 s[4:5]")
        e.label("L_pc")
        e("v_lshlrev_b32 v4, 6, v0\nv_min_u32 v4, L_codeend-L_pc-4, v4")
        e.vmem("global_load_dword v5, v4, s[4:5]")
        e(f"v_lshrrev_b32 v6, 6, v0\nv_and_b32 v{vL}, 63, v0\nv_and_b32 v{vC}, 15, v0\nv_bfe_u32 v{vG}, v0, 4, 2")
        e(f"v_readfirstlane_b32 s{sW}, v6")
        e(f"s_and_b32 s{sX}, s2, 7\ns_lshr_b32 s{sSLOT}, s2, 3\ns_lshr_b32 s{sH1}, s2, 6\ns_lshl_b32 s3, s{sX}, 2\ns_add_u32 s{sH1}, s{sH1}, s3\ns_and_b32 s{sJ}, s{sSLOT}, 7")
        e(f"s_mov_b32 s62, 0\ns_mov_b32 s63, -1\ns_mov_b32 {sCS}, {f32(CS)}")
        e(f"s_lshl_b32 s3, s{sJ}, 19\ns_lshl_b32 s12, s{sH1}, 8\ns_add_u32 s3, s3, s12")
        e(f"v_lshlrev_b32 v4, 17, v{vG}\nv_lshl_add_u32 v4, v{vC}, 4, v4\nv_add_u32 v4, s3, v4")
        e(f"s_lshl_b32 s12, s{sJ}, 7\nv_lshlrev_b32 v6, 5, v{vG}\nv_add_u32 v6, s12, v6")
        e(f"v_bfe_u32 v7, v0, 3, 1\nv_lshlrev_b32 v7, 6, v7\nv_lshl_add_u32 v7, v{vG}, 4, v7\nv_and_b32 v8, 7, v0")
        e(f"v_lshl_add_u32 v9, v8, 13, v7\nv_add_u32 v9, s3, v9")
        e("v_and_b32 v10, 3, v0\nv_lshlrev_b32 v10, 4, v10\nv_mov_b32 v13, 0\nv_mov_b32 v11, 0x0c0c0c0c\nv_and_b32 v14, 4, v0\nv_cmp_ne_u32 vcc, 0, v14")
        for pi, d in ((0, 0x0d0c), (1, 0x0f0e)):
            a = SELA + 2 * pi
            e(f"v_mov_b32 v12, {d:#x}\nv_lshlrev_b64 v[{a}:{a+1}], v10, v[12:13]\nv_xor_b32 v{a}, v11, v{a}\nv_xor_b32 v{a+1}, v11, v{a+1}")
            b = SELB + 4 * pi
            e(f"v_cndmask_b32 v{b}, v{a}, v11, vcc\nv_cndmask_b32 v{b+1}, v{a+1}, v11, vcc\nv_cndmask_b32 v{b+2}, v11, v{a}, vcc\nv_cndmask_b32 v{b+3}, v11, v{a+1}, vcc")
        e(f"v_lshlrev_b32 v10, 4, v{vL}")
        e(f"s_cmp_eq_u32 s{sW}, 7\ns_waitcnt lgkmcnt(0)")
        e(f"s_load_dword s{sT}, s[42:43], 0")
        e("s_cbranch_scc0 L_notctrl")

    def tagmake(self):
        self.e(f"s_waitcnt lgkmcnt(0)\ns_mul_i32 s{sT}, s{sT}, 0x9e3779b1\ns_add_u32 s{sT}, s{sT}, 0x7f4a7c15")

    def phase1(self):
        e, nt = self.e, self.p["NT"]
        WQ, WB, WU = 64, 128, 192
        tx = []
        for (r, p) in ((16, 16), (24, 28)):
            e.vmem(f"global_load_dwordx4 {vr(r)}, v6, s[{p}:{p+1}]")
            tx.append(e.vmem(f"global_load_dwordx4 {vr(r+4)}, v6, s[{p}:{p+1}] offset:16"))
        self.srd(48, 20, 1 << 22)
        tq, tb, tu = [], [], []
        e("s_mov_b32 s12, 0")
        for i in range(16):
            tq.append(e.vmem(f"buffer_load_dwordx4 {vr(WQ+4*i)}, v4, s[48:51], s12 offen {nt}"))
            if i < 15: e("s_addk_i32 s12, 0x2000")
        self.srd(52, 34, 1 << 22)
        e("s_mov_b32 s12, 0")
        for i in range(16):
            tb.append(e.vmem(f"buffer_load_dwordx4 {vr(WB+4*i)}, v4, s[52:55], s12 offen {nt}"))
            if i < 15: e("s_addk_i32 s12, 0x2000")
        self.srd(56, 22, 1 << 22)
        e("s_mov_b32 s12, 0\ns_mov_b32 s14, 0x10000")
        for n in range(8):
            for ks in range(2):
                tu.append(e.vmem(f"buffer_load_dwordx4 {vr(WU+8*n+4*ks)}, v9, s[56:59], s12 offen offset:{128*ks} {nt}"))
            if n < 7: e("s_add_u32 s12, s12, s14")
        self.srd(44, 42, WS_SIZE)
        self.tagmake()
        e("s_barrier")
        self.stamp(1)
        e(f"s_lshl_b32 s14, s{sH1}, 14\ns_add_u32 s14, s14, {WS_QP}\ns_lshl_b32 s15, s{sJ}, 11\ns_add_u32 s15, s15, s14")
        e(f"v_mov_b32 v57, s{sT}\nv_mov_b32 v59, s{sT}")
        E = (44, 48)
        for mat, (X, W, toks, tX) in enumerate(((16, WQ, tq, tx[0]), (24, WB, tb, tx[1]))):
            acc = 52
            e.wait_vm(tX)
            self.expand4(E[0], X, 0)
            for i in range(16):
                if i + 1 < 16: self.expand4(E[(i + 1) & 1], X + ((i + 1) >> 1), (i + 1) & 1)
                e.wait_vm(toks[i])
                e(f"v_mfma_f32_16x16x32_bf16 {vr(acc)}, {vr(E[i&1])}, {vr(W+4*i)}, {'0' if i == 0 else vr(acc)}")
            e(f"v_cndmask_b32 v56, v{acc}, v{acc+2}, {sHI}\nv_cndmask_b32 v58, v{acc+1}, v{acc+3}, {sHI}")
            e.vmem(f"buffer_store_dwordx4 v[56:59], v10, {WS}, s15 offen offset:{1024*mat} sc1")
            if mat == 0: self.stamp(2)
        QF = [16, 24, 96, 104]
        for b in QF:
            for r in range(8): e(f"v_mov_b32 v{b+r}, 0")
        e(f"v_and_b32 v11, 1, v{vG}\nv_lshlrev_b32 v11, 3, v11\nv_lshl_add_u32 v11, v{vC}, 4, v11\nv_lshrrev_b32 v12, 1, v{vG}\nv_lshl_add_u32 v11, v12, 2, v11")
        e(f"v_bfe_u32 v12, v{vL}, 1, 1\nv_lshlrev_b32 v12, 6, v12\nv_lshl_add_u32 v12, v{vG}, 4, v12")
        e(f"v_add_u32 v13, {L_LQ}, v11\nv_add_u32 v14, {L_LQ}, v12")
        def gat(mat):
            def f():
                for jj in range(8):
                    if jj % 2 == 0: e(f"s_add_u32 s12, s14, {jj*2048}")
                    e.vmem(f"buffer_load_dwordx4 {vr(WQ+4*jj)}, v10, {WS}, s12 offen offset:{(jj&1)*2048+1024*mat} sc1")
            return f
        tags = [WQ + 4 * jj + k for jj in range(8) for k in (1, 3)]
        def sum8():
            for jj in range(1, 8):
                e(f"v_add_f32 v{WQ}, v{WQ}, v{WQ+4*jj}\nv_add_f32 v{WQ+2}, v{WQ+2}, v{WQ+4*jj+2}")
        self.poll(gat(0), tags, 60, "gqa")
        self.stamp(3)
        sum8()
        e(f"v_cvt_pk_bf16_f32 v60, v{WQ}, v{WQ+2}")
        e.ds(f"ds_write_b32 v13, v60")
        e("s_waitcnt lgkmcnt(0)")
        for t in range(4):
            m = 0x000f000f << (4 * t)
            self.exec_mask(m, m)
            e.ds(f"ds_read_b128 {vr(QF[t])}, v14")
            e.ds(f"ds_read_b128 {vr(QF[t]+4)}, v14 offset:128")
        self.exec_full()
        e("s_waitcnt lgkmcnt(0)")
        X, Y = 44, 48
        for t in range(4):
            for T in range(2):
                for ks in range(2):
                    acc = (X, Y)[T]
                    first = (t == 0 and ks == 0)
                    e(f"v_mfma_f32_16x16x32_bf16 {vr(acc)}, {vr(WU+16*t+8*T+4*ks)}, {vr(QF[t]+4*ks)}, {'0' if first else vr(acc)}")
        e(f"s_lshl_b32 s12, s{sH1}, 11\ns_lshl_b32 s15, s{sJ}, 8\ns_add_u32 s12, s12, s15\ns_add_u32 s12, s12, {WS_QABS}")
        e(f"v_lshrrev_b32 v15, 2, v{vC}\nv_lshlrev_b32 v15, 6, v15\nv_lshl_add_u32 v15, v{vG}, 4, v15")
        self.fixup(X, Y, 52)
        e("v_cvt_pk_bf16_f32 v56, v52, v53\nv_cvt_pk_bf16_f32 v58, v54, v55")
        self.exec_mask(0x11111111, 0x11111111)
        e.vmem(f"buffer_store_dwordx4 v[56:59], v15, {WS}, s12 offen sc1")
        self.exec_full()
        self.stamp(4)
        e(f"s_cmp_lg_u32 s{sJ}, 0\ns_cbranch_scc1 L_p1done")
        self.poll(gat(1), tags, 60, "gqb")
        sum8()
        e(f"v_cvt_pk_bf16_f32 v56, v{WQ}, v{WQ+2}\nv_lshlrev_b32 v15, 1, v11\ns_lshl_b32 s12, s{sH1}, 9\ns_add_u32 s12, s12, {WS_QB}")
        e.vmem(f"buffer_store_dwordx2 v[56:57], v15, {WS}, s12 offen sc1")
        e.label("L_p1done")
        e(f"s_cmp_lt_u32 s{sSLOT}, 8\ns_cbranch_scc1 L_actrl")

    def fixup(self, X, Y, S):
        e = self.e
        for r in range(4): e(f"v_permlane32_swap_b32 v{X+r}, v{Y+r}")
        for r in range(4): e(f"v_mov_b32_dpp v{S+r}, v{X+r} quad_perm:[0,1,0,1] row_mask:0xf bank_mask:0xf")
        for r in range(4): e(f"v_add_f32_dpp v{S+r}, v{Y+r}, v{S+r} quad_perm:[2,3,2,3] row_mask:0xf bank_mask:0xf")

    def b_ids(self):
        e = self.e
        e(f"s_sub_u32 s64, s{sSLOT}, 8\ns_lshr_b32 s65, s64, 2\ns_lshl_b32 s3, s{sX}, 2\ns_add_u32 s65, s65, s3\ns_and_b32 s66, s64, 3")
        e(f"v_lshl_add_u32 v6, v8, 8, v7")
        e(f"v_lshlrev_b32 v9, 10, v{vG}\nv_lshl_add_u32 v9, v{vC}, 4, v9")
        e(f"s_lshl_b32 s3, s65, 7\ns_and_b32 s12, s{sW}, 3\ns_lshl_b32 s12, s12, 5\ns_add_u32 s3, s3, s12\ns_lshr_b32 s12, s{sW}, 2\ns_lshl_b32 s12, s12, 2\ns_add_u32 s3, s3, s12")
        e(f"s_lshl_b32 s3, s3, 10\ns_lshl_b32 s12, s66, 8\ns_add_u32 s3, s3, s12")
        e(f"v_lshlrev_b32 v4, 13, v{vG}\nv_lshl_add_u32 v4, v{vC}, 4, v4\nv_add_u32 v4, s3, v4")
        self.srd(48, 30, 1 << 25); self.srd(52, 32, 1 << 25); self.srd(56, 36, 1 << 22)
        e("s_cmp_lt_u32 s64, 16\ns_cselect_b32 s58, s58, 0")
    def b_kload(self, KR, t, n):
        return self.e.vmem(f"buffer_load_dwordx4 {vr(KR+16*t+4*n)}, v6, s[48:51], s14 offen offset:{(n>>1)*2048+(n&1)*128} {self.p['NT']}")
    def b_vload(self, VR, t, n):
        return self.e.vmem(f"buffer_load_dwordx4 {vr(VR+16*t+4*n)}, v9, s[52:55], s15 offen offset:{n*256} {self.p['NT']}")
    def b_woload(self, KR, i):
        return self.e.vmem(f"buffer_load_dwordx4 {vr(self.WO[i])}, v4, s[56:59], 0 offen offset:{i*1024} {self.p['NT']}")
    def b_softmax(self, nt, KR, tokK, bias):
        e = self.e
        e(f"v_lshrrev_b32 v11, 2, v{vC}\nv_bfe_u32 v12, v{vL}, 1, 1\nv_lshlrev_b32 v12, 6, v12\nv_lshl_add_u32 v12, v{vG}, 4, v12\nv_lshl_add_u32 v12, v11, 8, v12")
        e(f"v_lshlrev_b32 v13, 5, v11\ns_lshl_b32 s3, s{sW}, 2\nv_add_u32 v14, s3, v13")
        e("s_barrier")
        self.stamp(5)
        e.ds(f"ds_read_b128 v[16:19], v12 offset:{LB_Q}")
        e.ds(f"ds_read_b128 v[20:23], v12 offset:{LB_Q+128}")
        e("s_waitcnt lgkmcnt(0)")
        XY = ((44, 48), (52, 56))
        for t in range(nt + 1):
            if t < nt:
                X, Y = XY[t & 1]
                e.wait_vm(tokK[t])
                b = KR + 16 * t
                e(f"v_mfma_f32_16x16x32_bf16 {vr(X)}, {vr(b)}, v[16:19], 0")
                e(f"v_mfma_f32_16x16x32_bf16 {vr(Y)}, {vr(b+8)}, v[16:19], 0")
                e(f"v_mfma_f32_16x16x32_bf16 {vr(X)}, {vr(b+4)}, v[20:23], {vr(X)}")
                e(f"v_mfma_f32_16x16x32_bf16 {vr(Y)}, {vr(b+12)}, v[20:23], {vr(Y)}")
            if t > 0:
                X, Y = XY[(t - 1) & 1]
                self.fixup(X, Y, KR + 16 * (t - 1))
        S = [KR + 16 * t + r for t in range(nt) for r in range(4)]
        e(f"v_max3_f32 v60, v{S[0]}, v{S[1]}, v{S[2]}")
        rest = S[3:]
        while len(rest) >= 2:
            e(f"v_max3_f32 v60, v60, v{rest[0]}, v{rest[1]}"); rest = rest[2:]
        if rest: e(f"v_max_f32 v60, v60, v{rest[0]}")
        if bias: e(f"v_add_f32 v60, {bias}, v60")
        self.allred_G([60], [61], "v_max_f32")
        self.exec_mask(0x1111, 0)
        e.ds(f"ds_write_b32 v14, v60 offset:{LB_MX}")
        self.exec_full()
        e("s_waitcnt lgkmcnt(0)\ns_barrier")
        e.ds(f"ds_read_b128 v[44:47], v13 offset:{LB_MX}")
        e.ds(f"ds_read_b128 v[48:51], v13 offset:{LB_MX+16}")
        e("s_waitcnt lgkmcnt(0)")
        e("v_max3_f32 v60, v44, v45, v46\nv_max3_f32 v60, v60, v47, v48\nv_max3_f32 v60, v60, v49, v50\nv_max_f32 v60, v60, v51")
        e(f"v_mul_f32 v62, {sCS}, v60")
        if bias: e(f"v_sub_f32 v61, {bias}, v62")
        else: e("v_sub_f32 v61, 0, v62")
        for s in S: e(f"v_fma_f32 v{s}, v{s}, {sCS}, v61")
        for s in S: e(f"v_exp_f32 v{s}, v{s}")
        e(f"v_add_f32 v63, v{S[0]}, v{S[1]}")
        for s in S[2:]: e(f"v_add_f32 v63, v63, v{s}")
        for t in range(nt):
            b = KR + 16 * t
            e(f"v_cvt_pk_bf16_f32 v{b+4}, v{b}, v{b+1}\nv_cvt_pk_bf16_f32 v{b+5}, v{b+2}, v{b+3}")
        self.allred_G([63], [61], "v_add_f32")
        self.exec_mask(0x1111, 0)
        e.ds(f"ds_write_b32 v14, v63 offset:{LB_LS}")
        self.exec_full()
        e("s_waitcnt lgkmcnt(0)\ns_barrier")
        self.stamp(6)
    def b_pv_prep(self, KR, n):
        t, i = n >> 2, n & 3
        E = 44 + 2 * (n & 3)
        for q in range(2): self.e(f"v_perm_b32 v{E+q}, v{KR+16*t+4+(i>>1)}, v{KR+16*t+4+(i>>1)}, v{SELA+2*(i&1)+q}")
    def b_pv_mma(self, VR, n):
        t, i = n >> 2, n & 3
        E = 44 + 2 * (n & 3)
        b = VR + 16 * t + 4 * i
        for h in range(2):
            acc = 24 + 4 * h
            self.e(f"v_mfma_f32_16x16x16_bf16 {vr(acc)}, v[{E}:{E+1}], v[{b+2*h}:{b+2*h+1}], {'0' if n == 0 else vr(acc)}")
    def b_owrite(self):
        e = self.e
        e(f"s_lshl_b32 s3, s{sW}, 11\nv_add_u32 v11, s3, v10")
        e.ds(f"ds_write_b128 v11, v[24:27] offset:{LB_R4}")
        e.ds(f"ds_write_b128 v11, v[28:31] offset:{LB_R4+1024}")
        e("s_waitcnt lgkmcnt(0)")
        e("s_branch L_btail")

    def b_ctrl(self):
        e = self.e
        KR, VR = 64, 160
        self.WO = [72, 88, 104, 120]
        self.b_ids()
        e("s_cselect_b32 s50, s50, 0\ns_cselect_b32 s54, s54, 0")
        e(f"s_cselect_b32 s61, 0, {f32(-1e30)}")
        e(f"s_lshl_b32 s14, s{sX}, 22\ns_add_u32 s3, s64, 1008\ns_lshl_b32 s3, s3, 12\ns_cmp_lt_u32 s64, 16\ns_cselect_b32 s3, s3, 0\ns_add_u32 s14, s14, s3\ns_mov_b32 s15, s14")
        for n in range(4): tk = self.b_kload(KR, 0, n)
        for n in range(4): self.b_vload(VR, 0, n)
        e(f"s_lshl_b32 s12, s{sX}, 11\ns_add_u32 s12, s12, {WS_QB}")
        def gq():
            for n in range(2): e.vmem(f"buffer_load_dwordx4 {vr(128+4*n)}, v10, {WS}, s12 offen offset:{1024*n} sc1")
        self.poll(gq, [129, 131, 133, 135], 60, "gqb2")
        e(f"v_mov_b32 v129, v130\nv_mov_b32 v133, v134\nv_lshlrev_b32 v11, 3, v{vL}")
        e.ds(f"ds_write_b64 v11, v[128:129] offset:{LB_Q}")
        e.ds(f"ds_write_b64 v11, v[132:133] offset:{LB_Q+512}")
        e("s_waitcnt lgkmcnt(0)")
        self.b_softmax(1, KR, [tk], "s61")
        e.ds(f"ds_read_b128 v[44:47], v13 offset:{LB_LS}")
        e.ds(f"ds_read_b128 v[48:51], v13 offset:{LB_LS+16}")
        e(f"s_lshl_b32 s12, s{sX}, 11\ns_lshl_b32 s3, s64, 4\ns_add_u32 s12, s12, s3\ns_add_u32 s12, s12, {WS_BML}")
        e(f"v_lshlrev_b32 v11, 4, v13\nv_mov_b32 v52, v62\nv_mov_b32 v53, s{sT}\nv_mov_b32 v55, s{sT}")
        e("s_waitcnt lgkmcnt(0)")
        e("v_add_f32 v54, v44, v45")
        for r in range(46, 52): e(f"v_add_f32 v54, v54, v{r}")
        self.exec_mask(0x1111, 0)
        e.vmem(f"buffer_store_dwordx4 v[52:55], v11, {WS}, s12 offen sc1")
        self.exec_full()
        for n in range(4):
            self.b_pv_prep(KR, n)
        for n in range(4):
            self.b_pv_mma(VR, n)
        e("s_cmp_lt_u32 s64, 16\ns_cbranch_scc0 L_bc_nod")
        for i in range(4): self.b_woload(KR, i)
        e(f"v_and_b32 v15, 31, v{vL}\nv_min_u32 v11, 23, v15\nv_lshlrev_b32 v11, 4, v11\ns_lshl_b32 s12, s65, 9\ns_add_u32 s12, s12, {WS_BML}")
        def gm(): e.vmem(f"buffer_load_dwordx4 v[52:55], v11, {WS}, s12 offen sc1")
        self.poll(gm, [53, 55], 60, "gml")
        e("v_mov_b32 v56, v52")
        self.rowred([56], "v_max_f32", (8, 4, 2, 1))
        self.allred_G([56], [57], "v_max_f32", steps=(16,))
        e("v_sub_f32 v52, v52, v56\nv_exp_f32 v52, v52\nv_cmp_gt_u32 vcc, 24, v15\nv_cndmask_b32 v52, 0, v52, vcc\nv_mul_f32 v54, v54, v52")
        self.rowred([54], "v_add_f32", (8, 4, 2, 1))
        self.allred_G([54], [57], "v_add_f32", steps=(16,))
        e("v_rcp_f32 v54, v54\nv_lshlrev_b32 v15, 2, v15\nv_mul_f32 v52, v52, v54")
        e.ds(f"ds_write_b32 v15, v52 offset:{LB_F}")
        e.label("L_bc_nod")
        self.b_owrite()

    def b_stream(self):
        e, p = self.e, self.p
        KR, VR, NT_ = 64, 160, 6
        self.WO = [72, 88, 104, 120]
        self.b_ids()
        e(f"s_mul_i32 s3, s64, 7\ns_add_u32 s3, s3, s{sW}\ns_mul_i32 s3, s3, {6*4096}\ns_lshl_b32 s14, s{sX}, 22\ns_add_u32 s14, s14, s3\ns_mov_b32 s15, s14")
        self.srd(44, 42, WS_SIZE)
        self.tagmake()
        e("s_barrier")
        self.stamp(1)
        D = p["D_B"]
        tok = []
        def issue(n, throttle=True):
            if throttle and n >= D: e.wait_vm(tok[n - D])
            if n < 24:
                if n and n % 4 == 0: e("s_addk_i32 s14, 0x1000")
                tok.append(self.b_kload(KR, n >> 2, n & 3))
            elif n < 48:
                m = n - 24
                if m and m % 4 == 0: e("s_addk_i32 s15, 0x1000")
                tok.append(self.b_vload(VR, m >> 2, m & 3))
            else:
                tok.append(self.b_woload(KR, n - 48))
        n = 0
        while n < p["N1"]: issue(n); n += 1
        for _ in range(p["BURST"]): issue(n, False); n += 1
        self.b_softmax(NT_, KR, [tok[4 * t + 3] for t in range(NT_)], None)
        done = 0
        while n < 52:
            issue(n)
            landed = min(n - D - 24 + 1, 24)
            k = 0
            while done < landed and k < p["PVK"]:
                self.b_pv_prep(KR, done); self.b_pv_mma(VR, done); done += 1; k += 1
            n += 1
        while done < 24:
            self.b_pv_prep(KR, done)
            e.wait_vm(tok[24 + done])
            self.b_pv_mma(VR, done); done += 1
        self.stamp(7)
        self.b_owrite()

    def b_tail(self):
        e = self.e
        e.label("L_btail")
        e("s_barrier")
        e(f"s_cmp_lt_u32 s{sW}, 2\ns_cbranch_scc0 L_bt_nored")
        e(f"s_lshl_b32 s3, s{sW}, 10\nv_add_u32 v11, s3, v10")
        tk = [e.ds(f"ds_read_b128 {vr(128+4*w)}, v11 offset:{LB_R4+2048*w}") for w in range(8)]
        e(f"s_mul_i32 s12, s{sX}, {4*24*512}\ns_lshl_b32 s3, s64, 9\ns_add_u32 s12, s12, s3\ns_lshl_b32 s3, s{sW}, 8\ns_add_u32 s12, s12, s3\ns_add_u32 s12, s12, {WS_BO}")
        e(f"v_mul_u32_u24 v12, {24*512}, v{vG}\nv_lshl_add_u32 v12, v{vC}, 4, v12\nv_mov_b32 v53, s{sT}\nv_mov_b32 v55, s{sT}")
        for w in range(1, 8):
            e.wait_lg(tk[w])
            e(f"v_pk_add_f32 v[128:129], v[128:129], v[{128+4*w}:{129+4*w}]\nv_pk_add_f32 v[130:131], v[130:131], v[{130+4*w}:{131+4*w}]")
        e("v_cvt_pk_bf16_f32 v52, v128, v129\nv_cvt_pk_bf16_f32 v54, v130, v131")
        e.vmem(f"buffer_store_dwordx4 v[52:55], v12, {WS}, s12 offen sc1")
        e.label("L_bt_nored")
        self.stamp(8)
        e("s_cmp_lt_u32 s64, 16\ns_cbranch_scc1 L_bt_duty")
        self.exit()
        e.label("L_bt_duty")
        e(f"v_lshlrev_b32 v11, 2, v{vC}")
        e.ds(f"ds_read_b32 v60, v11 offset:{LB_F}")
        e.ds(f"ds_read_b32 v61, v11 offset:{LB_F+64}")
        e(f"s_mul_i32 s12, s65, {24*512}\ns_lshl_b32 s3, s{sW}, 6\ns_add_u32 s12, s12, s3\ns_add_u32 s12, s12, {WS_BO}")
        e(f"v_lshlrev_b32 v12, 9, v{vC}\nv_lshl_add_u32 v12, v{vG}, 4, v12\nv_lshlrev_b32 v13, 9, v8\nv_lshl_add_u32 v13, v{vG}, 4, v13\nv_add_u32 v13, {16*512}, v13")
        def g():
            e.vmem(f"buffer_load_dwordx4 v[128:131], v12, {WS}, s12 offen sc1")
            e.vmem(f"buffer_load_dwordx4 v[132:135], v13, {WS}, s12 offen sc1")
        self.poll(g, [129, 131, 133, 135], 62, "gbo")
        e("s_waitcnt lgkmcnt(0)")
        for k, (src, f) in enumerate(((128, 60), (132, 61))):
            e(f"v_lshlrev_b32 v136, 16, v{src}\nv_and_b32 v137, 0xffff0000, v{src}\nv_lshlrev_b32 v138, 16, v{src+2}\nv_and_b32 v139, 0xffff0000, v{src+2}")
            for i in range(4):
                e(f"v_mul_f32 v{140+i}, v{f}, v{136+i}" if k == 0 else f"v_fmac_f32 v{140+i}, v{f}, v{136+i}")
        self.rowred([140, 141, 142, 143], "v_add_f32", (8, 4, 2, 1))
        e("v_cvt_pk_bf16_f32 v144, v140, v141\nv_cvt_pk_bf16_f32 v145, v142, v143")
        for i in range(4): self.expand4(148 + 4 * i, 144 + (i >> 1), i & 1)
        for i in range(4):
            e(f"v_mfma_f32_16x16x32_bf16 v[24:27], {vr(148+4*i)}, {vr(self.WO[i])}, {'0' if i == 0 else 'v[24:27]'}")
        e(f"s_lshl_b32 s3, s{sW}, 10\nv_add_u32 v11, s3, v10")
        e.ds(f"ds_write_b128 v11, v[24:27] offset:{LB_R5}")
        e("s_waitcnt lgkmcnt(0)\ns_barrier")
        e(f"s_cmp_eq_u32 s{sW}, 0\ns_cbranch_scc1 L_bt_fin")
        self.exit()
        e.label("L_bt_fin")
        e(f"v_and_b32 v11, 31, v{vL}\nv_lshlrev_b32 v11, 4, v11\nv_lshrrev_b32 v12, 5, v{vL}\nv_lshl_add_u32 v11, v12, 12, v11")
        tk = [e.ds(f"ds_read_b128 {vr(128+4*w)}, v11 offset:{LB_R5+1024*w}") for w in range(4)]
        e(f"s_lshl_b32 s12, s65, 12\ns_lshl_b32 s3, s66, 10\ns_add_u32 s12, s12, s3\ns_add_u32 s12, s12, {WS_OUTB}")
        e(f"v_and_b32 v13, 1, v{vG}\nv_lshlrev_b32 v13, 5, v13\nv_lshl_add_u32 v13, v{vC}, 6, v13\nv_lshl_add_u32 v13, v12, 4, v13\nv_mov_b32 v53, s{sT}\nv_mov_b32 v55, s{sT}")
        for w in range(1, 4):
            e.wait_lg(tk[w])
            e(f"v_pk_add_f32 v[128:129], v[128:129], v[{128+4*w}:{129+4*w}]\nv_pk_add_f32 v[130:131], v[130:131], v[{130+4*w}:{131+4*w}]")
        e("v_permlane32_swap_b32 v128, v130\nv_permlane32_swap_b32 v129, v131")
        e("v_add_f32 v52, v128, v130\nv_add_f32 v54, v129, v131")
        e.vmem(f"buffer_store_dwordx4 v[52:55], v13, {WS}, s12 offen sc1")
        self.stamp(9)
        e(f"s_lshl_b32 s3, s66, 7\ns_lshl_b32 s14, s65, 2\ns_add_u32 s14, s14, s3\ns_lshl_b32 s12, s14, 3\ns_add_u32 s12, s12, {WS_OUTB}")
        e(f"v_lshrrev_b32 v11, 1, v{vL}\nv_lshlrev_b32 v11, 12, v11\nv_and_b32 v12, 1, v{vL}\nv_lshl_add_u32 v11, v12, 4, v11")
        self.srd(48, 38, 2048)
        e(f"s_lshl_b32 s14, s14, 1\ns_add_u32 s14, s14, 1024\nv_lshlrev_b32 v12, 2, v12")
        def g2(): e.vmem(f"buffer_load_dwordx4 v[128:131], v11, {WS}, s12 offen sc1")
        self.poll(g2, [129, 131], 62, "gob")
        self.rowred([128, 130], "v_add_f32", (8, 4, 2))
        self.allred_G([128, 130], [132, 133], "v_add_f32")
        e("v_cvt_pk_bf16_f32 v128, v128, v130")
        self.exec_mask(3, 0)
        e.vmem("buffer_store_dword v128, v12, s[48:51], s14 offen")
        if self.p["TIMING"]: self.exec_full(); e("s_waitcnt vmcnt(0)")
        self.exit()

    def a_setup(self):
        e = self.e
        e(f"s_lshl_b32 s64, s{sSLOT}, 3\ns_add_u32 s64, s64, s{sX}\ns_lshr_b32 s65, s64, 1\ns_and_b32 s66, s64, 1")
        self.srd(48, 18, 1 << 24)
        e(f"s_lshl_b32 s14, s64, 18\ns_lshl_b32 s3, s{sW}, 15\ns_add_u32 s14, s14, s3")
        e(f"s_lshl_b32 s15, s{sW}, 13\ns_add_u32 s15, s15, {WS_QABS}")
        e(f"s_lshl_b32 s67, s{sW}, 14")
        e(f"v_and_b32 v11, 3, v{vC}\nv_lshlrev_b32 v11, 2, v11")
        e(f"v_lshrrev_b32 v12, 2, v{vC}\nv_and_b32 v13, 1, v12\nv_or_b32 v11, v11, v13")
        e(f"v_xor_b32 v12, v12, v{vC}\nv_and_b32 v12, 2, v12\nv_or_b32 v11, v11, v12")
        e(f"v_lshlrev_b32 v11, 4, v11\nv_lshl_add_u32 v11, v{vG}, 8, v11\nv_lshl_add_u32 v11, v{vC}, 10, v11")
        e(f"v_add_u32 v6, s67, v11\nv_add_u32 v7, {LA_Q}, v11")
        e(f"v_add_u32 v9, s67, v10")
    def a_issue(self, depthf):
        e, p = self.e, self.p
        T1, T0, QG = 64, 128, 192
        seq = [("t1", i) for i in range(16)] + [("t0", i) for i in range(16)]
        q = p["QPOS"]
        seq = seq[:q] + [("q", i) for i in range(8)] + seq[q:]
        tok, done = [], 0
        tokof = {}
        def landed_action(it):
            kind, i = it
            if kind == "t1":
                e(f"v_xor_b32 v12, {16*fswz(i)}, v9")
                e.ds(f"ds_write_b128 v12, {vr(T1+4*i)} offset:{1024*i}")
                if i == 15:
                    e("s_waitcnt lgkmcnt(0)")
                    for ks in range(16):
                        e(f"v_xor_b32 v12, {16*ks}, v6")
                        e.ds(f"ds_read_b128 {vr(T1+4*ks)}, v12")
            elif kind == "t0":
                e(f"v_xor_b32 v12, {16*fswz(i)}, v9")
                e.ds(f"ds_write_b128 v12, {vr(T0+4*i)} offset:{1024*i}")
        def qload(i):
            if i % 4 == 0: e(f"s_add_u32 s12, s15, {1024*i}")
            return e.vmem(f"buffer_load_dwordx4 {vr(QG+4*i)}, v10, {WS}, s12 offen offset:{1024*(i&3)} sc1")
        for n, it in enumerate(seq):
            D = depthf(n)
            if n >= D:
                e.wait_vm(tok[n - D])
            kind, i = it
            if kind == "q":
                t = qload(i)
            else:
                if i % 4 == 0: e(f"s_add_u32 s3, s14, {(16384 if kind == 't1' else 0) + 1024*i}")
                elif seq[n-1][0] == "q": e(f"s_add_u32 s3, s14, {(16384 if kind == 't1' else 0) + 1024*(i & ~3)}")
                t = e.vmem(f"buffer_load_dwordx4 {vr((T1 if kind == 't1' else T0)+4*i)}, v10, s[48:51], s3 offen offset:{1024*(i&3)} {p['NT']}")
            tok.append(t); tokof[it] = t
            while done <= n - D and done < len(seq) and n >= D:
                landed_action(seq[done]); done += 1
        e.wait_vm(tokof[("q", 7)])
        while done < len(seq) and tok[done] <= tokof[("q", 7)]:
            landed_action(seq[done]); done += 1
        self.stamp(2)
        tags = [QG + 4 * i + k for i in range(8) for k in (1, 3)]
        self.tagcheck(tags, 60)
        R, B = self.lab("aqr"), self.lab("aqb")
        e(f"s_cbranch_vccnz {R}")
        e.label(B)
        def ool():
            e.label(R)
            self.poll(lambda: [qload(i) for i in range(8)], tags, 60, "aqp")
            e(f"s_branch {B}")
        self.ool.append(ool)
        self.stamp(3)
        e(f"v_lshlrev_b32 v13, 3, v{vL}\ns_lshl_b32 s3, s{sW}, 12\ns_add_u32 s3, s3, {LA_Q}\nv_add_u32 v13, s3, v13")
        e(f"s_and_b32 s3, s{sW}, 3\ns_lshl_b32 s3, s3, 4\nv_xor_b32 v13, s3, v13")
        for i in range(8):
            e(f"v_mov_b32 v{QG+4*i+1}, v{QG+4*i+2}")
            if i % 2 == 0: e(f"v_xor_b32 v12, {16*fswz(i>>1)}, v13")
            e.ds(f"ds_write_b64 v12, v[{QG+4*i}:{QG+4*i+1}] offset:{1024*(i>>1)+512*(i&1)}")
        while done < len(seq):
            e.wait_vm(tok[done]); landed_action(seq[done]); done += 1
        e("s_waitcnt lgkmcnt(0)")

    def a_wloads(self):
        e, nt = self.e, self.p["NT"]
        UV, WO = 160, 192
        self.srd(52, 24, 1 << 22); self.srd(56, 26, 1 << 22)
        e(f"s_lshl_b32 s3, s{sW}, 19\ns_lshl_b32 s12, s65, 8\ns_add_u32 s3, s3, s12\ns_lshl_b32 s12, s66, 7\ns_add_u32 s3, s3, s12")
        e(f"v_bfe_u32 v14, v{vL}, 3, 1\nv_lshlrev_b32 v14, 16, v14\nv_lshl_add_u32 v14, v{vG}, 17, v14\nv_lshl_add_u32 v14, v8, 4, v14")
        self.tuv, self.two = [], []
        for i in range(8):
            self.tuv.append(e.vmem(f"buffer_load_dwordx4 {vr(UV+4*i)}, v14, s[52:55], s3 offen {nt}"))
            if i < 7: e("s_addk_i32 s3, 0x2000")
        e(f"s_lshl_b32 s3, s64, 16\ns_lshr_b32 s12, s{sW}, 2\ns_lshl_b32 s12, s12, 15\ns_add_u32 s3, s3, s12\ns_and_b32 s12, s{sW}, 3\ns_lshl_b32 s12, s12, 8\ns_add_u32 s3, s3, s12")
        e(f"v_lshlrev_b32 v15, 13, v{vG}\nv_lshl_add_u32 v15, v{vC}, 4, v15")
        for i in range(8):
            if i == 4: e("s_addk_i32 s3, 0x1000")
            self.two.append(e.vmem(f"buffer_load_dwordx4 {vr(WO+4*i)}, v15, s[56:59], s3 offen offset:{1024*(i&3)} {nt}"))

    def a_main(self):
        e, p = self.e, self.p
        T1 = 64
        FR = (224, 236, 44)
        e.label("L_amain")
        e("s_barrier")
        self.stamp(4)
        e(f"s_or_b32 s3, s64, s{sW}\ns_cmp_eq_u32 s3, 0\ns_cbranch_scc0 L_noep")
        e(f"v_mov_b32 v12, s{sT}\nv_mov_b32 v13, 0")
        self.exec_mask(1, 0)
        e(f"buffer_store_dword v12, v13, {WS}, 0 offen sc1")
        self.exec_full()
        e.label("L_noep")
        if p["WPOS"] == "qk": self.a_wloads()
        def rd(ks):
            f = FR[ks % 3]
            e(f"v_xor_b32 v12, {16*ks}, v6\nv_xor_b32 v13, {16*ks}, v7")
            e.ds(f"ds_read_b128 {vr(f)}, v13")
            e.ds(f"ds_read_b128 {vr(f+4)}, v13 offset:16384")
            return e.ds(f"ds_read_b128 {vr(f+8)}, v12")
        tk = {0: rd(0), 1: rd(1)}
        for ks in range(16):
            f = FR[ks % 3]
            e.wait_lg(tk[ks])
            c = lambda r: "0" if ks == 0 else vr(r)
            e(f"v_mfma_f32_16x16x32_bf16 {vr(24)}, {vr(T1+4*ks)}, {vr(f)}, {c(24)}")
            e(f"v_mfma_f32_16x16x32_bf16 {vr(28)}, {vr(T1+4*ks)}, {vr(f+4)}, {c(28)}")
            if ks + 2 < 16: tk[ks + 2] = rd(ks + 2)
            e(f"v_mfma_f32_16x16x32_bf16 {vr(16)}, {vr(f+8)}, {vr(f)}, {c(16)}")
            e(f"v_mfma_f32_16x16x32_bf16 {vr(20)}, {vr(f+8)}, {vr(f+4)}, {c(20)}")
        e(f"v_lshlrev_b32 v13, 5, v{vC}\ns_lshl_b32 s3, s{sW}, 2\nv_add_u32 v13, {LA_MX}, v13\nv_add_u32 v12, s3, v13")
        e("s_barrier")
        for hh in range(2):
            a, b = 16 + 4 * hh, 24 + 4 * hh
            e(f"v_max3_f32 v{56+hh}, v{a}, v{a+1}, v{a+2}\nv_max3_f32 v{56+hh}, v{56+hh}, v{a+3}, v{b}\nv_max3_f32 v{56+hh}, v{56+hh}, v{b+1}, v{b+2}\nv_max_f32 v{56+hh}, v{56+hh}, v{b+3}")
        self.allred_G([56, 57], [58, 59], "v_max_f32")
        self.exec_mask(0xffff, 0)
        e.ds("ds_write_b32 v12, v56")
        e.ds("ds_write_b32 v12, v57 offset:512")
        self.exec_full()
        e("s_waitcnt lgkmcnt(0)\ns_barrier")
        for hh in range(2):
            e.ds(f"ds_read_b128 {vr(224+8*hh)}, v13 offset:{512*hh}")
            e.ds(f"ds_read_b128 {vr(228+8*hh)}, v13 offset:{512*hh+16}")
        e(f"v_lshrrev_b32 v14, 1, v{vG}\ns_lshl_b32 s3, s{sW}, 1\nv_add_u32 v14, s3, v14\nv_xor_b32 v14, v14, v{vC}\nv_lshlrev_b32 v14, 4, v14\nv_lshl_add_u32 v14, v{vC}, 9, v14")
        e(f"v_and_b32 v15, 1, v{vG}\nv_lshl_add_u32 v14, v15, 3, v14\nv_add_u32 v14, {LA_P}, v14")
        e("s_waitcnt lgkmcnt(0)")
        for hh in range(2):
            m = 224 + 8 * hh
            e(f"v_max3_f32 v{56+hh}, v{m}, v{m+1}, v{m+2}\nv_max3_f32 v{56+hh}, v{56+hh}, v{m+3}, v{m+4}\nv_max3_f32 v{56+hh}, v{56+hh}, v{m+5}, v{m+6}\nv_max_f32 v{56+hh}, v{56+hh}, v{m+7}")
            e(f"v_mul_f32 v{56+hh}, {sCS}, v{56+hh}")
        for T in range(2):
            for hh in range(2):
                for r in range(4):
                    s = 16 + 8 * T + 4 * hh + r
                    e(f"v_fma_f32 v{s}, v{s}, {sCS}, -v{56+hh}")
        for s in range(16, 32): e(f"v_exp_f32 v{s}, v{s}")
        for hh in range(2):
            a, b = 16 + 4 * hh, 24 + 4 * hh
            e(f"v_add_f32 v{58+hh}, v{a}, v{a+1}")
            for s in (a + 2, a + 3, b, b + 1, b + 2, b + 3): e(f"v_add_f32 v{58+hh}, v{58+hh}, v{s}")
        for T in range(2):
            for hh in range(2):
                s = 16 + 8 * T + 4 * hh
                e(f"v_cvt_pk_bf16_f32 v{s}, v{s}, v{s+1}\nv_cvt_pk_bf16_f32 v{s+1}, v{s+2}, v{s+3}")
                e.ds(f"ds_write_b64 v14, v[{s}:{s+1}] offset:{256*T+8192*hh}")
        self.allred_G([58, 59], [56, 57], "v_add_f32")
        self.exec_mask(0xffff, 0)
        e.ds(f"ds_write_b32 v12, v58 offset:{LA_LS-LA_MX}")
        e.ds(f"ds_write_b32 v12, v59 offset:{LA_LS-LA_MX+512}")
        self.exec_full()
        e(f"v_and_b32 v21, 31, v{vL}\nv_lshrrev_b32 v22, 5, v{vL}")
        e(f"v_xor_b32 v20, v22, v{vC}\nv_lshlrev_b32 v20, 4, v20\nv_lshl_add_u32 v20, v21, 9, v20\nv_add_u32 v20, {LA_P}, v20")
        e(f"v_bfe_u32 v23, v{vL}, 2, 2\nv_lshlrev_b32 v24, 2, v23\nv_lshrrev_b32 v25, 1, v23\nv_xor_b32 v25, v25, v22\nv_lshl_add_u32 v24, v25, 1, v24")
        e(f"v_and_b32 v25, 1, v{vG}\nv_bfe_u32 v26, v{vL}, 1, 1\nv_lshl_add_u32 v25, v25, 1, v26\ns_and_b32 s3, s{sW}, 1\ns_lshl_b32 s3, s3, 3\nv_add_u32 v25, s3, v25\nv_xor_b32 v24, v24, v25")
        e(f"v_lshlrev_b32 v24, 4, v24\nv_and_b32 v26, 1, v{vL}\nv_lshl_add_u32 v24, v26, 3, v24\nv_lshl_add_u32 v24, v23, 10, v24\nv_lshl_add_u32 v24, v22, 13, v24")
        e(f"s_lshr_b32 s3, s{sW}, 1\ns_lshl_b32 s3, s3, 8\nv_add_u32 v16, s3, v24")
        e("v_xor_b32 v17, 16, v16\nv_add_u32 v17, 0x1000, v17\nv_xor_b32 v18, 64, v16\nv_xor_b32 v19, 64, v17")
        e("s_waitcnt lgkmcnt(0)\ns_barrier")
        self.stamp(5)
        ACC = (128, 144)
        for R in range(2):
            def rdp(n):
                f = FR[n % 3]
                if n == 4:
                    for k in range(16, 20): e(f"v_add_u32 v{k}, 0x10000, v{k}")
                e(f"v_xor_b32 v12, {32*n}, v20")
                e.ds(f"ds_read_b128 {vr(f)}, v12 offset:{256*R}")
                for t in range(2):
                    for nn in range(2):
                        tkk = e.ds(f"ds_read_b64_tr_b16 v[{f+4+4*t+2*nn}:{f+5+4*t+2*nn}], v{16+2*t+nn} offset:{16384*(n&3)}")
                return tkk
            tk = {0: rdp(0), 1: rdp(1)}
            for n in range(8):
                f = FR[n % 3]
                e.wait_lg(tk[n])
                first = (R == 0 and n == 0)
                e(f"v_mfma_f32_32x32x16_bf16 {vr(ACC[0],16)}, {vr(f+4)}, {vr(f)}, {'0' if first else vr(ACC[0],16)}")
                if n + 2 < 8: tk[n + 2] = rdp(n + 2)
                e(f"v_mfma_f32_32x32x16_bf16 {vr(ACC[1],16)}, {vr(f+8)}, {vr(f)}, {'0' if first else vr(ACC[1],16)}")
            e("s_barrier")
            if R == 0:
                for ks in range(16):
                    e(f"v_xor_b32 v12, {16*ks}, v6")
                    e.ds(f"ds_write_b128 v12, {vr(T1+4*ks)}")
                for k in range(16, 20): e(f"v_subrev_u32 v{k}, 0x10000, v{k}")
                e("s_waitcnt lgkmcnt(0)\ns_barrier")
        if p["WPOS"] == "pv": self.a_wloads()
        e(f"v_and_b32 v13, 7, v21\nv_lshlrev_b32 v13, 4, v13\nv_lshl_add_u32 v13, v21, 10, v13\nv_lshl_add_u32 v13, v22, 3, v13\ns_lshl_b32 s3, s{sW}, 7\nv_add_u32 v13, s3, v13")
        for t in range(2):
            for q in range(4):
                a = ACC[t] + 4 * q
                e(f"v_cvt_pk_bf16_f32 v{a}, v{a}, v{a+1}\nv_cvt_pk_bf16_f32 v{a+1}, v{a+2}, v{a+3}\nv_xor_b32 v12, {16*(4*t+q)}, v13")
                e.ds(f"ds_write_b64 v12, v[{a}:{a+1}]")
        e(f"s_and_b32 s3, s{sW}, 1\ns_lshl_b32 s3, s3, 6\nv_xor_b32 v13, s3, v10\ns_lshl_b32 s3, s{sW}, 12\nv_add_u32 v13, s3, v13")
        e(f"s_lshl_b32 s12, s{sW}, 18\ns_lshl_b32 s3, s64, 10\ns_add_u32 s12, s12, s3\ns_add_u32 s12, s12, {WS_AO}\ns_mov_b32 s15, 0x10000")
        e("s_waitcnt lgkmcnt(0)\ns_barrier")
        tk = []
        for i in range(4):
            e(f"v_xor_b32 v12, {16*i}, v13")
            tk.append(e.ds(f"ds_read_b128 {vr(64+4*i)}, v12 offset:{1024*i}"))
        for i in range(4):
            e.wait_lg(tk[i])
            e.vmem(f"buffer_store_dwordx4 {vr(64+4*i)}, v10, {WS}, s12 offen sc1")
            if i < 3: e("s_add_u32 s12, s12, s15")
        e("s_waitcnt vmcnt(0)\ns_barrier")
        self.stamp(6)
        if p["WPOS"] == "ao": self.a_wloads()
        e(f"s_cmp_eq_u32 s{sW}, 0\ns_cbranch_scc0 L_at_f")
        e(f"v_lshlrev_b32 v12, 5, v21\nv_add_u32 v12, {LA_MX}, v12")
        for k in range(2):
            e.ds(f"ds_read_b128 {vr(64+8*k)}, v12 offset:{1024*k}")
            e.ds(f"ds_read_b128 {vr(68+8*k)}, v12 offset:{1024*k+16}")
        e(f"v_lshlrev_b32 v13, 10, v21\ns_lshl_b32 s12, s64, 4\ns_add_u32 s12, s12, {WS_AML}\nv_mov_b32 v53, s{sT}\nv_mov_b32 v55, s{sT}")
        e("s_waitcnt lgkmcnt(0)")
        e("v_max3_f32 v52, v64, v65, v66\nv_max3_f32 v52, v52, v67, v68\nv_max3_f32 v52, v52, v69, v70\nv_max_f32 v52, v52, v71")
        e(f"v_mul_f32 v52, {sCS}, v52\nv_add_f32 v54, v72, v73")
        for r in range(74, 80): e(f"v_add_f32 v54, v54, v{r}")
        e("s_mov_b32 exec_hi, 0")
        e(f"buffer_store_dwordx4 v[52:55], v13, {WS}, s12 offen sc1")
        self.exec_full()
        e(f"s_lshl_b32 s12, s65, 10\ns_add_u32 s12, s12, {WS_AML}")
        self.poll(lambda: e(f"buffer_load_dwordx4 v[64:67], v10, {WS}, s12 offen sc1"), [65, 67], 60, "gaml")
        e("v_mov_b32 v56, v64")
        self.rowred([56], "v_max_f32", (8, 4, 2, 1))
        self.allred_G([56], [57], "v_max_f32")
        e("v_sub_f32 v64, v64, v56\nv_exp_f32 v64, v64\nv_mul_f32 v66, v66, v64")
        self.rowred([66], "v_add_f32", (8, 4, 2, 1))
        self.allred_G([66], [57], "v_add_f32")
        e("v_rcp_f32 v66, v66\nv_mul_f32 v64, v64, v66\nv_cvt_pk_bf16_f32 v65, v64, v64\nv_and_b32 v66, 0xffff0000, v65\nv_sub_f32 v66, v64, v66\nv_cvt_pk_bf16_f32 v66, v66, v66")
        e(f"v_lshlrev_b32 v12, 1, v{vL}")
        e.ds(f"ds_write_b16 v12, v65 offset:{LA_F}")
        e.ds(f"ds_write_b16 v12, v66 offset:{LA_F+128}")
        e("s_waitcnt lgkmcnt(0)")
        e.label("L_at_f")
        e(f"s_lshl_b32 s12, s65, 16\ns_lshr_b32 s3, s{sW}, 2\ns_lshl_b32 s3, s3, 15\ns_add_u32 s12, s12, s3\ns_and_b32 s3, s{sW}, 3\ns_lshl_b32 s3, s3, 8\ns_add_u32 s12, s12, s3\ns_add_u32 s12, s12, {WS_AO}")
        e(f"v_lshlrev_b32 v15, 13, v{vG}\nv_lshl_add_u32 v15, v{vC}, 4, v15")
        e(f"v_bfe_u32 v16, v{vL}, 3, 1\nv_lshlrev_b32 v17, 7, v16\nv_lshl_add_u32 v17, v{vG}, 4, v17\ns_lshr_b32 s3, s{sW}, 2\ns_lshl_b32 s3, s3, 6\nv_add_u32 v17, s3, v17")
        e(f"s_lshl_b32 s3, s{sW}, 10\nv_add_u32 v18, s3, v10")
        e("s_barrier")
        self.stamp(7)
        tk = []
        for i in range(8):
            if i == 4: e("s_addk_i32 s12, 0x1000")
            tk.append(e.vmem(f"buffer_load_dwordx4 {vr(64+4*i)}, v15, {WS}, s12 offen offset:{1024*(i&3)} sc1"))
        e.ds(f"ds_read_b128 v[28:31], v17 offset:{LA_F}")
        e("s_waitcnt lgkmcnt(0)")
        self.gemv8(24, 28, 64, tk)
        e.ds(f"ds_write_b128 v18, v[24:27] offset:{LA_R1}")
        e(f"v_lshlrev_b32 v17, 4, v16\nv_lshl_add_u32 v17, v{vG}, 5, v17\ns_lshl_b32 s3, s{sW}, 7\nv_add_u32 v17, s3, v17")
        e("s_waitcnt lgkmcnt(0)\ns_barrier")
        e(f"s_cmp_lt_u32 s{sW}, 2\ns_cbranch_scc0 L_at_l")
        e(f"v_lshrrev_b32 v12, 5, v0\nv_lshlrev_b32 v13, 4, v21\nv_lshl_add_u32 v13, v12, 10, v13")
        for k in range(4): e.ds(f"ds_read_b128 {vr(64+4*k)}, v13 offset:{LA_R1+4096*(k>>1)+512*(k&1)}")
        e(f"v_and_b32 v13, 1, v{vG}\nv_lshlrev_b32 v13, 3, v13\nv_lshl_add_u32 v13, v{vC}, 4, v13\nv_lshl_add_u32 v13, v12, 8, v13")
        e("s_waitcnt lgkmcnt(0)")
        for k in range(1, 4):
            e(f"v_pk_add_f32 v[64:65], v[64:65], v[{64+4*k}:{65+4*k}]\nv_pk_add_f32 v[66:67], v[66:67], v[{66+4*k}:{67+4*k}]")
        e("v_cvt_pk_bf16_f32 v64, v64, v65\nv_cvt_pk_bf16_f32 v65, v66, v67")
        e.ds(f"ds_write_b64 v13, v[64:65] offset:{LA_LAT}")
        e("s_waitcnt lgkmcnt(0)")
        e.label("L_at_l")
        e("s_barrier")
        e.ds(f"ds_read_b128 v[28:31], v17 offset:{LA_LAT}")
        e("s_waitcnt lgkmcnt(0)")
        self.gemv8(24, 28, 160, None)
        e.ds(f"ds_write_b128 v18, v[24:27] offset:{LA_R2}")
        e(f"v_lshlrev_b32 v13, 8, v16\nv_lshl_add_u32 v13, v8, 4, v13\nv_lshl_add_u32 v13, v{vG}, 11, v13")
        e(f"v_lshlrev_b32 v14, 3, v16\nv_lshl_add_u32 v14, v8, 4, v14\ns_lshl_b32 s3, s{sW}, 7\nv_add_u32 v14, s3, v14")
        e(f"s_lshr_b32 s12, s{sW}, 2\ns_lshl_b32 s12, s12, 6\ns_add_u32 s3, s3, s12\nv_lshlrev_b32 v17, 4, v{vG}\nv_add_u32 v17, s3, v17")
        e("s_waitcnt lgkmcnt(0)\ns_barrier")
        for k in range(4): e.ds(f"ds_read_b128 {vr(64+4*k)}, v13 offset:{LA_R2+1024*(k>>1)+(512+128)*(k&1)}")
        e("s_waitcnt lgkmcnt(0)")
        for k in range(1, 4):
            e(f"v_pk_add_f32 v[64:65], v[64:65], v[{64+4*k}:{65+4*k}]\nv_pk_add_f32 v[66:67], v[66:67], v[{66+4*k}:{67+4*k}]")
        self.allred_G([64, 65, 66, 67], [68, 69, 70, 71], "v_add_f32")
        e("v_cvt_pk_bf16_f32 v64, v64, v65\nv_cvt_pk_bf16_f32 v65, v66, v67")
        e.ds(f"ds_write_b64 v14, v[64:65] offset:{LA_CTX}")
        e("s_waitcnt lgkmcnt(0)")
        e.ds(f"ds_read_b128 v[28:31], v17 offset:{LA_CTX}")
        e("s_waitcnt lgkmcnt(0)")
        self.gemv8(24, 28, 192, None)
        e(f"s_cmp_lt_u32 s{sW}, 4\ns_cbranch_scc1 L_at_o")
        e.ds(f"ds_write_b128 v18, v[24:27] offset:{LA_R1}")
        e("s_waitcnt lgkmcnt(0)\ns_barrier")
        self.exit()
        e.label("L_at_o")
        e(f"s_lshl_b32 s12, s64, 12\ns_lshl_b32 s3, s{sW}, 10\ns_add_u32 s12, s12, s3\ns_add_u32 s12, s12, {WS_OUTA}")
        e(f"v_and_b32 v13, 1, v{vG}\nv_lshlrev_b32 v13, 5, v13\nv_lshl_add_u32 v13, v{vC}, 6, v13\nv_lshl_add_u32 v13, v22, 4, v13\nv_mov_b32 v53, s{sT}\nv_mov_b32 v55, s{sT}")
        e("s_barrier")
        e.ds(f"ds_read_b128 v[64:67], v18 offset:{LA_R1+4096}")
        e("s_waitcnt lgkmcnt(0)")
        e("v_pk_add_f32 v[24:25], v[24:25], v[64:65]\nv_pk_add_f32 v[26:27], v[26:27], v[66:67]")
        e(f"v_cndmask_b32 v52, v24, v26, {sHI}\nv_cndmask_b32 v54, v25, v27, {sHI}")
        e(f"buffer_store_dwordx4 v[52:55], v13, {WS}, s12 offen sc1")
        self.stamp(8)
        e(f"s_cmp_eq_u32 s{sW}, 0\ns_cbranch_scc1 L_at_fin")
        self.exit()
        e.label("L_at_fin")
        e(f"s_lshl_b32 s12, s64, 6\ns_add_u32 s12, s12, {WS_OUTA}\nv_lshrrev_b32 v11, 2, v{vL}\nv_lshlrev_b32 v11, 12, v11\nv_and_b32 v12, 3, v{vL}\nv_lshl_add_u32 v11, v12, 4, v11")
        self.srd(48, 38, 2048)
        e(f"s_lshl_b32 s14, s64, 4\nv_lshlrev_b32 v12, 2, v12\ns_mov_b32 s15, 0x10000")
        def g():
            e("s_mov_b32 s3, s12")
            for k in range(4):
                e(f"buffer_load_dwordx4 {vr(64+4*k)}, v11, {WS}, s3 offen sc1")
                if k < 3: e("s_add_u32 s3, s3, s15")
        self.poll(g, [65, 67, 69, 71, 73, 75, 77, 79], 60, "goa")
        for k in range(1, 4): e(f"v_add_f32 v64, v64, v{64+4*k}\nv_add_f32 v66, v66, v{66+4*k}")
        self.rowred([64, 66], "v_add_f32", (8, 4))
        self.allred_G([64, 66], [68, 69], "v_add_f32")
        e("v_cvt_pk_bf16_f32 v64, v64, v66")
        self.exec_mask(15, 0)
        e("buffer_store_dword v64, v12, s[48:51], s14 offen")
        if self.p["TIMING"]: self.exec_full(); e("s_waitcnt vmcnt(0)"); self.stamp(9)
        self.exit()

    def build(self):
        e, p = self.e, self.p
        self.prologue()
        vm0 = e.vm
        self.phase1()
        vmp = e.vm
        self.b_ctrl()
        e.label("L_actrl")
        e.vm = vmp
        self.a_setup()
        self.a_issue(lambda n: 40)
        e("s_branch L_amain")
        e.label("L_notctrl")
        e.vm = vm0
        e(f"s_cmp_lt_u32 s{sSLOT}, 8\ns_cbranch_scc1 L_astream")
        self.b_stream()
        self.b_tail()
        e.label("L_astream")
        e.vm = vm0
        self.a_setup()
        self.srd(44, 42, WS_SIZE)
        self.tagmake()
        e("s_barrier")
        self.stamp(1)
        self.a_issue(lambda n: p["D_A1"] if n < p["NA1"] else p["D_A2"])
        self.a_main()
        for f in list(self.ool): f()
        if p["TIMING"]:
            e.label("L_exit")
            e("s_mov_b64 exec, -1\ns_memrealtime s[68:69]\ns_getreg_b32 s70, hwreg(HW_REG_XCC_ID)\ns_waitcnt lgkmcnt(0)\nv_mov_b32 v44, 0")
            for i in range(10): e(f"v_writelane_b32 v44, s{80+2*i}, {i}")
            e("v_writelane_b32 v44, s68, 10\nv_writelane_b32 v44, s70, 11")
            e(f"s_lshl_b32 s3, s2, 3\ns_add_u32 s3, s3, s{sW}\ns_lshl_b32 s3, s3, 6\ns_add_u32 s3, s3, {WS_STAMP}\nv_lshlrev_b32 v45, 2, v{vL}\ns_mov_b64 exec, 0xffff")
            e(f"buffer_store_dword v44, v45, {WS}, s3 offen")
        if p["PAD"]:
            e.label("L_exit")
            e(f"s_add_u32 s80, s80, {p['PAD']}")
            e.label("L_padl")
            e("s_sleep 4\ns_memrealtime s[68:69]\ns_waitcnt lgkmcnt(0)\ns_sub_u32 s68, s68, s80\ns_cmp_lt_i32 s68, 0\ns_cbranch_scc1 L_padl")
        e.label("L_end")
        e("s_endpgm")
        e.label("L_codeend")
        body = pad_hazards(e.L)
        ref = open(f"cdna_kernels/{NAME}.s.ref").read().split("\n")
        head = [l for l in ref if l.startswith(";") and "@launch" not in l]
        out = head + ["; @launch grid=(256,1,1) block=(512,1,1) lds=163840",
                      '.amdgcn_target "amdgcn-amd-amdhsa--gfx950"', ".text", f".globl {NAME}_kernel", ".p2align 8",
                      f".type {NAME}_kernel,@function", f"{NAME}_kernel:"]
        out += [("" if l.endswith(":") else "    ") + l for l in body]
        out += ['.section .rodata,"a"', ".p2align 6", f".amdhsa_kernel {NAME}_kernel", "  .amdhsa_next_free_vgpr 256",
                "  .amdhsa_next_free_sgpr 102", "  .amdhsa_accum_offset 256", "  .amdhsa_group_segment_fixed_size 0",
                "  .amdhsa_kernarg_size 112", "  .amdhsa_user_sgpr_count 2", "  .amdhsa_user_sgpr_kernarg_segment_ptr 1",
                "  .amdhsa_system_sgpr_workgroup_id_x 1", ".end_amdhsa_kernel", ""]
        return "\n".join(out)

if __name__ == "__main__":
    kw = {}
    for a in sys.argv[2:]:
        k, v = a.split("=")
        kw[k] = (v == "True") if v in ("True", "False") else (int(v) if v.lstrip("-").isdigit() else v)
    open(sys.argv[1], "w").write(K(**kw).build())
```

```python
import sys, struct
from asmlib import Emit, pad_hazards

NAME = "concat_heads__compressed_kv_cla__gqa_block_cached__decode"
DEF = dict(D_B0=2, NB0=18, D_B=5, N1=14, PVK=3, D_A1=4, NA1=6, D_A2=5, QPOS=32, TIMING=False, MAXPOLL=400000,
           NT="nt", PAD=0, NWE=8, LIGHT=False, PROG=False, GDELAY=0, GM="sc1", SM="sc1", SDELAY=0, NFAST=48, CPS=1)

def f32(x): return "0x%08x" % struct.unpack("<I", struct.pack("<f", x))[0]
CS = 1.4426950408889634 * 128 ** -0.5

WS_QP, WS_QABS, WS_QB, WS_BML, WS_AML = 0x10000, 0x90000, 0xA0000, 0xA8000, 0xB0000
WS_BO, WS_OUTB, WS_OUTA, WS_AO, WS_STAMP = 0xC0000, 0x120000, 0x140000, 0x200000, 0x400000
WS_SIZE = 0x800000
SLOW = 0x500000
L_PR = 32768
L_LQ = 40960
LB_Q, LB_MX, LB_LS, LB_F, LB_G, LB_FLAG, LB_R4, LB_R5 = 0, 1024, 1152, 1280, 1408, 1536, 2048, 20480
LA_Q = 131072
LA_P, LA_MX, LA_LS = 131072, 147456, 148480
LA_F, LA_R1, LA_LAT, LA_R2, LA_CTX = 32768, 36864, 49152, 53248, 61440

vL, vC, vG = 1, 2, 3
SELA, SELB = 32, 36
sW, sX, sSLOT, sH1, sJ, sT = 6, 7, 8, 9, 10, 11
WS = "s[44:47]"
sHI = "s[62:63]"
sCS = "s60"

def fswz(k):
    k0, k1, k2, k3 = k & 1, (k >> 1) & 1, (k >> 2) & 1, (k >> 3) & 1
    return (k1 << 3) | (k0 << 2) | ((k1 ^ k3) << 1) | k2

def vr(a, n=4): return f"v[{a}:{a+n-1}]"

class K:
    def __init__(self, **kw):
        self.p = dict(DEF); self.p.update(kw)
        self.e = Emit()
        self.nlab = 0
        self.ool = []
    def lab(self, s):
        self.nlab += 1
        return f"L_{s}_{self.nlab}"
    def stamp(self, i):
        if self.p["TIMING"] and not self.p["PROG"] and (not self.p["LIGHT"] or i in (4, 6, 7)):
            self.e(f"s_memrealtime s[98:99]\ns_waitcnt lgkmcnt(0)\ns_mov_b32 s{70+i}, s98")
    def prog(self, n, step):
        if self.p["PROG"] and (n + 1) % step == 0 and (n + 1) // step <= 13:
            k = 72 + 2 * ((n + 1) // step - 1)
            self.e(f"s_memrealtime s[{k}:{k+1}]")
    def cnt(self, i):
        if self.p["TIMING"] and not self.p["PROG"]: self.e(f"s_mov_b32 s{70+i}, s13")
    def exit(self):
        self.e("s_branch L_exit" if self.p["TIMING"] or self.p["PAD"] else "s_endpgm")
    def srd(self, s, ptr, size):
        self.e(f"s_mov_b32 s{s}, s{ptr}\ns_mov_b32 s{s+1}, s{ptr+1}\ns_mov_b32 s{s+2}, {size}\ns_mov_b32 s{s+3}, 0x20000")
    def exec_full(self): self.e("s_mov_b64 exec, -1")
    def exec_mask(self, lo, hi): self.e(f"s_mov_b32 exec_lo, {lo:#x}\ns_mov_b32 exec_hi, {hi:#x}")
    def allred_G(self, vals, tmps, op, steps=(32, 16)):
        e = self.e
        for st in steps:
            for v, t in zip(vals, tmps): e(f"v_mov_b32 v{t}, v{v}")
            for v, t in zip(vals, tmps): e(f"v_permlane{st}_swap_b32 v{t}, v{v}")
            for v, t in zip(vals, tmps): e(f"{op} v{v}, v{t}, v{v}")
    def rowred(self, vals, op, rors):
        for r in rors:
            for v in vals: self.e(f"{op}_dpp v{v}, v{v}, v{v} row_ror:{r} row_mask:0xf bank_mask:0xf")
    def tagcheck(self, tags, acc):
        e = self.e
        e(f"v_xor_b32 v{acc}, s{sT}, v{tags[0]}")
        for t in tags[1:]: e(f"v_bitop3_b32 v{acc}, v{t}, s{sT}, v{acc} bitop3:0xbe")
        e(f"v_cmp_ne_u32 vcc, 0, v{acc}")
    def poll(self, issue, tags, acc, name, fast=None, slowpub=None):
        e = self.e
        L, D, F = self.lab(name), self.lab(name + "d"), self.lab(name + "f")
        e("s_mov_b32 s13, 0")
        e.label(L)
        issue()
        e(f"s_add_u32 s13, s13, 1\ns_waitcnt vmcnt(0)")
        self.tagcheck(tags, acc)
        if fast:
            e(f"s_cbranch_vccnz {F}")
            def ool():
                e.label(F)
                e(f"s_cmp_gt_u32 s13, {self.p['MAXPOLL']}\ns_cbranch_scc1 {D}\ns_cmp_eq_u32 s13, {self.p['NFAST']}\ns_cbranch_scc0 {L}")
                if slowpub: slowpub()
                e(f"s_add_u32 {fast}, {fast}, {SLOW}\ns_branch {L}")
            self.ool.append(ool)
        else:
            e(f"s_cmp_gt_u32 s13, {self.p['MAXPOLL']}\ns_cbranch_scc1 {D}\ns_cbranch_vccnz {L}")
        e.label(D)
        if slowpub: slowpub()
    def expand4(self, dst, src, pi):
        for q in range(4): self.e(f"v_perm_b32 v{dst+q}, v{src}, v{src}, v{SELB+4*pi+q}")
    def gemv8(self, acc, frag, data, toks, E=(44, 48)):
        e = self.e
        self.expand4(E[0], frag, 0)
        for i in range(8):
            if i + 1 < 8: self.expand4(E[(i + 1) & 1], frag + ((i + 1) >> 1), (i + 1) & 1)
            if toks is not None and toks[i] is not None: e.wait_vm(toks[i])
            e(f"v_mfma_f32_16x16x32_bf16 {vr(acc)}, {vr(E[i&1])}, {vr(data+4*i)}, {'0' if i == 0 else vr(acc)}")

    def prologue(self):
        e, nt = self.e, self.p["NT"]
        e("s_cmp_ge_u32 s2, 256\ns_cbranch_scc1 L_end")
        e("s_load_dwordx16 s[16:31], s[0:1], 0\ns_load_dwordx8 s[32:39], s[0:1], 64\ns_load_dwordx4 s[40:43], s[0:1], 96")
        if self.p["TIMING"]:
            for i in range(72, 98): e(f"s_mov_b32 s{i}, 0")
            e("s_memrealtime s[70:71]")
        if self.p["PAD"]: e("s_memrealtime s[80:81]")
        e("s_getpc_b64 s[4:5]")
        e.label("L_pc")
        e("v_lshlrev_b32 v4, 6, v0\nv_min_u32 v4, L_codeend-L_pc-4, v4")
        e.vmem("global_load_dword v5, v4, s[4:5]")
        e(f"v_lshrrev_b32 v6, 6, v0\nv_and_b32 v{vL}, 63, v0\nv_and_b32 v{vC}, 15, v0\nv_bfe_u32 v{vG}, v0, 4, 2")
        e(f"v_readfirstlane_b32 s{sW}, v6")
        e(f"s_and_b32 s{sX}, s2, 7\ns_lshr_b32 s{sSLOT}, s2, 3")
        e(f"v_bfe_u32 v7, v0, 3, 1\nv_lshlrev_b32 v7, 6, v7\nv_lshl_add_u32 v7, v{vG}, 4, v7\nv_and_b32 v8, 7, v0\nv_lshlrev_b32 v10, 4, v{vL}")
        e(f"s_cmp_lt_u32 s{sSLOT}, 8\ns_cbranch_scc1 L_astream")
        e(f"s_sub_u32 s64, s{sSLOT}, 8\ns_mul_i32 s{sH1}, s64, 43\ns_lshr_b32 s{sH1}, s{sH1}, 8\ns_mul_i32 s3, s{sH1}, 6\ns_sub_u32 s{sJ}, s64, s3\ns_lshl_b32 s3, s{sX}, 2\ns_add_u32 s{sH1}, s{sH1}, s3")
        e(f"s_mul_i32 s3, s{sJ}, {96*8192}\ns_lshl_b32 s12, s{sH1}, 8\ns_add_u32 s61, s3, s12")
        e(f"v_lshrrev_b32 v6, 4, v0\nv_lshlrev_b32 v4, 13, v6\nv_lshl_add_u32 v4, v{vC}, 4, v4\nv_add_u32 v4, s61, v4\nv_add_u32 v11, 0x40000, v4\nv_add_u32 v12, 0x80000, v4")
        e(f"s_mul_i32 s12, s{sJ}, 192\nv_lshl_add_u32 v6, v6, 1, s12")
        e("s_mov_b32 s50, 0x400000\ns_mov_b32 s51, 0x20000\ns_mov_b32 s54, 0x400000\ns_mov_b32 s55, 0x20000")
        e("s_movk_i32 s58, 0x400\ns_mov_b32 s59, 0x20000\ns_movk_i32 s46, 0x400\ns_mov_b32 s47, 0x20000")
        e(f"s_cmp_eq_u32 s{sW}, 7\ns_waitcnt lgkmcnt(0)")
        e("s_mov_b32 s48, s20\ns_mov_b32 s49, s21\ns_mov_b32 s56, s16\ns_mov_b32 s57, s17")
        for i in range(3): e.vmem(f"buffer_load_ushort v{16+i}, v6, s[56:59], 0 offen offset:{64*i}")
        for i in range(3): self.tA = e.vmem(f"buffer_load_dwordx4 {vr(128+4*i)}, v{(4,11,12)[i]}, s[48:51], 0 offen {nt}")
        e("s_mov_b32 s52, s34\ns_mov_b32 s53, s35\ns_mov_b32 s44, s28\ns_mov_b32 s45, s29")
        for i in range(3): e.vmem(f"buffer_load_ushort v{19+i}, v6, s[44:47], 0 offen offset:{64*i}")
        for i in range(3): self.tB = e.vmem(f"buffer_load_dwordx4 {vr(140+4*i)}, v{(4,11,12)[i]}, s[52:55], 0 offen {nt}")
        e("s_cbranch_scc0 L_notctrl")

    def selectors(self):
        e = self.e
        e(f"s_mov_b32 s62, 0\ns_mov_b32 s63, -1\ns_mov_b32 {sCS}, {f32(CS)}")
        self.srd(44, 42, WS_SIZE)
        e("v_and_b32 v15, 3, v0\nv_lshlrev_b32 v15, 4, v15\nv_mov_b32 v13, 0\nv_mov_b32 v11, 0x0c0c0c0c\nv_and_b32 v14, 4, v0\nv_cmp_ne_u32 vcc, 0, v14")
        for pi, d in ((0, 0x0d0c), (1, 0x0f0e)):
            a = SELA + 2 * pi
            e(f"v_mov_b32 v12, {d:#x}\nv_lshlrev_b64 v[{a}:{a+1}], v15, v[12:13]\nv_xor_b32 v{a}, v11, v{a}\nv_xor_b32 v{a+1}, v11, v{a+1}")
            b = SELB + 4 * pi
            e(f"v_cndmask_b32 v{b}, v{a}, v11, vcc\nv_cndmask_b32 v{b+1}, v{a+1}, v11, vcc\nv_cndmask_b32 v{b+2}, v11, v{a}, vcc\nv_cndmask_b32 v{b+3}, v11, v{a+1}, vcc")
    def tagmake(self):
        self.e(f"s_waitcnt lgkmcnt(0)\ns_mul_i32 s{sT}, s{sT}, 0x9e3779b1\ns_add_u32 s{sT}, s{sT}, 0x7f4a7c15")

    def p1_compute(self, ctrl):
        e = self.e
        self.selectors()
        e(f"v_lshlrev_b32 v11, 4, v0\nv_add_u32 v11, {L_PR}, v11")
        if ctrl:
            self.tagmake()
            e(f"v_mov_b32 v57, s{sT}\nv_mov_b32 v59, s{sT}")
            e.ds(f"ds_write_b32 v13, v57 offset:{LB_FLAG+8}")
            e.ds(f"ds_write_b32 v13, v13 offset:{LB_FLAG}")
            e.ds(f"ds_write_b32 v13, v13 offset:{LB_FLAG+4}")
        for (X, W, tk, acc) in ((16, 128, self.tA, 152), (19, 140, self.tB, 156)):
            e.wait_vm(tk)
            for i in range(3): self.expand4(44 + 4 * i, X + i, 0)
            for i in range(3): e(f"v_mfma_f32_16x16x32_bf16 {vr(acc)}, {vr(44+4*i)}, {vr(W+4*i)}, {'0' if i == 0 else vr(acc)}")
        for r in range(4): e(f"v_cndmask_b32 v{152+r}, v{152+r}, v{156+r}, {sHI}")
        e.ds("ds_write_b128 v11, v[152:155]")
        e("s_waitcnt lgkmcnt(0)\ns_barrier")
        self.stamp(1)
        if not ctrl:
            e.ds(f"ds_read_b32 v12, v13 offset:{LB_FLAG+8}")
            e(f"s_waitcnt lgkmcnt(0)\nv_readfirstlane_b32 s{sT}, v12")

    def phase1(self):
        e, nt = self.e, self.p["NT"]
        WQ, WU = 64, 160
        e(f"s_load_dword s{sT}, s[42:43], 0")
        e(f"v_lshl_add_u32 v9, v8, 13, v7\nv_add_u32 v9, s61, v9")
        self.srd(56, 22, 1 << 22)
        for n in range(12):
            for ks in range(2):
                e.vmem(f"buffer_load_dwordx4 {vr(WU+8*n+4*ks)}, v9, s[56:59], 0 offen offset:{128*ks} {nt}")
            if n < 11: e("v_add_u32 v9, 0x10000, v9")
        self.p1_compute(True)
        e(f"v_add_u32 v11, {L_PR}, v10")
        tk = [e.ds(f"ds_read_b128 {vr(WQ+4*w)}, v11 offset:{1024*w}") for w in range(8)]
        e(f"s_lshl_b32 s14, s{sH1}, 14\ns_add_u32 s14, s14, {WS_QP}\ns_lshl_b32 s15, s{sJ}, 11\ns_add_u32 s15, s15, s14")
        e(f"v_mov_b32 v53, s{sT}\nv_mov_b32 v55, s{sT}")
        for w in range(1, 8):
            e.wait_lg(tk[w])
            e(f"v_pk_add_f32 v[{WQ}:{WQ+1}], v[{WQ}:{WQ+1}], v[{WQ+4*w}:{WQ+4*w+1}]\nv_pk_add_f32 v[{WQ+2}:{WQ+3}], v[{WQ+2}:{WQ+3}], v[{WQ+4*w+2}:{WQ+4*w+3}]")
        for _ in range(self.p["SDELAY"]): e("s_sleep 36")
        e(f"v_mov_b32 v52, v{WQ}\nv_mov_b32 v54, v{WQ+1}\nv_mov_b32 v56, v{WQ+2}\nv_mov_b32 v58, v{WQ+3}")
        e.vmem(f"buffer_store_dwordx4 v[52:55], v10, {WS}, s15 offen")
        e.vmem(f"buffer_store_dwordx4 v[56:59], v10, {WS}, s15 offen offset:1024")
        self.stamp(2)
        e(f"s_add_u32 s15, s15, {SLOW}")
        def qp_slow():
            e.vmem(f"buffer_store_dwordx4 v[52:55], v10, {WS}, s15 offen sc1")
            e.vmem(f"buffer_store_dwordx4 v[56:59], v10, {WS}, s15 offen offset:1024 sc1")
        e(f"v_and_b32 v4, 31, v{vL}\nv_lshlrev_b32 v4, 4, v4\nv_lshrrev_b32 v6, 5, v{vL}\nv_lshl_add_u32 v4, v6, 10, v4")
        QF = [16, 24, 120, 128]
        for b in QF:
            for r in range(8): e(f"v_mov_b32 v{b+r}, 0")
        e(f"v_and_b32 v11, 1, v{vG}\nv_lshlrev_b32 v11, 3, v11\nv_lshl_add_u32 v11, v{vC}, 4, v11\nv_lshrrev_b32 v12, 1, v{vG}\nv_lshl_add_u32 v11, v12, 2, v11")
        e(f"v_bfe_u32 v12, v{vL}, 1, 1\nv_lshlrev_b32 v12, 6, v12\nv_lshl_add_u32 v12, v{vG}, 4, v12")
        e(f"v_add_u32 v13, {L_LQ}, v11\nv_add_u32 v14, {L_LQ}, v12")
        WB = 96
        def gat(mats):
            def f():
                for jj in range(6):
                    if jj % 2 == 0: e(f"s_add_u32 s12, s14, {jj*2048}")
                    for mat in mats:
                        e.vmem(f"buffer_load_dwordx4 {vr((WQ, WB)[mat]+4*jj)}, v4, {WS}, s12 offen offset:{(jj&1)*2048+512*mat} sc1")
            return f
        tags = lambda R: [R + 4 * jj + k for jj in range(6) for k in (1, 3)]
        def sum8(R):
            for jj in range(1, 6):
                e(f"v_add_f32 v{R}, v{R}, v{R+4*jj}\nv_add_f32 v{R+2}, v{R+2}, v{R+4*jj+2}")
        e(f"s_cmp_lg_u32 s{sJ}, 0\ns_cbranch_scc1 L_p1_g1")
        self.poll(gat((0, 1)), tags(WQ) + tags(WB), 60, "gqab", fast="s14", slowpub=qp_slow)
        sum8(WB)
        e(f"v_cvt_pk_bf16_f32 v62, v{WB}, v{WB+2}\nv_mov_b32 v63, s{sT}\nv_lshlrev_b32 v15, 1, v11\ns_lshl_b32 s12, s{sH1}, 9\ns_add_u32 s12, s12, {WS_QB}")
        e.vmem(f"buffer_store_dwordx2 v[62:63], v15, {WS}, s12 offen")
        e(f"s_add_u32 s12, s12, {SLOW}")
        e.vmem(f"buffer_store_dwordx2 v[62:63], v15, {WS}, s12 offen sc1")
        e("s_branch L_p1_g2")
        e.label("L_p1_g1")
        self.poll(gat((0,)), tags(WQ), 60, "gqa", fast="s14", slowpub=qp_slow)
        e.label("L_p1_g2")
        self.stamp(3); self.cnt(20)
        sum8(WQ)
        e(f"v_cvt_pk_bf16_f32 v60, v{WQ}, v{WQ+2}")
        e.ds(f"ds_write_b32 v13, v60")
        e("s_waitcnt lgkmcnt(0)")
        for t in range(4):
            m = 0x000f000f << (4 * t)
            self.exec_mask(m, m)
            e.ds(f"ds_read_b128 {vr(QF[t])}, v14")
            e.ds(f"ds_read_b128 {vr(QF[t]+4)}, v14 offset:128")
        self.exec_full()
        e("s_waitcnt lgkmcnt(0)")
        XY = ((44, 48), (136, 140))
        for t in range(6):
            for T in range(2):
                for ks in range(2):
                    acc = XY[t >> 2][T]
                    first = (t & 3 == 0 and ks == 0)
                    e(f"v_mfma_f32_16x16x32_bf16 {vr(acc)}, {vr(WU+16*t+8*T+4*ks)}, {vr(QF[t&3]+4*ks)}, {'0' if first else vr(acc)}")
        e(f"s_lshl_b32 s12, s{sH1}, 11\ns_mul_i32 s15, s{sJ}, 384\ns_add_u32 s12, s12, s15\ns_add_u32 s12, s12, {WS_QABS}")
        e(f"v_lshrrev_b32 v15, 2, v{vC}\nv_lshlrev_b32 v15, 6, v15\nv_lshl_add_u32 v15, v{vG}, 4, v15")
        e(f"s_mov_b32 s3, 0x00110011\ns_cmp_lt_u32 s{sJ}, 5\ns_cselect_b32 s3, 0x11111111, s3")
        self.fixup(44, 48, 64)
        e("v_cvt_pk_bf16_f32 v56, v64, v65\nv_cvt_pk_bf16_f32 v58, v66, v67")
        e("s_mov_b32 exec_lo, s3\ns_mov_b32 exec_hi, s3")
        e.vmem(f"buffer_store_dwordx4 v[56:59], v15, {WS}, s12 offen sc1")
        self.exec_full()
        e("s_cbranch_scc0 L_p1done")
        self.fixup(136, 140, 64)
        e("v_cvt_pk_bf16_f32 v52, v64, v65\nv_cvt_pk_bf16_f32 v54, v66, v67")
        self.exec_mask(0x00110011, 0x00110011)
        e(f"buffer_store_dwordx4 v[52:55], v15, {WS}, s12 offen offset:256 sc1")
        self.exec_full()
        e.label("L_p1done")
        self.stamp(4)

    def fixup(self, X, Y, S):
        e = self.e
        for r in range(4): e(f"v_permlane32_swap_b32 v{X+r}, v{Y+r}")
        for r in range(4): e(f"v_mov_b32_dpp v{S+r}, v{X+r} quad_perm:[0,1,0,1] row_mask:0xf bank_mask:0xf")
        for r in range(4): e(f"v_add_f32_dpp v{S+r}, v{Y+r}, v{S+r} quad_perm:[2,3,2,3] row_mask:0xf bank_mask:0xf")

    def b_ids(self):
        e = self.e
        e(f"s_lshr_b32 s65, s64, 2\ns_lshl_b32 s3, s{sX}, 2\ns_add_u32 s65, s65, s3\ns_and_b32 s66, s64, 3")
        e(f"v_lshl_add_u32 v6, v8, 8, v7")
        e(f"v_lshlrev_b32 v9, 10, v{vG}\nv_lshl_add_u32 v9, v{vC}, 4, v9")
        e(f"s_lshl_b32 s3, s65, 7\ns_and_b32 s12, s{sW}, 3\ns_lshl_b32 s12, s12, 5\ns_add_u32 s3, s3, s12\ns_lshr_b32 s12, s{sW}, 2\ns_lshl_b32 s12, s12, 2\ns_add_u32 s3, s3, s12")
        e(f"s_lshl_b32 s3, s3, 10\ns_lshl_b32 s12, s66, 8\ns_add_u32 s3, s3, s12")
        e(f"v_lshlrev_b32 v4, 13, v{vG}\nv_lshl_add_u32 v4, v{vC}, 4, v4\nv_add_u32 v4, s3, v4")
        self.srd(48, 30, 1 << 25); self.srd(52, 32, 1 << 25); self.srd(56, 36, 1 << 22)
        e("s_cmp_lt_u32 s64, 16\ns_cselect_b32 s58, s58, 0")
    def b_kload(self, KR, t, n):
        return self.e.vmem(f"buffer_load_dwordx4 {vr(KR+16*t+4*n)}, v6, s[48:51], s14 offen offset:{(n>>1)*2048+(n&1)*128} {self.p['NT']}")
    def b_vload(self, VR, t, n):
        return self.e.vmem(f"buffer_load_dwordx4 {vr(VR+16*t+4*n)}, v9, s[52:55], s15 offen offset:{n*256} {self.p['NT']}")
    def b_woload(self, KR, i):
        return self.e.vmem(f"buffer_load_dwordx4 {vr(self.WO[i])}, v4, s[56:59], 0 offen offset:{i*1024} {self.p['NT']}")
    def b_chunks(self, nt, KR, bias, wait_q):
        e = self.e
        ch = []
        def c_q():
            e(f"v_lshrrev_b32 v11, 2, v{vC}\nv_bfe_u32 v12, v{vL}, 1, 1\nv_lshlrev_b32 v12, 6, v12\nv_lshl_add_u32 v12, v{vG}, 4, v12\nv_lshl_add_u32 v12, v11, 8, v12")
            e(f"v_lshlrev_b32 v13, 5, v11\ns_lshl_b32 s3, s{sW}, 2\nv_add_u32 v14, s3, v13\nv_mov_b32 v15, 0")
            if wait_q:
                L = self.lab("wq")
                e.label(L)
                e.ds(f"ds_read_b32 v60, v15 offset:{LB_FLAG}")
                e(f"s_waitcnt lgkmcnt(0)\nv_readfirstlane_b32 s3, v60\ns_cmp_eq_u32 s3, 0\ns_cbranch_scc1 {L}")
            self.stamp(5)
            e.ds(f"ds_read_b128 v[16:19], v12 offset:{LB_Q}")
            e.ds(f"ds_read_b128 v[20:23], v12 offset:{LB_Q+128}")
            e("s_waitcnt lgkmcnt(0)")
        ch.append((-1, c_q))
        XY = ((44, 48), (52, 56))
        def c_qk(t):
            def f():
                if t < nt:
                    X, Y = XY[t & 1]
                    b = KR + 16 * t
                    e(f"v_mfma_f32_16x16x32_bf16 {vr(X)}, {vr(b)}, v[16:19], 0")
                    e(f"v_mfma_f32_16x16x32_bf16 {vr(Y)}, {vr(b+8)}, v[16:19], 0")
                    e(f"v_mfma_f32_16x16x32_bf16 {vr(X)}, {vr(b+4)}, v[20:23], {vr(X)}")
                    e(f"v_mfma_f32_16x16x32_bf16 {vr(Y)}, {vr(b+12)}, v[20:23], {vr(Y)}")
                if t > 0:
                    X, Y = XY[(t - 1) & 1]
                    b = KR + 16 * (t - 1)
                    self.fixup(X, Y, b)
                    if t == 1: e(f"v_max3_f32 v60, v{b}, v{b+1}, v{b+2}\nv_max_f32 v60, v60, v{b+3}")
                    else: e(f"v_max3_f32 v60, v60, v{b}, v{b+1}\nv_max3_f32 v60, v60, v{b+2}, v{b+3}")
                if t == nt:
                    self.allred_G([60], [61], "v_max_f32")
                    e(f"v_mul_f32 v62, {sCS}, v60")
            return f
        for t in range(nt + 1): ch.append((min(t, nt - 1), c_qk(t)))
        def c_exp(t):
            def f():
                b = KR + 16 * t
                for r in range(4): e(f"v_fma_f32 v{b+r}, v{b+r}, {sCS}, -v62")
                for r in range(4): e(f"v_exp_f32 v{b+r}, v{b+r}")
                if t == 0: e(f"v_add_f32 v63, v{b}, v{b+1}")
                else: e(f"v_add_f32 v63, v63, v{b}\nv_add_f32 v63, v63, v{b+1}")
                e(f"v_cvt_pk_bf16_f32 v{b+4}, v{b}, v{b+1}\nv_add_f32 v63, v63, v{b+2}\nv_cvt_pk_bf16_f32 v{b+5}, v{b+2}, v{b+3}\nv_add_f32 v63, v63, v{b+3}")
            return f
        for t in range(nt): ch.append((nt - 1, c_exp(t)))
        def c_l():
            self.allred_G([63], [61], "v_add_f32")
            if bias: e(f"v_add_f32 v62, {bias}, v62")
            e("v_mov_b32 v61, 1")
            self.exec_mask(0x1111, 0)
            e.ds(f"ds_write_b32 v14, v62 offset:{LB_MX}")
            e.ds(f"ds_write_b32 v14, v63 offset:{LB_LS}")
            e("s_mov_b32 exec_lo, 1")
            e.ds(f"ds_add_u32 v15, v61 offset:{LB_FLAG+4}")
            self.exec_full()
            self.stamp(6)
        ch.append((nt - 1, c_l))
        return ch
    def b_pv_prep(self, KR, n):
        t, i = n >> 2, n & 3
        E = 44 + 2 * (n & 3)
        for q in range(2): self.e(f"v_perm_b32 v{E+q}, v{KR+16*t+4+(i>>1)}, v{KR+16*t+4+(i>>1)}, v{SELA+2*(i&1)+q}")
    def b_pv_mma(self, VR, n):
        t, i = n >> 2, n & 3
        E = 44 + 2 * (n & 3)
        b = VR + 16 * t + 4 * i
        for h in range(2):
            acc = 24 + 4 * h
            self.e(f"v_mfma_f32_16x16x16_bf16 {vr(acc)}, v[{E}:{E+1}], v[{b+2*h}:{b+2*h+1}], {'0' if n == 0 else vr(acc)}")
    def b_owrite(self):
        e = self.e
        e(f"s_lshl_b32 s3, s{sW}, 11\nv_add_u32 v11, s3, v10")
        e.ds(f"ds_write_b128 v11, v[24:27] offset:{LB_R4}")
        e.ds(f"ds_write_b128 v11, v[28:31] offset:{LB_R4+1024}")
        e("s_waitcnt lgkmcnt(0)")
        e("s_branch L_btail")

    def b_ctrl(self):
        e = self.e
        KR, VR = 64, 160
        self.WO = [72, 88, 104, 120]
        self.b_ids()
        e("s_cselect_b32 s50, s50, 0\ns_cselect_b32 s54, s54, 0")
        e(f"s_cselect_b32 s61, 0, {f32(-1e30)}")
        e(f"s_lshl_b32 s14, s{sX}, 22\ns_add_u32 s3, s64, 1008\ns_lshl_b32 s3, s3, 12\ns_cmp_lt_u32 s64, 16\ns_cselect_b32 s3, s3, 0\ns_add_u32 s14, s14, s3\ns_mov_b32 s15, s14")
        for n in range(4): tk = self.b_kload(KR, 0, n)
        for n in range(4): self.b_vload(VR, 0, n)
        e(f"s_lshl_b32 s12, s{sX}, 11\ns_add_u32 s12, s12, {WS_QB}")
        def gq():
            for n in range(2): e.vmem(f"buffer_load_dwordx4 {vr(128+4*n)}, v10, {WS}, s12 offen offset:{1024*n} sc1")
        self.poll(gq, [129, 131, 133, 135], 60, "gqb2", fast="s12")
        e(f"v_mov_b32 v129, v130\nv_mov_b32 v133, v134\nv_lshlrev_b32 v11, 3, v{vL}\nv_mov_b32 v15, 0\nv_mov_b32 v61, 1")
        e.ds(f"ds_write_b64 v11, v[128:129] offset:{LB_Q}")
        e.ds(f"ds_write_b64 v11, v[132:133] offset:{LB_Q+512}")
        e.ds(f"ds_write_b32 v15, v61 offset:{LB_FLAG}")
        e("s_waitcnt lgkmcnt(0)")
        for _, f in self.b_chunks(1, KR, "s61", False): f()
        for n in range(4):
            self.b_pv_prep(KR, n)
        for n in range(4):
            self.b_pv_mma(VR, n)
        e(f"s_lshl_b32 s12, s{sX}, 11\ns_lshl_b32 s3, s64, 4\ns_add_u32 s12, s12, s3\ns_add_u32 s12, s12, {WS_BML}")
        e(f"v_lshlrev_b32 v11, 4, v13\nv_mov_b32 v53, s{sT}\nv_mov_b32 v55, s{sT}")
        L = self.lab("wml")
        e.label(L)
        e("s_sleep 2")
        e.ds(f"ds_read_b32 v60, v15 offset:{LB_FLAG+4}")
        e(f"s_waitcnt lgkmcnt(0)\nv_readfirstlane_b32 s3, v60\ns_cmp_lt_u32 s3, 8\ns_cbranch_scc1 {L}")
        e.ds(f"ds_read_b128 v[128:131], v13 offset:{LB_MX}")
        e.ds(f"ds_read_b128 v[132:135], v13 offset:{LB_MX+16}")
        e.ds(f"ds_read_b128 v[136:139], v13 offset:{LB_LS}")
        e.ds(f"ds_read_b128 v[140:143], v13 offset:{LB_LS+16}")
        e("s_waitcnt lgkmcnt(0)")
        e("v_max3_f32 v52, v128, v129, v130\nv_max3_f32 v52, v52, v131, v132\nv_max3_f32 v52, v52, v133, v134\nv_max_f32 v52, v52, v135")
        for r in range(128, 136): e(f"v_sub_f32 v{r}, v{r}, v52")
        for r in range(128, 136): e(f"v_exp_f32 v{r}, v{r}")
        e("v_mul_f32 v54, v128, v136")
        for r in range(1, 8): e(f"v_fmac_f32 v54, v{128+r}, v{136+r}")
        self.exec_mask(0x1111, 0)
        e.ds(f"ds_write_b128 v13, v[128:131] offset:{LB_G}")
        e.ds(f"ds_write_b128 v13, v[132:135] offset:{LB_G+16}")
        e.vmem(f"buffer_store_dwordx4 v[52:55], v11, {WS}, s12 offen")
        e(f"s_add_u32 s12, s12, {SLOW}")
        e.vmem(f"buffer_store_dwordx4 v[52:55], v11, {WS}, s12 offen sc1")
        self.exec_full()
        e("s_cmp_lt_u32 s64, 16\ns_cbranch_scc0 L_bc_nod")
        for i in range(4): self.b_woload(KR, i)
        e(f"v_and_b32 v15, 31, v{vL}\nv_min_u32 v11, 23, v15\nv_lshlrev_b32 v11, 4, v11\ns_lshl_b32 s12, s65, 9\ns_add_u32 s12, s12, {WS_BML}")
        def gm(): e.vmem(f"buffer_load_dwordx4 v[52:55], v11, {WS}, s12 offen sc1")
        self.poll(gm, [53, 55], 60, "gml", fast="s12")
        e("v_mov_b32 v56, v52")
        self.rowred([56], "v_max_f32", (8, 4, 2, 1))
        self.allred_G([56], [57], "v_max_f32", steps=(16,))
        e("v_sub_f32 v52, v52, v56\nv_exp_f32 v52, v52\nv_cmp_gt_u32 vcc, 24, v15\nv_cndmask_b32 v52, 0, v52, vcc\nv_mul_f32 v54, v54, v52")
        self.rowred([54], "v_add_f32", (8, 4, 2, 1))
        self.allred_G([54], [57], "v_add_f32", steps=(16,))
        e("v_rcp_f32 v54, v54\nv_lshlrev_b32 v15, 2, v15\nv_mul_f32 v52, v52, v54")
        e.ds(f"ds_write_b32 v15, v52 offset:{LB_F}")
        e.label("L_bc_nod")
        self.b_owrite()

    def b_stream(self):
        e, p = self.e, self.p
        KR, VR, NT_ = 64, 160, 6
        self.WO = [72, 88, 104, 120]
        self.b_ids()
        e(f"s_mul_i32 s3, s64, 7\ns_add_u32 s3, s3, s{sW}\ns_lshl_b32 s3, s3, 12\ns_lshl_b32 s14, s{sX}, 22\ns_add_u32 s14, s14, s3\ns_mov_b32 s15, s14\ns_mov_b32 s67, {168*4096}")
        Df = lambda n: p["D_B0"] if n < p["NB0"] else p["D_B"]
        D = p["D_B"]
        tok = []
        def issue(n, throttle=True):
            if throttle and n >= Df(n): e.wait_vm(tok[n - Df(n)])
            self.prog(n, 4)
            if n < 24:
                if n and n % 4 == 0: e("s_add_u32 s14, s14, s67")
                tok.append(self.b_kload(KR, n >> 2, n & 3))
            elif n < 48:
                m = n - 24
                if m and m % 4 == 0: e("s_add_u32 s15, s15, s67")
                tok.append(self.b_vload(VR, m >> 2, m & 3))
            else:
                tok.append(self.b_woload(KR, n - 48))
        n = 0
        while n < p["D_B0"]: issue(n); n += 1
        self.p1_compute(False)
        while n < p["N1"]: issue(n); n += 1
        ch = self.b_chunks(NT_, KR, None, True)
        done = 0
        while n < 52:
            issue(n)
            landed = n - Df(n)
            k = 0
            while ch and k < p["CPS"] and 4 * ch[0][0] + 3 <= landed:
                ch.pop(0)[1](); k += 1
            k = 0
            while not ch and done < min(landed - 24 + 1, 24) and k < p["PVK"]:
                self.b_pv_prep(KR, done); self.b_pv_mma(VR, done); done += 1; k += 1
            n += 1
        assert not ch
        while done < 24:
            self.b_pv_prep(KR, done)
            e.wait_vm(tok[24 + done])
            self.b_pv_mma(VR, done); done += 1
        self.stamp(7)
        self.b_owrite()

    def b_tail(self):
        e = self.e
        e.label("L_btail")
        e("s_barrier")
        self.stamp(10)
        e(f"s_cmp_lt_u32 s{sW}, 2\ns_cbranch_scc0 L_bt_nored")
        e(f"s_lshl_b32 s3, s{sW}, 10\nv_add_u32 v11, s3, v10")
        e(f"v_lshlrev_b32 v13, 5, v{vG}")
        e.ds(f"ds_read_b128 v[44:47], v13 offset:{LB_G}")
        e.ds(f"ds_read_b128 v[48:51], v13 offset:{LB_G+16}")
        tk = [e.ds(f"ds_read_b128 {vr(128+4*w)}, v11 offset:{LB_R4+2048*w}") for w in range(8)]
        e(f"s_mul_i32 s15, s{sX}, {4*24*512}\ns_lshl_b32 s3, s64, 9\ns_add_u32 s15, s15, s3\ns_lshl_b32 s3, s{sW}, 8\ns_add_u32 s15, s15, s3\ns_add_u32 s15, s15, {WS_BO}")
        e(f"v_mul_u32_u24 v14, {24*512}, v{vG}\nv_lshl_add_u32 v14, v{vC}, 4, v14\nv_mov_b32 v53, s{sT}\nv_mov_b32 v55, s{sT}")
        for w in range(8):
            e.wait_lg(tk[w])
            g = 44 + (w & ~1)
            sel = f"op_sel:[0,{w&1},0] op_sel_hi:[1,{w&1},1]"
            for k in (0, 2):
                if w == 0: e(f"v_pk_mul_f32 v[{128+k}:{129+k}], v[{128+k}:{129+k}], v[{g}:{g+1}] op_sel:[0,0] op_sel_hi:[1,0]")
                else: e(f"v_pk_fma_f32 v[{128+k}:{129+k}], v[{128+4*w+k}:{129+4*w+k}], v[{g}:{g+1}], v[{128+k}:{129+k}] {sel}")
        e("v_cvt_pk_bf16_f32 v52, v128, v129\nv_cvt_pk_bf16_f32 v54, v130, v131")
        e.vmem(f"buffer_store_dwordx4 v[52:55], v14, {WS}, s15 offen")
        e(f"s_add_u32 s15, s15, {SLOW}")
        e.label("L_bt_nored")
        self.stamp(8)
        def bo_slow():
            L = self.lab("bos")
            e(f"s_cmp_lt_u32 s{sW}, 2\ns_cbranch_scc0 {L}")
            e(f"buffer_store_dwordx4 v[52:55], v14, {WS}, s15 offen sc1")
            e.label(L)
        e("s_cmp_lt_u32 s64, 16\ns_cbranch_scc1 L_bt_duty")
        bo_slow()
        self.exit()
        e.label("L_bt_duty")
        e(f"v_lshlrev_b32 v11, 2, v{vC}")
        e.ds(f"ds_read_b32 v60, v11 offset:{LB_F}")
        e.ds(f"ds_read_b32 v61, v11 offset:{LB_F+64}")
        e(f"s_mul_i32 s12, s65, {24*512}\ns_lshl_b32 s3, s{sW}, 6\ns_add_u32 s12, s12, s3\ns_add_u32 s12, s12, {WS_BO}")
        e(f"v_lshlrev_b32 v12, 9, v{vC}\nv_lshl_add_u32 v12, v{vG}, 4, v12\nv_lshlrev_b32 v13, 9, v8\nv_lshl_add_u32 v13, v{vG}, 4, v13\nv_add_u32 v13, {16*512}, v13")
        def g():
            e.vmem(f"buffer_load_dwordx4 v[128:131], v12, {WS}, s12 offen sc1")
            e.vmem(f"buffer_load_dwordx4 v[132:135], v13, {WS}, s12 offen sc1")
        self.poll(g, [129, 131, 133, 135], 62, "gbo", fast="s12", slowpub=bo_slow)
        self.stamp(11); self.cnt(12)
        e("s_waitcnt lgkmcnt(0)")
        for k, (src, f) in enumerate(((128, 60), (132, 61))):
            e(f"v_lshlrev_b32 v136, 16, v{src}\nv_and_b32 v137, 0xffff0000, v{src}\nv_lshlrev_b32 v138, 16, v{src+2}\nv_and_b32 v139, 0xffff0000, v{src+2}")
            for i in range(4):
                e(f"v_mul_f32 v{140+i}, v{f}, v{136+i}" if k == 0 else f"v_fmac_f32 v{140+i}, v{f}, v{136+i}")
        self.rowred([140, 141, 142, 143], "v_add_f32", (8, 4, 2, 1))
        e("v_cvt_pk_bf16_f32 v144, v140, v141\nv_cvt_pk_bf16_f32 v145, v142, v143")
        for i in range(4): self.expand4(148 + 4 * i, 144 + (i >> 1), i & 1)
        for i in range(4):
            e(f"v_mfma_f32_16x16x32_bf16 v[24:27], {vr(148+4*i)}, {vr(self.WO[i])}, {'0' if i == 0 else 'v[24:27]'}")
        e(f"s_lshl_b32 s3, s{sW}, 10\nv_add_u32 v11, s3, v10")
        e.ds(f"ds_write_b128 v11, v[24:27] offset:{LB_R5}")
        e("s_waitcnt lgkmcnt(0)")
        self.stamp(13)
        e("s_barrier")
        self.stamp(14)
        e(f"s_cmp_eq_u32 s{sW}, 0\ns_cbranch_scc1 L_bt_fin")
        self.exit()
        e.label("L_bt_fin")
        e(f"v_and_b32 v11, 31, v{vL}\nv_lshlrev_b32 v11, 4, v11\nv_lshrrev_b32 v12, 5, v{vL}\nv_lshl_add_u32 v11, v12, 12, v11")
        tk = [e.ds(f"ds_read_b128 {vr(128+4*w)}, v11 offset:{LB_R5+1024*w}") for w in range(4)]
        e(f"s_lshl_b32 s12, s65, 12\ns_lshl_b32 s3, s66, 10\ns_add_u32 s12, s12, s3\ns_add_u32 s12, s12, {WS_OUTB}")
        e(f"v_and_b32 v13, 1, v{vG}\nv_lshlrev_b32 v13, 5, v13\nv_lshl_add_u32 v13, v{vC}, 6, v13\nv_lshl_add_u32 v13, v12, 4, v13\nv_mov_b32 v53, s{sT}\nv_mov_b32 v55, s{sT}")
        for w in range(1, 4):
            e.wait_lg(tk[w])
            e(f"v_pk_add_f32 v[128:129], v[128:129], v[{128+4*w}:{129+4*w}]\nv_pk_add_f32 v[130:131], v[130:131], v[{130+4*w}:{131+4*w}]")
        e("v_permlane32_swap_b32 v128, v130\nv_permlane32_swap_b32 v129, v131")
        e("v_add_f32 v52, v128, v130\nv_add_f32 v54, v129, v131")
        e.vmem(f"buffer_store_dwordx4 v[52:55], v13, {WS}, s12 offen sc1")
        self.stamp(9)
        e(f"s_lshl_b32 s3, s66, 7\ns_lshl_b32 s14, s65, 2\ns_add_u32 s14, s14, s3\ns_lshl_b32 s12, s14, 3\ns_add_u32 s12, s12, {WS_OUTB}")
        e(f"v_lshrrev_b32 v11, 1, v{vL}\nv_lshlrev_b32 v11, 12, v11\nv_and_b32 v12, 1, v{vL}\nv_lshl_add_u32 v11, v12, 4, v11")
        self.srd(48, 38, 2048)
        e(f"s_lshl_b32 s14, s14, 1\ns_add_u32 s14, s14, 1024\nv_lshlrev_b32 v12, 2, v12")
        def g2(): e.vmem(f"buffer_load_dwordx4 v[128:131], v11, {WS}, s12 offen sc1")
        self.poll(g2, [129, 131], 62, "gob")
        self.stamp(15); self.cnt(16)
        self.rowred([128, 130], "v_add_f32", (8, 4, 2))
        self.allred_G([128, 130], [132, 133], "v_add_f32")
        e("v_cvt_pk_bf16_f32 v128, v128, v130")
        self.exec_mask(3, 0)
        e.vmem("buffer_store_dword v128, v12, s[48:51], s14 offen")
        if self.p["TIMING"]: self.exec_full(); e("s_waitcnt vmcnt(0)")
        self.exit()

    def a_setup(self):
        e = self.e
        e(f"s_lshl_b32 s64, s{sX}, 3\ns_add_u32 s64, s64, s{sSLOT}\ns_lshr_b32 s65, s64, 1\ns_and_b32 s66, s64, 1")
        e("s_waitcnt lgkmcnt(0)")
        e(f"s_load_dword s{sT}, s[42:43], 0")
        self.srd(48, 18, 1 << 24)
        e(f"s_lshl_b32 s14, s64, 13\ns_lshl_b32 s3, s{sW}, 10\ns_add_u32 s14, s14, s3\ns_mov_b32 s61, 0x80000")
        e(f"s_lshl_b32 s15, s{sW}, 13\ns_add_u32 s15, s15, {WS_QABS}")
        e(f"s_lshl_b32 s67, s{sW}, 14")
        e(f"v_and_b32 v11, 3, v{vC}\nv_lshlrev_b32 v11, 2, v11")
        e(f"v_lshrrev_b32 v12, 2, v{vC}\nv_and_b32 v13, 1, v12\nv_or_b32 v11, v11, v13")
        e(f"v_xor_b32 v12, v12, v{vC}\nv_and_b32 v12, 2, v12\nv_or_b32 v11, v11, v12")
        e(f"v_lshlrev_b32 v11, 4, v11\nv_lshl_add_u32 v11, v{vG}, 8, v11\nv_lshl_add_u32 v11, v{vC}, 10, v11")
        e(f"v_add_u32 v6, s67, v11\nv_add_u32 v7, {LA_Q}, v11")
        e(f"v_add_u32 v9, s67, v10")
    def a_issue(self, depthf, p1at=None):
        e, p = self.e, self.p
        T1, T0, QG = 64, 128, 192
        seq = [("t1", i) for i in range(16)] + [("t0", i) for i in range(16)]
        q = p["QPOS"]
        seq = seq[:q] + [("q", i) for i in range(8)] + seq[q:]
        tok, done = [], 0
        tokof = {}
        def landed_action(it):
            kind, i = it
            if kind == "t1":
                e(f"v_xor_b32 v12, {16*fswz(i)}, v9")
                e.ds(f"ds_write_b128 v12, {vr(T1+4*i)} offset:{1024*i}")
                if i == 15:
                    e("s_waitcnt lgkmcnt(0)")
                    for ks in range(16):
                        e(f"v_xor_b32 v12, {16*ks}, v6")
                        e.ds(f"ds_read_b128 {vr(T1+4*ks)}, v12")
            elif kind == "t0":
                e(f"v_xor_b32 v12, {16*fswz(i)}, v9")
                e.ds(f"ds_write_b128 v12, {vr(T0+4*i)} offset:{1024*i}")
        def qload(i):
            if i % 4 == 0: e(f"s_add_u32 s12, s15, {1024*i}")
            return e.vmem(f"buffer_load_dwordx4 {vr(QG+4*i)}, v10, {WS}, s12 offen offset:{1024*(i&3)} sc1")
        for n, it in enumerate(seq):
            if n == p1at: self.selectors(); self.tagmake(); self.stamp(1)
            D = depthf(n)
            if n >= D:
                e.wait_vm(tok[n - D])
            self.prog(n, 4)
            kind, i = it
            if kind == "q":
                t = qload(i)
            else:
                t = e.vmem(f"buffer_load_dwordx4 {vr((T1 if kind == 't1' else T0)+4*i)}, v10, s[48:51], s14 offen {p['NT']}")
                if not (kind == "t0" and i == 15): e("s_add_u32 s14, s14, s61")
            tok.append(t); tokof[it] = t
            while done <= n - D and done < len(seq) and n >= D:
                landed_action(seq[done]); done += 1
        e.wait_vm(tokof[("q", 7)])
        while done < len(seq) and tok[done] <= tokof[("q", 7)]:
            landed_action(seq[done]); done += 1
        self.stamp(2)
        tags = [QG + 4 * i + k for i in range(8) for k in (1, 3)]
        self.tagcheck(tags, 60)
        R, B = self.lab("aqr"), self.lab("aqb")
        e(f"s_cbranch_vccnz {R}")
        e.label(B)
        def ool():
            e.label(R)
            self.poll(lambda: [qload(i) for i in range(8)], tags, 60, "aqp")
            e(f"s_branch {B}")
        self.ool.append(ool)
        self.stamp(3)
        e(f"v_lshlrev_b32 v13, 3, v{vL}\ns_lshl_b32 s3, s{sW}, 12\ns_add_u32 s3, s3, {LA_Q}\nv_add_u32 v13, s3, v13")
        e(f"s_and_b32 s3, s{sW}, 3\ns_lshl_b32 s3, s3, 4\nv_xor_b32 v13, s3, v13")
        for i in range(8):
            e(f"v_mov_b32 v{QG+4*i+1}, v{QG+4*i+2}")
            if i % 2 == 0: e(f"v_xor_b32 v12, {16*fswz(i>>1)}, v13")
            e.ds(f"ds_write_b64 v12, v[{QG+4*i}:{QG+4*i+1}] offset:{1024*(i>>1)+512*(i&1)}")
        while done < len(seq):
            e.wait_vm(tok[done]); landed_action(seq[done]); done += 1
        e("s_waitcnt lgkmcnt(0)")

    def a_wsetup(self):
        e, nt = self.e, self.p["NT"]
        UV, WO = 160, 192
        self.srd(52, 24, 1 << 22); self.srd(56, 26, 1 << 22)
        e(f"s_lshl_b32 s68, s{sW}, 19\ns_lshl_b32 s12, s65, 8\ns_add_u32 s68, s68, s12\ns_lshl_b32 s12, s66, 7\ns_add_u32 s68, s68, s12")
        e(f"v_bfe_u32 v248, v{vL}, 3, 1\nv_lshlrev_b32 v248, 16, v248\nv_lshl_add_u32 v248, v{vG}, 17, v248\nv_lshl_add_u32 v248, v8, 4, v248")
        e(f"s_lshl_b32 s69, s64, 16\ns_lshr_b32 s12, s{sW}, 2\ns_lshl_b32 s12, s12, 15\ns_add_u32 s69, s69, s12\ns_and_b32 s12, s{sW}, 3\ns_lshl_b32 s12, s12, 8\ns_add_u32 s69, s69, s12")
        e(f"v_lshlrev_b32 v249, 13, v{vG}\nv_lshl_add_u32 v249, v{vC}, 4, v249")
        self.wq = []
        for i in range(8):
            self.wq.append((f"buffer_load_dwordx4 {vr(UV+4*i)}, v248, s[52:55], s68 offen {nt}", "s_addk_i32 s68, 0x2000" if i < 7 else ""))
        for i in range(8):
            self.wq.append((f"buffer_load_dwordx4 {vr(WO+4*i)}, v249, s[56:59], s69 offen offset:{1024*(i&3)} {nt}", "s_addk_i32 s69, 0x1000" if i == 3 else ""))
    def wtick(self, n=1, late=False):
        for _ in range(n):
            if self.wq and (late or len(self.wq) > 16 - self.p["NWE"]):
                a, b = self.wq.pop(0)
                self.e.vmem(a); self.e(b)

    def a_main(self):
        e, p = self.e, self.p
        T1 = 64
        FR = (224, 236, 44)
        e.label("L_amain")
        e("s_barrier")
        self.stamp(4)
        self.a_wsetup()
        def rd(ks):
            f = FR[ks % 3]
            e(f"v_xor_b32 v12, {16*ks}, v6\nv_xor_b32 v13, {16*ks}, v7")
            e.ds(f"ds_read_b128 {vr(f)}, v13")
            e.ds(f"ds_read_b128 {vr(f+4)}, v13 offset:16384")
            return e.ds(f"ds_read_b128 {vr(f+8)}, v12")
        tk = {0: rd(0), 1: rd(1)}
        for ks in range(16):
            f = FR[ks % 3]
            e.wait_lg(tk[ks])
            c = lambda r: "0" if ks == 0 else vr(r)
            e(f"v_mfma_f32_16x16x32_bf16 {vr(24)}, {vr(T1+4*ks)}, {vr(f)}, {c(24)}")
            e(f"v_mfma_f32_16x16x32_bf16 {vr(28)}, {vr(T1+4*ks)}, {vr(f+4)}, {c(28)}")
            if ks + 2 < 16: tk[ks + 2] = rd(ks + 2)
            if ks % 3 == 0: self.wtick()
            e(f"v_mfma_f32_16x16x32_bf16 {vr(16)}, {vr(f+8)}, {vr(f)}, {c(16)}")
            e(f"v_mfma_f32_16x16x32_bf16 {vr(20)}, {vr(f+8)}, {vr(f+4)}, {c(20)}")
        e(f"v_lshlrev_b32 v13, 5, v{vC}\ns_lshl_b32 s3, s{sW}, 2\nv_add_u32 v13, {LA_MX}, v13\nv_add_u32 v12, s3, v13")
        e("s_barrier")
        self.stamp(10)
        self.wtick()
        for hh in range(2):
            a, b = 16 + 4 * hh, 24 + 4 * hh
            e(f"v_max3_f32 v{56+hh}, v{a}, v{a+1}, v{a+2}\nv_max3_f32 v{56+hh}, v{56+hh}, v{a+3}, v{b}\nv_max3_f32 v{56+hh}, v{56+hh}, v{b+1}, v{b+2}\nv_max_f32 v{56+hh}, v{56+hh}, v{b+3}")
        self.allred_G([56, 57], [58, 59], "v_max_f32")
        self.exec_mask(0xffff, 0)
        e.ds("ds_write_b32 v12, v56")
        e.ds("ds_write_b32 v12, v57 offset:512")
        self.exec_full()
        e("s_waitcnt lgkmcnt(0)\ns_barrier")
        for hh in range(2):
            e.ds(f"ds_read_b128 {vr(224+8*hh)}, v13 offset:{512*hh}")
            e.ds(f"ds_read_b128 {vr(228+8*hh)}, v13 offset:{512*hh+16}")
        e(f"v_lshrrev_b32 v14, 1, v{vG}\ns_lshl_b32 s3, s{sW}, 1\nv_add_u32 v14, s3, v14\nv_xor_b32 v14, v14, v{vC}\nv_lshlrev_b32 v14, 4, v14\nv_lshl_add_u32 v14, v{vC}, 9, v14")
        e(f"v_and_b32 v15, 1, v{vG}\nv_lshl_add_u32 v14, v15, 3, v14\nv_add_u32 v14, {LA_P}, v14")
        e("s_waitcnt lgkmcnt(0)")
        for hh in range(2):
            m = 224 + 8 * hh
            e(f"v_max3_f32 v{56+hh}, v{m}, v{m+1}, v{m+2}\nv_max3_f32 v{56+hh}, v{56+hh}, v{m+3}, v{m+4}\nv_max3_f32 v{56+hh}, v{56+hh}, v{m+5}, v{m+6}\nv_max_f32 v{56+hh}, v{56+hh}, v{m+7}")
            e(f"v_mul_f32 v{56+hh}, {sCS}, v{56+hh}")
        for T in range(2):
            for hh in range(2):
                for r in range(4):
                    s = 16 + 8 * T + 4 * hh + r
                    e(f"v_fma_f32 v{s}, v{s}, {sCS}, -v{56+hh}")
        self.wtick()
        for s in range(16, 32): e(f"v_exp_f32 v{s}, v{s}")
        for hh in range(2):
            a, b = 16 + 4 * hh, 24 + 4 * hh
            e(f"v_add_f32 v{58+hh}, v{a}, v{a+1}")
            for s in (a + 2, a + 3, b, b + 1, b + 2, b + 3): e(f"v_add_f32 v{58+hh}, v{58+hh}, v{s}")
        for T in range(2):
            for hh in range(2):
                s = 16 + 8 * T + 4 * hh
                e(f"v_cvt_pk_bf16_f32 v{s}, v{s}, v{s+1}\nv_cvt_pk_bf16_f32 v{s+1}, v{s+2}, v{s+3}")
                e.ds(f"ds_write_b64 v14, v[{s}:{s+1}] offset:{256*T+8192*hh}")
        self.allred_G([58, 59], [56, 57], "v_add_f32")
        self.exec_mask(0xffff, 0)
        e.ds(f"ds_write_b32 v12, v58 offset:{LA_LS-LA_MX}")
        e.ds(f"ds_write_b32 v12, v59 offset:{LA_LS-LA_MX+512}")
        self.exec_full()
        e(f"v_and_b32 v21, 31, v{vL}\nv_lshrrev_b32 v22, 5, v{vL}")
        e(f"v_xor_b32 v20, v22, v{vC}\nv_lshlrev_b32 v20, 4, v20\nv_lshl_add_u32 v20, v21, 9, v20\nv_add_u32 v20, {LA_P}, v20")
        e(f"v_bfe_u32 v23, v{vL}, 2, 2\nv_lshlrev_b32 v24, 2, v23\nv_lshrrev_b32 v25, 1, v23\nv_xor_b32 v25, v25, v22\nv_lshl_add_u32 v24, v25, 1, v24")
        e(f"v_and_b32 v25, 1, v{vG}\nv_bfe_u32 v26, v{vL}, 1, 1\nv_lshl_add_u32 v25, v25, 1, v26\ns_and_b32 s3, s{sW}, 1\ns_lshl_b32 s3, s3, 3\nv_add_u32 v25, s3, v25\nv_xor_b32 v24, v24, v25")
        e(f"v_lshlrev_b32 v24, 4, v24\nv_and_b32 v26, 1, v{vL}\nv_lshl_add_u32 v24, v26, 3, v24\nv_lshl_add_u32 v24, v23, 10, v24\nv_lshl_add_u32 v24, v22, 13, v24")
        e(f"s_lshr_b32 s3, s{sW}, 1\ns_lshl_b32 s3, s3, 8\nv_add_u32 v16, s3, v24")
        e("v_xor_b32 v17, 16, v16\nv_add_u32 v17, 0x1000, v17\nv_xor_b32 v18, 64, v16\nv_xor_b32 v19, 64, v17")
        e("s_waitcnt lgkmcnt(0)\ns_barrier")
        self.stamp(5)
        ACC = (128, 144)
        for R in range(2):
            def rdp(n):
                f = FR[n % 3]
                if n == 4:
                    for k in range(16, 20): e(f"v_add_u32 v{k}, 0x10000, v{k}")
                e(f"v_xor_b32 v12, {32*n}, v20")
                e.ds(f"ds_read_b128 {vr(f)}, v12 offset:{256*R}")
                for t in range(2):
                    for nn in range(2):
                        tkk = e.ds(f"ds_read_b64_tr_b16 v[{f+4+4*t+2*nn}:{f+5+4*t+2*nn}], v{16+2*t+nn} offset:{16384*(n&3)}")
                return tkk
            tk = {0: rdp(0), 1: rdp(1)}
            for n in range(8):
                f = FR[n % 3]
                e.wait_lg(tk[n])
                first = (R == 0 and n == 0)
                e(f"v_mfma_f32_32x32x16_bf16 {vr(ACC[0],16)}, {vr(f+4)}, {vr(f)}, {'0' if first else vr(ACC[0],16)}")
                if n + 2 < 8: tk[n + 2] = rdp(n + 2)
                if n % 3 == 0: self.wtick()
                e(f"v_mfma_f32_32x32x16_bf16 {vr(ACC[1],16)}, {vr(f+8)}, {vr(f)}, {'0' if first else vr(ACC[1],16)}")
            e("s_barrier")
            self.stamp(11 + 2 * R)
            if R == 0:
                for ks in range(16):
                    e(f"v_xor_b32 v12, {16*ks}, v6")
                    e.ds(f"ds_write_b128 v12, {vr(T1+4*ks)}")
                    if ks % 6 == 0: self.wtick()
                for k in range(16, 20): e(f"v_subrev_u32 v{k}, 0x10000, v{k}")
                e("s_waitcnt lgkmcnt(0)\ns_barrier")
                self.stamp(12)
        self.wtick(16)
        e(f"v_and_b32 v13, 7, v21\nv_lshlrev_b32 v13, 4, v13\nv_lshl_add_u32 v13, v21, 10, v13\nv_lshl_add_u32 v13, v22, 3, v13\ns_lshl_b32 s3, s{sW}, 7\nv_add_u32 v13, s3, v13")
        for t in range(2):
            for q in range(4):
                a = ACC[t] + 4 * q
                e(f"v_cvt_pk_bf16_f32 v{a}, v{a}, v{a+1}\nv_cvt_pk_bf16_f32 v{a+1}, v{a+2}, v{a+3}\nv_xor_b32 v12, {16*(4*t+q)}, v13")
                e.ds(f"ds_write_b64 v12, v[{a}:{a+1}]")
        e(f"s_and_b32 s3, s{sW}, 1\ns_lshl_b32 s3, s3, 6\nv_xor_b32 v13, s3, v10\ns_lshl_b32 s3, s{sW}, 12\nv_add_u32 v13, s3, v13")
        e(f"s_lshl_b32 s12, s{sW}, 18\ns_lshl_b32 s3, s64, 10\ns_add_u32 s12, s12, s3\ns_add_u32 s12, s12, {WS_AO}\ns_mov_b32 s15, 0x10000")
        e("s_waitcnt lgkmcnt(0)\ns_barrier")
        self.stamp(14)
        tk = []
        for i in range(4):
            e(f"v_xor_b32 v12, {16*i}, v13")
            tk.append(e.ds(f"ds_read_b128 {vr(64+4*i)}, v12 offset:{1024*i}"))
        for i in range(4):
            e.wait_lg(tk[i])
            e.vmem(f"buffer_store_dwordx4 {vr(64+4*i)}, v10, {WS}, s12 offen sc1")
            if i < 3: e("s_add_u32 s12, s12, s15")
        e("s_waitcnt vmcnt(0)\ns_barrier")
        self.stamp(6)
        e(f"s_cmp_eq_u32 s{sW}, 0\ns_cbranch_scc0 L_at_f")
        e(f"v_lshlrev_b32 v12, 5, v21\nv_add_u32 v12, {LA_MX}, v12")
        for k in range(2):
            e.ds(f"ds_read_b128 {vr(64+8*k)}, v12 offset:{1024*k}")
            e.ds(f"ds_read_b128 {vr(68+8*k)}, v12 offset:{1024*k+16}")
        e(f"v_lshlrev_b32 v13, 10, v21\ns_lshl_b32 s12, s64, 4\ns_add_u32 s12, s12, {WS_AML}\nv_mov_b32 v53, s{sT}\nv_mov_b32 v55, s{sT}")
        e("s_waitcnt lgkmcnt(0)")
        e("v_max3_f32 v52, v64, v65, v66\nv_max3_f32 v52, v52, v67, v68\nv_max3_f32 v52, v52, v69, v70\nv_max_f32 v52, v52, v71")
        e(f"v_mul_f32 v52, {sCS}, v52\nv_add_f32 v54, v72, v73")
        for r in range(74, 80): e(f"v_add_f32 v54, v54, v{r}")
        e("s_mov_b32 exec_hi, 0")
        e(f"buffer_store_dwordx4 v[52:55], v13, {WS}, s12 offen sc1")
        self.exec_full()
        e.label("L_at_f")
        e(f"s_lshl_b32 s12, s65, 16\ns_lshr_b32 s3, s{sW}, 2\ns_lshl_b32 s3, s3, 15\ns_add_u32 s12, s12, s3\ns_and_b32 s3, s{sW}, 3\ns_lshl_b32 s3, s3, 8\ns_add_u32 s12, s12, s3\ns_add_u32 s12, s12, {WS_AO}")
        e(f"v_lshlrev_b32 v15, 10, v{vG}\nv_lshl_add_u32 v15, v{vC}, 4, v15")
        e(f"v_bfe_u32 v16, v{vL}, 3, 1\nv_lshlrev_b32 v17, 7, v16\nv_lshl_add_u32 v17, v{vG}, 4, v17\ns_lshr_b32 s3, s{sW}, 2\ns_lshl_b32 s3, s3, 6\nv_add_u32 v17, s3, v17")
        e(f"s_lshl_b32 s3, s{sW}, 8\nv_add_u32 v17, s3, v17")
        e(f"s_lshl_b32 s3, s{sW}, 10\nv_add_u32 v18, s3, v10")
        e(f"v_and_b32 v19, 3, v{vL}\nv_lshlrev_b32 v19, 3, v19\nv_bfe_u32 v12, v{vL}, 2, 3\nv_add_u32 v19, v19, v12\nv_and_b32 v12, 32, v{vL}\nv_add_u32 v19, v19, v12\nv_lshlrev_b32 v19, 1, v19\ns_lshl_b32 s3, s{sW}, 8\nv_add_u32 v19, s3, v19")
        e(f"s_lshl_b32 s15, s65, 10\ns_add_u32 s15, s15, {WS_AML}\ns_mov_b32 s14, 0x11111111\ns_mov_b32 s13, 0\ns_lshr_b32 s61, s{sW}, 2\ns_lshl_b32 s61, s61, 5")
        e.label("L_agl")
        e(f"buffer_load_dwordx4 v[96:99], v10, {WS}, s15 offen sc1")
        e("s_add_u32 s13, s13, 1\ns_waitcnt vmcnt(0)")
        e(f"v_xor_b32 v60, s{sT}, v97\nv_bitop3_b32 v60, v99, s{sT}, v60 bitop3:0xbe\nv_cmp_eq_u32 vcc, 0, v60")
        e(f"s_cmp_gt_u32 s13, {p['MAXPOLL']}\ns_cselect_b64 vcc, -1, vcc")
        e("s_lshr_b64 s[4:5], vcc, s61\ns_lshr_b32 s5, s4, 1\ns_and_b32 s4, s4, s5\ns_lshr_b32 s5, s4, 2\ns_and_b32 s4, s4, s5\ns_and_b32 s4, s4, s14\ns_andn2_b32 s14, s14, s4")
        for i in range(8):
            L = self.lab("agi")
            e(f"s_bitcmp1_b32 s4, {4*i}\ns_cbranch_scc0 {L}\ns_add_u32 s3, s12, {4096*i}")
            e(f"buffer_load_dwordx4 {vr(64+4*i)}, v15, {WS}, s3 offen sc1")
            e.label(L)
        e("s_cmp_eq_u64 vcc, -1\ns_cbranch_scc0 L_agl")
        self.stamp(7)
        tk = [None] * 8
        tk[0] = e.vm
        self.wtick(16, late=True)
        tkw = e.vm
        e(f"s_or_b32 s3, s64, s{sW}\ns_cmp_eq_u32 s3, 0\ns_cbranch_scc0 L_noep")
        e(f"v_mov_b32 v12, s{sT}\nv_mov_b32 v13, 0")
        self.exec_mask(1, 0)
        e(f"buffer_store_dword v12, v13, {WS}, 0 offen sc1")
        self.exec_full()
        e.label("L_noep")
        e("v_mov_b32 v56, v96")
        self.rowred([56], "v_max_f32", (8, 4, 2, 1))
        self.allred_G([56], [57], "v_max_f32")
        e("v_sub_f32 v96, v96, v56\nv_exp_f32 v96, v96\nv_mul_f32 v98, v98, v96")
        self.rowred([98], "v_add_f32", (8, 4, 2, 1))
        self.allred_G([98], [57], "v_add_f32")
        e("v_rcp_f32 v98, v98\nv_mul_f32 v96, v96, v98\nv_cvt_pk_bf16_f32 v97, v96, v96\nv_and_b32 v98, 0xffff0000, v97\nv_sub_f32 v98, v96, v98\nv_cvt_pk_bf16_f32 v98, v98, v98")
        e.ds(f"ds_write_b16 v19, v97 offset:{LA_F}")
        e.ds(f"ds_write_b16 v19, v98 offset:{LA_F+128}")
        e("s_waitcnt lgkmcnt(0)")
        e.ds(f"ds_read_b128 v[28:31], v17 offset:{LA_F}")
        e("s_waitcnt lgkmcnt(0)")
        self.gemv8(24, 28, 64, tk)
        e.ds(f"ds_write_b128 v18, v[24:27] offset:{LA_R1}")
        e(f"v_lshlrev_b32 v17, 4, v16\nv_lshl_add_u32 v17, v{vG}, 5, v17\ns_lshl_b32 s3, s{sW}, 7\nv_add_u32 v17, s3, v17")
        e("s_waitcnt lgkmcnt(0)\ns_barrier")
        self.stamp(15)
        e(f"s_cmp_lt_u32 s{sW}, 2\ns_cbranch_scc0 L_at_l")
        e(f"v_lshrrev_b32 v12, 5, v0\nv_lshlrev_b32 v13, 4, v21\nv_lshl_add_u32 v13, v12, 10, v13")
        for k in range(4): e.ds(f"ds_read_b128 {vr(64+4*k)}, v13 offset:{LA_R1+4096*(k>>1)+512*(k&1)}")
        e(f"v_and_b32 v13, 1, v{vG}\nv_lshlrev_b32 v13, 3, v13\nv_lshl_add_u32 v13, v{vC}, 4, v13\nv_lshl_add_u32 v13, v12, 8, v13")
        e("s_waitcnt lgkmcnt(0)")
        for k in range(1, 4):
            e(f"v_pk_add_f32 v[64:65], v[64:65], v[{64+4*k}:{65+4*k}]\nv_pk_add_f32 v[66:67], v[66:67], v[{66+4*k}:{67+4*k}]")
        e("v_cvt_pk_bf16_f32 v64, v64, v65\nv_cvt_pk_bf16_f32 v65, v66, v67")
        e.ds(f"ds_write_b64 v13, v[64:65] offset:{LA_LAT}")
        e("s_waitcnt lgkmcnt(0)")
        e.label("L_at_l")
        e("s_barrier")
        e.ds(f"ds_read_b128 v[28:31], v17 offset:{LA_LAT}")
        e("s_waitcnt lgkmcnt(0)")
        nlate = 16 - self.p["NWE"]
        wt = lambda k: (tkw - (15 - k)) if (15 - k) < nlate else None
        self.gemv8(24, 28, 160, [wt(k) for k in range(8)])
        e.ds(f"ds_write_b128 v18, v[24:27] offset:{LA_R2}")
        e(f"v_lshlrev_b32 v13, 8, v16\nv_lshl_add_u32 v13, v8, 4, v13\nv_lshl_add_u32 v13, v{vG}, 11, v13")
        e(f"v_lshlrev_b32 v14, 3, v16\nv_lshl_add_u32 v14, v8, 4, v14\ns_lshl_b32 s3, s{sW}, 7\nv_add_u32 v14, s3, v14")
        e(f"s_lshr_b32 s12, s{sW}, 2\ns_lshl_b32 s12, s12, 6\ns_add_u32 s3, s3, s12\nv_lshlrev_b32 v17, 4, v{vG}\nv_add_u32 v17, s3, v17")
        e("s_waitcnt lgkmcnt(0)\ns_barrier")
        self.stamp(16)
        for k in range(4): e.ds(f"ds_read_b128 {vr(64+4*k)}, v13 offset:{LA_R2+1024*(k>>1)+(512+128)*(k&1)}")
        e("s_waitcnt lgkmcnt(0)")
        for k in range(1, 4):
            e(f"v_pk_add_f32 v[64:65], v[64:65], v[{64+4*k}:{65+4*k}]\nv_pk_add_f32 v[66:67], v[66:67], v[{66+4*k}:{67+4*k}]")
        self.allred_G([64, 65, 66, 67], [68, 69, 70, 71], "v_add_f32")
        e("v_cvt_pk_bf16_f32 v64, v64, v65\nv_cvt_pk_bf16_f32 v65, v66, v67")
        e.ds(f"ds_write_b64 v14, v[64:65] offset:{LA_CTX}")
        e("s_waitcnt lgkmcnt(0)")
        e.ds(f"ds_read_b128 v[28:31], v17 offset:{LA_CTX}")
        e("s_waitcnt lgkmcnt(0)")
        self.gemv8(24, 28, 192, [wt(8 + k) for k in range(8)])
        e(f"s_cmp_lt_u32 s{sW}, 4\ns_cbranch_scc1 L_at_o")
        e.ds(f"ds_write_b128 v18, v[24:27] offset:{LA_R1}")
        e("s_waitcnt lgkmcnt(0)\ns_barrier")
        self.exit()
        e.label("L_at_o")
        e(f"s_lshl_b32 s12, s64, 12\ns_lshl_b32 s3, s{sW}, 10\ns_add_u32 s12, s12, s3\ns_add_u32 s12, s12, {WS_OUTA}")
        e(f"v_and_b32 v13, 1, v{vG}\nv_lshlrev_b32 v13, 5, v13\nv_lshl_add_u32 v13, v{vC}, 6, v13\nv_lshl_add_u32 v13, v22, 4, v13\nv_mov_b32 v53, s{sT}\nv_mov_b32 v55, s{sT}")
        e("s_barrier")
        e.ds(f"ds_read_b128 v[64:67], v18 offset:{LA_R1+4096}")
        e("s_waitcnt lgkmcnt(0)")
        e("v_pk_add_f32 v[24:25], v[24:25], v[64:65]\nv_pk_add_f32 v[26:27], v[26:27], v[66:67]")
        e(f"v_cndmask_b32 v52, v24, v26, {sHI}\nv_cndmask_b32 v54, v25, v27, {sHI}")
        e(f"buffer_store_dwordx4 v[52:55], v13, {WS}, s12 offen sc1")
        self.stamp(8)
        e(f"s_cmp_eq_u32 s{sW}, 0\ns_cbranch_scc1 L_at_fin")
        self.exit()
        e.label("L_at_fin")
        e(f"s_lshl_b32 s12, s64, 6\ns_add_u32 s12, s12, {WS_OUTA}\nv_lshrrev_b32 v11, 2, v{vL}\nv_lshlrev_b32 v11, 12, v11\nv_and_b32 v12, 3, v{vL}\nv_lshl_add_u32 v11, v12, 4, v11")
        self.srd(48, 38, 2048)
        e(f"s_lshl_b32 s14, s64, 4\nv_lshlrev_b32 v12, 2, v12\ns_mov_b32 s15, 0x10000")
        def g():
            e("s_mov_b32 s3, s12")
            for k in range(4):
                e(f"buffer_load_dwordx4 {vr(64+4*k)}, v11, {WS}, s3 offen sc1")
                if k < 3: e("s_add_u32 s3, s3, s15")
        self.poll(g, [65, 67, 69, 71, 73, 75, 77, 79], 60, "goa")
        for k in range(1, 4): e(f"v_add_f32 v64, v64, v{64+4*k}\nv_add_f32 v66, v66, v{66+4*k}")
        self.rowred([64, 66], "v_add_f32", (8, 4))
        self.allred_G([64, 66], [68, 69], "v_add_f32")
        e("v_cvt_pk_bf16_f32 v64, v64, v66")
        self.exec_mask(15, 0)
        e("buffer_store_dword v64, v12, s[48:51], s14 offen")
        if self.p["TIMING"]: self.exec_full(); e("s_waitcnt vmcnt(0)"); self.stamp(9)
        self.exit()

    def build(self):
        e, p = self.e, self.p
        self.prologue()
        vm0 = e.vm
        self.phase1()
        self.b_ctrl()
        e.label("L_notctrl")
        e.vm = vm0
        self.b_stream()
        self.b_tail()
        e.label("L_astream")
        e.vm = 1
        self.a_setup()
        self.a_issue(lambda n: p["D_A1"] if n < p["NA1"] else p["D_A2"], p1at=p["D_A1"])
        self.a_main()
        while self.ool: self.ool.pop(0)()
        if p["TIMING"]:
            e.label("L_exit")
            e("s_mov_b64 exec, -1\ns_memrealtime s[98:99]\ns_getreg_b32 s100, hwreg(HW_REG_XCC_ID)\ns_waitcnt lgkmcnt(0)\nv_mov_b32 v44, 0")
            for i in range(28): e(f"v_writelane_b32 v44, s{70+i}, {i}")
            e("v_writelane_b32 v44, s98, 30\nv_writelane_b32 v44, s100, 31")
            e(f"s_lshl_b32 s3, s2, 3\ns_add_u32 s3, s3, s{sW}\ns_lshl_b32 s3, s3, 7\ns_add_u32 s3, s3, {WS_STAMP}\nv_lshlrev_b32 v45, 2, v{vL}\ns_mov_b32 exec_hi, 0")
            e(f"buffer_store_dword v44, v45, {WS}, s3 offen")
        if p["PAD"]:
            e.label("L_exit")
            e(f"s_add_u32 s80, s80, {p['PAD']}")
            e.label("L_padl")
            e("s_sleep 4\ns_memrealtime s[68:69]\ns_waitcnt lgkmcnt(0)\ns_sub_u32 s68, s68, s80\ns_cmp_lt_i32 s68, 0\ns_cbranch_scc1 L_padl")
        e.label("L_end")
        e("s_endpgm")
        e.label("L_codeend")
        gm, sm = p["GM"].replace("_", " "), p["SM"].replace("_", " ")
        e.L = [(l[:-3] + (gm if "load" in l else sm)) if l.endswith(" sc1") else l for l in e.L]
        body = pad_hazards(e.L)
        ref = open(f"cdna_kernels/{NAME}.s.ref").read().split("\n")
        head = [l for l in ref if l.startswith(";") and "@launch" not in l]
        out = head + ["; @launch grid=(256,1,1) block=(512,1,1) lds=163840",
                      '.amdgcn_target "amdgcn-amd-amdhsa--gfx950"', ".text", f".globl {NAME}_kernel", ".p2align 8",
                      f".type {NAME}_kernel,@function", f"{NAME}_kernel:"]
        out += [("" if l.endswith(":") else "    ") + l for l in body]
        out += ['.section .rodata,"a"', ".p2align 6", f".amdhsa_kernel {NAME}_kernel", "  .amdhsa_next_free_vgpr 256",
                "  .amdhsa_next_free_sgpr 102", "  .amdhsa_accum_offset 256", "  .amdhsa_group_segment_fixed_size 0",
                "  .amdhsa_kernarg_size 112", "  .amdhsa_user_sgpr_count 2", "  .amdhsa_user_sgpr_kernarg_segment_ptr 1",
                "  .amdhsa_system_sgpr_workgroup_id_x 1", ".end_amdhsa_kernel", ""]
        return "\n".join(out)

if __name__ == "__main__":
    kw = {}
    for a in sys.argv[2:]:
        k, v = a.split("=")
        kw[k] = (v == "True") if v in ("True", "False") else (int(v) if v.lstrip("-").isdigit() else v)
    open(sys.argv[1], "w").write(K(**kw).build())
```

```python
import sys, struct
from asmlib import Emit, pad_hazards

NAME = "concat_heads__compressed_kv_cla__gqa_block_cached__decode"
DEF = dict(D_B0=2, NB0=15, D_B=5, N1=14, PVK=3, D_A1=4, NA1=6, D_A2=5, QPOS=32, TIMING=False, MAXPOLL=400000,
           NT="nt", PAD=0, PADEV=-1, PADROLE="", NWE=8, LIGHT=False, PROG=False, GDELAY=0, GM="sc1", SM="sc1", SDELAY=0, NFAST=48, CPS=3, D_B2=5, NB2=40, WARMQ=1, WARMO=30, WARMB=0, WOK=23, NDUTY=0, DEEPW=-1, GSL=0, NU=-1, WQ0=2, PRIO=0, NOSLOW=0, AKILL=0, PTRACE="", WM="nt")

def f32(x): return "0x%08x" % struct.unpack("<I", struct.pack("<f", x))[0]
CS = 1.4426950408889634 * 128 ** -0.5

WS_QP, WS_QABS, WS_QB, WS_BML, WS_AML = 0x10000, 0x90000, 0xA0000, 0xA8000, 0xB0000
WS_BO, WS_OUTB, WS_OUTA, WS_AO, WS_STAMP = 0xC0000, 0x120000, 0x140000, 0x200000, 0x400000
WS_SIZE = 0x800000
SLOW = 0x500000
L_PR = 32768
L_PRB = 49152
L_LQ = 40960
LB_Q, LB_MX, LB_LS, LB_F, LB_G, LB_FLAG, LB_R4, LB_R5 = 0, 1024, 1152, 1280, 1408, 1536, 2048, 20480
LA_Q = 131072
LA_P, LA_MX, LA_LS = 131072, 147456, 148480
LA_F, LA_R1, LA_LAT, LA_R2, LA_CTX = 32768, 36864, 49152, 53248, 61440

vL, vC, vG = 1, 2, 3
SELA, SELB = 32, 36
sW, sX, sSLOT, sH1, sJ, sT = 6, 7, 8, 9, 10, 11
WS = "s[44:47]"
sHI = "s[62:63]"
sCS = "s60"

def fswz(k):
    k0, k1, k2, k3 = k & 1, (k >> 1) & 1, (k >> 2) & 1, (k >> 3) & 1
    return (k1 << 3) | (k0 << 2) | ((k1 ^ k3) << 1) | k2

def vr(a, n=4): return f"v[{a}:{a+n-1}]"

class K:
    def __init__(self, **kw):
        self.p = dict(DEF); self.p.update(kw)
        self.e = Emit()
        self.nlab = 0
        self.role = "B"
        self.ool = []
    def lab(self, s):
        self.nlab += 1
        return f"L_{s}_{self.nlab}"
    def stamp(self, i):
        if self.p["PAD"] and i == self.p["PADEV"] and self.role in self.p["PADROLE"]:
            self.e("s_memrealtime s[82:83]\ns_waitcnt lgkmcnt(0)")
        if self.p["TIMING"] and not self.p["PROG"] and (not self.p["LIGHT"] or i in (1, 3, 4, 5, 6, 7, 10, 11, 21, 22)):
            self.e(f"s_memrealtime s[98:99]\ns_waitcnt lgkmcnt(0)\ns_mov_b32 s{70+i}, s98")
    def prog(self, n, step):
        if self.p["PROG"] and (n + 1) % step == 0 and (n + 1) // step <= 13:
            k = 72 + 2 * ((n + 1) // step - 1)
            self.e(f"s_memrealtime s[{k}:{k+1}]")
    def cnt(self, i):
        if self.p["TIMING"] and not self.p["PROG"]: self.e(f"s_mov_b32 s{70+i}, s13")
    def exit(self):
        self.e("s_branch L_exit" if self.p["TIMING"] or self.p["PAD"] else "s_endpgm")
    def srd(self, s, ptr, size):
        self.e(f"s_mov_b32 s{s}, s{ptr}\ns_mov_b32 s{s+1}, s{ptr+1}\ns_mov_b32 s{s+2}, {size}\ns_mov_b32 s{s+3}, 0x20000")
    def exec_full(self): self.e("s_mov_b64 exec, -1")
    def exec_mask(self, lo, hi): self.e(f"s_mov_b32 exec_lo, {lo:#x}\ns_mov_b32 exec_hi, {hi:#x}")
    def allred_G(self, vals, tmps, op, steps=(32, 16)):
        e = self.e
        for st in steps:
            for v, t in zip(vals, tmps): e(f"v_mov_b32 v{t}, v{v}")
            for v, t in zip(vals, tmps): e(f"v_permlane{st}_swap_b32 v{t}, v{v}")
            for v, t in zip(vals, tmps): e(f"{op} v{v}, v{t}, v{v}")
    def rowred(self, vals, op, rors):
        for r in rors:
            for v in vals: self.e(f"{op}_dpp v{v}, v{v}, v{v} row_ror:{r} row_mask:0xf bank_mask:0xf")
    def tagcheck(self, tags, acc):
        e = self.e
        e(f"v_xor_b32 v{acc}, s{sT}, v{tags[0]}")
        for t in tags[1:]: e(f"v_bitop3_b32 v{acc}, v{t}, s{sT}, v{acc} bitop3:0xbe")
        e(f"v_cmp_ne_u32 vcc, 0, v{acc}")
    def poll(self, issue, tags, acc, name, fast=None, slowpub=None):
        e = self.e
        L, D, F = self.lab(name), self.lab(name + "d"), self.lab(name + "f")
        e("s_mov_b32 s13, 0")
        e.label(L)
        issue()
        e(f"s_add_u32 s13, s13, 1\ns_waitcnt vmcnt(0)")
        if self.p["TIMING"] and self.p["PTRACE"] == name:
            e("s_memrealtime s[98:99]\ns_waitcnt lgkmcnt(0)")
            for k in range(1, 7): e(f"s_cmp_eq_u32 s13, {k}\ns_cselect_b32 s{90+k}, s98, s{90+k}")
        self.tagcheck(tags, acc)
        if fast:
            e(f"s_cbranch_vccnz {F}")
            def ool():
                e.label(F)
                e(f"s_cmp_gt_u32 s13, {self.p['MAXPOLL']}\ns_cbranch_scc1 {D}\ns_cmp_eq_u32 s13, {self.p['NFAST']}\ns_cbranch_scc0 {L}")
                if slowpub: slowpub()
                e(f"s_add_u32 {fast}, {fast}, {SLOW}\ns_branch {L}")
            self.ool.append(ool)
        else:
            e(f"s_cmp_gt_u32 s13, {self.p['MAXPOLL']}\ns_cbranch_scc1 {D}\ns_cbranch_vccnz {L}")
        e.label(D)
        if slowpub: slowpub()
    def expand4(self, dst, src, pi):
        for q in range(4): self.e(f"v_perm_b32 v{dst+q}, v{src}, v{src}, v{SELB+4*pi+q}")
    def gemv8(self, acc, frag, data, toks, E=(44, 48)):
        e = self.e
        self.expand4(E[0], frag, 0)
        for i in range(8):
            if i + 1 < 8: self.expand4(E[(i + 1) & 1], frag + ((i + 1) >> 1), (i + 1) & 1)
            if toks is not None and toks[i] is not None: e.wait_vm(toks[i])
            e(f"v_mfma_f32_16x16x32_bf16 {vr(acc)}, {vr(E[i&1])}, {vr(data+4*i)}, {'0' if i == 0 else vr(acc)}")

    def prologue(self):
        e, nt = self.e, self.p["NT"]
        e("s_cmp_ge_u32 s2, 256\ns_cbranch_scc1 L_end")
        e("s_load_dwordx16 s[16:31], s[0:1], 0\ns_load_dwordx8 s[32:39], s[0:1], 64\ns_load_dwordx4 s[40:43], s[0:1], 96")
        if self.p["TIMING"]:
            for i in range(72, 98): e(f"s_mov_b32 s{i}, 0")
            e("s_memrealtime s[70:71]")
        if self.p["PAD"]: e("s_memrealtime s[80:81]\ns_mov_b32 s82, 0")
        e("s_getpc_b64 s[4:5]")
        e.label("L_pc")
        e("v_lshlrev_b32 v4, 6, v0\nv_min_u32 v4, L_codeend-L_pc-4, v4")
        e.vmem("global_load_dword v5, v4, s[4:5]")
        e(f"v_lshrrev_b32 v6, 6, v0\nv_and_b32 v{vL}, 63, v0\nv_and_b32 v{vC}, 15, v0\nv_bfe_u32 v{vG}, v0, 4, 2")
        e(f"v_readfirstlane_b32 s{sW}, v6")
        e(f"s_and_b32 s{sX}, s2, 7\ns_lshr_b32 s{sSLOT}, s2, 3")
        e(f"v_and_b32 v7, 3, v0\nv_lshlrev_b32 v7, 4, v7\nv_lshl_add_u32 v7, v{vG}, 6, v7\nv_and_b32 v8, 7, v0\nv_lshlrev_b32 v10, 4, v{vL}")
        e(f"s_cmp_lt_u32 s{sSLOT}, 8\ns_cbranch_scc1 L_astream")
        e(f"s_sub_u32 s64, s{sSLOT}, 8\ns_mul_i32 s{sH1}, s64, 43\ns_lshr_b32 s{sH1}, s{sH1}, 8\ns_mul_i32 s3, s{sH1}, 6\ns_sub_u32 s{sJ}, s64, s3\ns_lshl_b32 s3, s{sX}, 2\ns_add_u32 s{sH1}, s{sH1}, s3")
        e(f"s_mul_i32 s3, s{sJ}, {96*8192}\ns_lshl_b32 s12, s{sH1}, 8\ns_add_u32 s61, s3, s12")
        e(f"v_lshrrev_b32 v6, 4, v0\nv_lshlrev_b32 v4, 13, v6\nv_lshl_add_u32 v4, v{vC}, 4, v4\nv_add_u32 v4, s61, v4\nv_add_u32 v11, 0x40000, v4\nv_add_u32 v12, 0x80000, v4")
        e(f"s_mul_i32 s12, s{sJ}, 192\nv_lshl_add_u32 v6, v6, 1, s12")
        e("s_mov_b32 s50, 0x400000\ns_mov_b32 s51, 0x20000")
        e("s_movk_i32 s58, 0x400\ns_mov_b32 s59, 0x20000\ns_movk_i32 s46, 0x400\ns_mov_b32 s47, 0x20000")
        e(f"s_cmp_eq_u32 s{sW}, 7\ns_waitcnt lgkmcnt(0)")
        if self.p["WARMQ"]:
            wm = self.p["WM"].replace("_", " ")
            e("s_cbranch_scc0 L_nowarm")
            e(f"s_lshl_b32 s14, s{sH1}, 14\ns_add_u32 s14, s14, {WS_QP}\ns_add_u32 s4, s42, s14\ns_addc_u32 s5, s43, 0\nv_lshlrev_b32 v9, 3, v10\nv_add_u32 v13, 0x2000, v9")
            e(f"global_load_dword v5, v9, s[4:5] {wm}\ns_mov_b32 exec_hi, 0\nglobal_load_dword v5, v13, s[4:5] {wm}")
            e(f"s_lshl_b32 s14, s{sX}, 11\ns_add_u32 s14, s14, {WS_BML}\ns_add_u32 s4, s42, s14\ns_addc_u32 s5, s43, 0\ns_mov_b32 exec_lo, 0xffff\nglobal_load_dword v5, v9, s[4:5] {wm}\ns_mov_b64 exec, -1\ns_cmp_eq_u32 s{sW}, 7")
            e.label("L_nowarm")
        e("s_mov_b32 s48, s20\ns_mov_b32 s49, s21\ns_mov_b32 s56, s16\ns_mov_b32 s57, s17")
        for i in range(3): e.vmem(f"buffer_load_ushort v{16+i}, v6, s[56:59], 0 offen offset:{64*i}")
        for i in range(3): self.tA = e.vmem(f"buffer_load_dwordx4 {vr(128+4*i)}, v{(4,11,12)[i]}, s[48:51], 0 offen {nt}")
        e("s_mov_b32 s44, s28\ns_mov_b32 s45, s29")
        for i in range(3): e.vmem(f"buffer_load_ushort v{19+i}, v6, s[44:47], 0 offen offset:{64*i}")
        e("v_mov_b32 v22, v4\ns_cbranch_scc0 L_notctrl")

    def wq_load(self, i):
        e = self.e
        if i == 0: self.srd(72, 34, 1 << 22)
        t = e.vmem(f"buffer_load_dwordx4 {vr(140+4*i)}, v22, s[16:19], 0 offen {self.p['NT']}")
        if i < 2: e("v_add_u32 v22, 0x40000, v22")
        return t
    def p1_gemv(self, X, W, dst):
        e = self.e
        for i in range(3): self.expand4(44 + 4 * i, X + i, 0)
        for i in range(3): e(f"v_mfma_f32_16x16x32_bf16 v[152:155], {vr(44+4*i)}, {vr(W+4*i)}, {'0' if i == 0 else 'v[152:155]'}")
        e(f"v_lshlrev_b32 v11, 4, v0")
        e.ds(f"ds_write_b128 v11, v[152:155] offset:{dst}")
    def p1_reduce(self, src, R, pub):
        e = self.e
        e(f"v_and_b32 v11, 31, v{vL}\nv_lshlrev_b32 v11, 4, v11\nv_lshrrev_b32 v12, 5, v{vL}\nv_lshl_add_u32 v11, v12, 12, v11")
        tk = [e.ds(f"ds_read_b128 {vr(R+4*w)}, v11 offset:{src+1024*w}") for w in range(4)]
        e(f"v_mov_b32 v{pub+1}, s{sT}\nv_mov_b32 v{pub+3}, s{sT}")
        for w in range(1, 4):
            e.wait_lg(tk[w])
            e(f"v_pk_add_f32 v[{R}:{R+1}], v[{R}:{R+1}], v[{R+4*w}:{R+4*w+1}]\nv_pk_add_f32 v[{R+2}:{R+3}], v[{R+2}:{R+3}], v[{R+4*w+2}:{R+4*w+3}]")
        e(f"v_permlane32_swap_b32 v{R}, v{R+2}\nv_permlane32_swap_b32 v{R+1}, v{R+3}\nv_add_f32 v{pub}, v{R}, v{R+2}\nv_add_f32 v{pub+2}, v{R+1}, v{R+3}")

    def selectors(self):
        e = self.e
        e(f"s_mov_b32 s62, 0\ns_mov_b32 s63, -1\ns_mov_b32 {sCS}, {f32(CS)}")
        self.srd(44, 42, WS_SIZE)
        e("v_and_b32 v15, 3, v0\nv_lshlrev_b32 v15, 4, v15\nv_mov_b32 v13, 0\nv_mov_b32 v11, 0x0c0c0c0c\nv_and_b32 v14, 4, v0\nv_cmp_ne_u32 vcc, 0, v14")
        for pi, d in ((0, 0x0d0c), (1, 0x0f0e)):
            a = SELA + 2 * pi
            e(f"v_mov_b32 v12, {d:#x}\nv_lshlrev_b64 v[{a}:{a+1}], v15, v[12:13]\nv_xor_b32 v{a}, v11, v{a}\nv_xor_b32 v{a+1}, v11, v{a+1}")
            b = SELB + 4 * pi
            e(f"v_cndmask_b32 v{b}, v{a}, v11, vcc\nv_cndmask_b32 v{b+1}, v{a+1}, v11, vcc\nv_cndmask_b32 v{b+2}, v11, v{a}, vcc\nv_cndmask_b32 v{b+3}, v11, v{a+1}, vcc")
    def tagmake(self):
        self.e(f"s_waitcnt lgkmcnt(0)\ns_mul_i32 s{sT}, s{sT}, 0x9e3779b1\ns_add_u32 s{sT}, s{sT}, 0x7f4a7c15")

    def p1_compute(self, ctrl):
        e = self.e
        self.selectors()
        if ctrl:
            self.tagmake()
            e(f"v_mov_b32 v57, s{sT}\nv_mov_b32 v59, s{sT}")
            e.ds(f"ds_write_b32 v13, v57 offset:{LB_FLAG+8}")
            for k in (0, 4, 12): e.ds(f"ds_write_b32 v13, v13 offset:{LB_FLAG+k}")
        e.wait_vm(self.tA)
        self.p1_gemv(16, 128, L_PR)
        e("s_waitcnt lgkmcnt(0)\ns_barrier")
        self.stamp(1)
        if not ctrl:
            e.ds(f"ds_read_b32 v12, v13 offset:{LB_FLAG+8}")
            tq = [self.wq_load(i) for i in range(self.p["WQ0"])]
            e(f"s_waitcnt lgkmcnt(0)\nv_readfirstlane_b32 s{sT}, v12")
            e("s_barrier")
            tq += [self.wq_load(i) for i in range(self.p["WQ0"], 3)]
            return tq[2]

    def phase1(self):
        e, nt = self.e, self.p["NT"]
        WQ, WU = 64, 160
        e(f"s_load_dword s{sT}, s[42:43], 0")
        e(f"v_bfe_u32 v14, v0, 2, 2\nv_lshl_add_u32 v9, v14, 15, v7\nv_add_u32 v9, s61, v9\nv_lshl_add_u32 v14, v14, 14, v7\nv_add_u32 v14, s61, v14")
        self.srd(56, 22, 1 << 22)
        tu = []
        for t in range(4):
            for a in range(4):
                tu.append(e.vmem(f"buffer_load_dwordx4 {vr(WU+16*a+4*t)}, v9, s[56:59], 0 offen {nt}"))
                if (t, a) != (3, 3): e(f"v_add_u32 v9, {0x2000 if a < 3 else 0x20000-0x6000:#x}, v9")
        e("v_add_u32 v14, 0x80000, v14")
        for t in range(4):
            for a in range(2):
                tu.append(e.vmem(f"buffer_load_dwordx4 {vr(WU+64+16*a+4*t)}, v14, s[56:59], 0 offen {nt}"))
                if (t, a) != (3, 1): e(f"v_add_u32 v14, {0x2000 if a < 1 else 0x10000-0x2000:#x}, v14")
        self.p1_compute(True)
        e(f"s_lshl_b32 s14, s{sH1}, 14\ns_add_u32 s14, s14, {WS_QP}\ns_lshl_b32 s15, s{sJ}, 11\ns_add_u32 s15, s15, s14")
        self.p1_reduce(L_PR, WQ, 52)
        tst = e.vmem(f"buffer_store_dwordx4 v[52:55], v10, {WS}, s15 offen")
        self.stamp(2)
        e(f"s_add_u32 s68, s15, {SLOW}")
        def qp_slow():
            e.vmem(f"buffer_store_dwordx4 v[52:55], v10, {WS}, s68 offen sc1")
        QF = [24, 28, 120, 124]
        for b in QF:
            for r in range(4): e(f"v_mov_b32 v{b+r}, 0")
        e(f"v_and_b32 v9, 1, v{vG}\nv_lshlrev_b32 v9, 3, v9\nv_lshl_add_u32 v9, v{vC}, 4, v9\nv_lshrrev_b32 v12, 1, v{vG}\nv_lshl_add_u32 v9, v12, 2, v9")
        e(f"v_add_u32 v13, {L_LQ}, v9\nv_add_u32 v14, {L_LQ}, v7")
        def gat(base, mat):
            def f():
                for jj in range(6):
                    if jj % 2 == 0: e(f"s_add_u32 s12, {base}, {jj*2048}")
                    t = e.vmem(f"buffer_load_dwordx4 {vr(WQ+4*jj)}, v10, {WS}, s12 offen offset:{(jj&1)*2048+1024*mat} sc1")
                return t
            return f
        tags = [WQ + 4 * jj + k for jj in range(6) for k in (1, 3)]
        def sum6():
            for jj in range(1, 6):
                e(f"v_add_f32 v{WQ}, v{WQ}, v{WQ+4*jj}\nv_add_f32 v{WQ+2}, v{WQ+2}, v{WQ+4*jj+2}")
        if self.p["TIMING"]:
            e.wait_vm(tu[min(23, 23 - self.p["NU"])]); self.stamp(22)
        e.wait_vm(tu[23 - self.p["NU"]] if self.p["NU"] >= 0 else tst)
        if self.p["NU"] < 0 and self.p["TIMING"]:
            pass
        self.stamp(21)
        for _ in range(self.p["GSL"]): e("s_sleep 2")
        tg = gat("s14", 0)()
        e("s_barrier")
        for i in range(3): tq = self.wq_load(i)
        e.wait_vm(tg)
        self.tagcheck(tags, 60)
        e("s_cbranch_vccnz L_p1_retry")
        if self.p["TIMING"]: e("s_mov_b32 s13, 0")
        qp_slow()
        e.label("L_p1_got")
        def ool():
            e.label("L_p1_retry")
            self.poll(gat("s14", 0), tags, 60, "gqa", fast="s14", slowpub=qp_slow)
            e("s_branch L_p1_got")
        self.ool.append(ool)
        self.stamp(3); self.cnt(20)
        sum6()
        e(f"v_cvt_pk_bf16_f32 v60, v{WQ}, v{WQ+2}")
        e.ds(f"ds_write_b32 v13, v60")
        e("s_waitcnt lgkmcnt(0)")
        for t in range(4):
            m = 0x000f000f << (4 * t)
            self.exec_mask(m, m)
            e.ds(f"ds_read_b128 {vr(QF[t])}, v14")
        self.exec_full()
        e("s_waitcnt lgkmcnt(0)")
        for a in range(6):
            for t in range(4):
                e(f"v_mfma_f32_16x16x32_bf16 {vr(64+4*a)}, {vr(WU+16*a+4*t)}, {vr(QF[t])}, {'0' if t == 0 else vr(64+4*a)}")
        e(f"s_lshl_b32 s12, s{sH1}, 11\ns_mul_i32 s3, s{sJ}, 384\ns_add_u32 s12, s12, s3\ns_add_u32 s12, s12, {WS_QABS}")
        e(f"v_and_b32 v15, 12, v{vC}\nv_add_u32 v15, v15, v{vG}\nv_lshlrev_b32 v14, 3, v15\nv_lshlrev_b32 v15, 4, v15")
        e(f"s_mov_b32 s3, 0x00110011\ns_cmp_lt_u32 s{sJ}, 5\ns_cselect_b32 s3, 0x11111111, s3")
        self.quadsum([(64 + 4 * a, 44 + a) for a in range(6)])
        e(f"v_cvt_pk_bf16_f32 v56, v44, v45\nv_cvt_pk_bf16_f32 v58, v46, v47\nv_cvt_pk_bf16_f32 v62, v48, v49\nv_mov_b32 v63, s{sT}")
        e("s_mov_b32 exec_lo, s3\ns_mov_b32 exec_hi, s3")
        e.vmem(f"buffer_store_dwordx4 v[56:59], v15, {WS}, s12 offen sc1")
        e("s_cbranch_scc0 L_p1done")
        e(f"buffer_store_dwordx2 v[62:63], v14, {WS}, s12 offen offset:256 sc1")
        e.label("L_p1done")
        self.exec_full()
        self.stamp(4)
        e.wait_vm(tq)
        self.p1_gemv(19, 140, L_PRB)
        e("v_mov_b32 v15, 0")
        L = self.lab("wqb")
        e.label(L)
        e.ds(f"ds_read_b32 v60, v15 offset:{LB_FLAG+12}")
        e(f"s_waitcnt lgkmcnt(0)\nv_readfirstlane_b32 s3, v60\ns_cmp_lt_u32 s3, 7\ns_cbranch_scc1 {L}")
        self.p1_reduce(L_PRB, WQ, 52)
        e.vmem(f"buffer_store_dwordx4 v[52:55], v10, {WS}, s15 offen offset:1024")
        e.vmem(f"buffer_store_dwordx4 v[52:55], v10, {WS}, s68 offen offset:1024 sc1")
        R = 160
        e(f"s_lshl_b32 s67, s{sX}, 16\ns_add_u32 s67, s67, {WS_QP}")
        def gb():
            for hh in range(4):
                for jj in range(6):
                    if jj % 2 == 0: e(f"s_add_u32 s12, s67, {hh*16384+jj*2048}")
                    e.vmem(f"buffer_load_dwordx4 {vr(R+24*hh+4*jj)}, v10, {WS}, s12 offen offset:{(jj&1)*2048+1024} sc1")
        self.poll(gb, [R + 4 * i + k for i in range(24) for k in (1, 3)], 60, "gqb", fast="s67")
        for jj in range(1, 6):
            for hh in range(4):
                b = R + 24 * hh
                e(f"v_add_f32 v{b}, v{b}, v{b+4*jj}\nv_add_f32 v{b+2}, v{b+2}, v{b+4*jj+2}")
        e("v_mov_b32 v15, 0\nv_mov_b32 v61, 1")
        for hh in range(4):
            b = R + 24 * hh
            e(f"v_cvt_pk_bf16_f32 v{b}, v{b}, v{b+2}")
            e.ds(f"ds_write_b32 v9, v{b} offset:{LB_Q+256*hh}")
        e.ds(f"ds_write_b32 v15, v61 offset:{LB_FLAG}")
        e("s_waitcnt lgkmcnt(0)")

    def quadsum(self, pairs):
        e = self.e
        for D, S in pairs: e(f"v_mov_b32_dpp v{S}, v{D} quad_perm:[0,0,0,0] row_mask:0xf bank_mask:0xf")
        for r in range(1, 4):
            for D, S in pairs: e(f"v_add_f32_dpp v{S}, v{D+r}, v{S} quad_perm:[{r},{r},{r},{r}] row_mask:0xf bank_mask:0xf")

    def b_ids(self):
        e = self.e
        e(f"s_lshr_b32 s65, s64, 2\ns_lshl_b32 s3, s{sX}, 2\ns_add_u32 s65, s65, s3\ns_and_b32 s66, s64, 3")
        e(f"v_bfe_u32 v6, v{vL}, 2, 2\nv_lshl_add_u32 v6, v6, 8, v7")
        e(f"s_lshl_b32 s3, s65, 7\ns_and_b32 s12, s{sW}, 3\ns_lshl_b32 s12, s12, 5\ns_add_u32 s3, s3, s12\ns_lshr_b32 s12, s{sW}, 2\ns_lshl_b32 s12, s12, 2\ns_add_u32 s3, s3, s12")
        e(f"s_lshl_b32 s3, s3, 10\ns_lshl_b32 s12, s66, 8\ns_add_u32 s69, s3, s12")
        e(f"v_lshlrev_b32 v4, 10, v{vG}\nv_lshl_add_u32 v4, v{vC}, 4, v4")
        self.srd(48, 30, 1 << 25); self.srd(52, 32, 1 << 25); self.srd(56, 36, 1 << 22)
        e("s_cmp_lt_u32 s64, 16\ns_cselect_b32 s58, s58, 0")
    def bo_addr(self):
        e = self.e
        e(f"s_mul_i32 s68, s65, {24*512}\ns_lshl_b32 s3, s{sW}, 6\ns_add_u32 s68, s68, s3\ns_add_u32 s68, s68, {WS_BO}")
        e(f"v_and_b32 v9, 3, v{vL}\nv_lshlrev_b32 v9, 4, v9\nv_lshrrev_b32 v6, 2, v{vL}\nv_lshl_add_u32 v6, v6, 9, v9\nv_and_b32 v9, 0xfff, v6\nv_add_u32 v9, {16*512}, v9")
    def bo_warm(self):
        e = self.e
        self.bo_addr()
        L = self.lab("bow")
        e(f"s_cmp_lt_u32 s64, 16\ns_cbranch_scc0 {L}")
        e(f"buffer_load_dword v5, v6, {WS}, s68 offen {self.p['WM'].replace('_',' ')}")
        e(f"buffer_load_dword v5, v9, {WS}, s68 offen {self.p['WM'].replace('_',' ')}")
        e.label(L)
    def b_kload(self, KR, t, n):
        return self.e.vmem(f"buffer_load_dwordx4 {vr(KR+16*t+4*n)}, v6, s[48:51], s14 offen offset:{n*1024} {self.p['NT']}")
    def b_vload(self, VR, t, n):
        return self.e.vmem(f"buffer_load_dwordx4 {vr(VR+16*t+4*n)}, v10, s[52:55], s15 offen offset:{n*1024} {self.p['NT']}")
    def b_woloads(self):
        for i in range(4):
            self.e.vmem(f"buffer_load_dwordx4 {vr(self.WO[i])}, v4, s[56:59], s69 offen {self.p['NT']}")
            if i < 3: self.e("s_addk_i32 s69, 0x2000")
    def b_chunks(self, nt, KR, bias, wait_q):
        e = self.e
        ch = []
        def c_q():
            e(f"v_lshrrev_b32 v11, 2, v{vC}\nv_lshl_add_u32 v12, v11, 8, v7")
            e(f"v_lshlrev_b32 v13, 5, v11\ns_lshl_b32 s3, s{sW}, 2\nv_add_u32 v14, s3, v13\nv_mov_b32 v15, 0")
            if wait_q:
                L = self.lab("wq")
                e.label(L)
                e.ds(f"ds_read_b32 v60, v15 offset:{LB_FLAG}")
                e(f"s_waitcnt lgkmcnt(0)\nv_readfirstlane_b32 s3, v60\ns_cmp_eq_u32 s3, 0\ns_cbranch_scc1 {L}")
            self.stamp(5)
            e.ds(f"ds_read_b128 v[16:19], v12 offset:{LB_Q}")
            e("s_waitcnt lgkmcnt(0)")
        ch.append((-1, c_q))
        def c_qk(t):
            def f():
                b = KR + 16 * t
                if t < nt:
                    for i in range(4): e(f"v_mfma_f32_16x16x32_bf16 {vr(44+4*i)}, {vr(b+4*i)}, v[16:19], 0")
                    self.quadsum([(44 + 4 * i, b + i) for i in range(4)])
                    if t == 0: e(f"v_max3_f32 v60, v{b}, v{b+1}, v{b+2}\nv_max_f32 v60, v60, v{b+3}")
                    else: e(f"v_max3_f32 v60, v60, v{b}, v{b+1}\nv_max3_f32 v60, v60, v{b+2}, v{b+3}")
                if t == nt:
                    self.allred_G([60], [61], "v_max_f32")
                    e(f"v_mul_f32 v62, {sCS}, v60")
            return f
        for t in range(nt + 1): ch.append((min(t, nt - 1), c_qk(t)))
        def c_exp(t):
            def f():
                b = KR + 16 * t
                for r in range(4): e(f"v_fma_f32 v{b+r}, v{b+r}, {sCS}, -v62")
                for r in range(4): e(f"v_exp_f32 v{b+r}, v{b+r}")
                if t == 0: e(f"v_add_f32 v63, v{b}, v{b+1}")
                else: e(f"v_add_f32 v63, v63, v{b}\nv_add_f32 v63, v63, v{b+1}")
                e(f"v_cvt_pk_bf16_f32 v{b+4}, v{b}, v{b+1}\nv_add_f32 v63, v63, v{b+2}\nv_cvt_pk_bf16_f32 v{b+5}, v{b+2}, v{b+3}\nv_add_f32 v63, v63, v{b+3}")
            return f
        for t in range(nt): ch.append((nt - 1, c_exp(t)))
        def c_l():
            self.allred_G([63], [61], "v_add_f32")
            if bias: e(f"v_add_f32 v62, {bias}, v62")
            e("v_mov_b32 v61, 1")
            self.exec_mask(0x1111, 0)
            e.ds(f"ds_write_b32 v14, v62 offset:{LB_MX}")
            e.ds(f"ds_write_b32 v14, v63 offset:{LB_LS}")
            e("s_mov_b32 exec_lo, 1")
            e.ds(f"ds_add_u32 v15, v61 offset:{LB_FLAG+4}")
            self.exec_full()
            self.stamp(6)
        ch.append((nt - 1, c_l))
        return ch
    def b_pv_prep(self, KR, n):
        t, i = n >> 2, n & 3
        E = 44 + 2 * (n & 3)
        for q in range(2): self.e(f"v_perm_b32 v{E+q}, v{KR+16*t+4+(i>>1)}, v{KR+16*t+4+(i>>1)}, v{SELA+2*(i&1)+q}")
    def b_pv_mma(self, VR, n):
        t, i = n >> 2, n & 3
        E = 44 + 2 * (n & 3)
        b = VR + 16 * t + 4 * i
        for h in range(2):
            acc = 24 + 4 * h
            self.e(f"v_mfma_f32_16x16x16_bf16 {vr(acc)}, v[{E}:{E+1}], v[{b+2*h}:{b+2*h+1}], {'0' if n == 0 else vr(acc)}")
    def b_owrite(self):
        e = self.e
        e(f"s_lshl_b32 s3, s{sW}, 11\nv_add_u32 v11, s3, v10")
        e.ds(f"ds_write_b128 v11, v[24:27] offset:{LB_R4}")
        e.ds(f"ds_write_b128 v11, v[28:31] offset:{LB_R4+1024}")
        e("s_waitcnt lgkmcnt(0)")
        e("s_branch L_btail")

    def b_ctrl(self):
        e = self.e
        KR, VR = 64, 160
        self.WO = [72, 88, 104, 120]
        self.b_ids()
        e("s_cmp_ge_u32 s64, 16\ns_cselect_b32 s50, s50, 0\ns_cselect_b32 s54, s54, 0")
        e(f"s_cselect_b32 s61, 0, {f32(-1e30)}")
        e(f"s_lshl_b32 s14, s{sX}, 22\ns_lshl_b32 s3, s64, 1\ns_add_u32 s3, s3, {1008-32}\ns_lshl_b32 s3, s3, 12\ns_cmp_ge_u32 s64, 16\ns_cselect_b32 s3, s3, 0\ns_add_u32 s14, s14, s3\ns_mov_b32 s15, s14")
        for t in range(2):
            for n in range(4): self.b_kload(KR, t, n)
            if t == 0: e("s_addk_i32 s14, 0x1000")
        for t in range(2):
            for n in range(4): self.b_vload(VR, t, n)
            if t == 0: e("s_addk_i32 s15, 0x1000")
        e("s_waitcnt vmcnt(0) lgkmcnt(0)")
        for _, f in self.b_chunks(2, KR, "s61", False): f()
        for n in range(8):
            self.b_pv_prep(KR, n)
            self.b_pv_mma(VR, n)
        self.bo_warm() if self.p["WARMB"] else self.bo_addr()
        e(f"s_lshl_b32 s12, s{sX}, 11\ns_lshl_b32 s3, s64, 4\ns_add_u32 s12, s12, s3\ns_add_u32 s12, s12, {WS_BML}")
        e(f"v_lshlrev_b32 v11, 4, v13\nv_mov_b32 v53, s{sT}\nv_mov_b32 v55, s{sT}")
        L = self.lab("wml")
        e.label(L)
        e("s_sleep 2")
        e.ds(f"ds_read_b32 v60, v15 offset:{LB_FLAG+4}")
        e(f"s_waitcnt lgkmcnt(0)\nv_readfirstlane_b32 s3, v60\ns_cmp_lt_u32 s3, 8\ns_cbranch_scc1 {L}")
        e.ds(f"ds_read_b128 v[128:131], v13 offset:{LB_MX}")
        e.ds(f"ds_read_b128 v[132:135], v13 offset:{LB_MX+16}")
        e.ds(f"ds_read_b128 v[136:139], v13 offset:{LB_LS}")
        e.ds(f"ds_read_b128 v[140:143], v13 offset:{LB_LS+16}")
        e("s_waitcnt lgkmcnt(0)")
        e("v_max3_f32 v52, v128, v129, v130\nv_max3_f32 v52, v52, v131, v132\nv_max3_f32 v52, v52, v133, v134\nv_max_f32 v52, v52, v135")
        for r in range(128, 136): e(f"v_sub_f32 v{r}, v{r}, v52")
        for r in range(128, 136): e(f"v_exp_f32 v{r}, v{r}")
        e("v_mul_f32 v54, v128, v136")
        for r in range(1, 8): e(f"v_fmac_f32 v54, v{128+r}, v{136+r}")
        self.exec_mask(0x1111, 0)
        e.ds(f"ds_write_b128 v13, v[128:131] offset:{LB_G}")
        e.ds(f"ds_write_b128 v13, v[132:135] offset:{LB_G+16}")
        e.vmem(f"buffer_store_dwordx4 v[52:55], v11, {WS}, s12 offen")
        e(f"s_add_u32 s12, s12, {SLOW}")
        e.vmem(f"buffer_store_dwordx4 v[52:55], v11, {WS}, s12 offen sc1")
        self.exec_full()
        e("s_cmp_lt_u32 s64, 16\ns_cbranch_scc0 L_bc_nod")
        if self.p["WOK"] <= 23: self.b_woloads()
        e(f"v_and_b32 v15, 31, v{vL}\nv_min_u32 v11, 23, v15\nv_lshlrev_b32 v11, 4, v11\ns_lshl_b32 s12, s65, 9\ns_add_u32 s12, s12, {WS_BML}")
        def gm(): e.vmem(f"buffer_load_dwordx4 v[52:55], v11, {WS}, s12 offen sc1")
        self.poll(gm, [53, 55], 60, "gml", fast="s12")
        e("v_mov_b32 v56, v52")
        self.rowred([56], "v_max_f32", (8, 4, 2, 1))
        self.allred_G([56], [57], "v_max_f32", steps=(16,))
        e("v_sub_f32 v52, v52, v56\nv_exp_f32 v52, v52\nv_cmp_gt_u32 vcc, 24, v15\nv_cndmask_b32 v52, 0, v52, vcc\nv_mul_f32 v54, v54, v52")
        self.rowred([54], "v_add_f32", (8, 4, 2, 1))
        self.allred_G([54], [57], "v_add_f32", steps=(16,))
        e("v_rcp_f32 v54, v54\nv_lshlrev_b32 v15, 2, v15\nv_mul_f32 v52, v52, v54")
        e.ds(f"ds_write_b32 v15, v52 offset:{LB_F}")
        e.label("L_bc_nod")
        self.b_owrite()

    def b_stream(self):
        e, p = self.e, self.p
        KR, VR, NT_ = 64, 160, 6
        self.WO = [72, 88, 104, 120]
        self.b_ids()
        e(f"s_mul_i32 s3, s64, 7\ns_add_u32 s3, s3, s{sW}\ns_lshl_b32 s3, s3, 12\ns_lshl_b32 s14, s{sX}, 22\ns_add_u32 s14, s14, s3\ns_mov_b32 s15, s14\ns_mov_b32 s67, {168*4096}")
        Df = lambda n: p["D_B0"] if n < p["NB0"] else p["D_B"] if n < p["NB2"] else p["D_B2"]
        D = p["D_B"]
        tok = []
        def issue(n, throttle=True):
            if throttle and n >= Df(n):
                if n < p["NDUTY"]:
                    L = self.lab("dty")
                    e(f"s_cbranch_vccnz {L}")
                    e.wait_vm(tok[n - Df(n)])
                    e.label(L)
                    if n > Df(n): e.wait_vm(tok[n - Df(n) - 1])
                else: e.wait_vm(tok[n - Df(n)])
            self.prog(n, 4)
            if n < 24:
                if n and n % 4 == 0: e("s_add_u32 s14, s14, s67")
                tok.append(self.b_kload(KR, n >> 2, n & 3))
            elif n < 48:
                m = n - 24
                if m and m % 4 == 0: e("s_add_u32 s15, s15, s67")
                tok.append(self.b_vload(VR, m >> 2, m & 3))
        n = 0
        if p["PRIO"]:
            L = self.lab("prio")
            e(f"s_cmp_ge_u32 s{sW}, 4\ns_cbranch_scc0 {L}\ns_setprio {p['PRIO']}")
            e.label(L)
        tq = self.p1_compute(False)
        while n < p["D_B0"]: issue(n); n += 1
        e.wait_vm(tq)
        self.p1_gemv(19, 140, L_PRB)
        e("v_mov_b32 v12, 1\ns_mov_b64 exec, 1")
        e.ds(f"ds_add_u32 v13, v12 offset:{LB_FLAG+12}")
        self.exec_full()
        assert p["NDUTY"] <= p["N1"]
        if p["NDUTY"]:
            if p["DEEPW"] < 0: e("s_cmp_lt_u32 s64, 16\ns_cselect_b64 vcc, -1, 0")
            else: e(f"s_cmp_ge_u32 s{sW}, {7-p['DEEPW']}\ns_cselect_b64 vcc, -1, 0")
        while n < p["N1"]: issue(n); n += 1
        ch = self.b_chunks(NT_, KR, None, True)
        done = 0
        landed = -1
        while n < 48:
            if n == p["WARMO"]:
                assert n >= 24
                self.bo_warm() if p["WARMB"] else self.bo_addr()
            issue(n)
            landed = max(landed, n - Df(n))
            k = 0
            while ch and k < p["CPS"] and 4 * ch[0][0] + 3 <= landed:
                ch.pop(0)[1](); k += 1
            k = 0
            while not ch and done < min(landed - 24 + 1, 24) and k < p["PVK"]:
                self.b_pv_prep(KR, done); self.b_pv_mma(VR, done); done += 1; k += 1
            n += 1
        assert not ch
        assert done <= p["WOK"]
        while done < 24:
            self.b_pv_prep(KR, done)
            e.wait_vm(tok[24 + done])
            if done == p["WOK"]: self.b_woloads()
            self.b_pv_mma(VR, done); done += 1
        self.stamp(7)
        self.b_owrite()

    def b_tail(self):
        e = self.e
        e.label("L_btail")
        e("s_barrier")
        self.stamp(10)
        e(f"s_cmp_lt_u32 s{sW}, 2\ns_cbranch_scc0 L_bt_nored")
        e(f"s_lshl_b32 s3, s{sW}, 10\nv_add_u32 v11, s3, v10")
        e(f"v_lshlrev_b32 v13, 5, v{vG}")
        e.ds(f"ds_read_b128 v[44:47], v13 offset:{LB_G}")
        e.ds(f"ds_read_b128 v[48:51], v13 offset:{LB_G+16}")
        tk = [e.ds(f"ds_read_b128 {vr(128+4*w)}, v11 offset:{LB_R4+2048*w}") for w in range(8)]
        e(f"s_mul_i32 s15, s{sX}, {4*24*512}\ns_lshl_b32 s3, s64, 9\ns_add_u32 s15, s15, s3\ns_lshl_b32 s3, s{sW}, 8\ns_add_u32 s15, s15, s3\ns_add_u32 s15, s15, {WS_BO}")
        e(f"v_mul_u32_u24 v14, {24*512}, v{vG}\nv_lshl_add_u32 v14, v{vC}, 4, v14\nv_mov_b32 v53, s{sT}\nv_mov_b32 v55, s{sT}")
        for w in range(8):
            e.wait_lg(tk[w])
            g = 44 + (w & ~1)
            sel = f"op_sel:[0,{w&1},0] op_sel_hi:[1,{w&1},1]"
            for k in (0, 2):
                if w == 0: e(f"v_pk_mul_f32 v[{128+k}:{129+k}], v[{128+k}:{129+k}], v[{g}:{g+1}] op_sel:[0,0] op_sel_hi:[1,0]")
                else: e(f"v_pk_fma_f32 v[{128+k}:{129+k}], v[{128+4*w+k}:{129+4*w+k}], v[{g}:{g+1}], v[{128+k}:{129+k}] {sel}")
        e("v_cvt_pk_bf16_f32 v52, v128, v129\nv_cvt_pk_bf16_f32 v54, v130, v131")
        e.vmem(f"buffer_store_dwordx4 v[52:55], v14, {WS}, s15 offen")
        e(f"s_add_u32 s15, s15, {SLOW}")
        e.label("L_bt_nored")
        self.stamp(8)
        def bo_slow():
            L = self.lab("bos")
            e(f"s_cmp_lt_u32 s{sW}, 2\ns_cbranch_scc0 {L}")
            e(f"buffer_store_dwordx4 v[52:55], v14, {WS}, s15 offen sc1")
            e.label(L)
        e("s_cmp_lt_u32 s64, 16\ns_cbranch_scc1 L_bt_duty")
        bo_slow()
        self.exit()
        e.label("L_bt_duty")
        if self.p["WOK"] > 23: self.b_woloads()
        e(f"v_and_b32 v11, 60, v{vL}")
        e.ds(f"ds_read_b32 v60, v11 offset:{LB_F}")
        e.ds(f"ds_read_b32 v61, v11 offset:{LB_F+64}")
        def g():
            e.vmem(f"buffer_load_dwordx4 v[128:131], v6, {WS}, s68 offen sc1")
            e.vmem(f"buffer_load_dwordx4 v[132:135], v9, {WS}, s68 offen sc1")
        self.poll(g, [129, 131, 133, 135], 62, "gbo", fast="s68", slowpub=bo_slow)
        self.stamp(11); self.cnt(12)
        e("s_waitcnt lgkmcnt(0)")
        for k, (src, f) in enumerate(((128, 60), (132, 61))):
            e(f"v_lshlrev_b32 v136, 16, v{src}\nv_and_b32 v137, 0xffff0000, v{src}\nv_lshlrev_b32 v138, 16, v{src+2}\nv_and_b32 v139, 0xffff0000, v{src+2}")
            for i in range(4):
                e(f"v_mul_f32 v{140+i}, v{f}, v{136+i}" if k == 0 else f"v_fmac_f32 v{140+i}, v{f}, v{136+i}")
        e("v_permlane32_swap_b32 v140, v142\nv_permlane32_swap_b32 v141, v143\nv_add_f32 v140, v140, v142\nv_add_f32 v141, v141, v143")
        e("v_permlane16_swap_b32 v140, v141\nv_add_f32 v140, v140, v141")
        self.rowred([140], "v_add_f32", (8, 4))
        e("v_cvt_pk_bf16_f32 v140, v140, v140")
        for i in range(4): e(f"v_mov_b32_dpp v{144+i}, v140 quad_perm:[{i},{i},{i},{i}] row_mask:0xf bank_mask:0xf")
        for i in range(4): self.expand4(148 + 4 * i, 144 + i, 0)
        for i in range(4):
            e(f"v_mfma_f32_16x16x32_bf16 v[24:27], {vr(148+4*i)}, {vr(self.WO[i])}, {'0' if i == 0 else 'v[24:27]'}")
        e(f"s_lshl_b32 s3, s{sW}, 10\nv_add_u32 v11, s3, v10")
        e.ds(f"ds_write_b128 v11, v[24:27] offset:{LB_R5}")
        e("s_waitcnt lgkmcnt(0)")
        self.stamp(13)
        e("s_barrier")
        self.stamp(14)
        e(f"s_cmp_eq_u32 s{sW}, 0\ns_cbranch_scc1 L_bt_fin")
        self.exit()
        e.label("L_bt_fin")
        e(f"v_and_b32 v11, 31, v{vL}\nv_lshlrev_b32 v11, 4, v11\nv_lshrrev_b32 v12, 5, v{vL}\nv_lshl_add_u32 v11, v12, 12, v11")
        tk = [e.ds(f"ds_read_b128 {vr(128+4*w)}, v11 offset:{LB_R5+1024*w}") for w in range(4)]
        e(f"s_lshl_b32 s12, s65, 12\ns_lshl_b32 s3, s66, 10\ns_add_u32 s12, s12, s3\ns_add_u32 s12, s12, {WS_OUTB}")
        e(f"v_and_b32 v13, 1, v{vG}\nv_lshlrev_b32 v13, 5, v13\nv_lshl_add_u32 v13, v{vC}, 6, v13\nv_lshl_add_u32 v13, v12, 4, v13\nv_mov_b32 v53, s{sT}\nv_mov_b32 v55, s{sT}")
        for w in range(1, 4):
            e.wait_lg(tk[w])
            e(f"v_pk_add_f32 v[128:129], v[128:129], v[{128+4*w}:{129+4*w}]\nv_pk_add_f32 v[130:131], v[130:131], v[{130+4*w}:{131+4*w}]")
        e("v_permlane32_swap_b32 v128, v130\nv_permlane32_swap_b32 v129, v131")
        e("v_add_f32 v52, v128, v130\nv_add_f32 v54, v129, v131")
        e.vmem(f"buffer_store_dwordx4 v[52:55], v13, {WS}, s12 offen sc1")
        self.stamp(9)
        e(f"s_lshl_b32 s3, s66, 7\ns_lshl_b32 s14, s65, 2\ns_add_u32 s14, s14, s3\ns_lshl_b32 s12, s14, 3\ns_add_u32 s12, s12, {WS_OUTB}")
        e(f"v_lshrrev_b32 v11, 1, v{vL}\nv_lshlrev_b32 v11, 12, v11\nv_and_b32 v12, 1, v{vL}\nv_lshl_add_u32 v11, v12, 4, v11")
        self.srd(48, 38, 2048)
        e(f"s_lshl_b32 s14, s14, 1\ns_add_u32 s14, s14, 1024\nv_lshlrev_b32 v12, 2, v12")
        def g2(): e.vmem(f"buffer_load_dwordx4 v[128:131], v11, {WS}, s12 offen sc1")
        self.poll(g2, [129, 131], 62, "gob")
        self.stamp(15); self.cnt(16)
        self.rowred([128, 130], "v_add_f32", (8, 4, 2))
        self.allred_G([128, 130], [132, 133], "v_add_f32")
        e("v_cvt_pk_bf16_f32 v128, v128, v130")
        self.exec_mask(3, 0)
        e.vmem("buffer_store_dword v128, v12, s[48:51], s14 offen")
        if self.p["TIMING"]: self.exec_full(); e("s_waitcnt vmcnt(0)")
        self.exit()

    def a_setup(self):
        e = self.e
        e(f"s_lshl_b32 s64, s{sX}, 3\ns_add_u32 s64, s64, s{sSLOT}\ns_lshr_b32 s65, s64, 1\ns_and_b32 s66, s64, 1")
        e("s_waitcnt lgkmcnt(0)")
        e(f"s_load_dword s{sT}, s[42:43], 0")
        self.srd(48, 18, 1 << 24)
        e(f"s_lshl_b32 s14, s64, 13\ns_lshl_b32 s3, s{sW}, 10\ns_add_u32 s14, s14, s3\ns_mov_b32 s61, 0x80000")
        e(f"s_lshl_b32 s15, s{sW}, 13\ns_add_u32 s15, s15, {WS_QABS}")
        e(f"s_lshl_b32 s67, s{sW}, 14")
        e(f"v_and_b32 v11, 3, v{vC}\nv_lshlrev_b32 v11, 2, v11")
        e(f"v_lshrrev_b32 v12, 2, v{vC}\nv_and_b32 v13, 1, v12\nv_or_b32 v11, v11, v13")
        e(f"v_xor_b32 v12, v12, v{vC}\nv_and_b32 v12, 2, v12\nv_or_b32 v11, v11, v12")
        e(f"v_lshlrev_b32 v11, 4, v11\nv_lshl_add_u32 v11, v{vG}, 8, v11\nv_lshl_add_u32 v11, v{vC}, 10, v11")
        e(f"v_add_u32 v6, s67, v11\nv_add_u32 v7, {LA_Q}, v11")
        e(f"v_add_u32 v9, s67, v10")
    def a_issue(self, depthf, p1at=None):
        e, p = self.e, self.p
        T1, T0, QG = 64, 128, 192
        seq = [("t1", i) for i in range(16)] + [("t0", i) for i in range(16)]
        q = p["QPOS"]
        seq = seq[:q] + [("q", i) for i in range(8)] + seq[q:]
        tok, done = [], 0
        tokof = {}
        def landed_action(it):
            kind, i = it
            if kind == "t1":
                e(f"v_xor_b32 v12, {16*fswz(i)}, v9")
                e.ds(f"ds_write_b128 v12, {vr(T1+4*i)} offset:{1024*i}")
                if i == 15:
                    e("s_waitcnt lgkmcnt(0)")
                    for ks in range(16):
                        e(f"v_xor_b32 v12, {16*ks}, v6")
                        e.ds(f"ds_read_b128 {vr(T1+4*ks)}, v12")
            elif kind == "t0":
                e(f"v_xor_b32 v12, {16*fswz(i)}, v9")
                e.ds(f"ds_write_b128 v12, {vr(T0+4*i)} offset:{1024*i}")
        def qload(i):
            if i % 4 == 0: e(f"s_add_u32 s12, s15, {1024*i}")
            return e.vmem(f"buffer_load_dwordx4 {vr(QG+4*i)}, v10, {WS}, s12 offen offset:{1024*(i&3)} sc1")
        for n, it in enumerate(seq):
            if n == p1at: self.selectors(); self.a_addrs(); self.tagmake(); self.stamp(1)
            D = depthf(n)
            if n >= D:
                e.wait_vm(tok[n - D])
            self.prog(n, 4)
            kind, i = it
            if kind == "q":
                t = qload(i)
            else:
                t = e.vmem(f"buffer_load_dwordx4 {vr((T1 if kind == 't1' else T0)+4*i)}, v10, s[48:51], s14 offen {p['NT']}")
                if not (kind == "t0" and i == 15): e("s_add_u32 s14, s14, s61")
            tok.append(t); tokof[it] = t
            while done <= n - D and done < len(seq) and n >= D:
                landed_action(seq[done]); done += 1
        e.wait_vm(tokof[("q", 7)])
        while done < len(seq) and tok[done] <= tokof[("q", 7)]:
            landed_action(seq[done]); done += 1
        self.stamp(2)
        tags = [QG + 4 * i + k for i in range(8) for k in (1, 3)]
        self.tagcheck(tags, 60)
        R, B = self.lab("aqr"), self.lab("aqb")
        e(f"s_cbranch_vccnz {R}")
        e.label(B)
        def ool():
            e.label(R)
            self.poll(lambda: [qload(i) for i in range(8)], tags, 60, "aqp")
            e(f"s_branch {B}")
        self.ool.append(ool)
        self.stamp(3)
        for i in range(8):
            e(f"v_mov_b32 v{QG+4*i+1}, v{QG+4*i+2}")
            if i % 2 == 0: e(f"v_xor_b32 v12, {16*fswz(i>>1)}, v4")
            e.ds(f"ds_write_b64 v12, v[{QG+4*i}:{QG+4*i+1}] offset:{1024*(i>>1)+512*(i&1)}")
        while done < len(seq):
            e.wait_vm(tok[done]); landed_action(seq[done]); done += 1
        e("s_waitcnt lgkmcnt(0)")

    def a_addrs(self):
        e = self.e
        e(f"v_lshlrev_b32 v250, 5, v{vC}\ns_lshl_b32 s3, s{sW}, 2\nv_add_u32 v250, {LA_MX}, v250\nv_add_u32 v251, s3, v250")
        e(f"v_lshrrev_b32 v252, 1, v{vG}\ns_lshl_b32 s3, s{sW}, 1\nv_add_u32 v252, s3, v252\nv_xor_b32 v252, v252, v{vC}\nv_lshlrev_b32 v252, 4, v252\nv_lshl_add_u32 v252, v{vC}, 9, v252")
        e(f"v_and_b32 v56, 1, v{vG}\nv_lshl_add_u32 v252, v56, 3, v252\nv_add_u32 v252, {LA_P}, v252")
        e(f"v_and_b32 v14, 31, v{vL}\nv_lshrrev_b32 v15, 5, v{vL}")
        e(f"v_xor_b32 v253, v15, v{vC}\nv_lshlrev_b32 v253, 4, v253\nv_lshl_add_u32 v253, v14, 9, v253\nv_add_u32 v253, {LA_P}, v253")
        e(f"v_bfe_u32 v57, v{vL}, 2, 2\nv_lshlrev_b32 v58, 2, v57\nv_lshrrev_b32 v59, 1, v57\nv_xor_b32 v59, v59, v15\nv_lshl_add_u32 v58, v59, 1, v58")
        e(f"v_bfe_u32 v59, v{vL}, 1, 1\nv_lshl_add_u32 v59, v56, 1, v59\ns_and_b32 s3, s{sW}, 1\ns_lshl_b32 s3, s3, 3\nv_add_u32 v59, s3, v59\nv_xor_b32 v58, v58, v59")
        e(f"v_lshlrev_b32 v58, 4, v58\nv_and_b32 v59, 1, v{vL}\nv_lshl_add_u32 v58, v59, 3, v58\nv_lshl_add_u32 v58, v57, 10, v58\nv_lshl_add_u32 v58, v15, 13, v58")
        e(f"s_lshr_b32 s3, s{sW}, 1\ns_lshl_b32 s3, s3, 8\nv_add_u32 v32, s3, v58")
        e("v_xor_b32 v33, 16, v32\nv_add_u32 v33, 0x1000, v33\nv_xor_b32 v34, 64, v32\nv_xor_b32 v35, 64, v33")
        e(f"v_and_b32 v254, 7, v14\nv_lshlrev_b32 v254, 4, v254\nv_lshl_add_u32 v254, v14, 10, v254\nv_lshl_add_u32 v254, v15, 3, v254\ns_lshl_b32 s3, s{sW}, 7\nv_add_u32 v254, s3, v254")
        e(f"s_and_b32 s3, s{sW}, 1\ns_lshl_b32 s3, s3, 6\nv_xor_b32 v255, s3, v10\ns_lshl_b32 s3, s{sW}, 12\nv_add_u32 v255, s3, v255")
        e(f"v_lshlrev_b32 v4, 3, v{vL}\ns_lshl_b32 s3, s{sW}, 12\ns_add_u32 s3, s3, {LA_Q}\nv_add_u32 v4, s3, v4\ns_and_b32 s3, s{sW}, 3\ns_lshl_b32 s3, s3, 4\nv_xor_b32 v4, s3, v4")
        e(f"s_lshl_b32 s16, s{sW}, 18\ns_lshl_b32 s3, s64, 10\ns_add_u32 s16, s16, s3\ns_add_u32 s16, s16, {WS_AO}\ns_mov_b32 s17, 0x10000")
        self.a_wsetup()
    def a_wsetup(self):
        e, nt = self.e, self.p["NT"]
        UV, WO = 160, 192
        self.srd(52, 24, 1 << 22); self.srd(56, 26, 1 << 22)
        e(f"s_lshl_b32 s68, s{sW}, 19\ns_lshl_b32 s3, s65, 8\ns_add_u32 s68, s68, s3\ns_lshl_b32 s3, s66, 7\ns_add_u32 s68, s68, s3")
        e(f"v_bfe_u32 v248, v{vL}, 3, 1\nv_lshlrev_b32 v248, 16, v248\nv_lshl_add_u32 v248, v{vG}, 17, v248\nv_lshl_add_u32 v248, v8, 4, v248")
        e(f"s_lshl_b32 s69, s64, 16\ns_lshr_b32 s3, s{sW}, 2\ns_lshl_b32 s3, s3, 15\ns_add_u32 s69, s69, s3\ns_and_b32 s3, s{sW}, 3\ns_lshl_b32 s3, s3, 8\ns_add_u32 s69, s69, s3")
        e(f"v_lshlrev_b32 v249, 13, v{vG}\nv_lshl_add_u32 v249, v{vC}, 4, v249")
        self.wq = []
        for i in range(8):
            self.wq.append((f"buffer_load_dwordx4 {vr(UV+4*i)}, v248, s[52:55], s68 offen {nt}", "s_addk_i32 s68, 0x2000" if i < 7 else ""))
        for i in range(8):
            self.wq.append((f"buffer_load_dwordx4 {vr(WO+4*i)}, v249, s[56:59], s69 offen offset:{1024*(i&3)} {nt}", "s_addk_i32 s69, 0x1000" if i == 3 else ""))
    def wtick(self, n=1, late=False):
        for _ in range(n):
            if self.wq and (late or len(self.wq) > 16 - self.p["NWE"]):
                a, b = self.wq.pop(0)
                self.e.vmem(a); self.e(b)

    def a_tail_addrs(self):
        e = self.e
        e(f"v_and_b32 v20, 1, v{vG}\nv_lshlrev_b32 v252, 5, v20\nv_lshl_add_u32 v252, v{vC}, 6, v252\nv_lshl_add_u32 v252, v15, 4, v252")
        e(f"v_lshrrev_b32 v23, 5, v0\nv_lshlrev_b32 v21, 4, v14\nv_lshl_add_u32 v21, v23, 10, v21\nv_lshlrev_b32 v22, 3, v20\nv_lshl_add_u32 v22, v{vC}, 4, v22\nv_lshl_add_u32 v22, v23, 8, v22")
        e(f"s_lshl_b32 s12, s65, 16\ns_lshr_b32 s3, s{sW}, 2\ns_lshl_b32 s3, s3, 15\ns_add_u32 s12, s12, s3\ns_and_b32 s3, s{sW}, 3\ns_lshl_b32 s3, s3, 8\ns_add_u32 s12, s12, s3\ns_add_u32 s12, s12, {WS_AO}")
        e(f"v_lshlrev_b32 v15, 10, v{vG}\nv_lshl_add_u32 v15, v{vC}, 4, v15")
        e(f"v_bfe_u32 v16, v{vL}, 3, 1\nv_lshlrev_b32 v17, 7, v16\nv_lshl_add_u32 v17, v{vG}, 4, v17\ns_lshr_b32 s3, s{sW}, 2\ns_lshl_b32 s3, s3, 6\ns_lshl_b32 s14, s{sW}, 8\ns_add_u32 s3, s3, s14\nv_add_u32 v17, s3, v17")
        e(f"s_lshl_b32 s3, s{sW}, 10\nv_add_u32 v18, s3, v10")
        e(f"v_and_b32 v19, 3, v{vL}\nv_lshlrev_b32 v19, 3, v19\nv_bfe_u32 v23, v{vL}, 2, 3\nv_add_u32 v19, v19, v23\nv_and_b32 v23, 32, v{vL}\nv_add_u32 v19, v19, v23\nv_lshlrev_b32 v19, 1, v19\nv_add_u32 v19, s14, v19")
        e(f"v_lshlrev_b32 v20, 4, v16\nv_lshl_add_u32 v20, v{vG}, 5, v20\ns_lshl_b32 s3, s{sW}, 7\nv_add_u32 v20, s3, v20")
        e(f"v_lshlrev_b32 v23, 8, v16\nv_lshl_add_u32 v23, v8, 4, v23\nv_lshl_add_u32 v23, v{vG}, 11, v23")
        e(f"v_lshlrev_b32 v250, 3, v16\nv_lshl_add_u32 v250, v8, 4, v250\nv_add_u32 v250, s3, v250")
        e(f"s_lshr_b32 s14, s{sW}, 2\ns_lshl_b32 s14, s14, 6\ns_add_u32 s3, s3, s14\nv_lshlrev_b32 v251, 4, v{vG}\nv_add_u32 v251, s3, v251")
        e(f"s_lshl_b32 s15, s65, 10\ns_add_u32 s15, s15, {WS_AML}\ns_mov_b32 s14, 0x11111111\ns_mov_b32 s13, 0\ns_lshr_b32 s61, s{sW}, 2\ns_lshl_b32 s61, s61, 5")
        e(f"s_lshl_b32 s17, s64, 12\ns_lshl_b32 s3, s{sW}, 10\ns_add_u32 s17, s17, s3\ns_add_u32 s17, s17, {WS_OUTA}")

    def a_main(self):
        e, p = self.e, self.p
        T1 = 64
        FR = (224, 236, 44)
        e.label("L_amain")
        e("s_barrier")
        self.stamp(4)
        if p["AKILL"] == 1: self.exit()
        def rd(ks):
            f = FR[ks % 3]
            e(f"v_xor_b32 v12, {16*ks}, v6\nv_xor_b32 v13, {16*ks}, v7")
            e.ds(f"ds_read_b128 {vr(f)}, v13")
            e.ds(f"ds_read_b128 {vr(f+4)}, v13 offset:16384")
            return e.ds(f"ds_read_b128 {vr(f+8)}, v12")
        tk = {0: rd(0), 1: rd(1)}
        for ks in range(16):
            f = FR[ks % 3]
            e.wait_lg(tk[ks])
            c = lambda r: "0" if ks == 0 else vr(r)
            e(f"v_mfma_f32_16x16x32_bf16 {vr(24)}, {vr(T1+4*ks)}, {vr(f)}, {c(24)}")
            e(f"v_mfma_f32_16x16x32_bf16 {vr(28)}, {vr(T1+4*ks)}, {vr(f+4)}, {c(28)}")
            if ks + 2 < 16: tk[ks + 2] = rd(ks + 2)
            if ks % 3 == 0: self.wtick()
            e(f"v_mfma_f32_16x16x32_bf16 {vr(16)}, {vr(f+8)}, {vr(f)}, {c(16)}")
            e(f"v_mfma_f32_16x16x32_bf16 {vr(20)}, {vr(f+8)}, {vr(f+4)}, {c(20)}")
        self.wtick()
        for hh in range(2):
            a, b = 16 + 4 * hh, 24 + 4 * hh
            e(f"v_max3_f32 v{56+hh}, v{a}, v{a+1}, v{a+2}\nv_max3_f32 v{56+hh}, v{56+hh}, v{a+3}, v{b}\nv_max3_f32 v{56+hh}, v{56+hh}, v{b+1}, v{b+2}\nv_max_f32 v{56+hh}, v{56+hh}, v{b+3}")
        self.allred_G([56, 57], [58, 59], "v_max_f32")
        e("s_barrier")
        self.stamp(10)
        self.exec_mask(0xffff, 0)
        e.ds("ds_write_b32 v251, v56")
        e.ds("ds_write_b32 v251, v57 offset:512")
        self.exec_full()
        e("s_waitcnt lgkmcnt(0)\ns_barrier")
        for hh in range(2):
            e.ds(f"ds_read_b128 {vr(224+8*hh)}, v250 offset:{512*hh}")
            e.ds(f"ds_read_b128 {vr(228+8*hh)}, v250 offset:{512*hh+16}")
        e("s_waitcnt lgkmcnt(0)")
        for hh in range(2):
            m = 224 + 8 * hh
            e(f"v_max3_f32 v{56+hh}, v{m}, v{m+1}, v{m+2}\nv_max3_f32 v{56+hh}, v{56+hh}, v{m+3}, v{m+4}\nv_max3_f32 v{56+hh}, v{56+hh}, v{m+5}, v{m+6}\nv_max_f32 v{56+hh}, v{56+hh}, v{m+7}")
            e(f"v_mul_f32 v{56+hh}, {sCS}, v{56+hh}")
        for T in range(2):
            for hh in range(2):
                for r in range(4):
                    s = 16 + 8 * T + 4 * hh + r
                    e(f"v_fma_f32 v{s}, v{s}, {sCS}, -v{56+hh}")
        self.wtick()
        for s in range(16, 32): e(f"v_exp_f32 v{s}, v{s}")
        for hh in range(2):
            a, b = 16 + 4 * hh, 24 + 4 * hh
            e(f"v_add_f32 v{58+hh}, v{a}, v{a+1}")
            for s in (a + 2, a + 3, b, b + 1, b + 2, b + 3): e(f"v_add_f32 v{58+hh}, v{58+hh}, v{s}")
        for T in range(2):
            for hh in range(2):
                s = 16 + 8 * T + 4 * hh
                e(f"v_cvt_pk_bf16_f32 v{s}, v{s}, v{s+1}\nv_cvt_pk_bf16_f32 v{s+1}, v{s+2}, v{s+3}")
                e.ds(f"ds_write_b64 v252, v[{s}:{s+1}] offset:{256*T+8192*hh}")
        self.allred_G([58, 59], [56, 57], "v_add_f32")
        self.exec_mask(0xffff, 0)
        e.ds(f"ds_write_b32 v251, v58 offset:{LA_LS-LA_MX}")
        e.ds(f"ds_write_b32 v251, v59 offset:{LA_LS-LA_MX+512}")
        self.exec_full()
        e("s_waitcnt lgkmcnt(0)\ns_barrier")
        self.stamp(5)
        ACC = (128, 144)
        for R in range(2):
            def rdp(n):
                f = FR[n % 3]
                if n == 4:
                    for k in range(32, 36): e(f"v_add_u32 v{k}, 0x10000, v{k}")
                e(f"v_xor_b32 v12, {32*n}, v253")
                e.ds(f"ds_read_b128 {vr(f)}, v12 offset:{256*R}")
                for t in range(2):
                    for nn in range(2):
                        tkk = e.ds(f"ds_read_b64_tr_b16 v[{f+4+4*t+2*nn}:{f+5+4*t+2*nn}], v{32+2*t+nn} offset:{16384*(n&3)}")
                return tkk
            tk = {0: rdp(0), 1: rdp(1)}
            for n in range(8):
                f = FR[n % 3]
                e.wait_lg(tk[n])
                first = (R == 0 and n == 0)
                e(f"v_mfma_f32_32x32x16_bf16 {vr(ACC[0],16)}, {vr(f+4)}, {vr(f)}, {'0' if first else vr(ACC[0],16)}")
                if n + 2 < 8: tk[n + 2] = rdp(n + 2)
                if n % 3 == 0: self.wtick()
                e(f"v_mfma_f32_32x32x16_bf16 {vr(ACC[1],16)}, {vr(f+8)}, {vr(f)}, {'0' if first else vr(ACC[1],16)}")
            e("s_barrier")
            self.stamp(11 + 2 * R)
            if R == 0:
                for ks in range(16):
                    e(f"v_xor_b32 v12, {16*ks}, v6")
                    e.ds(f"ds_write_b128 v12, {vr(T1+4*ks)}")
                    if ks % 6 == 0: self.wtick()
                for k in range(32, 36): e(f"v_subrev_u32 v{k}, 0x10000, v{k}")
                e("s_waitcnt lgkmcnt(0)\ns_barrier")
                self.stamp(12)
        self.wtick(16)
        for t in range(2):
            for q in range(4):
                a = ACC[t] + 4 * q
                e(f"v_cvt_pk_bf16_f32 v{a}, v{a}, v{a+1}\nv_cvt_pk_bf16_f32 v{a+1}, v{a+2}, v{a+3}\nv_xor_b32 v12, {16*(4*t+q)}, v254")
                e.ds(f"ds_write_b64 v12, v[{a}:{a+1}]")
        e("s_waitcnt lgkmcnt(0)\ns_barrier")
        self.stamp(14)
        if p["AKILL"] == 8: self.exit()
        tk = []
        for i in range(4):
            e(f"v_xor_b32 v12, {16*i}, v255")
            tk.append(e.ds(f"ds_read_b128 {vr(64+4*i)}, v12 offset:{1024*i}"))
        for i in range(4):
            e.wait_lg(tk[i])
            e.vmem(f"buffer_store_dwordx4 {vr(64+4*i)}, v10, {WS}, s16 offen sc1")
            if i < 3: e("s_add_u32 s16, s16, s17")
        e(f"v_and_b32 v12, 3, v{vL}\ns_lshl_b32 s3, s{sW}, 2\nv_add_u32 v13, s3, v12\nv_lshlrev_b32 v12, 5, v13\nv_add_u32 v12, {LA_MX}, v12")
        for k in range(2):
            e.ds(f"ds_read_b128 {vr(96+8*k)}, v12 offset:{1024*k}")
            e.ds(f"ds_read_b128 {vr(100+8*k)}, v12 offset:{1024*k+16}")
        e(f"v_lshlrev_b32 v13, 10, v13\ns_lshl_b32 s16, s64, 4\ns_add_u32 s16, s16, {WS_AML}\nv_mov_b32 v53, s{sT}\nv_mov_b32 v55, s{sT}")
        self.a_tail_addrs()
        e("s_waitcnt lgkmcnt(0)")
        e("v_max3_f32 v52, v96, v97, v98\nv_max3_f32 v52, v52, v99, v100\nv_max3_f32 v52, v52, v101, v102\nv_max_f32 v52, v52, v103")
        e(f"v_mul_f32 v52, {sCS}, v52\nv_add_f32 v54, v104, v105")
        for r in range(106, 112): e(f"v_add_f32 v54, v54, v{r}")
        e("s_mov_b64 exec, 15\ns_waitcnt vmcnt(0)")
        e(f"buffer_store_dwordx4 v[52:55], v13, {WS}, s16 offen sc1")
        self.exec_full()
        self.stamp(6)
        if p["AKILL"] == 9: self.exit()
        e.label("L_agl")
        e(f"buffer_load_dwordx4 v[96:99], v10, {WS}, s15 offen sc1")
        e("s_add_u32 s13, s13, 1\ns_waitcnt vmcnt(0)")
        e(f"v_xor_b32 v60, s{sT}, v97\nv_bitop3_b32 v60, v99, s{sT}, v60 bitop3:0xbe\nv_cmp_eq_u32 vcc, 0, v60")
        e(f"s_cmp_gt_u32 s13, {p['MAXPOLL']}\ns_cselect_b64 vcc, -1, vcc")
        e("s_lshr_b64 s[4:5], vcc, s61\ns_lshr_b32 s5, s4, 1\ns_and_b32 s4, s4, s5\ns_lshr_b32 s5, s4, 2\ns_and_b32 s4, s4, s5\ns_and_b32 s4, s4, s14\ns_andn2_b32 s14, s14, s4")
        for i in range(8):
            L = self.lab("agi")
            e(f"s_bitcmp1_b32 s4, {4*i}\ns_cbranch_scc0 {L}\ns_add_u32 s3, s12, {4096*i}")
            e(f"buffer_load_dwordx4 {vr(64+4*i)}, v15, {WS}, s3 offen sc1")
            e.label(L)
        e("s_cmp_eq_u64 vcc, -1\ns_cbranch_scc0 L_agl")
        self.stamp(7)
        tk = [None] * 8
        tk[0] = e.vm
        self.wtick(16, late=True)
        tkw = e.vm
        e(f"s_or_b32 s3, s64, s{sW}\ns_cmp_eq_u32 s3, 0\ns_cbranch_scc0 L_noep")
        e(f"v_mov_b32 v12, s{sT}\nv_mov_b32 v13, 0")
        self.exec_mask(1, 0)
        e(f"buffer_store_dword v12, v13, {WS}, 0 offen sc1")
        self.exec_full()
        e.label("L_noep")
        e("v_mov_b32 v56, v96")
        self.rowred([56], "v_max_f32", (8, 4, 2, 1))
        self.allred_G([56], [57], "v_max_f32")
        e("v_sub_f32 v96, v96, v56\nv_exp_f32 v96, v96\nv_mul_f32 v98, v98, v96")
        self.rowred([98], "v_add_f32", (8, 4, 2, 1))
        self.allred_G([98], [57], "v_add_f32")
        e("v_rcp_f32 v98, v98\nv_mul_f32 v96, v96, v98\nv_cvt_pk_bf16_f32 v97, v96, v96\nv_and_b32 v98, 0xffff0000, v97\nv_sub_f32 v98, v96, v98\nv_cvt_pk_bf16_f32 v98, v98, v98")
        e.ds(f"ds_write_b16 v19, v97 offset:{LA_F}")
        e.ds(f"ds_write_b16 v19, v98 offset:{LA_F+128}")
        e("s_waitcnt lgkmcnt(0)")
        e.ds(f"ds_read_b128 v[28:31], v17 offset:{LA_F}")
        e("s_waitcnt lgkmcnt(0)")
        self.gemv8(24, 28, 64, tk)
        e.ds(f"ds_write_b128 v18, v[24:27] offset:{LA_R1}")
        e("s_waitcnt lgkmcnt(0)\ns_barrier")
        self.stamp(15)
        e(f"s_cmp_lt_u32 s{sW}, 2\ns_cbranch_scc0 L_at_l")
        for k in range(4): e.ds(f"ds_read_b128 {vr(64+4*k)}, v21 offset:{LA_R1+4096*(k>>1)+512*(k&1)}")
        e("s_waitcnt lgkmcnt(0)")
        for k in range(1, 4):
            e(f"v_pk_add_f32 v[64:65], v[64:65], v[{64+4*k}:{65+4*k}]\nv_pk_add_f32 v[66:67], v[66:67], v[{66+4*k}:{67+4*k}]")
        e("v_cvt_pk_bf16_f32 v64, v64, v65\nv_cvt_pk_bf16_f32 v65, v66, v67")
        e.ds(f"ds_write_b64 v22, v[64:65] offset:{LA_LAT}")
        e("s_waitcnt lgkmcnt(0)")
        e.label("L_at_l")
        e("s_barrier")
        e.ds(f"ds_read_b128 v[28:31], v20 offset:{LA_LAT}")
        e("s_waitcnt lgkmcnt(0)")
        nlate = 16 - self.p["NWE"]
        wt = lambda k: (tkw - (15 - k)) if (15 - k) < nlate else None
        self.gemv8(24, 28, 160, [wt(k) for k in range(8)])
        e.ds(f"ds_write_b128 v18, v[24:27] offset:{LA_R2}")
        e("s_waitcnt lgkmcnt(0)\ns_barrier")
        self.stamp(16)
        for k in range(4): e.ds(f"ds_read_b128 {vr(64+4*k)}, v23 offset:{LA_R2+1024*(k>>1)+(512+128)*(k&1)}")
        e("s_waitcnt lgkmcnt(0)")
        for k in range(1, 4):
            e(f"v_pk_add_f32 v[64:65], v[64:65], v[{64+4*k}:{65+4*k}]\nv_pk_add_f32 v[66:67], v[66:67], v[{66+4*k}:{67+4*k}]")
        self.allred_G([64, 65, 66, 67], [68, 69, 70, 71], "v_add_f32")
        e("v_cvt_pk_bf16_f32 v64, v64, v65\nv_cvt_pk_bf16_f32 v65, v66, v67")
        e.ds(f"ds_write_b64 v250, v[64:65] offset:{LA_CTX}")
        e("s_waitcnt lgkmcnt(0)")
        e.ds(f"ds_read_b128 v[28:31], v251 offset:{LA_CTX}")
        e("s_waitcnt lgkmcnt(0)")
        self.gemv8(24, 28, 192, [wt(8 + k) for k in range(8)])
        e(f"s_cmp_lt_u32 s{sW}, 4\ns_cbranch_scc1 L_at_o")
        e.ds(f"ds_write_b128 v18, v[24:27] offset:{LA_R1}")
        e("s_waitcnt lgkmcnt(0)\ns_barrier")
        self.exit()
        e.label("L_at_o")
        e("s_barrier")
        e.ds(f"ds_read_b128 v[64:67], v18 offset:{LA_R1+4096}")
        e("s_waitcnt lgkmcnt(0)")
        e("v_pk_add_f32 v[24:25], v[24:25], v[64:65]\nv_pk_add_f32 v[26:27], v[26:27], v[66:67]")
        e(f"v_cndmask_b32 v52, v24, v26, {sHI}\nv_cndmask_b32 v54, v25, v27, {sHI}")
        e(f"buffer_store_dwordx4 v[52:55], v252, {WS}, s17 offen sc1")
        self.stamp(8)
        e(f"s_cmp_eq_u32 s{sW}, 0\ns_cbranch_scc1 L_at_fin")
        self.exit()
        e.label("L_at_fin")
        e(f"s_lshl_b32 s12, s64, 6\ns_add_u32 s12, s12, {WS_OUTA}\nv_lshrrev_b32 v11, 2, v{vL}\nv_lshlrev_b32 v11, 12, v11\nv_and_b32 v12, 3, v{vL}\nv_lshl_add_u32 v11, v12, 4, v11")
        self.srd(48, 38, 2048)
        e(f"s_lshl_b32 s14, s64, 4\nv_lshlrev_b32 v12, 2, v12\ns_mov_b32 s15, 0x10000")
        def g():
            e("s_mov_b32 s3, s12")
            for k in range(4):
                e(f"buffer_load_dwordx4 {vr(64+4*k)}, v11, {WS}, s3 offen sc1")
                if k < 3: e("s_add_u32 s3, s3, s15")
        self.poll(g, [65, 67, 69, 71, 73, 75, 77, 79], 60, "goa")
        for k in range(1, 4): e(f"v_add_f32 v64, v64, v{64+4*k}\nv_add_f32 v66, v66, v{66+4*k}")
        self.rowred([64, 66], "v_add_f32", (8, 4))
        self.allred_G([64, 66], [68, 69], "v_add_f32")
        e("v_cvt_pk_bf16_f32 v64, v64, v66")
        self.exec_mask(15, 0)
        e("buffer_store_dword v64, v12, s[48:51], s14 offen")
        if self.p["TIMING"]: self.exec_full(); e("s_waitcnt vmcnt(0)"); self.stamp(9)
        self.exit()

    def build(self):
        e, p = self.e, self.p
        self.prologue()
        vm0 = e.vm
        self.phase1()
        self.b_ctrl()
        e.label("L_notctrl")
        e.vm = vm0
        self.b_stream()
        self.b_tail()
        e.label("L_astream")
        self.role = "A"
        e.vm = 1
        self.a_setup()
        self.a_issue(lambda n: p["D_A1"] if n < p["NA1"] else p["D_A2"], p1at=p["D_A1"])
        self.a_main()
        while self.ool: self.ool.pop(0)()
        if p["TIMING"]:
            e.label("L_exit")
            e("s_mov_b64 exec, -1\ns_memrealtime s[98:99]\ns_getreg_b32 s100, hwreg(HW_REG_XCC_ID)\ns_waitcnt lgkmcnt(0)\nv_mov_b32 v44, 0")
            for i in range(28): e(f"v_writelane_b32 v44, s{70+i}, {i}")
            e("v_writelane_b32 v44, s98, 30\nv_writelane_b32 v44, s100, 31")
            e(f"s_lshl_b32 s3, s2, 3\ns_add_u32 s3, s3, s{sW}\ns_lshl_b32 s3, s3, 7\ns_add_u32 s3, s3, {WS_STAMP}\nv_lshlrev_b32 v45, 2, v{vL}\ns_mov_b32 exec_hi, 0")
            e(f"buffer_store_dword v44, v45, {WS}, s3 offen")
        if p["PAD"]:
            e.label("L_exit")
            if p["PADEV"] == 99:
                e(f"s_cmp_{'lt' if p['PADROLE'] == 'A' else 'ge'}_u32 s{sSLOT}, 8\ns_cbranch_scc0 L_padn\ns_memrealtime s[82:83]\ns_waitcnt lgkmcnt(0)")
                e.label("L_padn")
            e(f"s_cmp_eq_u32 s82, 0\ns_cselect_b32 s80, s80, s82\ns_add_u32 s80, s80, {p['PAD']}")
            e.label("L_padl")
            e("s_sleep 4\ns_memrealtime s[68:69]\ns_waitcnt lgkmcnt(0)\ns_sub_u32 s68, s68, s80\ns_cmp_lt_i32 s68, 0\ns_cbranch_scc1 L_padl")
        e.label("L_end")
        e("s_endpgm")
        e.label("L_codeend")
        if p["NOSLOW"]:
            out, k = [], 0
            for i, l in enumerate(e.L):
                if "store" in l and l.endswith("sc1") and ("v14, " in l or "v11, " in l or "dwordx2" in l or ("v10, " in l and "s15" in l)): continue
                out.append(l)
            e.L = out
        gm, sm = p["GM"].replace("_", " "), p["SM"].replace("_", " ")
        e.L = [(l[:-3] + (gm if "load" in l else sm)) if l.endswith(" sc1") else l for l in e.L]
        body = pad_hazards(e.L)
        ref = open(f"cdna_kernels/{NAME}.s.ref").read().split("\n")
        head = [l for l in ref if l.startswith(";") and "@launch" not in l]
        out = head + ["; @launch grid=(256,1,1) block=(512,1,1) lds=163840",
                      '.amdgcn_target "amdgcn-amd-amdhsa--gfx950"', ".text", f".globl {NAME}_kernel", ".p2align 8",
                      f".type {NAME}_kernel,@function", f"{NAME}_kernel:"]
        out += [("" if l.endswith(":") else "    ") + l for l in body]
        out += ['.section .rodata,"a"', ".p2align 6", f".amdhsa_kernel {NAME}_kernel", "  .amdhsa_next_free_vgpr 256",
                "  .amdhsa_next_free_sgpr 102", "  .amdhsa_accum_offset 256", "  .amdhsa_group_segment_fixed_size 0",
                "  .amdhsa_kernarg_size 112", "  .amdhsa_user_sgpr_count 2", "  .amdhsa_user_sgpr_kernarg_segment_ptr 1",
                "  .amdhsa_system_sgpr_workgroup_id_x 1", ".end_amdhsa_kernel", ""]
        return "\n".join(out)

if __name__ == "__main__":
    kw = {}
    for a in sys.argv[2:]:
        k, v = a.split("=")
        kw[k] = (v == "True") if v in ("True", "False") else (int(v) if v.lstrip("-").isdigit() else v)
    open(sys.argv[1], "w").write(K(**kw).build())
```

```python
import sys, struct
from asmlib import Emit, pad_hazards

NAME = "concat_heads__compressed_kv_cla__gqa_block_cached__decode"
DEF = dict(D_B0=3, NB0=20, D_B=5, N1=20, PVK=3, D_A1=4, NA1=6, D_A2=5, QPOS=32, TIMING=False, MAXPOLL=400000,
           NT="nt", PAD=0, PADEV=-1, PADROLE="", NWE=8, LIGHT=False, PROG=False, GDELAY=0, GM="sc1", SM="sc1", SDELAY=0, NFAST=48, CPS=3, D_B2=12, NB2=38, WARMQ=1, WARMO=30, WARMB=0, WOK=23, NDUTY=0, WOLATE=4, NWO=40, B4B=1, ANODS=0, QKE=0, RLATE=1, TOUCH=0, TPOS=0, TSH=3, NL=0, RK=64, DSLOW=3, NTK=24, LSET=(4, 6, 7, 10), DEEPW=-1, GSL=0, NU=-1, WQ0=3, PRIO=1, NOSLOW=0, AKILL=0, PTRACE="", WM="nt")

def f32(x): return "0x%08x" % struct.unpack("<I", struct.pack("<f", x))[0]
CS = 1.4426950408889634 * 128 ** -0.5

WS_QP, WS_QABS, WS_QB, WS_BML, WS_AML = 0x10000, 0x90000, 0xA0000, 0xA8000, 0xB0000
WS_BO, WS_OUTB, WS_OUTA, WS_AO, WS_STAMP = 0xC0000, 0x120000, 0x140000, 0x200000, 0x400000
WS_SIZE = 0x800000
SLOW = 0x500000
L_PR = 32768
L_PRB = 49152
L_LQ = 40960
LB_Q, LB_MX, LB_LS, LB_F, LB_G, LB_FLAG, LB_R4, LB_R5 = 0, 1024, 1152, 1280, 1408, 1536, 2048, 20480
LA_Q = 131072
LA_P, LA_MX, LA_LS = 131072, 147456, 148480
LA_F, LA_R1, LA_LAT, LA_R2, LA_CTX = 32768, 36864, 49152, 53248, 61440

vL, vC, vG = 1, 2, 3
SELA, SELB = 32, 36
sW, sX, sSLOT, sH1, sJ, sT = 6, 7, 8, 9, 10, 11
WS = "s[44:47]"
sHI = "s[62:63]"
sCS = "s60"

def fswz(k):
    k0, k1, k2, k3 = k & 1, (k >> 1) & 1, (k >> 2) & 1, (k >> 3) & 1
    return (k1 << 3) | (k0 << 2) | ((k1 ^ k3) << 1) | k2

def vr(a, n=4): return f"v[{a}:{a+n-1}]"

class K:
    def __init__(self, **kw):
        self.p = dict(DEF); self.p.update(kw)
        self.e = Emit()
        self.nlab = 0
        self.role = "B"
        self.ool = []
    def lab(self, s):
        self.nlab += 1
        return f"L_{s}_{self.nlab}"
    def stamp(self, i):
        if self.p["PAD"] and i == self.p["PADEV"] and self.role in self.p["PADROLE"]:
            self.e("s_memrealtime s[82:83]\ns_waitcnt lgkmcnt(0)")
        if self.p["TIMING"] and not self.p["PROG"] and (not self.p["LIGHT"] or i in self.p["LSET"]):
            self.e(f"s_memrealtime s[98:99]\ns_waitcnt lgkmcnt(0)\ns_mov_b32 s{70+i}, s98")
    def prog(self, n, step):
        if self.p["PROG"] and (n + 1) % step == 0 and (n + 1) // step <= 13:
            k = 72 + 2 * ((n + 1) // step - 1)
            self.e(f"s_memrealtime s[{k}:{k+1}]")
    def cnt(self, i):
        if self.p["TIMING"] and not self.p["PROG"]: self.e(f"s_mov_b32 s{70+i}, s13")
    def exit(self):
        self.e("s_branch L_exit" if self.p["TIMING"] or self.p["PAD"] else "s_endpgm")
    def srd(self, s, ptr, size):
        self.e(f"s_mov_b32 s{s}, s{ptr}\ns_mov_b32 s{s+1}, s{ptr+1}\ns_mov_b32 s{s+2}, {size}\ns_mov_b32 s{s+3}, 0x20000")
    def exec_full(self): self.e("s_mov_b64 exec, -1")
    def exec_mask(self, lo, hi): self.e(f"s_mov_b32 exec_lo, {lo:#x}\ns_mov_b32 exec_hi, {hi:#x}")
    def allred_G(self, vals, tmps, op, steps=(32, 16)):
        e = self.e
        for st in steps:
            for v, t in zip(vals, tmps): e(f"v_mov_b32 v{t}, v{v}")
            for v, t in zip(vals, tmps): e(f"v_permlane{st}_swap_b32 v{t}, v{v}")
            for v, t in zip(vals, tmps): e(f"{op} v{v}, v{t}, v{v}")
    def rowred(self, vals, op, rors):
        for r in rors:
            for v in vals: self.e(f"{op}_dpp v{v}, v{v}, v{v} row_ror:{r} row_mask:0xf bank_mask:0xf")
    def tagcheck(self, tags, acc):
        e = self.e
        e(f"v_xor_b32 v{acc}, s{sT}, v{tags[0]}")
        for t in tags[1:]: e(f"v_bitop3_b32 v{acc}, v{t}, s{sT}, v{acc} bitop3:0xbe")
        e(f"v_cmp_ne_u32 vcc, 0, v{acc}")
    def poll(self, issue, tags, acc, name, fast=None, slowpub=None):
        e = self.e
        L, D, F = self.lab(name), self.lab(name + "d"), self.lab(name + "f")
        e("s_mov_b32 s13, 0")
        e.label(L)
        issue()
        e(f"s_add_u32 s13, s13, 1\ns_waitcnt vmcnt(0)")
        if self.p["TIMING"] and self.p["PTRACE"] == name:
            e("s_memrealtime s[98:99]\ns_waitcnt lgkmcnt(0)")
            for k in range(1, 7): e(f"s_cmp_eq_u32 s13, {k}\ns_cselect_b32 s{90+k}, s98, s{90+k}")
        self.tagcheck(tags, acc)
        if fast:
            e(f"s_cbranch_vccnz {F}")
            def ool():
                e.label(F)
                e(f"s_cmp_gt_u32 s13, {self.p['MAXPOLL']}\ns_cbranch_scc1 {D}\ns_cmp_eq_u32 s13, {self.p['NFAST']}\ns_cbranch_scc0 {L}")
                if slowpub: slowpub()
                e(f"s_add_u32 {fast}, {fast}, {SLOW}\ns_branch {L}")
            self.ool.append(ool)
        else:
            e(f"s_cmp_gt_u32 s13, {self.p['MAXPOLL']}\ns_cbranch_scc1 {D}\ns_cbranch_vccnz {L}")
        e.label(D)
        if slowpub: slowpub()
    def expand4(self, dst, src, pi):
        for q in range(4): self.e(f"v_perm_b32 v{dst+q}, v{src}, v{src}, v{SELB+4*pi+q}")
    def gemv8(self, acc, frag, data, toks, E=(44, 48)):
        e = self.e
        self.expand4(E[0], frag, 0)
        for i in range(8):
            if i + 1 < 8: self.expand4(E[(i + 1) & 1], frag + ((i + 1) >> 1), (i + 1) & 1)
            if toks is not None and toks[i] is not None: e.wait_vm(toks[i])
            e(f"v_mfma_f32_16x16x32_bf16 {vr(acc)}, {vr(E[i&1])}, {vr(data+4*i)}, {'0' if i == 0 else vr(acc)}")

    def prologue(self):
        e, nt = self.e, self.p["NT"]
        e("s_cmp_ge_u32 s2, 256\ns_cbranch_scc1 L_end")
        e("s_load_dwordx16 s[16:31], s[0:1], 0\ns_load_dwordx8 s[32:39], s[0:1], 64\ns_load_dwordx4 s[40:43], s[0:1], 96")
        if self.p["TIMING"]:
            for i in range(72, 98): e(f"s_mov_b32 s{i}, 0")
            e("s_memrealtime s[70:71]")
        if self.p["PAD"]: e("s_memrealtime s[80:81]\ns_mov_b32 s82, 0")
        e("s_getpc_b64 s[4:5]")
        e.label("L_pc")
        e("v_lshlrev_b32 v4, 6, v0\nv_min_u32 v4, L_codeend-L_pc-4, v4")
        e.vmem("global_load_dword v5, v4, s[4:5]")
        e(f"v_lshrrev_b32 v6, 6, v0\nv_and_b32 v{vL}, 63, v0\nv_and_b32 v{vC}, 15, v0\nv_bfe_u32 v{vG}, v0, 4, 2")
        e(f"v_readfirstlane_b32 s{sW}, v6")
        e(f"s_and_b32 s{sX}, s2, 7\ns_lshr_b32 s{sSLOT}, s2, 3")
        e(f"v_and_b32 v7, 3, v0\nv_lshlrev_b32 v7, 4, v7\nv_lshl_add_u32 v7, v{vG}, 6, v7\nv_and_b32 v8, 7, v0\nv_lshlrev_b32 v10, 4, v{vL}")
        e(f"s_cmp_lt_u32 s{sSLOT}, 8\ns_cbranch_scc1 L_astream")
        e(f"s_sub_u32 s64, s{sSLOT}, 8\ns_mul_i32 s{sH1}, s64, 43\ns_lshr_b32 s{sH1}, s{sH1}, 8\ns_mul_i32 s3, s{sH1}, 6\ns_sub_u32 s{sJ}, s64, s3\ns_lshl_b32 s3, s{sX}, 2\ns_add_u32 s{sH1}, s{sH1}, s3")
        e(f"s_mul_i32 s3, s{sJ}, {96*8192}\ns_lshl_b32 s12, s{sH1}, 8\ns_add_u32 s61, s3, s12")
        e(f"v_lshrrev_b32 v6, 4, v0\nv_lshlrev_b32 v4, 13, v6\nv_lshl_add_u32 v4, v{vC}, 4, v4\nv_add_u32 v4, s61, v4\nv_add_u32 v11, 0x40000, v4\nv_add_u32 v12, 0x80000, v4")
        e(f"s_mul_i32 s12, s{sJ}, 192\nv_lshl_add_u32 v6, v6, 1, s12")
        e("s_mov_b32 s50, 0x400000\ns_mov_b32 s51, 0x20000")
        e("s_movk_i32 s58, 0x400\ns_mov_b32 s59, 0x20000\ns_movk_i32 s46, 0x400\ns_mov_b32 s47, 0x20000")
        e(f"s_cmp_eq_u32 s{sW}, 7\ns_waitcnt lgkmcnt(0)")
        if self.p["WARMQ"]:
            wm = self.p["WM"].replace("_", " ")
            e("s_cbranch_scc0 L_nowarm")
            e(f"s_lshl_b32 s14, s{sH1}, 14\ns_add_u32 s14, s14, {WS_QP}\ns_add_u32 s4, s42, s14\ns_addc_u32 s5, s43, 0\nv_lshlrev_b32 v9, 3, v10\nv_add_u32 v13, 0x2000, v9")
            e(f"global_load_dword v5, v9, s[4:5] {wm}\ns_mov_b32 exec_hi, 0\nglobal_load_dword v5, v13, s[4:5] {wm}")
            e(f"s_lshl_b32 s14, s{sX}, 11\ns_add_u32 s14, s14, {WS_BML}\ns_add_u32 s4, s42, s14\ns_addc_u32 s5, s43, 0\ns_mov_b32 exec_lo, 0xffff\nglobal_load_dword v5, v9, s[4:5] {wm}\ns_mov_b64 exec, -1\ns_cmp_eq_u32 s{sW}, 7")
            e.label("L_nowarm")
        e("s_mov_b32 s48, s20\ns_mov_b32 s49, s21\ns_mov_b32 s56, s16\ns_mov_b32 s57, s17")
        for i in range(3): e.vmem(f"buffer_load_ushort v{16+i}, v6, s[56:59], 0 offen offset:{64*i}")
        for i in range(3): self.tA = e.vmem(f"buffer_load_dwordx4 {vr(128+4*i)}, v{(4,11,12)[i]}, s[48:51], 0 offen {nt}")
        e("s_mov_b32 s44, s28\ns_mov_b32 s45, s29")
        for i in range(3): e.vmem(f"buffer_load_ushort v{19+i}, v6, s[44:47], 0 offen offset:{64*i}")
        e("v_mov_b32 v22, v4\ns_cbranch_scc0 L_notctrl")

    def wq_load(self, i):
        e = self.e
        if i == 0: self.srd(72, 34, 1 << 22)
        t = e.vmem(f"buffer_load_dwordx4 {vr(140+4*i)}, v22, s[16:19], 0 offen {self.p['NT']}")
        if i < 2: e("v_add_u32 v22, 0x40000, v22")
        return t
    def p1_gemv(self, X, W, dst):
        e = self.e
        for i in range(3): self.expand4(44 + 4 * i, X + i, 0)
        for i in range(3): e(f"v_mfma_f32_16x16x32_bf16 v[152:155], {vr(44+4*i)}, {vr(W+4*i)}, {'0' if i == 0 else 'v[152:155]'}")
        e(f"v_lshlrev_b32 v11, 4, v0")
        e.ds(f"ds_write_b128 v11, v[152:155] offset:{dst}")
    def p1_reduce(self, src, R, pub):
        e = self.e
        e(f"v_and_b32 v11, 31, v{vL}\nv_lshlrev_b32 v11, 4, v11\nv_lshrrev_b32 v12, 5, v{vL}\nv_lshl_add_u32 v11, v12, 12, v11")
        tk = [e.ds(f"ds_read_b128 {vr(R+4*w)}, v11 offset:{src+1024*w}") for w in range(4)]
        e(f"v_mov_b32 v{pub+1}, s{sT}\nv_mov_b32 v{pub+3}, s{sT}")
        for w in range(1, 4):
            e.wait_lg(tk[w])
            e(f"v_pk_add_f32 v[{R}:{R+1}], v[{R}:{R+1}], v[{R+4*w}:{R+4*w+1}]\nv_pk_add_f32 v[{R+2}:{R+3}], v[{R+2}:{R+3}], v[{R+4*w+2}:{R+4*w+3}]")
        e(f"v_permlane32_swap_b32 v{R}, v{R+2}\nv_permlane32_swap_b32 v{R+1}, v{R+3}\nv_add_f32 v{pub}, v{R}, v{R+2}\nv_add_f32 v{pub+2}, v{R+1}, v{R+3}")

    def selectors(self):
        e = self.e
        e(f"s_mov_b32 s62, 0\ns_mov_b32 s63, -1\ns_mov_b32 {sCS}, {f32(CS)}")
        self.srd(44, 42, WS_SIZE)
        e("v_and_b32 v15, 3, v0\nv_lshlrev_b32 v15, 4, v15\nv_mov_b32 v13, 0\nv_mov_b32 v11, 0x0c0c0c0c\nv_and_b32 v14, 4, v0\nv_cmp_ne_u32 vcc, 0, v14")
        for pi, d in ((0, 0x0d0c), (1, 0x0f0e)):
            a = SELA + 2 * pi
            e(f"v_mov_b32 v12, {d:#x}\nv_lshlrev_b64 v[{a}:{a+1}], v15, v[12:13]\nv_xor_b32 v{a}, v11, v{a}\nv_xor_b32 v{a+1}, v11, v{a+1}")
            b = SELB + 4 * pi
            e(f"v_cndmask_b32 v{b}, v{a}, v11, vcc\nv_cndmask_b32 v{b+1}, v{a+1}, v11, vcc\nv_cndmask_b32 v{b+2}, v11, v{a}, vcc\nv_cndmask_b32 v{b+3}, v11, v{a+1}, vcc")
    def tagmake(self):
        self.e(f"s_waitcnt lgkmcnt(0)\ns_mul_i32 s{sT}, s{sT}, 0x9e3779b1\ns_add_u32 s{sT}, s{sT}, 0x7f4a7c15")

    def p1_compute(self, ctrl):
        e = self.e
        self.selectors()
        if ctrl:
            self.tagmake()
            e(f"v_mov_b32 v57, s{sT}\nv_mov_b32 v59, s{sT}")
            e.ds(f"ds_write_b32 v13, v57 offset:{LB_FLAG+8}")
            for k in (0, 4, 12, 16, 20): e.ds(f"ds_write_b32 v13, v13 offset:{LB_FLAG+k}")
        e.wait_vm(self.tA)
        self.p1_gemv(16, 128, L_PR)
        e("s_waitcnt lgkmcnt(0)\ns_barrier")
        self.stamp(1)
        if not ctrl:
            e.ds(f"ds_read_b32 v12, v13 offset:{LB_FLAG+8}")
            tq = [self.wq_load(i) for i in range(self.p["WQ0"])]
            e(f"s_waitcnt lgkmcnt(0)\nv_readfirstlane_b32 s{sT}, v12")
            e("s_barrier")
            tq += [self.wq_load(i) for i in range(self.p["WQ0"], 3)]
            return tq[2]

    def phase1(self):
        e, nt = self.e, self.p["NT"]
        WQ, WU = 64, 160
        e(f"s_load_dword s{sT}, s[42:43], 0")
        e(f"v_bfe_u32 v14, v0, 2, 2\nv_lshl_add_u32 v9, v14, 15, v7\nv_add_u32 v9, s61, v9\nv_lshl_add_u32 v14, v14, 14, v7\nv_add_u32 v14, s61, v14")
        self.srd(56, 22, 1 << 22)
        tu = []
        for t in range(4):
            for a in range(4):
                tu.append(e.vmem(f"buffer_load_dwordx4 {vr(WU+16*a+4*t)}, v9, s[56:59], 0 offen {nt}"))
                if (t, a) != (3, 3): e(f"v_add_u32 v9, {0x2000 if a < 3 else 0x20000-0x6000:#x}, v9")
        e("v_add_u32 v14, 0x80000, v14")
        for t in range(4):
            for a in range(2):
                tu.append(e.vmem(f"buffer_load_dwordx4 {vr(WU+64+16*a+4*t)}, v14, s[56:59], 0 offen {nt}"))
                if (t, a) != (3, 1): e(f"v_add_u32 v14, {0x2000 if a < 1 else 0x10000-0x2000:#x}, v14")
        self.p1_compute(True)
        e(f"s_lshl_b32 s14, s{sH1}, 14\ns_add_u32 s14, s14, {WS_QP}\ns_lshl_b32 s15, s{sJ}, 11\ns_add_u32 s15, s15, s14")
        self.p1_reduce(L_PR, WQ, 52)
        tst = e.vmem(f"buffer_store_dwordx4 v[52:55], v10, {WS}, s15 offen")
        self.stamp(2)
        e(f"s_add_u32 s68, s15, {SLOW}")
        def qp_slow():
            e.vmem(f"buffer_store_dwordx4 v[52:55], v10, {WS}, s68 offen sc1")
        QF = [24, 28, 120, 124]
        for b in QF:
            for r in range(4): e(f"v_mov_b32 v{b+r}, 0")
        e(f"v_and_b32 v9, 1, v{vG}\nv_lshlrev_b32 v9, 3, v9\nv_lshl_add_u32 v9, v{vC}, 4, v9\nv_lshrrev_b32 v12, 1, v{vG}\nv_lshl_add_u32 v9, v12, 2, v9")
        e(f"v_add_u32 v13, {L_LQ}, v9\nv_add_u32 v14, {L_LQ}, v7")
        def gat(base, mat):
            def f():
                for jj in range(6):
                    if jj % 2 == 0: e(f"s_add_u32 s12, {base}, {jj*2048}")
                    t = e.vmem(f"buffer_load_dwordx4 {vr(WQ+4*jj)}, v10, {WS}, s12 offen offset:{(jj&1)*2048+1024*mat} sc1")
                return t
            return f
        tags = [WQ + 4 * jj + k for jj in range(6) for k in (1, 3)]
        def sum6():
            for jj in range(1, 6):
                e(f"v_add_f32 v{WQ}, v{WQ}, v{WQ+4*jj}\nv_add_f32 v{WQ+2}, v{WQ+2}, v{WQ+4*jj+2}")
        if self.p["TIMING"]:
            e.wait_vm(tu[min(23, 23 - self.p["NU"])]); self.stamp(22)
        e.wait_vm(tu[23 - self.p["NU"]] if self.p["NU"] >= 0 else tst)
        if self.p["NU"] < 0 and self.p["TIMING"]:
            pass
        self.stamp(21)
        for _ in range(self.p["GSL"]): e("s_sleep 2")
        tg = gat("s14", 0)()
        if not self.p["RLATE"]: e("s_barrier")
        for i in range(3): tq = self.wq_load(i)
        e.wait_vm(tg)
        self.tagcheck(tags, 60)
        e("s_cbranch_vccnz L_p1_retry")
        if self.p["TIMING"]: e("s_mov_b32 s13, 0")
        qp_slow()
        e.label("L_p1_got")
        if self.p["RLATE"]: e("s_barrier")
        def ool():
            e.label("L_p1_retry")
            self.poll(gat("s14", 0), tags, 60, "gqa", fast="s14", slowpub=qp_slow)
            e("s_branch L_p1_got")
        self.ool.append(ool)
        self.stamp(3); self.cnt(20)
        sum6()
        e(f"v_cvt_pk_bf16_f32 v60, v{WQ}, v{WQ+2}")
        e.ds(f"ds_write_b32 v13, v60")
        e("s_waitcnt lgkmcnt(0)")
        for t in range(4):
            m = 0x000f000f << (4 * t)
            self.exec_mask(m, m)
            e.ds(f"ds_read_b128 {vr(QF[t])}, v14")
        self.exec_full()
        e("s_waitcnt lgkmcnt(0)")
        for a in range(6):
            for t in range(4):
                e(f"v_mfma_f32_16x16x32_bf16 {vr(64+4*a)}, {vr(WU+16*a+4*t)}, {vr(QF[t])}, {'0' if t == 0 else vr(64+4*a)}")
        e(f"s_lshl_b32 s12, s{sH1}, 11\ns_mul_i32 s3, s{sJ}, 384\ns_add_u32 s12, s12, s3\ns_add_u32 s12, s12, {WS_QABS}")
        e(f"v_and_b32 v15, 12, v{vC}\nv_add_u32 v15, v15, v{vG}\nv_lshlrev_b32 v14, 3, v15\nv_lshlrev_b32 v15, 4, v15")
        e(f"s_mov_b32 s3, 0x00110011\ns_cmp_lt_u32 s{sJ}, 5\ns_cselect_b32 s3, 0x11111111, s3")
        self.quadsum([(64 + 4 * a, 44 + a) for a in range(6)])
        e(f"v_cvt_pk_bf16_f32 v56, v44, v45\nv_cvt_pk_bf16_f32 v58, v46, v47\nv_cvt_pk_bf16_f32 v62, v48, v49\nv_mov_b32 v63, s{sT}")
        e("s_mov_b32 exec_lo, s3\ns_mov_b32 exec_hi, s3")
        e.vmem(f"buffer_store_dwordx4 v[56:59], v15, {WS}, s12 offen sc1")
        e("s_cbranch_scc0 L_p1done")
        e(f"buffer_store_dwordx2 v[62:63], v14, {WS}, s12 offen offset:256 sc1")
        e.label("L_p1done")
        self.exec_full()
        self.stamp(4)
        e.wait_vm(tq)
        self.p1_gemv(19, 140, L_PRB)
        e("v_mov_b32 v15, 0")
        L = self.lab("wqb")
        e.label(L)
        e.ds(f"ds_read_b32 v60, v15 offset:{LB_FLAG+12}")
        e(f"s_waitcnt lgkmcnt(0)\nv_readfirstlane_b32 s3, v60\ns_cmp_lt_u32 s3, 7\ns_cbranch_scc1 {L}")
        self.p1_reduce(L_PRB, WQ, 52)
        e.vmem(f"buffer_store_dwordx4 v[52:55], v10, {WS}, s15 offen offset:1024")
        e.vmem(f"buffer_store_dwordx4 v[52:55], v10, {WS}, s68 offen offset:1024 sc1")
        R = 160
        e(f"s_lshl_b32 s67, s{sX}, 16\ns_add_u32 s67, s67, {WS_QP}")
        def gb():
            for hh in range(4):
                for jj in range(6):
                    if jj % 2 == 0: e(f"s_add_u32 s12, s67, {hh*16384+jj*2048}")
                    e.vmem(f"buffer_load_dwordx4 {vr(R+24*hh+4*jj)}, v10, {WS}, s12 offen offset:{(jj&1)*2048+1024} sc1")
        self.poll(gb, [R + 4 * i + k for i in range(24) for k in (1, 3)], 60, "gqb", fast="s67")
        for jj in range(1, 6):
            for hh in range(4):
                b = R + 24 * hh
                e(f"v_add_f32 v{b}, v{b}, v{b+4*jj}\nv_add_f32 v{b+2}, v{b+2}, v{b+4*jj+2}")
        e("v_mov_b32 v15, 0\nv_mov_b32 v61, 1")
        for hh in range(4):
            b = R + 24 * hh
            e(f"v_cvt_pk_bf16_f32 v{b}, v{b}, v{b+2}")
            e.ds(f"ds_write_b32 v9, v{b} offset:{LB_Q+256*hh}")
        e.ds(f"ds_write_b32 v15, v61 offset:{LB_FLAG}")
        e("s_waitcnt lgkmcnt(0)")

    def quadsum(self, pairs):
        e = self.e
        for D, S in pairs: e(f"v_mov_b32_dpp v{S}, v{D} quad_perm:[0,0,0,0] row_mask:0xf bank_mask:0xf")
        for r in range(1, 4):
            for D, S in pairs: e(f"v_add_f32_dpp v{S}, v{D+r}, v{S} quad_perm:[{r},{r},{r},{r}] row_mask:0xf bank_mask:0xf")

    def b_ids(self):
        e = self.e
        e(f"s_lshr_b32 s65, s64, 2\ns_lshl_b32 s3, s{sX}, 2\ns_add_u32 s65, s65, s3\ns_and_b32 s66, s64, 3")
        e(f"v_bfe_u32 v6, v{vL}, 2, 2\nv_lshl_add_u32 v6, v6, 8, v7")
        e(f"s_lshl_b32 s3, s65, 7\ns_and_b32 s12, s{sW}, 3\ns_lshl_b32 s12, s12, 5\ns_add_u32 s3, s3, s12\ns_lshr_b32 s12, s{sW}, 2\ns_lshl_b32 s12, s12, 2\ns_add_u32 s3, s3, s12")
        e(f"s_lshl_b32 s3, s3, 10\ns_lshl_b32 s12, s66, 8\ns_add_u32 s69, s3, s12")
        e(f"v_lshlrev_b32 v4, 10, v{vG}\nv_lshl_add_u32 v4, v{vC}, 4, v4")
        self.srd(48, 30, 1 << 25); self.srd(52, 32, 1 << 25); self.srd(56, 36, 1 << 22)
        e("s_cmp_lt_u32 s64, 16\ns_cselect_b32 s58, s58, 0")
    def bo_addr(self):
        e = self.e
        e(f"s_mul_i32 s68, s65, {24*512}\ns_lshl_b32 s3, s{sW}, 6\ns_add_u32 s68, s68, s3\ns_add_u32 s68, s68, {WS_BO}")
        e(f"v_and_b32 v9, 3, v{vL}\nv_lshlrev_b32 v9, 4, v9\nv_lshrrev_b32 v6, 2, v{vL}\nv_lshl_add_u32 v6, v6, 9, v9\nv_and_b32 v9, 0xfff, v6\nv_add_u32 v9, {16*512}, v9")
    def bo_warm(self):
        e = self.e
        self.bo_addr()
        L = self.lab("bow")
        e(f"s_cmp_lt_u32 s64, 16\ns_cbranch_scc0 {L}")
        e(f"buffer_load_dword v5, v6, {WS}, s68 offen {self.p['WM'].replace('_',' ')}")
        e(f"buffer_load_dword v5, v9, {WS}, s68 offen {self.p['WM'].replace('_',' ')}")
        e.label(L)
    def b_kload(self, KR, t, n):
        return self.e.vmem(f"buffer_load_dwordx4 {vr(KR+16*t+4*n)}, v6, s[48:51], s14 offen offset:{n*1024} {self.p['NT']}")
    def b_vload(self, VR, t, n):
        return self.e.vmem(f"buffer_load_dwordx4 {vr(VR+16*t+4*n)}, v10, s[52:55], s15 offen offset:{n*1024} {self.p['NT']}")
    def b_woloads(self):
        for i in range(4):
            self.e.vmem(f"buffer_load_dwordx4 {vr(self.WO[i])}, v4, s[56:59], s69 offen {self.p['NT']}")
            if i < 3: self.e("s_addk_i32 s69, 0x2000")
    def b_chunks(self, nt, KR, bias, wait_q):
        e = self.e
        ch = []
        def c_q():
            e(f"v_lshrrev_b32 v11, 2, v{vC}\nv_lshl_add_u32 v12, v11, 8, v7")
            e(f"v_lshlrev_b32 v13, 5, v11\ns_lshl_b32 s3, s{sW}, 2\nv_add_u32 v14, s3, v13\nv_mov_b32 v15, 0")
            if wait_q:
                L = self.lab("wq")
                e.label(L)
                e.ds(f"ds_read_b32 v60, v15 offset:{LB_FLAG}")
                e(f"s_waitcnt lgkmcnt(0)\nv_readfirstlane_b32 s3, v60\ns_cmp_eq_u32 s3, 0\ns_cbranch_scc1 {L}")
            self.stamp(5)
            e.ds(f"ds_read_b128 v[16:19], v12 offset:{LB_Q}")
            e("s_waitcnt lgkmcnt(0)")
        ch.append((-1, c_q))
        def c_qk(t):
            def f():
                b = KR + 16 * t
                if t < nt:
                    for i in range(4): e(f"v_mfma_f32_16x16x32_bf16 {vr(44+4*i)}, {vr(b+4*i)}, v[16:19], 0")
                    self.quadsum([(44 + 4 * i, b + i) for i in range(4)])
                    if t == 0: e(f"v_max3_f32 v60, v{b}, v{b+1}, v{b+2}\nv_max_f32 v60, v60, v{b+3}")
                    else: e(f"v_max3_f32 v60, v60, v{b}, v{b+1}\nv_max3_f32 v60, v60, v{b+2}, v{b+3}")
                if t == nt:
                    self.allred_G([60], [61], "v_max_f32")
                    e(f"v_mul_f32 v62, {sCS}, v60")
            return f
        for t in range(nt + 1): ch.append((min(t, nt - 1), c_qk(t)))
        def c_exp(t):
            def f():
                b = KR + 16 * t
                for r in range(4): e(f"v_fma_f32 v{b+r}, v{b+r}, {sCS}, -v62")
                for r in range(4): e(f"v_exp_f32 v{b+r}, v{b+r}")
                if t == 0: e(f"v_add_f32 v63, v{b}, v{b+1}")
                else: e(f"v_add_f32 v63, v63, v{b}\nv_add_f32 v63, v63, v{b+1}")
                e(f"v_cvt_pk_bf16_f32 v{b+4}, v{b}, v{b+1}\nv_add_f32 v63, v63, v{b+2}\nv_cvt_pk_bf16_f32 v{b+5}, v{b+2}, v{b+3}\nv_add_f32 v63, v63, v{b+3}")
            return f
        for t in range(nt): ch.append((nt - 1, c_exp(t)))
        def c_l():
            self.allred_G([63], [61], "v_add_f32")
            if bias: e(f"v_add_f32 v62, {bias}, v62")
            e("v_mov_b32 v61, 1")
            self.exec_mask(0x1111, 0)
            e.ds(f"ds_write_b32 v14, v62 offset:{LB_MX}")
            e.ds(f"ds_write_b32 v14, v63 offset:{LB_LS}")
            e("s_mov_b32 exec_lo, 1")
            e.ds(f"ds_add_u32 v15, v61 offset:{LB_FLAG+4}")
            self.exec_full()
            self.stamp(6)
        ch.append((nt - 1, c_l))
        return ch
    def b_pv_prep(self, KR, n):
        t, i = n >> 2, n & 3
        E = 44 + 2 * (n & 3)
        for q in range(2): self.e(f"v_perm_b32 v{E+q}, v{KR+16*t+4+(i>>1)}, v{KR+16*t+4+(i>>1)}, v{SELA+2*(i&1)+q}")
    def b_pv_mma(self, VR, n):
        t, i = n >> 2, n & 3
        E = 44 + 2 * (n & 3)
        b = VR + 16 * t + 4 * i
        for h in range(2):
            acc = 24 + 4 * h
            self.e(f"v_mfma_f32_16x16x16_bf16 {vr(acc)}, v[{E}:{E+1}], v[{b+2*h}:{b+2*h+1}], {'0' if n == 0 else vr(acc)}")
    def b_owrite(self):
        e = self.e
        e(f"s_lshl_b32 s3, s{sW}, 11\nv_add_u32 v11, s3, v10")
        e.ds(f"ds_write_b128 v11, v[24:27] offset:{LB_R4}")
        e.ds(f"ds_write_b128 v11, v[28:31] offset:{LB_R4+1024}")
        e("s_waitcnt lgkmcnt(0)")
        e("s_branch L_btail")

    def b_ctrl(self):
        e = self.e
        KR, VR = 64, 160
        self.WO = [72, 88, 104, 120]
        self.b_ids()
        e("s_cmp_ge_u32 s64, 16\ns_cselect_b32 s50, s50, 0\ns_cselect_b32 s54, s54, 0")
        e(f"s_cselect_b32 s61, 0, {f32(-1e30)}")
        e(f"s_lshl_b32 s14, s{sX}, 22\ns_lshl_b32 s3, s64, 1\ns_add_u32 s3, s3, {1008-32}\ns_lshl_b32 s3, s3, 12\ns_cmp_ge_u32 s64, 16\ns_cselect_b32 s3, s3, 0\ns_add_u32 s14, s14, s3\ns_mov_b32 s15, s14")
        for t in range(2):
            for n in range(4): self.b_kload(KR, t, n)
            if t == 0: e("s_addk_i32 s14, 0x1000")
        for t in range(2):
            for n in range(4): self.b_vload(VR, t, n)
            if t == 0: e("s_addk_i32 s15, 0x1000")
        e("s_waitcnt vmcnt(0) lgkmcnt(0)")
        for _, f in self.b_chunks(2, KR, "s61", False): f()
        for n in range(8):
            self.b_pv_prep(KR, n)
            self.b_pv_mma(VR, n)
        self.bo_warm() if self.p["WARMB"] else self.bo_addr()
        e(f"s_lshl_b32 s12, s{sX}, 11\ns_lshl_b32 s3, s64, 4\ns_add_u32 s12, s12, s3\ns_add_u32 s12, s12, {WS_BML}")
        e(f"v_lshlrev_b32 v11, 4, v13\nv_mov_b32 v53, s{sT}\nv_mov_b32 v55, s{sT}")
        if self.p["NL"]:
            L = self.lab("wtk")
            e.label(L)
            e("s_sleep 2")
            e.ds(f"ds_read_b32 v60, v15 offset:{LB_FLAG+20}")
            e(f"s_waitcnt lgkmcnt(0)\nv_readfirstlane_b32 s3, v60\ns_cmp_eq_u32 s3, 0\ns_cbranch_scc1 {L}")
            e("v_mov_b32 v144, 1\ns_mov_b64 exec, 1")
            e("global_atomic_add v145, v15, v144, s[40:41] sc0 sc1")
            e(f"s_waitcnt vmcnt(0)\nv_cmp_gt_u32 vcc, {self.p['RK']}, v145\nv_cndmask_b32 v145, 0, 1, vcc")
            e.ds(f"ds_write_b32 v15, v145 offset:{LB_FLAG+16}")
            self.exec_full()
        L = self.lab("wml")
        e.label(L)
        e("s_sleep 2")
        e.ds(f"ds_read_b32 v60, v15 offset:{LB_FLAG+4}")
        e(f"s_waitcnt lgkmcnt(0)\nv_readfirstlane_b32 s3, v60\ns_cmp_lt_u32 s3, 8\ns_cbranch_scc1 {L}")
        e.ds(f"ds_read_b128 v[128:131], v13 offset:{LB_MX}")
        e.ds(f"ds_read_b128 v[132:135], v13 offset:{LB_MX+16}")
        e.ds(f"ds_read_b128 v[136:139], v13 offset:{LB_LS}")
        e.ds(f"ds_read_b128 v[140:143], v13 offset:{LB_LS+16}")
        e("s_waitcnt lgkmcnt(0)")
        e("v_max3_f32 v52, v128, v129, v130\nv_max3_f32 v52, v52, v131, v132\nv_max3_f32 v52, v52, v133, v134\nv_max_f32 v52, v52, v135")
        for r in range(128, 136): e(f"v_sub_f32 v{r}, v{r}, v52")
        for r in range(128, 136): e(f"v_exp_f32 v{r}, v{r}")
        e("v_mul_f32 v54, v128, v136")
        for r in range(1, 8): e(f"v_fmac_f32 v54, v{128+r}, v{136+r}")
        self.exec_mask(0x1111, 0)
        e.ds(f"ds_write_b128 v13, v[128:131] offset:{LB_G}")
        e.ds(f"ds_write_b128 v13, v[132:135] offset:{LB_G+16}")
        e.vmem(f"buffer_store_dwordx4 v[52:55], v11, {WS}, s12 offen")
        e(f"s_add_u32 s12, s12, {SLOW}")
        e.vmem(f"buffer_store_dwordx4 v[52:55], v11, {WS}, s12 offen sc1")
        self.exec_full()
        e("s_cmp_lt_u32 s64, 16\ns_cbranch_scc0 L_bc_nod")
        if self.p["WOK"] <= 23: self.b_woloads()
        e(f"v_and_b32 v15, 31, v{vL}\nv_min_u32 v11, 23, v15\nv_lshlrev_b32 v11, 4, v11\ns_lshl_b32 s12, s65, 9\ns_add_u32 s12, s12, {WS_BML}")
        def gm(): e.vmem(f"buffer_load_dwordx4 v[52:55], v11, {WS}, s12 offen sc1")
        self.poll(gm, [53, 55], 60, "gml", fast="s12")
        e("v_mov_b32 v56, v52")
        self.rowred([56], "v_max_f32", (8, 4, 2, 1))
        self.allred_G([56], [57], "v_max_f32", steps=(16,))
        e("v_sub_f32 v52, v52, v56\nv_exp_f32 v52, v52\nv_cmp_gt_u32 vcc, 24, v15\nv_cndmask_b32 v52, 0, v52, vcc\nv_mul_f32 v54, v54, v52")
        self.rowred([54], "v_add_f32", (8, 4, 2, 1))
        self.allred_G([54], [57], "v_add_f32", steps=(16,))
        e("v_rcp_f32 v54, v54\nv_lshlrev_b32 v15, 2, v15\nv_mul_f32 v52, v52, v54")
        e.ds(f"ds_write_b32 v15, v52 offset:{LB_F}")
        e.label("L_bc_nod")
        self.b_owrite()

    def b_stream(self):
        e, p = self.e, self.p
        KR, VR, NT_ = 64, 160, 6
        self.WO = [72, 88, 104, 120]
        self.b_ids()
        e(f"s_mul_i32 s3, s64, 7\ns_add_u32 s3, s3, s{sW}\ns_lshl_b32 s3, s3, 12\ns_lshl_b32 s14, s{sX}, 22\ns_add_u32 s14, s14, s3\ns_mov_b32 s15, s14\ns_mov_b32 s67, {168*4096}")
        Df = lambda n: p["D_B0"] if n < p["NB0"] else p["D_B"] if n < p["NB2"] else p["D_B2"]
        D = p["D_B"]
        tok = []
        ch = []
        def issue(n, throttle=True):
            if throttle and n >= Df(n):
                if n < p["NDUTY"]:
                    L = self.lab("dty")
                    e(f"s_cbranch_vccnz {L}")
                    e.wait_vm(tok[n - Df(n)])
                    e.label(L)
                    if n > Df(n): e.wait_vm(tok[n - Df(n) - 1])
                elif p["NL"] and n >= p["NL"]:
                    if n == p["NL"]:
                        e(f"s_waitcnt lgkmcnt(0)\nv_readfirstlane_b32 s3, v5\ns_cmp_eq_u32 s3, 0\ns_cselect_b64 vcc, -1, 0")
                    L = self.lab("bal")
                    e(f"s_cbranch_vccnz {L}")
                    e.wait_vm(tok[n - p["DSLOW"]])
                    e.label(L)
                    e.wait_vm(tok[n - Df(n)])
                else: e.wait_vm(tok[n - Df(n)])
            if p["NL"] and n == p["NL"] - 1:
                e.ds(f"ds_read_b32 v5, v15 offset:{LB_FLAG+16}")
            if p["NL"] and n == p["NTK"]:
                assert n > p["N1"]
                L = self.lab("tk")
                e(f"s_cmp_eq_u32 s{sW}, 6\ns_cbranch_scc0 {L}")
                e(f"ds_write_b32 v15, v32 offset:{LB_FLAG+20}")
                e.label(L)
            self.prog(n, 4)
            if n < 24:
                if n and n % 4 == 0: e("s_add_u32 s14, s14, s67")
                tok.append(self.b_kload(KR, n >> 2, n & 3))
            elif n < 48:
                m = n - 24
                if m and m % 4 == 0: e("s_add_u32 s15, s15, s67")
                tok.append(self.b_vload(VR, m >> 2, m & 3))
        n = 0
        if p["PRIO"]:
            L = self.lab("prio")
            e(f"s_cmp_ge_u32 s{sW}, 4\ns_cbranch_scc0 {L}\ns_setprio {p['PRIO']}")
            e.label(L)
        def touch():
            e(f"s_mul_i32 s3, s64, 7\ns_add_u32 s3, s3, s{sW}\ns_and_b32 s12, s3, 7\ns_lshl_b32 s12, s12, 13\ns_lshr_b32 s3, s3, 3\ns_add_u32 s3, s3, {p['TOUCH']}\ns_lshl_b32 s3, s3, 19\ns_add_u32 s3, s3, s12")
            e(f"s_lshl_b32 s12, s{sX}, 16\ns_add_u32 s3, s3, s12\nv_lshlrev_b32 v12, {p['TSH']}, v10\nv_add_u32 v12, s3, v12")
            for k in range(8 >> p["TSH"]):
                e.vmem(f"buffer_load_dword v5, v12, s[20:23], 0 offen {p['NT']}")
                if k + 1 < 8 >> p["TSH"]: e(f"v_add_u32 v12, {1024 << p['TSH']}, v12")
        if p["TOUCH"]:
            self.srd(20, 18, 1 << 24)
            if p["TPOS"] == 1: touch()
        tq = self.p1_compute(False)
        if p["TOUCH"] and p["TPOS"] == 0: touch()
        while n < p["D_B0"]: issue(n); n += 1
        e.wait_vm(tq)
        self.p1_gemv(19, 140, L_PRB)
        e("v_mov_b32 v12, 1\ns_mov_b64 exec, 1")
        e.ds(f"ds_add_u32 v13, v12 offset:{LB_FLAG+12}")
        self.exec_full()
        assert p["NDUTY"] <= p["N1"]
        if p["NDUTY"]:
            if p["DEEPW"] < 0: e("s_cmp_lt_u32 s64, 16\ns_cselect_b64 vcc, -1, 0")
            else: e(f"s_cmp_ge_u32 s{sW}, {7-p['DEEPW']}\ns_cselect_b64 vcc, -1, 0")
        while n < p["N1"]: issue(n); n += 1
        ch += self.b_chunks(NT_, KR, None, True)
        done = 0
        landed = -1
        while n < 48:
            if n == p["WARMO"]:
                assert n >= 24
                self.bo_warm() if p["WARMB"] else self.bo_addr()
            issue(n)
            if n == p["NWO"]:
                assert not ch
                self.b_woloads()
            landed = max(landed, n - Df(n))
            k = 0
            while ch and k < p["CPS"] and 4 * ch[0][0] + 3 <= landed:
                ch.pop(0)[1](); k += 1
            k = 0
            while not ch and done < min(landed - 24 + 1, 24) and k < p["PVK"]:
                self.b_pv_prep(KR, done); self.b_pv_mma(VR, done); done += 1; k += 1
            n += 1
        assert not ch
        assert done <= p["WOK"]
        while done < 24:
            self.b_pv_prep(KR, done)
            e.wait_vm(tok[24 + done])
            if done == p["WOK"] and not p["NWO"]:
                L = self.lab("wol")
                e(f"s_cmp_lt_u32 s{sW}, {p['WOLATE']}\ns_cbranch_scc0 {L}")
                v = e.vm
                self.b_woloads()
                e.vm = v
                e.label(L)
            self.b_pv_mma(VR, done); done += 1
        self.stamp(7)
        self.b_owrite()

    def b_tail(self):
        e = self.e
        e.label("L_btail")
        e("s_barrier")
        self.stamp(10)
        e(f"s_cmp_lt_u32 s{sW}, 2\ns_cbranch_scc0 L_bt_nored")
        e(f"s_lshl_b32 s3, s{sW}, 10\nv_add_u32 v11, s3, v10")
        e(f"v_lshlrev_b32 v13, 5, v{vG}")
        e.ds(f"ds_read_b128 v[44:47], v13 offset:{LB_G}")
        e.ds(f"ds_read_b128 v[48:51], v13 offset:{LB_G+16}")
        tk = [e.ds(f"ds_read_b128 {vr(128+4*w)}, v11 offset:{LB_R4+2048*w}") for w in range(8)]
        e(f"s_mul_i32 s15, s{sX}, {4*24*512}\ns_lshl_b32 s3, s64, 9\ns_add_u32 s15, s15, s3\ns_lshl_b32 s3, s{sW}, 8\ns_add_u32 s15, s15, s3\ns_add_u32 s15, s15, {WS_BO}")
        e(f"v_mul_u32_u24 v14, {24*512}, v{vG}\nv_lshl_add_u32 v14, v{vC}, 4, v14\nv_mov_b32 v53, s{sT}\nv_mov_b32 v55, s{sT}")
        for w in range(8):
            e.wait_lg(tk[w])
            g = 44 + (w & ~1)
            sel = f"op_sel:[0,{w&1},0] op_sel_hi:[1,{w&1},1]"
            for k in (0, 2):
                if w == 0: e(f"v_pk_mul_f32 v[{128+k}:{129+k}], v[{128+k}:{129+k}], v[{g}:{g+1}] op_sel:[0,0] op_sel_hi:[1,0]")
                else: e(f"v_pk_fma_f32 v[{128+k}:{129+k}], v[{128+4*w+k}:{129+4*w+k}], v[{g}:{g+1}], v[{128+k}:{129+k}] {sel}")
        e("v_cvt_pk_bf16_f32 v52, v128, v129\nv_cvt_pk_bf16_f32 v54, v130, v131")
        e.vmem(f"buffer_store_dwordx4 v[52:55], v14, {WS}, s15 offen")
        e(f"s_add_u32 s15, s15, {SLOW}")
        e.label("L_bt_nored")
        self.stamp(8)
        def bo_slow():
            L = self.lab("bos")
            e(f"s_cmp_lt_u32 s{sW}, 2\ns_cbranch_scc0 {L}")
            e(f"buffer_store_dwordx4 v[52:55], v14, {WS}, s15 offen sc1")
            e.label(L)
        e("s_cmp_lt_u32 s64, 16\ns_cbranch_scc1 L_bt_duty")
        bo_slow()
        self.exit()
        e.label("L_bt_duty")
        if self.p["NWO"] and self.p["B4B"]: e("s_barrier")
        if self.p["WOLATE"] < 7 and not self.p["NWO"]:
            L = self.lab("wol")
            e(f"s_barrier\ns_sub_u32 s3, s{sW}, {self.p['WOLATE']}\ns_cmp_lt_u32 s3, {7-self.p['WOLATE']}\ns_cbranch_scc0 {L}")
            self.b_woloads()
            e.label(L)
        e(f"v_and_b32 v11, 60, v{vL}")
        e.ds(f"ds_read_b32 v60, v11 offset:{LB_F}")
        e.ds(f"ds_read_b32 v61, v11 offset:{LB_F+64}")
        def g():
            e.vmem(f"buffer_load_dwordx4 v[128:131], v6, {WS}, s68 offen sc1")
            e.vmem(f"buffer_load_dwordx4 v[132:135], v9, {WS}, s68 offen sc1")
        self.poll(g, [129, 131, 133, 135], 62, "gbo", fast="s68", slowpub=bo_slow)
        self.stamp(11); self.cnt(12)
        e("s_waitcnt lgkmcnt(0)")
        for k, (src, f) in enumerate(((128, 60), (132, 61))):
            e(f"v_lshlrev_b32 v136, 16, v{src}\nv_and_b32 v137, 0xffff0000, v{src}\nv_lshlrev_b32 v138, 16, v{src+2}\nv_and_b32 v139, 0xffff0000, v{src+2}")
            for i in range(4):
                e(f"v_mul_f32 v{140+i}, v{f}, v{136+i}" if k == 0 else f"v_fmac_f32 v{140+i}, v{f}, v{136+i}")
        e("v_permlane32_swap_b32 v140, v142\nv_permlane32_swap_b32 v141, v143\nv_add_f32 v140, v140, v142\nv_add_f32 v141, v141, v143")
        e("v_permlane16_swap_b32 v140, v141\nv_add_f32 v140, v140, v141")
        self.rowred([140], "v_add_f32", (8, 4))
        e("v_cvt_pk_bf16_f32 v140, v140, v140")
        for i in range(4): e(f"v_mov_b32_dpp v{144+i}, v140 quad_perm:[{i},{i},{i},{i}] row_mask:0xf bank_mask:0xf")
        for i in range(4): self.expand4(148 + 4 * i, 144 + i, 0)
        for i in range(4):
            e(f"v_mfma_f32_16x16x32_bf16 v[24:27], {vr(148+4*i)}, {vr(self.WO[i])}, {'0' if i == 0 else 'v[24:27]'}")
        e(f"s_lshl_b32 s3, s{sW}, 10\nv_add_u32 v11, s3, v10")
        e.ds(f"ds_write_b128 v11, v[24:27] offset:{LB_R5}")
        e("s_waitcnt lgkmcnt(0)")
        self.stamp(13)
        e("s_barrier")
        self.stamp(14)
        e(f"s_cmp_eq_u32 s{sW}, 0\ns_cbranch_scc1 L_bt_fin")
        self.exit()
        e.label("L_bt_fin")
        e(f"v_and_b32 v11, 31, v{vL}\nv_lshlrev_b32 v11, 4, v11\nv_lshrrev_b32 v12, 5, v{vL}\nv_lshl_add_u32 v11, v12, 12, v11")
        tk = [e.ds(f"ds_read_b128 {vr(128+4*w)}, v11 offset:{LB_R5+1024*w}") for w in range(4)]
        e(f"s_lshl_b32 s12, s65, 12\ns_lshl_b32 s3, s66, 10\ns_add_u32 s12, s12, s3\ns_add_u32 s12, s12, {WS_OUTB}")
        e(f"v_and_b32 v13, 1, v{vG}\nv_lshlrev_b32 v13, 5, v13\nv_lshl_add_u32 v13, v{vC}, 6, v13\nv_lshl_add_u32 v13, v12, 4, v13\nv_mov_b32 v53, s{sT}\nv_mov_b32 v55, s{sT}")
        for w in range(1, 4):
            e.wait_lg(tk[w])
            e(f"v_pk_add_f32 v[128:129], v[128:129], v[{128+4*w}:{129+4*w}]\nv_pk_add_f32 v[130:131], v[130:131], v[{130+4*w}:{131+4*w}]")
        e("v_permlane32_swap_b32 v128, v130\nv_permlane32_swap_b32 v129, v131")
        e("v_add_f32 v52, v128, v130\nv_add_f32 v54, v129, v131")
        e.vmem(f"buffer_store_dwordx4 v[52:55], v13, {WS}, s12 offen sc1")
        self.stamp(9)
        e(f"s_lshl_b32 s3, s66, 7\ns_lshl_b32 s14, s65, 2\ns_add_u32 s14, s14, s3\ns_lshl_b32 s12, s14, 3\ns_add_u32 s12, s12, {WS_OUTB}")
        e(f"v_lshrrev_b32 v11, 1, v{vL}\nv_lshlrev_b32 v11, 12, v11\nv_and_b32 v12, 1, v{vL}\nv_lshl_add_u32 v11, v12, 4, v11")
        self.srd(48, 38, 2048)
        e(f"s_lshl_b32 s14, s14, 1\ns_add_u32 s14, s14, 1024\nv_lshlrev_b32 v12, 2, v12")
        def g2(): e.vmem(f"buffer_load_dwordx4 v[128:131], v11, {WS}, s12 offen sc1")
        self.poll(g2, [129, 131], 62, "gob")
        self.stamp(15); self.cnt(16)
        self.rowred([128, 130], "v_add_f32", (8, 4, 2))
        self.allred_G([128, 130], [132, 133], "v_add_f32")
        e("v_cvt_pk_bf16_f32 v128, v128, v130")
        self.exec_mask(3, 0)
        e.vmem("buffer_store_dword v128, v12, s[48:51], s14 offen")
        if self.p["TIMING"]: self.exec_full(); e("s_waitcnt vmcnt(0)")
        self.exit()

    def a_setup(self):
        e = self.e
        e(f"s_lshl_b32 s64, s{sX}, 3\ns_add_u32 s64, s64, s{sSLOT}\ns_lshr_b32 s65, s64, 1\ns_and_b32 s66, s64, 1")
        e("s_waitcnt lgkmcnt(0)")
        e(f"s_load_dword s{sT}, s[42:43], 0")
        self.srd(48, 18, 1 << 24)
        e(f"s_lshl_b32 s14, s64, 13\ns_lshl_b32 s3, s{sW}, 10\ns_add_u32 s14, s14, s3\ns_mov_b32 s61, 0x80000")
        e(f"s_lshl_b32 s15, s{sW}, 13\ns_add_u32 s15, s15, {WS_QABS}")
        e(f"s_lshl_b32 s67, s{sW}, 14")
        e(f"v_and_b32 v11, 3, v{vC}\nv_lshlrev_b32 v11, 2, v11")
        e(f"v_lshrrev_b32 v12, 2, v{vC}\nv_and_b32 v13, 1, v12\nv_or_b32 v11, v11, v13")
        e(f"v_xor_b32 v12, v12, v{vC}\nv_and_b32 v12, 2, v12\nv_or_b32 v11, v11, v12")
        e(f"v_lshlrev_b32 v11, 4, v11\nv_lshl_add_u32 v11, v{vG}, 8, v11\nv_lshl_add_u32 v11, v{vC}, 10, v11")
        e(f"v_add_u32 v6, s67, v11\nv_add_u32 v7, {LA_Q}, v11")
        e(f"v_add_u32 v9, s67, v10")
    def a_issue(self, depthf, p1at=None):
        e, p = self.e, self.p
        T1, T0, QG = 64, 128, 192
        seq = [("t1", i) for i in range(16)] + [("t0", i) for i in range(16)]
        q = p["QPOS"]
        seq = seq[:q] + [("q", i) for i in range(8)] + seq[q:]
        tok, done = [], 0
        tokof = {}
        def landed_action(it):
            kind, i = it
            if p["ANODS"]: return
            if kind == "t1":
                e(f"v_xor_b32 v12, {16*fswz(i)}, v9")
                e.ds(f"ds_write_b128 v12, {vr(T1+4*i)} offset:{1024*i}")
                if i == 15:
                    e("s_waitcnt lgkmcnt(0)")
                    for ks in range(16):
                        e(f"v_xor_b32 v12, {16*ks}, v6")
                        e.ds(f"ds_read_b128 {vr(T1+4*ks)}, v12")
            elif kind == "t0":
                e(f"v_xor_b32 v12, {16*fswz(i)}, v9")
                e.ds(f"ds_write_b128 v12, {vr(T0+4*i)} offset:{1024*i}")
        def qload(i):
            if i % 4 == 0: e(f"s_add_u32 s12, s15, {1024*i}")
            return e.vmem(f"buffer_load_dwordx4 {vr(QG+4*i)}, v10, {WS}, s12 offen offset:{1024*(i&3)} sc1")
        for n, it in enumerate(seq):
            if n == p1at: self.selectors(); self.a_addrs(); self.tagmake(); self.stamp(1)
            D = depthf(n)
            if n >= D:
                e.wait_vm(tok[n - D])
            self.prog(n, 4)
            kind, i = it
            if kind == "q":
                t = qload(i)
            else:
                t = e.vmem(f"buffer_load_dwordx4 {vr((T1 if kind == 't1' else T0)+4*i)}, v10, s[48:51], s14 offen {p['NT']}")
                if not (kind == "t0" and i == 15): e("s_add_u32 s14, s14, s61")
            tok.append(t); tokof[it] = t
            while done <= n - D and done < len(seq) and n >= D:
                landed_action(seq[done]); done += 1
        e.wait_vm(tokof[("q", 7)])
        while done < len(seq) and tok[done] <= tokof[("q", 7)]:
            landed_action(seq[done]); done += 1
        self.stamp(2)
        tags = [QG + 4 * i + k for i in range(8) for k in (1, 3)]
        self.tagcheck(tags, 60)
        R, B = self.lab("aqr"), self.lab("aqb")
        e(f"s_cbranch_vccnz {R}")
        e.label(B)
        def ool():
            e.label(R)
            e("s_mov_b32 s13, 0")
            L = self.lab("aql")
            e.label(L)
            e("s_mov_b32 s4, 0")
            for i in range(8):
                S = self.lab("aqs")
                self.tagcheck([QG + 4 * i + 1, QG + 4 * i + 3], 60)
                e(f"s_cbranch_vccz {S}\ns_add_u32 s12, s15, {1024*i}\ns_mov_b32 s4, 1")
                e(f"buffer_load_dwordx4 {vr(QG+4*i)}, v10, {WS}, s12 offen sc1")
                e.label(S)
            e(f"s_cmp_eq_u32 s4, 0\ns_cbranch_scc1 {B}\ns_add_u32 s13, s13, 1\ns_waitcnt vmcnt(0)\ns_cmp_gt_u32 s13, {p['MAXPOLL']}\ns_cbranch_scc0 {L}\ns_branch {B}")
        self.ool.append(ool)
        self.stamp(3)
        for i in range(8):
            e(f"v_mov_b32 v{QG+4*i+1}, v{QG+4*i+2}")
            if i % 2 == 0: e(f"v_xor_b32 v12, {16*fswz(i>>1)}, v4")
            e.ds(f"ds_write_b64 v12, v[{QG+4*i}:{QG+4*i+1}] offset:{1024*(i>>1)+512*(i&1)}")
        if p["QKE"]:
            FR = (224, 236, 44)
            e("s_waitcnt lgkmcnt(0)\ns_barrier")
            self.stamp(4)
            if p["AKILL"] == 1: self.exit()
            def rd(ks):
                f = FR[ks % 3]
                e(f"v_xor_b32 v13, {16*ks}, v7")
                e.ds(f"ds_read_b128 {vr(f)}, v13")
                return e.ds(f"ds_read_b128 {vr(f+4)}, v13 offset:16384")
            tk = {0: rd(0), 1: rd(1)}
            left = len(seq) - done
            for ks in range(16):
                f = FR[ks % 3]
                e.wait_lg(tk[ks])
                c = lambda r: "0" if ks == 0 else vr(r)
                e(f"v_mfma_f32_16x16x32_bf16 {vr(24)}, {vr(T1+4*ks)}, {vr(f)}, {c(24)}")
                if ks + 2 < 16: tk[ks + 2] = rd(ks + 2)
                e(f"v_mfma_f32_16x16x32_bf16 {vr(28)}, {vr(T1+4*ks)}, {vr(f+4)}, {c(28)}")
                if left and done < len(seq) and (ks + 1) * left >= (done - (len(seq) - left) + 1) * 16:
                    e.wait_vm(tok[done]); landed_action(seq[done]); done += 1
        while done < len(seq):
            e.wait_vm(tok[done]); landed_action(seq[done]); done += 1
        e("s_waitcnt lgkmcnt(0)")

    def a_addrs(self):
        e = self.e
        e(f"v_lshlrev_b32 v250, 5, v{vC}\ns_lshl_b32 s3, s{sW}, 2\nv_add_u32 v250, {LA_MX}, v250\nv_add_u32 v251, s3, v250")
        e(f"v_lshrrev_b32 v252, 1, v{vG}\ns_lshl_b32 s3, s{sW}, 1\nv_add_u32 v252, s3, v252\nv_xor_b32 v252, v252, v{vC}\nv_lshlrev_b32 v252, 4, v252\nv_lshl_add_u32 v252, v{vC}, 9, v252")
        e(f"v_and_b32 v56, 1, v{vG}\nv_lshl_add_u32 v252, v56, 3, v252\nv_add_u32 v252, {LA_P}, v252")
        e(f"v_and_b32 v14, 31, v{vL}\nv_lshrrev_b32 v15, 5, v{vL}")
        e(f"v_xor_b32 v253, v15, v{vC}\nv_lshlrev_b32 v253, 4, v253\nv_lshl_add_u32 v253, v14, 9, v253\nv_add_u32 v253, {LA_P}, v253")
        e(f"v_bfe_u32 v57, v{vL}, 2, 2\nv_lshlrev_b32 v58, 2, v57\nv_lshrrev_b32 v59, 1, v57\nv_xor_b32 v59, v59, v15\nv_lshl_add_u32 v58, v59, 1, v58")
        e(f"v_bfe_u32 v59, v{vL}, 1, 1\nv_lshl_add_u32 v59, v56, 1, v59\ns_and_b32 s3, s{sW}, 1\ns_lshl_b32 s3, s3, 3\nv_add_u32 v59, s3, v59\nv_xor_b32 v58, v58, v59")
        e(f"v_lshlrev_b32 v58, 4, v58\nv_and_b32 v59, 1, v{vL}\nv_lshl_add_u32 v58, v59, 3, v58\nv_lshl_add_u32 v58, v57, 10, v58\nv_lshl_add_u32 v58, v15, 13, v58")
        e(f"s_lshr_b32 s3, s{sW}, 1\ns_lshl_b32 s3, s3, 8\nv_add_u32 v32, s3, v58")
        e("v_xor_b32 v33, 16, v32\nv_add_u32 v33, 0x1000, v33\nv_xor_b32 v34, 64, v32\nv_xor_b32 v35, 64, v33")
        e(f"v_and_b32 v254, 7, v14\nv_lshlrev_b32 v254, 4, v254\nv_lshl_add_u32 v254, v14, 10, v254\nv_lshl_add_u32 v254, v15, 3, v254\ns_lshl_b32 s3, s{sW}, 7\nv_add_u32 v254, s3, v254")
        e(f"s_lshl_b32 s3, s{sW}, 13\nv_add_u32 v255, s3, v10")
        e(f"v_lshlrev_b32 v4, 3, v{vL}\ns_lshl_b32 s3, s{sW}, 12\ns_add_u32 s3, s3, {LA_Q}\nv_add_u32 v4, s3, v4\ns_and_b32 s3, s{sW}, 3\ns_lshl_b32 s3, s3, 4\nv_xor_b32 v4, s3, v4")
        e(f"s_lshl_b32 s16, s{sW}, 19\ns_lshl_b32 s3, s64, 10\ns_add_u32 s16, s16, s3\ns_add_u32 s16, s16, {WS_AO}\ns_mov_b32 s17, 0x10000")
        self.a_wsetup()
    def a_wsetup(self):
        e, nt = self.e, self.p["NT"]
        UV, WO = 160, 192
        self.srd(52, 24, 1 << 22); self.srd(56, 26, 1 << 22)
        e(f"s_lshl_b32 s68, s{sW}, 19\ns_lshl_b32 s3, s65, 8\ns_add_u32 s68, s68, s3\ns_lshl_b32 s3, s66, 7\ns_add_u32 s68, s68, s3")
        e(f"v_bfe_u32 v248, v{vL}, 3, 1\nv_lshlrev_b32 v248, 16, v248\nv_lshl_add_u32 v248, v{vG}, 17, v248\nv_lshl_add_u32 v248, v8, 4, v248")
        e(f"s_lshl_b32 s69, s64, 16\ns_lshr_b32 s3, s{sW}, 2\ns_lshl_b32 s3, s3, 15\ns_add_u32 s69, s69, s3\ns_and_b32 s3, s{sW}, 3\ns_lshl_b32 s3, s3, 8\ns_add_u32 s69, s69, s3")
        e(f"v_lshlrev_b32 v249, 13, v{vG}\nv_lshl_add_u32 v249, v{vC}, 4, v249")
        self.wq = []
        for i in range(8):
            self.wq.append((f"buffer_load_dwordx4 {vr(UV+4*i)}, v248, s[52:55], s68 offen {nt}", "s_addk_i32 s68, 0x2000" if i < 7 else ""))
        for i in range(8):
            self.wq.append((f"buffer_load_dwordx4 {vr(WO+4*i)}, v249, s[56:59], s69 offen offset:{1024*(i&3)} {nt}", "s_addk_i32 s69, 0x1000" if i == 3 else ""))
    def wtick(self, n=1, late=False):
        for _ in range(n):
            if self.wq and (late or len(self.wq) > 16 - self.p["NWE"]):
                a, b = self.wq.pop(0)
                self.e.vmem(a); self.e(b)

    def a_tail_addrs(self):
        e = self.e
        e(f"v_and_b32 v20, 1, v{vG}\nv_lshlrev_b32 v252, 5, v20\nv_lshl_add_u32 v252, v{vC}, 6, v252\nv_lshl_add_u32 v252, v15, 4, v252")
        e(f"s_and_b32 s3, s{sW}, 3\ns_lshl_b32 s14, s3, 8\nv_lshrrev_b32 v22, 2, v252\nv_add_u32 v22, s14, v22")
        e(f"s_lshl_b32 s12, s65, 16\ns_add_u32 s12, s12, s14\ns_add_u32 s12, s12, {WS_AO}")
        e(f"v_lshlrev_b32 v15, 10, v{vG}\nv_lshl_add_u32 v15, v{vC}, 4, v15")
        e(f"v_bfe_u32 v16, v{vL}, 3, 1\nv_lshlrev_b32 v17, 7, v16\nv_lshl_add_u32 v17, v{vG}, 5, v17\nv_add_u32 v17, s14, v17")
        e(f"s_lshl_b32 s3, s{sW}, 10\nv_add_u32 v18, s3, v10")
        e(f"v_and_b32 v19, 3, v{vL}\nv_lshlrev_b32 v19, 4, v19\nv_lshrrev_b32 v23, 2, v{vL}\nv_add_u32 v19, v19, v23\nv_lshlrev_b32 v19, 1, v19\nv_add_u32 v19, s14, v19")
        e(f"v_lshlrev_b32 v20, 4, v16\nv_lshl_add_u32 v20, v{vG}, 5, v20\ns_lshl_b32 s3, s{sW}, 7\nv_add_u32 v20, s3, v20")
        e(f"v_lshlrev_b32 v23, 8, v16\nv_lshl_add_u32 v23, v8, 4, v23\nv_lshl_add_u32 v23, v{vG}, 11, v23")
        e(f"v_lshlrev_b32 v250, 3, v16\nv_lshl_add_u32 v250, v8, 4, v250\nv_add_u32 v250, s3, v250")
        e(f"s_lshr_b32 s14, s{sW}, 2\ns_lshl_b32 s14, s14, 6\ns_add_u32 s3, s3, s14\nv_lshlrev_b32 v251, 4, v{vG}\nv_add_u32 v251, s3, v251")
        e(f"s_lshl_b32 s15, s65, 10\ns_add_u32 s15, s15, {WS_AML}\ns_mov_b32 s18, 0x11111111\ns_mov_b32 s19, 0x11111111\ns_mov_b32 s13, 0")
        e(f"s_lshl_b32 s61, s64, 12\ns_lshl_b32 s3, s{sW}, 10\ns_add_u32 s61, s61, s3\ns_add_u32 s61, s61, {WS_OUTA}")

    def a_main(self):
        e, p = self.e, self.p
        T1 = 64
        FR = (224, 236, 44)
        qke = p["QKE"]
        if not qke:
            e("s_barrier")
            self.stamp(4)
            if p["AKILL"] == 1: self.exit()
        else: self.stamp(17)
        def rd(ks):
            f = FR[ks % 3]
            e(f"v_xor_b32 v12, {16*ks}, v6\nv_xor_b32 v13, {16*ks}, v7")
            e.ds(f"ds_read_b128 {vr(f)}, v13")
            e.ds(f"ds_read_b128 {vr(f+4)}, v13 offset:16384")
            return e.ds(f"ds_read_b128 {vr(f+8)}, v12")
        tk = {0: rd(0), 1: rd(1)}
        for ks in range(16):
            f = FR[ks % 3]
            e.wait_lg(tk[ks])
            c = lambda r: "0" if ks == 0 else vr(r)
            if not qke:
                e(f"v_mfma_f32_16x16x32_bf16 {vr(24)}, {vr(T1+4*ks)}, {vr(f)}, {c(24)}")
                e(f"v_mfma_f32_16x16x32_bf16 {vr(28)}, {vr(T1+4*ks)}, {vr(f+4)}, {c(28)}")
            else: e(f"v_mfma_f32_16x16x32_bf16 {vr(16)}, {vr(f+8)}, {vr(f)}, {c(16)}")
            if ks + 2 < 16: tk[ks + 2] = rd(ks + 2)
            if ks % 3 == 0: self.wtick()
            if not qke: e(f"v_mfma_f32_16x16x32_bf16 {vr(16)}, {vr(f+8)}, {vr(f)}, {c(16)}")
            e(f"v_mfma_f32_16x16x32_bf16 {vr(20)}, {vr(f+8)}, {vr(f+4)}, {c(20)}")
        self.wtick()
        for hh in range(2):
            a, b = 16 + 4 * hh, 24 + 4 * hh
            e(f"v_max3_f32 v{56+hh}, v{a}, v{a+1}, v{a+2}\nv_max3_f32 v{56+hh}, v{56+hh}, v{a+3}, v{b}\nv_max3_f32 v{56+hh}, v{56+hh}, v{b+1}, v{b+2}\nv_max_f32 v{56+hh}, v{56+hh}, v{b+3}")
        self.allred_G([56, 57], [58, 59], "v_max_f32")
        e("s_barrier")
        self.stamp(10)
        self.exec_mask(0xffff, 0)
        e.ds("ds_write_b32 v251, v56")
        e.ds("ds_write_b32 v251, v57 offset:512")
        self.exec_full()
        e("s_waitcnt lgkmcnt(0)\ns_barrier")
        for hh in range(2):
            e.ds(f"ds_read_b128 {vr(224+8*hh)}, v250 offset:{512*hh}")
            e.ds(f"ds_read_b128 {vr(228+8*hh)}, v250 offset:{512*hh+16}")
        e("s_waitcnt lgkmcnt(0)")
        for hh in range(2):
            m = 224 + 8 * hh
            e(f"v_max3_f32 v{56+hh}, v{m}, v{m+1}, v{m+2}\nv_max3_f32 v{56+hh}, v{56+hh}, v{m+3}, v{m+4}\nv_max3_f32 v{56+hh}, v{56+hh}, v{m+5}, v{m+6}\nv_max_f32 v{56+hh}, v{56+hh}, v{m+7}")
            e(f"v_mul_f32 v{56+hh}, {sCS}, v{56+hh}")
        for T in range(2):
            for hh in range(2):
                for r in range(4):
                    s = 16 + 8 * T + 4 * hh + r
                    e(f"v_fma_f32 v{s}, v{s}, {sCS}, -v{56+hh}")
        self.wtick()
        for s in range(16, 32): e(f"v_exp_f32 v{s}, v{s}")
        for hh in range(2):
            a, b = 16 + 4 * hh, 24 + 4 * hh
            e(f"v_add_f32 v{58+hh}, v{a}, v{a+1}")
            for s in (a + 2, a + 3, b, b + 1, b + 2, b + 3): e(f"v_add_f32 v{58+hh}, v{58+hh}, v{s}")
        for T in range(2):
            for hh in range(2):
                s = 16 + 8 * T + 4 * hh
                e(f"v_cvt_pk_bf16_f32 v{s}, v{s}, v{s+1}\nv_cvt_pk_bf16_f32 v{s+1}, v{s+2}, v{s+3}")
                e.ds(f"ds_write_b64 v252, v[{s}:{s+1}] offset:{256*T+8192*hh}")
        self.allred_G([58, 59], [56, 57], "v_add_f32")
        self.exec_mask(0xffff, 0)
        e.ds(f"ds_write_b32 v251, v58 offset:{LA_LS-LA_MX}")
        e.ds(f"ds_write_b32 v251, v59 offset:{LA_LS-LA_MX+512}")
        self.exec_full()
        e("s_waitcnt lgkmcnt(0)\ns_barrier")
        self.stamp(5)
        ACC = (128, 144)
        for R in range(2):
            def rdp(n):
                f = FR[n % 3]
                if n == 4:
                    for k in range(32, 36): e(f"v_add_u32 v{k}, 0x10000, v{k}")
                e(f"v_xor_b32 v12, {32*n}, v253")
                e.ds(f"ds_read_b128 {vr(f)}, v12 offset:{256*R}")
                for t in range(2):
                    for nn in range(2):
                        tkk = e.ds(f"ds_read_b64_tr_b16 v[{f+4+4*t+2*nn}:{f+5+4*t+2*nn}], v{32+2*t+nn} offset:{16384*(n&3)}")
                return tkk
            tk = {0: rdp(0), 1: rdp(1)}
            for n in range(8):
                f = FR[n % 3]
                e.wait_lg(tk[n])
                first = (R == 0 and n == 0)
                e(f"v_mfma_f32_32x32x16_bf16 {vr(ACC[0],16)}, {vr(f+4)}, {vr(f)}, {'0' if first else vr(ACC[0],16)}")
                if n + 2 < 8: tk[n + 2] = rdp(n + 2)
                if n % 3 == 0: self.wtick()
                e(f"v_mfma_f32_32x32x16_bf16 {vr(ACC[1],16)}, {vr(f+8)}, {vr(f)}, {'0' if first else vr(ACC[1],16)}")
            e("s_barrier")
            self.stamp(11 + 2 * R)
            if R == 0:
                for ks in range(16):
                    e(f"v_xor_b32 v12, {16*ks}, v6")
                    e.ds(f"ds_write_b128 v12, {vr(T1+4*ks)}")
                    if ks % 6 == 0: self.wtick()
                for k in range(32, 36): e(f"v_subrev_u32 v{k}, 0x10000, v{k}")
                e(f"v_lshlrev_b32 v21, 5, v8\ns_lshl_b32 s3, s{sW}, 8\ns_add_u32 s3, s3, {LA_MX}\nv_add_u32 v21, s3, v21")
                self.a_tail_addrs()
                e("s_waitcnt lgkmcnt(0)\ns_barrier")
                self.stamp(12)
        self.wtick(16)
        e(f"s_cmp_lt_u32 s{sW}, 4\ns_cbranch_scc1 L_ast")
        e(f"buffer_load_dwordx4 v[224:227], v10, {WS}, s15 offen sc1")
        e.label("L_ast")
        for t in range(2):
            for q in range(4):
                a = ACC[t] + 4 * q
                e(f"v_cvt_pk_bf16_f32 v{a}, v{a}, v{a+1}\nv_cvt_pk_bf16_f32 v{a+1}, v{a+2}, v{a+3}\nv_xor_b32 v12, {16*(4*t+q)}, v254")
                e.ds(f"ds_write_b64 v12, v[{a}:{a+1}]")
        e("s_waitcnt lgkmcnt(0)\ns_barrier")
        self.stamp(14)
        if p["AKILL"] == 8: self.exit()
        e(f"v_mov_b32 v53, s{sT}\nv_mov_b32 v55, s{sT}\ns_cbranch_scc0 L_agl2")
        tk = []
        for i in range(8):
            e(f"v_xor_b32 v12, {16*i}, v255")
            tk.append(e.ds(f"ds_read_b128 {vr(64+4*i)}, v12 offset:{1024*i}"))
        for k in range(2):
            e.ds(f"ds_read_b128 {vr(96+8*k)}, v21 offset:{1024*k}")
            e.ds(f"ds_read_b128 {vr(100+8*k)}, v21 offset:{1024*k+16}")
        for i in range(8):
            e.wait_lg(tk[i])
            e.vmem(f"buffer_store_dwordx4 {vr(64+4*i)}, v10, {WS}, s16 offen sc1")
            if i < 7: e("s_add_u32 s16, s16, s17")
        e(f"v_lshlrev_b32 v13, 10, v8\ns_lshl_b32 s16, s64, 4\ns_lshl_b32 s3, s{sW}, 13\ns_add_u32 s16, s16, s3\ns_add_u32 s16, s16, {WS_AML}")
        e("s_waitcnt lgkmcnt(0)")
        e("v_max3_f32 v52, v96, v97, v98\nv_max3_f32 v52, v52, v99, v100\nv_max3_f32 v52, v52, v101, v102\nv_max_f32 v52, v52, v103")
        e(f"v_mul_f32 v52, {sCS}, v52\nv_add_f32 v54, v104, v105")
        for r in range(106, 112): e(f"v_add_f32 v54, v54, v{r}")
        e("s_mov_b64 exec, 0xff\ns_waitcnt vmcnt(0)")
        e(f"buffer_store_dwordx4 v[52:55], v13, {WS}, s16 offen sc1")
        self.exec_full()
        self.stamp(6)
        if p["AKILL"] == 9: self.exit()
        wsave = list(self.wq)
        e("s_barrier")
        self.wtick(16, late=True)
        e("s_branch L_alat")
        e.label("L_agl")
        e(f"buffer_load_dwordx4 v[224:227], v10, {WS}, s15 offen sc1")
        e.label("L_agl2")
        e("s_add_u32 s13, s13, 1\ns_waitcnt vmcnt(0)")
        e(f"v_xor_b32 v60, s{sT}, v225\nv_bitop3_b32 v60, v227, s{sT}, v60 bitop3:0xbe\nv_cmp_eq_u32 vcc, 0, v60")
        e(f"s_cmp_gt_u32 s13, {p['MAXPOLL']}\ns_cselect_b64 vcc, -1, vcc")
        e("s_lshr_b64 s[4:5], vcc, 1\ns_and_b64 s[4:5], s[4:5], vcc\ns_lshr_b64 s[20:21], s[4:5], 2\ns_and_b64 s[4:5], s[4:5], s[20:21]\ns_and_b64 s[4:5], s[4:5], s[18:19]\ns_andn2_b64 s[18:19], s[18:19], s[4:5]")
        for i in range(16):
            L = self.lab("agi")
            e(f"s_bitcmp1_b64 s[4:5], {4*i}\ns_cbranch_scc0 {L}\ns_add_u32 s3, s12, {4096*i}")
            e(f"buffer_load_dwordx4 {vr(64+4*i)}, v15, {WS}, s3 offen sc1")
            e.label(L)
        e("s_cmp_eq_u64 vcc, -1\ns_cbranch_scc0 L_agl")
        self.stamp(7)
        if p["AKILL"] == 9: self.exit()
        e("s_barrier")
        tg = e.vm
        e(f"s_cmp_eq_u32 s64, 0\ns_cbranch_scc0 L_noep")
        e(f"v_mov_b32 v12, s{sT}\nv_mov_b32 v13, 0")
        self.exec_mask(1, 0)
        e(f"buffer_store_dword v12, v13, {WS}, 0 offen sc1")
        self.exec_full()
        e.label("L_noep")
        e("v_mov_b32 v56, v224")
        self.rowred([56], "v_max_f32", (8, 4, 2, 1))
        self.allred_G([56], [57], "v_max_f32")
        e("v_sub_f32 v224, v224, v56\nv_exp_f32 v224, v224\nv_mul_f32 v226, v226, v224")
        self.rowred([226], "v_add_f32", (8, 4, 2, 1))
        self.allred_G([226], [57], "v_add_f32")
        e("v_rcp_f32 v226, v226\nv_mul_f32 v224, v224, v226\nv_cvt_pk_bf16_f32 v225, v224, v224\nv_and_b32 v226, 0xffff0000, v225\nv_sub_f32 v226, v224, v226\nv_cvt_pk_bf16_f32 v226, v226, v226")
        e.ds(f"ds_write_b16 v19, v225 offset:{LA_F}")
        e.ds(f"ds_write_b16 v19, v226 offset:{LA_F+128}")
        e("s_waitcnt lgkmcnt(0)")
        e.ds(f"ds_read_b128 v[228:231], v17 offset:{LA_F}")
        e.ds(f"ds_read_b128 v[232:235], v17 offset:{LA_F+16}")
        e("s_waitcnt lgkmcnt(0)")
        for i in range(8): self.expand4(128 + 4 * i, 228 + (i >> 1), i & 1)
        e.wait_vm(tg)
        for i in range(16):
            if i < 8: e(f"v_mfma_f32_16x16x32_bf16 v[24:27], {vr(128+4*i)}, {vr(64+4*i)}, {'0' if i == 0 else 'v[24:27]'}")
            else: e(f"v_mfma_f32_16x16x32_bf16 v[24:27], {vr((44,48)[i&1])}, {vr(64+4*i)}, v[24:27]")
            if 6 <= i < 14: self.expand4((44, 48)[i & 1], 228 + ((i + 2) >> 1), i & 1)
        e("v_permlane32_swap_b32 v24, v26\nv_permlane32_swap_b32 v25, v27\nv_add_f32 v24, v24, v26\nv_add_f32 v25, v25, v27\nv_cvt_pk_bf16_f32 v24, v24, v25")
        e.ds(f"ds_write_b32 v22, v24 offset:{LA_LAT}")
        self.wq = wsave
        self.wtick(16, late=True)
        tkw = e.vm
        e("s_waitcnt lgkmcnt(0)")
        e.label("L_alat")
        e("s_barrier")
        self.stamp(15)
        e.ds(f"ds_read_b128 v[28:31], v20 offset:{LA_LAT}")
        e("s_waitcnt lgkmcnt(0)")
        nlate = 16 - self.p["NWE"]
        wt = lambda k: (tkw - (15 - k)) if (15 - k) < nlate else None
        self.gemv8(24, 28, 160, [wt(k) for k in range(8)])
        e.ds(f"ds_write_b128 v18, v[24:27] offset:{LA_R2}")
        e("s_waitcnt lgkmcnt(0)\ns_barrier")
        self.stamp(16)
        for k in range(4): e.ds(f"ds_read_b128 {vr(64+4*k)}, v23 offset:{LA_R2+1024*(k>>1)+(512+128)*(k&1)}")
        e("s_waitcnt lgkmcnt(0)")
        for k in range(1, 4):
            e(f"v_pk_add_f32 v[64:65], v[64:65], v[{64+4*k}:{65+4*k}]\nv_pk_add_f32 v[66:67], v[66:67], v[{66+4*k}:{67+4*k}]")
        self.allred_G([64, 65, 66, 67], [68, 69, 70, 71], "v_add_f32")
        e("v_cvt_pk_bf16_f32 v64, v64, v65\nv_cvt_pk_bf16_f32 v65, v66, v67")
        e.ds(f"ds_write_b64 v250, v[64:65] offset:{LA_CTX}")
        e("s_waitcnt lgkmcnt(0)")
        e.ds(f"ds_read_b128 v[28:31], v251 offset:{LA_CTX}")
        e("s_waitcnt lgkmcnt(0)")
        self.gemv8(24, 28, 192, [wt(8 + k) for k in range(8)])
        e(f"s_cmp_lt_u32 s{sW}, 4\ns_cbranch_scc1 L_at_o")
        e.ds(f"ds_write_b128 v18, v[24:27] offset:{LA_R1}")
        e("s_waitcnt lgkmcnt(0)\ns_barrier")
        self.exit()
        e.label("L_at_o")
        e("s_barrier")
        e.ds(f"ds_read_b128 v[64:67], v18 offset:{LA_R1+4096}")
        e("s_waitcnt lgkmcnt(0)")
        e("v_pk_add_f32 v[24:25], v[24:25], v[64:65]\nv_pk_add_f32 v[26:27], v[26:27], v[66:67]")
        e(f"v_cndmask_b32 v52, v24, v26, {sHI}\nv_cndmask_b32 v54, v25, v27, {sHI}")
        e(f"buffer_store_dwordx4 v[52:55], v252, {WS}, s61 offen sc1")
        self.stamp(8)
        e(f"s_cmp_eq_u32 s{sW}, 0\ns_cbranch_scc1 L_at_fin")
        self.exit()
        e.label("L_at_fin")
        e(f"s_lshl_b32 s12, s64, 6\ns_add_u32 s12, s12, {WS_OUTA}\nv_lshrrev_b32 v11, 2, v{vL}\nv_lshlrev_b32 v11, 12, v11\nv_and_b32 v12, 3, v{vL}\nv_lshl_add_u32 v11, v12, 4, v11")
        self.srd(48, 38, 2048)
        e(f"s_lshl_b32 s14, s64, 4\nv_lshlrev_b32 v12, 2, v12\ns_mov_b32 s15, 0x10000")
        def g():
            e("s_mov_b32 s3, s12")
            for k in range(4):
                e(f"buffer_load_dwordx4 {vr(64+4*k)}, v11, {WS}, s3 offen sc1")
                if k < 3: e("s_add_u32 s3, s3, s15")
        self.poll(g, [65, 67, 69, 71, 73, 75, 77, 79], 60, "goa")
        for k in range(1, 4): e(f"v_add_f32 v64, v64, v{64+4*k}\nv_add_f32 v66, v66, v{66+4*k}")
        self.rowred([64, 66], "v_add_f32", (8, 4))
        self.allred_G([64, 66], [68, 69], "v_add_f32")
        e("v_cvt_pk_bf16_f32 v64, v64, v66")
        self.exec_mask(15, 0)
        e("buffer_store_dword v64, v12, s[48:51], s14 offen")
        if self.p["TIMING"]: self.exec_full(); e("s_waitcnt vmcnt(0)"); self.stamp(9)
        self.exit()

    def build(self):
        e, p = self.e, self.p
        self.prologue()
        vm0 = e.vm
        self.phase1()
        self.b_ctrl()
        e.label("L_notctrl")
        e.vm = vm0
        self.b_stream()
        self.b_tail()
        e.label("L_astream")
        self.role = "A"
        e.vm = 1
        self.a_setup()
        self.a_issue(lambda n: p["D_A1"] if n < p["NA1"] else p["D_A2"], p1at=p["D_A1"])
        self.a_main()
        while self.ool: self.ool.pop(0)()
        if p["TIMING"]:
            e.label("L_exit")
            e("s_mov_b64 exec, -1\ns_memrealtime s[98:99]\ns_getreg_b32 s100, hwreg(HW_REG_XCC_ID)\ns_waitcnt lgkmcnt(0)\nv_mov_b32 v44, 0")
            for i in range(28): e(f"v_writelane_b32 v44, s{70+i}, {i}")
            e("v_writelane_b32 v44, s98, 30\nv_writelane_b32 v44, s100, 31")
            e(f"s_lshl_b32 s3, s2, 3\ns_add_u32 s3, s3, s{sW}\ns_lshl_b32 s3, s3, 7\ns_add_u32 s3, s3, {WS_STAMP}\nv_lshlrev_b32 v45, 2, v{vL}\ns_mov_b32 exec_hi, 0")
            e(f"buffer_store_dword v44, v45, {WS}, s3 offen")
        if p["PAD"]:
            e.label("L_exit")
            if p["PADEV"] == 99:
                e(f"s_cmp_{'lt' if p['PADROLE'] == 'A' else 'ge'}_u32 s{sSLOT}, 8\ns_cbranch_scc0 L_padn\ns_memrealtime s[82:83]\ns_waitcnt lgkmcnt(0)")
                e.label("L_padn")
            e(f"s_cmp_eq_u32 s82, 0\ns_cselect_b32 s80, s80, s82\ns_add_u32 s80, s80, {p['PAD']}")
            e.label("L_padl")
            e("s_sleep 4\ns_memrealtime s[68:69]\ns_waitcnt lgkmcnt(0)\ns_sub_u32 s68, s68, s80\ns_cmp_lt_i32 s68, 0\ns_cbranch_scc1 L_padl")
        e.label("L_end")
        e("s_endpgm")
        e.label("L_codeend")
        if p["NOSLOW"]:
            out, k = [], 0
            for i, l in enumerate(e.L):
                if "store" in l and l.endswith("sc1") and ("v14, " in l or "v11, " in l or "dwordx2" in l or ("v10, " in l and "s15" in l)): continue
                out.append(l)
            e.L = out
        gm, sm = p["GM"].replace("_", " "), p["SM"].replace("_", " ")
        e.L = [(l[:-3] + (gm if "load" in l else sm)) if l.endswith(" sc1") else l for l in e.L]
        body = pad_hazards(e.L)
        ref = open(f"cdna_kernels/{NAME}.s.ref").read().split("\n")
        head = [l for l in ref if l.startswith(";") and "@launch" not in l]
        out = head + ["; @launch grid=(256,1,1) block=(512,1,1) lds=163840",
                      '.amdgcn_target "amdgcn-amd-amdhsa--gfx950"', ".text", f".globl {NAME}_kernel", ".p2align 8",
                      f".type {NAME}_kernel,@function", f"{NAME}_kernel:"]
        out += [("" if l.endswith(":") else "    ") + l for l in body]
        out += ['.section .rodata,"a"', ".p2align 6", f".amdhsa_kernel {NAME}_kernel", "  .amdhsa_next_free_vgpr 256",
                "  .amdhsa_next_free_sgpr 102", "  .amdhsa_accum_offset 256", "  .amdhsa_group_segment_fixed_size 0",
                "  .amdhsa_kernarg_size 112", "  .amdhsa_user_sgpr_count 2", "  .amdhsa_user_sgpr_kernarg_segment_ptr 1",
                "  .amdhsa_system_sgpr_workgroup_id_x 1", ".end_amdhsa_kernel", ""]
        return "\n".join(out)

if __name__ == "__main__":
    kw = {}
    for a in sys.argv[2:]:
        k, v = a.split("=")
        kw[k] = (v == "True") if v in ("True", "False") else (int(v) if v.lstrip("-").isdigit() else v)
    open(sys.argv[1], "w").write(K(**kw).build())
```

```python
import re

TRANS = ("v_exp_f32", "v_log_f32", "v_rcp_f32", "v_rsq_f32", "v_sqrt_f32", "v_sin_f32", "v_cos_f32")
MFMA_PASSES = {"v_mfma_f32_16x16x32_bf16": 4, "v_mfma_f32_16x16x16_bf16": 4, "v_mfma_f32_32x32x16_bf16": 8}

def _regs(tok):
    tok = tok.strip()
    tok = tok.lstrip("-")
    m = re.fullmatch(r"(?:abs\()?([vsa])(\d+)\)?", tok)
    if m: return {(m.group(1), int(m.group(2)))}
    m = re.fullmatch(r"([vsa])\[(\d+):(\d+)\]", tok)
    if m: return {(m.group(1), i) for i in range(int(m.group(2)), int(m.group(3)) + 1)}
    if tok == "vcc": return {("s", "vcc")}
    if tok == "exec": return {("s", "exec")}
    if tok == "m0": return {("s", "m0")}
    return set()

class Ins:
    def __init__(self, text):
        self.text = text
        t = text.split(";")[0].strip()
        self.label = t.endswith(":")
        self.op = t.split()[0] if t and not self.label else ""
        rest = t[len(self.op):].strip() if not self.label else ""
        ops, depth, cur = [], 0, ""
        for ch in rest:
            if ch == "[": depth += 1
            if ch == "]": depth -= 1
            if ch == "," and depth == 0:
                ops.append(cur.strip()); cur = ""
            else: cur += ch
        if cur.strip(): ops.append(cur.strip())
        self.mods = ""
        if ops:
            parts = ops[-1].split(None, 1)
            ops[-1] = parts[0]
            if len(parts) > 1: self.mods = parts[1]
        self.ops = ops
        op = self.op
        self.mfma = op.startswith("v_mfma")
        self.valu = op.startswith("v_") and not self.mfma
        self.trans = op.replace("_e32", "").replace("_e64", "") in TRANS
        self.dpp = self.valu and ("quad_perm" in self.mods or "row_" in self.mods)
        self.permlane = op.startswith("v_permlane")
        self.readlane = op.startswith("v_readlane") or op.startswith("v_readfirstlane")
        self.vmem = op.startswith("buffer_") or op.startswith("global_")
        self.ds = op.startswith("ds_")
        self.salu = op.startswith("s_")
        R = [_regs(o) for o in ops]
        self.w, self.r = set(), set()
        self.srcC = set(); self.srcAB = set(); self.stdata = set()
        if self.mfma:
            self.w = R[0]; self.srcAB = R[1] | R[2]; self.srcC = R[3]; self.r = self.srcAB | self.srcC
            self.passes = MFMA_PASSES[op]
        elif self.valu:
            if self.permlane and "swap" in op:
                self.w = R[0] | R[1]; self.r = R[0] | R[1]
            elif op.startswith("v_cmp"):
                self.w = R[0]; self.r = set().union(*R[1:])
            elif op.startswith("v_add_co") or op.startswith("v_addc_co") or op.startswith("v_sub_co"):
                self.w = R[0] | R[1]; self.r = set().union(*R[2:])
            else:
                self.w = R[0]; self.r = set().union(*R[1:]) if len(R) > 1 else set()
                if op.startswith("v_fmac") or op.startswith("v_dot2c") or self.dpp or op.startswith("v_writelane"):
                    self.r |= R[0]
                if op.startswith("v_cndmask") and len(R) == 3: self.r |= {("s", "vcc")}
        elif self.vmem:
            if "store" in op or ("atomic" in op):
                if op.startswith("buffer_"):
                    self.stdata = R[0]; self.r = set().union(*R)
                else:
                    self.stdata = R[1]; self.r = set().union(*R)
                self.wide = ("x4" in op or "x3" in op)
            elif "lds" in self.mods.split() or "_lds_" in op:
                self.r = set().union(*R) | {("s", "m0")}
            else:
                self.w = R[0]; self.r = set().union(*R[1:])
        elif self.ds:
            if op.startswith("ds_read") or op.startswith("ds_bpermute") or op.startswith("ds_permute") or op.startswith("ds_swizzle"):
                self.w = R[0]; self.r = set().union(*R[1:])
            else:
                self.r = set().union(*R)
        elif self.salu:
            if op.startswith("s_cmp") or op.startswith("s_bitcmp") or op.startswith("s_cbranch") or op in ("s_waitcnt", "s_barrier", "s_nop", "s_branch", "s_endpgm", "s_sleep", "s_setprio"):
                self.r = set().union(*R) if R else set()
            else:
                self.w = R[0] if R else set(); self.r = set().union(*R[1:]) if len(R) > 1 else set()
                if "saveexec" in op: self.w = self.w | {("s", "exec")}
    def states(self):
        if self.label: return 0
        if self.op == "s_nop": return int(self.ops[0]) + 1
        return 1

def need(J, I):
    n = 0
    Jv = {x for x in J.w if x[0] in "va"}
    Js = {x for x in J.w if x[0] == "s"}
    if J.valu:
        if I.mfma and Jv & I.r: n = max(n, 2)
        if I.dpp and Jv & I.r: n = max(n, 2)
        if I.permlane and Jv & I.r: n = max(n, 2)
        if I.readlane and Jv & I.r: n = max(n, 1)
        if J.trans and (I.valu or I.mfma) and Jv & I.r: n = max(n, 1)
        if Js:
            if (I.valu or I.mfma) and Js & I.r: n = max(n, 4 if I.readlane else 2)
            if I.vmem and Js & I.r: n = max(n, 5)
            if I.salu and Js & I.r: n = max(n, 1)
    if J.mfma:
        p = J.passes
        big = {4: 8, 8: 12}[p]
        if I.mfma:
            if J.w & I.srcAB: n = max(n, big)
            if J.w & I.srcC and not (J.w == I.srcC and I.passes == p): n = max(n, p + 2)
            if J.w & I.w and not (J.w == I.srcC and I.passes == p): n = max(n, p + 2)
        elif I.valu:
            if J.w & (I.r | I.w): n = max(n, big)
            if J.srcC & I.w: n = max(n, p - 1)
        elif I.vmem or I.ds:
            if J.w & (I.r | I.w): n = max(n, big)
    if J.vmem and J.stdata and getattr(J, "wide", False):
        if J.stdata & I.w: n = max(n, 2)
    if J.salu and ("s", "m0") in J.w and I.vmem and ("s", "m0") in I.r: n = max(n, 1)
    return n

def _is_ins(J): return not J.label and J.op and not J.op.startswith(".")

def _required(out, pos, I, branches):
    req = 0
    seen = {}
    stack = [(pos - 1, 0)]
    while stack:
        k, dist = stack.pop()
        while k >= 0 and dist < 20:
            if seen.get(k, 99) <= dist: break
            seen[k] = dist
            J = out[k]
            if J.label:
                for b in branches.get(J.text.strip()[:-1], ()):
                    stack.append((b, dist))
            elif _is_ins(J):
                nn = need(J, I)
                if nn - dist > req: req = nn - dist
                dist += J.states()
            k -= 1
            if k >= 0 and _is_ins(out[k]) and out[k].op in ("s_branch", "s_endpgm") : break
    return req

def pad_hazards(lines):
    cur = [Ins(t) for t in lines]
    while True:
        branches = {}
        for k, J in enumerate(cur):
            if _is_ins(J) and (J.op.startswith("s_cbranch") or J.op == "s_branch"):
                branches.setdefault(J.ops[0], []).append(k)
        k, changed = 0, False
        while k < len(cur):
            I = cur[k]
            if _is_ins(I) and not (k and _is_ins(cur[k - 1]) and cur[k - 1].op in ("s_branch", "s_endpgm")):
                r = _required(cur, k, I, branches)
                if r > 0:
                    cur[k:k] = [Ins(f"s_nop {min(r, 16) - 1}")]
                    for b in branches.values():
                        for i, x in enumerate(b):
                            if x >= k: b[i] = x + 1
                    changed = True
                    k += 1
                    continue
            k += 1
        if not changed: return [i.text for i in cur]

class Emit:
    def __init__(self):
        self.L = []
        self.vm = 0
        self.lg = 0
    def __call__(self, s):
        for l in s.split("\n"):
            l = l.strip()
            if l: self.L.append(l)
    def vmem(self, s):
        self(s); self.vm += 1; return self.vm
    def ds(self, s):
        self(s); self.lg += 1; return self.lg
    def wait_vm(self, tok):
        n = self.vm - tok
        assert 0 <= n <= 63, n
        self(f"s_waitcnt vmcnt({n})")
    def wait_lg(self, tok):
        n = self.lg - tok
        assert 0 <= n
        self(f"s_waitcnt lgkmcnt({min(n,15)})")
    def label(self, name):
        self.L.append(name + ":")
```

```python
import sys, struct
from asmlib import Emit, pad_hazards

NAME = "concat_heads__compressed_kv_cla__gqa_block_cached__decode"
DEF = dict(D_B0=3, NB0=20, D_B=5, N1=24, PVK=3, D_A1=4, NA1=6, D_A2=5, QPOS=32, TIMING=False, MAXPOLL=400000,
           NT="nt", PAD=0, PADEV=-1, PADROLE="", NWE=8, LIGHT=False, PROG=False, GDELAY=0, GM="sc1", SM="sc1", SDELAY=0, NFAST=48, CPS=3, D_B2=12, NB2=38, WARMQ=1, WARMO=30, WARMB=0, WOK=23, NDUTY=0, WOLATE=4, NWO=40, B4B=1, ANODS=0, QKE=0, RLATE=1, HROT=2, CYC=0, TLBP=0, DPOLL=0, PSL=6, ILV1=0, WOSP=1, TOUCH=0, TPOS=0, TSH=3, NL=0, RK=64, DSLOW=3, NTK=24, LSET=(4, 6, 7, 10), DEEPW=-1, GSL=0, NU=-1, WQ0=3, PRIO=1, NOSLOW=0, AKILL=0, PTRACE="", WM="nt")

def f32(x): return "0x%08x" % struct.unpack("<I", struct.pack("<f", x))[0]
CS = 1.4426950408889634 * 128 ** -0.5

WS_QP, WS_QABS, WS_QB, WS_BML, WS_AML = 0x10000, 0x90000, 0xA0000, 0xA8000, 0xB0000
WS_BO, WS_OUTB, WS_OUTA, WS_AO, WS_STAMP = 0xC0000, 0x120000, 0x140000, 0x200000, 0x400000
WS_SIZE = 0x800000
SLOW = 0x500000
L_PR = 32768
L_PRB = 49152
L_LQ = 40960
LB_Q, LB_MX, LB_LS, LB_F, LB_G, LB_FLAG, LB_R4, LB_R5 = 0, 1024, 1152, 1280, 1408, 1536, 2048, 20480
LA_Q = 131072
LA_P, LA_MX, LA_LS = 131072, 147456, 148480
LA_F, LA_R1, LA_LAT, LA_R2, LA_CTX = 32768, 36864, 49152, 53248, 61440

vL, vC, vG = 1, 2, 3
SELA, SELB = 32, 36
sW, sX, sSLOT, sH1, sJ, sT = 6, 7, 8, 9, 10, 11
WS = "s[44:47]"
sHI = "s[62:63]"
sCS = "s60"

def fswz(k):
    k0, k1, k2, k3 = k & 1, (k >> 1) & 1, (k >> 2) & 1, (k >> 3) & 1
    return (k1 << 3) | (k0 << 2) | ((k1 ^ k3) << 1) | k2

def vr(a, n=4): return f"v[{a}:{a+n-1}]"

class K:
    def __init__(self, **kw):
        self.p = dict(DEF); self.p.update(kw)
        self.e = Emit()
        self.nlab = 0
        self.role = "B"
        self.ilv = False
        self.ool = []
    def lab(self, s):
        self.nlab += 1
        return f"L_{s}_{self.nlab}"
    def stamp(self, i):
        if self.p["PAD"] and i == self.p["PADEV"] and self.role in self.p["PADROLE"]:
            self.e("s_memrealtime s[82:83]\ns_waitcnt lgkmcnt(0)")
        if self.p["TIMING"] and not self.p["PROG"] and (not self.p["LIGHT"] or i in self.p["LSET"]):
            self.e(f"s_memrealtime s[98:99]\ns_waitcnt lgkmcnt(0)\ns_mov_b32 s{70+i}, s98")
    def cyc(self, i):
        if self.p["TIMING"] and self.p["CYC"]:
            self.e(f"s_memtime s[98:99]\ns_waitcnt lgkmcnt(0)\ns_mov_b32 s{70+i}, s98")
    def prog(self, n, step):
        if self.p["PROG"] and (n + 1) % step == 0 and (n + 1) // step <= 13:
            k = 72 + 2 * ((n + 1) // step - 1)
            self.e(f"s_memrealtime s[{k}:{k+1}]")
    def cnt(self, i):
        if self.p["TIMING"] and not self.p["PROG"]: self.e(f"s_mov_b32 s{70+i}, s13")
    def exit(self):
        self.e("s_branch L_exit" if self.p["TIMING"] or self.p["PAD"] else "s_endpgm")
    def srd(self, s, ptr, size):
        self.e(f"s_mov_b32 s{s}, s{ptr}\ns_mov_b32 s{s+1}, s{ptr+1}\ns_mov_b32 s{s+2}, {size}\ns_mov_b32 s{s+3}, 0x20000")
    def exec_full(self): self.e("s_mov_b64 exec, -1")
    def exec_mask(self, lo, hi): self.e(f"s_mov_b32 exec_lo, {lo:#x}\ns_mov_b32 exec_hi, {hi:#x}")
    def allred_G(self, vals, tmps, op, steps=(32, 16)):
        e = self.e
        for st in steps:
            for v, t in zip(vals, tmps): e(f"v_mov_b32 v{t}, v{v}")
            for v, t in zip(vals, tmps): e(f"v_permlane{st}_swap_b32 v{t}, v{v}")
            for v, t in zip(vals, tmps): e(f"{op} v{v}, v{t}, v{v}")
    def rowred(self, vals, op, rors):
        for r in rors:
            for v in vals: self.e(f"{op}_dpp v{v}, v{v}, v{v} row_ror:{r} row_mask:0xf bank_mask:0xf")
    def tagcheck(self, tags, acc):
        e = self.e
        e(f"v_xor_b32 v{acc}, s{sT}, v{tags[0]}")
        for t in tags[1:]: e(f"v_bitop3_b32 v{acc}, v{t}, s{sT}, v{acc} bitop3:0xbe")
        e(f"v_cmp_ne_u32 vcc, 0, v{acc}")
    def poll(self, issue, tags, acc, name, fast=None, slowpub=None):
        e = self.e
        L, D, F = self.lab(name), self.lab(name + "d"), self.lab(name + "f")
        e("s_mov_b32 s13, 0")
        e.label(L)
        issue()
        e(f"s_add_u32 s13, s13, 1\ns_waitcnt vmcnt(0)")
        if self.p["TIMING"] and self.p["PTRACE"] == name:
            e("s_memrealtime s[98:99]\ns_waitcnt lgkmcnt(0)")
            for k in range(1, 7): e(f"s_cmp_eq_u32 s13, {k}\ns_cselect_b32 s{90+k}, s98, s{90+k}")
        self.tagcheck(tags, acc)
        if fast:
            e(f"s_cbranch_vccnz {F}")
            def ool():
                e.label(F)
                e(f"s_cmp_gt_u32 s13, {self.p['MAXPOLL']}\ns_cbranch_scc1 {D}\ns_cmp_eq_u32 s13, {self.p['NFAST']}\ns_cbranch_scc0 {L}")
                if slowpub: slowpub()
                e(f"s_add_u32 {fast}, {fast}, {SLOW}\ns_branch {L}")
            self.ool.append(ool)
        else:
            e(f"s_cmp_gt_u32 s13, {self.p['MAXPOLL']}\ns_cbranch_scc1 {D}\ns_cbranch_vccnz {L}")
        e.label(D)
        if slowpub: slowpub()
    def poll2(self, issue, nl, RA, RB, acc, name, finish):
        e = self.e
        L, DA = self.lab(name), self.lab(name + "a")
        tags = lambda R: [R + 4 * i + k for i in range(nl) for k in (1, 3)]
        e("s_mov_b32 s13, 0")
        issue(RA)
        e(f"s_sleep {self.p['PSL']}")
        e.label(L)
        issue(RB)
        e(f"s_add_u32 s13, s13, 1\ns_waitcnt vmcnt({nl})")
        self.tagcheck(tags(RA), acc)
        e(f"s_cmp_gt_u32 s13, {self.p['MAXPOLL']}\ns_cbranch_scc1 {DA}\ns_cbranch_vccz {DA}")
        issue(RA)
        e(f"s_waitcnt vmcnt({nl})")
        self.tagcheck(tags(RB), acc)
        e(f"s_cbranch_vccnz {L}")
        finish(RB)
        e.label(DA)
        finish(RA)
    def expand4(self, dst, src, pi):
        for q in range(4): self.e(f"v_perm_b32 v{dst+q}, v{src}, v{src}, v{SELB+4*pi+q}")
    def gemv8(self, acc, frag, data, toks, E=(44, 48)):
        e = self.e
        self.expand4(E[0], frag, 0)
        for i in range(8):
            if i + 1 < 8: self.expand4(E[(i + 1) & 1], frag + ((i + 1) >> 1), (i + 1) & 1)
            if toks is not None and toks[i] is not None: e.wait_vm(toks[i])
            e(f"v_mfma_f32_16x16x32_bf16 {vr(acc)}, {vr(E[i&1])}, {vr(data+4*i)}, {'0' if i == 0 else vr(acc)}")

    def prologue(self):
        e, nt = self.e, self.p["NT"]
        e("s_cmp_ge_u32 s2, 256\ns_cbranch_scc1 L_end")
        e("s_load_dwordx16 s[16:31], s[0:1], 0\ns_load_dwordx8 s[32:39], s[0:1], 64\ns_load_dwordx4 s[40:43], s[0:1], 96")
        if self.p["TIMING"]:
            for i in range(72, 98): e(f"s_mov_b32 s{i}, 0")
            e("s_memrealtime s[70:71]")
        if self.p["PAD"]: e("s_memrealtime s[80:81]\ns_mov_b32 s82, 0")
        e("s_getpc_b64 s[4:5]")
        e.label("L_pc")
        e("v_lshlrev_b32 v4, 6, v0\nv_min_u32 v4, L_codeend-L_pc-4, v4")
        e.vmem("global_load_dword v5, v4, s[4:5]")
        e(f"v_lshrrev_b32 v6, 6, v0\nv_and_b32 v{vL}, 63, v0\nv_and_b32 v{vC}, 15, v0\nv_bfe_u32 v{vG}, v0, 4, 2")
        e(f"v_readfirstlane_b32 s{sW}, v6")
        e(f"s_and_b32 s{sX}, s2, 7\ns_lshr_b32 s{sSLOT}, s2, 3")
        e(f"v_and_b32 v7, 3, v0\nv_lshlrev_b32 v7, 4, v7\nv_lshl_add_u32 v7, v{vG}, 6, v7\nv_and_b32 v8, 7, v0\nv_lshlrev_b32 v10, 4, v{vL}")
        e(f"s_cmp_lt_u32 s{sSLOT}, 8\ns_cbranch_scc1 L_astream")
        e(f"s_sub_u32 s64, s{sSLOT}, 8\ns_mul_i32 s{sH1}, s64, 43\ns_lshr_b32 s{sH1}, s{sH1}, 8\ns_mul_i32 s3, s{sH1}, 6\ns_sub_u32 s{sJ}, s64, s3\n" + (f"s_add_u32 s{sH1}, s{sH1}, {self.p['HROT']}\ns_and_b32 s{sH1}, s{sH1}, 3\n" if self.p["HROT"] else "") + f"s_lshl_b32 s3, s{sX}, 2\ns_add_u32 s{sH1}, s{sH1}, s3")
        e(f"s_mul_i32 s3, s{sJ}, {96*8192}\ns_lshl_b32 s12, s{sH1}, 8\ns_add_u32 s61, s3, s12")
        e(f"v_lshrrev_b32 v6, 4, v0\nv_lshlrev_b32 v4, 13, v6\nv_lshl_add_u32 v4, v{vC}, 4, v4\nv_add_u32 v4, s61, v4\nv_add_u32 v11, 0x40000, v4\nv_add_u32 v12, 0x80000, v4")
        e(f"s_mul_i32 s12, s{sJ}, 192\nv_lshl_add_u32 v6, v6, 1, s12")
        e("s_mov_b32 s50, 0x400000\ns_mov_b32 s51, 0x20000")
        e("s_movk_i32 s58, 0x400\ns_mov_b32 s59, 0x20000\ns_movk_i32 s46, 0x400\ns_mov_b32 s47, 0x20000")
        e(f"s_cmp_eq_u32 s{sW}, 7\ns_waitcnt lgkmcnt(0)")
        if self.p["WARMQ"]:
            wm = self.p["WM"].replace("_", " ")
            e("s_cbranch_scc0 L_nowarm")
            e(f"s_lshl_b32 s14, s{sH1}, 14\ns_add_u32 s14, s14, {WS_QP}\ns_add_u32 s4, s42, s14\ns_addc_u32 s5, s43, 0\nv_lshlrev_b32 v9, 3, v10\nv_add_u32 v13, 0x2000, v9")
            e(f"global_load_dword v5, v9, s[4:5] {wm}\ns_mov_b32 exec_hi, 0\nglobal_load_dword v5, v13, s[4:5] {wm}")
            e(f"s_lshl_b32 s14, s{sX}, 11\ns_add_u32 s14, s14, {WS_BML}\ns_add_u32 s4, s42, s14\ns_addc_u32 s5, s43, 0\ns_mov_b32 exec_lo, 0xffff\nglobal_load_dword v5, v9, s[4:5] {wm}\ns_mov_b64 exec, -1\ns_cmp_eq_u32 s{sW}, 7")
            e.label("L_nowarm")
        e("s_mov_b32 s48, s20\ns_mov_b32 s49, s21\ns_mov_b32 s56, s16\ns_mov_b32 s57, s17")
        for i in range(3): e.vmem(f"buffer_load_ushort v{16+i}, v6, s[56:59], 0 offen offset:{64*i}")
        for i in range(3): self.tA = e.vmem(f"buffer_load_dwordx4 {vr(128+4*i)}, v{(4,11,12)[i]}, s[48:51], 0 offen {nt}")
        e("s_mov_b32 s44, s28\ns_mov_b32 s45, s29")
        for i in range(3): e.vmem(f"buffer_load_ushort v{19+i}, v6, s[44:47], 0 offen offset:{64*i}")
        e("v_mov_b32 v22, v4\ns_cbranch_scc0 L_notctrl")

    def wq_load(self, i):
        e = self.e
        if i == 0: self.srd(72, 34, 1 << 22)
        t = e.vmem(f"buffer_load_dwordx4 {vr(140+4*i)}, v22, s[16:19], 0 offen {self.p['NT']}")
        if i < 2: e("v_add_u32 v22, 0x40000, v22")
        return t
    def p1_gemv(self, X, W, dst):
        e = self.e
        for i in range(3): self.expand4(44 + 4 * i, X + i, 0)
        for i in range(3): e(f"v_mfma_f32_16x16x32_bf16 v[152:155], {vr(44+4*i)}, {vr(W+4*i)}, {'0' if i == 0 else 'v[152:155]'}")
        e(f"v_lshlrev_b32 v11, 4, v0")
        e.ds(f"ds_write_b128 v11, v[152:155] offset:{dst}")
    def p1_reduce(self, src, R, pub):
        e = self.e
        e(f"v_and_b32 v11, 31, v{vL}\nv_lshlrev_b32 v11, 4, v11\nv_lshrrev_b32 v12, 5, v{vL}\nv_lshl_add_u32 v11, v12, 12, v11")
        tk = [e.ds(f"ds_read_b128 {vr(R+4*w)}, v11 offset:{src+1024*w}") for w in range(4)]
        e(f"v_mov_b32 v{pub+1}, s{sT}\nv_mov_b32 v{pub+3}, s{sT}")
        for w in range(1, 4):
            e.wait_lg(tk[w])
            e(f"v_pk_add_f32 v[{R}:{R+1}], v[{R}:{R+1}], v[{R+4*w}:{R+4*w+1}]\nv_pk_add_f32 v[{R+2}:{R+3}], v[{R+2}:{R+3}], v[{R+4*w+2}:{R+4*w+3}]")
        e(f"v_permlane32_swap_b32 v{R}, v{R+2}\nv_permlane32_swap_b32 v{R+1}, v{R+3}\nv_add_f32 v{pub}, v{R}, v{R+2}\nv_add_f32 v{pub+2}, v{R+1}, v{R+3}")

    def selectors(self):
        e = self.e
        e(f"s_mov_b32 s62, 0\ns_mov_b32 s63, -1\ns_mov_b32 {sCS}, {f32(CS)}")
        self.srd(44, 42, WS_SIZE)
        e("v_and_b32 v15, 3, v0\nv_lshlrev_b32 v15, 4, v15\nv_mov_b32 v13, 0\nv_mov_b32 v11, 0x0c0c0c0c\nv_and_b32 v14, 4, v0\nv_cmp_ne_u32 vcc, 0, v14")
        for pi, d in ((0, 0x0d0c), (1, 0x0f0e)):
            a = SELA + 2 * pi
            e(f"v_mov_b32 v12, {d:#x}\nv_lshlrev_b64 v[{a}:{a+1}], v15, v[12:13]\nv_xor_b32 v{a}, v11, v{a}\nv_xor_b32 v{a+1}, v11, v{a+1}")
            b = SELB + 4 * pi
            e(f"v_cndmask_b32 v{b}, v{a}, v11, vcc\nv_cndmask_b32 v{b+1}, v{a+1}, v11, vcc\nv_cndmask_b32 v{b+2}, v11, v{a}, vcc\nv_cndmask_b32 v{b+3}, v11, v{a+1}, vcc")
    def tagmake(self):
        self.e(f"s_waitcnt lgkmcnt(0)\ns_mul_i32 s{sT}, s{sT}, 0x9e3779b1\ns_add_u32 s{sT}, s{sT}, 0x7f4a7c15")

    def p1_compute(self, ctrl):
        e = self.e
        self.selectors()
        if ctrl:
            self.tagmake()
            e(f"v_mov_b32 v57, s{sT}\nv_mov_b32 v59, s{sT}")
            e.ds(f"ds_write_b32 v13, v57 offset:{LB_FLAG+8}")
            for k in (0, 4, 12, 16, 20): e.ds(f"ds_write_b32 v13, v13 offset:{LB_FLAG+k}")
        e.wait_vm(self.tA)
        self.p1_gemv(16, 128, L_PR)
        e("s_waitcnt lgkmcnt(0)\ns_barrier")
        self.stamp(1)
        if not ctrl:
            e.ds(f"ds_read_b32 v12, v13 offset:{LB_FLAG+8}")
            tq = [self.wq_load(i) for i in range(self.p["WQ0"])]
            e(f"s_waitcnt lgkmcnt(0)\nv_readfirstlane_b32 s{sT}, v12")
            e("s_barrier")
            tq += [self.wq_load(i) for i in range(self.p["WQ0"], 3)]
            return tq[2]

    def phase1(self):
        e, nt = self.e, self.p["NT"]
        WQ, WU = 64, 160
        e(f"s_load_dword s{sT}, s[42:43], 0")
        e(f"v_bfe_u32 v14, v0, 2, 2\nv_lshl_add_u32 v9, v14, 15, v7\nv_add_u32 v9, s61, v9\nv_lshl_add_u32 v14, v14, 14, v7\nv_add_u32 v14, s61, v14")
        self.srd(56, 22, 1 << 22)
        tu = []
        for t in range(4):
            for a in range(4):
                tu.append(e.vmem(f"buffer_load_dwordx4 {vr(WU+16*a+4*t)}, v9, s[56:59], 0 offen {nt}"))
                if (t, a) != (3, 3): e(f"v_add_u32 v9, {0x2000 if a < 3 else 0x20000-0x6000:#x}, v9")
        e("v_add_u32 v14, 0x80000, v14")
        for t in range(4):
            for a in range(2):
                tu.append(e.vmem(f"buffer_load_dwordx4 {vr(WU+64+16*a+4*t)}, v14, s[56:59], 0 offen {nt}"))
                if (t, a) != (3, 1): e(f"v_add_u32 v14, {0x2000 if a < 1 else 0x10000-0x2000:#x}, v14")
        self.p1_compute(True)
        e(f"s_lshl_b32 s14, s{sH1}, 14\ns_add_u32 s14, s14, {WS_QP}\ns_lshl_b32 s15, s{sJ}, 11\ns_add_u32 s15, s15, s14")
        self.p1_reduce(L_PR, WQ, 52)
        tst = e.vmem(f"buffer_store_dwordx4 v[52:55], v10, {WS}, s15 offen")
        self.stamp(2)
        e(f"s_add_u32 s68, s15, {SLOW}")
        def qp_slow():
            e.vmem(f"buffer_store_dwordx4 v[52:55], v10, {WS}, s68 offen sc1")
        QF = [24, 28, 120, 124]
        for b in QF:
            for r in range(4): e(f"v_mov_b32 v{b+r}, 0")
        e(f"v_and_b32 v9, 1, v{vG}\nv_lshlrev_b32 v9, 3, v9\nv_lshl_add_u32 v9, v{vC}, 4, v9\nv_lshrrev_b32 v12, 1, v{vG}\nv_lshl_add_u32 v9, v12, 2, v9")
        e(f"v_add_u32 v13, {L_LQ}, v9\nv_add_u32 v14, {L_LQ}, v7")
        def gat(base, mat):
            def f():
                for jj in range(6):
                    if jj % 2 == 0: e(f"s_add_u32 s12, {base}, {jj*2048}")
                    t = e.vmem(f"buffer_load_dwordx4 {vr(WQ+4*jj)}, v10, {WS}, s12 offen offset:{(jj&1)*2048+1024*mat} sc1")
                return t
            return f
        tags = [WQ + 4 * jj + k for jj in range(6) for k in (1, 3)]
        def sum6():
            for jj in range(1, 6):
                e(f"v_add_f32 v{WQ}, v{WQ}, v{WQ+4*jj}\nv_add_f32 v{WQ+2}, v{WQ+2}, v{WQ+4*jj+2}")
        if self.p["TIMING"]:
            e.wait_vm(tu[min(23, 23 - self.p["NU"])]); self.stamp(22)
        e.wait_vm(tu[23 - self.p["NU"]] if self.p["NU"] >= 0 else tst)
        if self.p["NU"] < 0 and self.p["TIMING"]:
            pass
        self.stamp(21)
        for _ in range(self.p["GSL"]): e("s_sleep 2")
        tg = gat("s14", 0)()
        if not self.p["RLATE"]: e("s_barrier")
        for i in range(3): tq = self.wq_load(i)
        e.wait_vm(tg)
        self.tagcheck(tags, 60)
        e("s_cbranch_vccnz L_p1_retry")
        if self.p["TIMING"]: e("s_mov_b32 s13, 0")
        qp_slow()
        e.label("L_p1_got")
        if self.p["RLATE"]: e("s_barrier")
        def ool():
            e.label("L_p1_retry")
            self.poll(gat("s14", 0), tags, 60, "gqa", fast="s14", slowpub=qp_slow)
            e("s_branch L_p1_got")
        self.ool.append(ool)
        self.stamp(3); self.cnt(20)
        sum6()
        e(f"v_cvt_pk_bf16_f32 v60, v{WQ}, v{WQ+2}")
        e.ds(f"ds_write_b32 v13, v60")
        e("s_waitcnt lgkmcnt(0)")
        for t in range(4):
            m = 0x000f000f << (4 * t)
            self.exec_mask(m, m)
            e.ds(f"ds_read_b128 {vr(QF[t])}, v14")
        self.exec_full()
        e("s_waitcnt lgkmcnt(0)")
        for a in range(6):
            for t in range(4):
                e(f"v_mfma_f32_16x16x32_bf16 {vr(64+4*a)}, {vr(WU+16*a+4*t)}, {vr(QF[t])}, {'0' if t == 0 else vr(64+4*a)}")
        e(f"s_lshl_b32 s12, s{sH1}, 11\ns_mul_i32 s3, s{sJ}, 384\ns_add_u32 s12, s12, s3\ns_add_u32 s12, s12, {WS_QABS}")
        e(f"v_and_b32 v15, 12, v{vC}\nv_add_u32 v15, v15, v{vG}\nv_lshlrev_b32 v14, 3, v15\nv_lshlrev_b32 v15, 4, v15")
        e(f"s_mov_b32 s3, 0x00110011\ns_cmp_lt_u32 s{sJ}, 5\ns_cselect_b32 s3, 0x11111111, s3")
        self.quadsum([(64 + 4 * a, 44 + a) for a in range(6)])
        e(f"v_cvt_pk_bf16_f32 v56, v44, v45\nv_cvt_pk_bf16_f32 v58, v46, v47\nv_cvt_pk_bf16_f32 v62, v48, v49\nv_mov_b32 v63, s{sT}")
        e("s_mov_b32 exec_lo, s3\ns_mov_b32 exec_hi, s3")
        e.vmem(f"buffer_store_dwordx4 v[56:59], v15, {WS}, s12 offen sc1")
        e("s_cbranch_scc0 L_p1done")
        e(f"buffer_store_dwordx2 v[62:63], v14, {WS}, s12 offen offset:256 sc1")
        e.label("L_p1done")
        self.exec_full()
        self.stamp(4)
        e.wait_vm(tq)
        self.p1_gemv(19, 140, L_PRB)
        e("v_mov_b32 v15, 0")
        L = self.lab("wqb")
        e.label(L)
        e.ds(f"ds_read_b32 v60, v15 offset:{LB_FLAG+12}")
        e(f"s_waitcnt lgkmcnt(0)\nv_readfirstlane_b32 s3, v60\ns_cmp_lt_u32 s3, 7\ns_cbranch_scc1 {L}")
        self.p1_reduce(L_PRB, WQ, 52)
        e.vmem(f"buffer_store_dwordx4 v[52:55], v10, {WS}, s15 offen offset:1024")
        e.vmem(f"buffer_store_dwordx4 v[52:55], v10, {WS}, s68 offen offset:1024 sc1")
        R = 160
        e(f"s_lshl_b32 s67, s{sX}, 16\ns_add_u32 s67, s67, {WS_QP}")
        def gb():
            for hh in range(4):
                for jj in range(6):
                    if jj % 2 == 0: e(f"s_add_u32 s12, s67, {hh*16384+jj*2048}")
                    e.vmem(f"buffer_load_dwordx4 {vr(R+24*hh+4*jj)}, v10, {WS}, s12 offen offset:{(jj&1)*2048+1024} sc1")
        self.poll(gb, [R + 4 * i + k for i in range(24) for k in (1, 3)], 60, "gqb", fast="s67")
        for jj in range(1, 6):
            for hh in range(4):
                b = R + 24 * hh
                e(f"v_add_f32 v{b}, v{b}, v{b+4*jj}\nv_add_f32 v{b+2}, v{b+2}, v{b+4*jj+2}")
        e("v_mov_b32 v15, 0\nv_mov_b32 v61, 1")
        for hh in range(4):
            b = R + 24 * hh
            e(f"v_cvt_pk_bf16_f32 v{b}, v{b}, v{b+2}")
            e.ds(f"ds_write_b32 v9, v{b} offset:{LB_Q+256*hh}")
        e.ds(f"ds_write_b32 v15, v61 offset:{LB_FLAG}")
        e("s_waitcnt lgkmcnt(0)")
        self.stamp(18); self.cnt(19)
        if self.p["TLBP"]:
            e(f"s_lshl_b32 s3, s{sX}, 22\ns_add_u32 s4, s32, s3\ns_addc_u32 s5, s33, 0\ns_load_dword s12, s[4:5], 0")
            e("s_add_u32 s4, s4, 0x200000\ns_addc_u32 s5, s5, 0\ns_load_dword s12, s[4:5], 0")
            e("s_add_u32 s4, s4, 0x1ffffc\ns_addc_u32 s5, s5, 0\ns_load_dword s12, s[4:5], 0")
            e(f"s_lshl_b32 s3, s{sX}, 19\ns_add_u32 s4, s36, s3\ns_addc_u32 s5, s37, 0\ns_load_dword s12, s[4:5], 0\ns_load_dword s12, s[38:39], 0")
            e(f"s_add_u32 s4, s42, {WS_AO}\ns_addc_u32 s5, s43, 0\ns_load_dword s12, s[4:5], 0\ns_waitcnt lgkmcnt(0)")

    def quadsum(self, pairs):
        e = self.e
        for D, S in pairs: e(f"v_mov_b32_dpp v{S}, v{D} quad_perm:[0,0,0,0] row_mask:0xf bank_mask:0xf")
        for r in range(1, 4):
            for D, S in pairs: e(f"v_add_f32_dpp v{S}, v{D+r}, v{S} quad_perm:[{r},{r},{r},{r}] row_mask:0xf bank_mask:0xf")

    def b_ids(self):
        e = self.e
        e(f"s_lshr_b32 s65, s64, 2\ns_lshl_b32 s3, s{sX}, 2\ns_add_u32 s65, s65, s3\ns_and_b32 s66, s64, 3")
        e(f"v_bfe_u32 v6, v{vL}, 2, 2\nv_lshl_add_u32 v6, v6, 8, v7")
        e(f"s_lshl_b32 s3, s65, 7\ns_and_b32 s12, s{sW}, 3\ns_lshl_b32 s12, s12, 5\ns_add_u32 s3, s3, s12\ns_lshr_b32 s12, s{sW}, 2\ns_lshl_b32 s12, s12, 2\ns_add_u32 s3, s3, s12")
        if self.p["WOSP"]:
            e(f"s_lshl_b32 s3, s3, 10\ns_and_b32 s12, s66, 1\ns_lshl_b32 s12, s12, 8\ns_add_u32 s3, s3, s12\ns_lshr_b32 s12, s66, 1\ns_lshl_b32 s12, s12, 7\ns_add_u32 s69, s3, s12")
            e(f"v_bfe_u32 v4, v{vL}, 3, 1\nv_lshlrev_b32 v4, 9, v4\nv_lshl_add_u32 v4, v{vG}, 10, v4\nv_lshl_add_u32 v4, v8, 4, v4")
        else:
            e(f"s_lshl_b32 s3, s3, 10\ns_lshl_b32 s12, s66, 8\ns_add_u32 s69, s3, s12")
            e(f"v_lshlrev_b32 v4, 10, v{vG}\nv_lshl_add_u32 v4, v{vC}, 4, v4")
        self.srd(48, 30, 1 << 25); self.srd(52, 32, 1 << 25); self.srd(56, 36, 1 << 22)
        e("s_cmp_lt_u32 s64, 16\ns_cselect_b32 s58, s58, 0")
    def bo_addr(self):
        e = self.e
        e(f"s_mul_i32 s68, s65, {24*512}\ns_lshl_b32 s3, s{sW}, 6\ns_add_u32 s68, s68, s3\ns_add_u32 s68, s68, {WS_BO}")
        e(f"v_and_b32 v9, 3, v{vL}\nv_lshlrev_b32 v9, 4, v9\nv_lshrrev_b32 v6, 2, v{vL}\nv_lshl_add_u32 v6, v6, 9, v9\nv_and_b32 v9, 0xfff, v6\nv_add_u32 v9, {16*512}, v9")
    def bo_warm(self):
        e = self.e
        self.bo_addr()
        L = self.lab("bow")
        e(f"s_cmp_lt_u32 s64, 16\ns_cbranch_scc0 {L}")
        e(f"buffer_load_dword v5, v6, {WS}, s68 offen {self.p['WM'].replace('_',' ')}")
        e(f"buffer_load_dword v5, v9, {WS}, s68 offen {self.p['WM'].replace('_',' ')}")
        e.label(L)
    def b_kload(self, KR, t, n):
        return self.e.vmem(f"buffer_load_dwordx4 {vr(KR+16*t+4*n)}, v6, s[48:51], s14 offen offset:{0 if self.ilv else n*1024} {self.p['NT']}")
    def b_vload(self, VR, t, n):
        return self.e.vmem(f"buffer_load_dwordx4 {vr(VR+16*t+4*n)}, v10, s[52:55], s15 offen offset:{0 if self.ilv else n*1024} {self.p['NT']}")
    def b_woloads(self):
        for i in range(4):
            self.e.vmem(f"buffer_load_dwordx4 {vr(self.WO[i])}, v4, s[56:59], s69 offen {self.p['NT']}")
            if i < 3: self.e("s_addk_i32 s69, 0x2000")
    def b_chunks(self, nt, KR, bias, wait_q):
        e = self.e
        ch = []
        def c_q():
            e(f"v_lshrrev_b32 v11, 2, v{vC}\nv_lshl_add_u32 v12, v11, 8, v7")
            e(f"v_lshlrev_b32 v13, 5, v11\ns_lshl_b32 s3, s{sW}, 2\nv_add_u32 v14, s3, v13\nv_mov_b32 v15, 0")
            if wait_q:
                L = self.lab("wq")
                e.label(L)
                e.ds(f"ds_read_b32 v60, v15 offset:{LB_FLAG}")
                e(f"s_waitcnt lgkmcnt(0)\nv_readfirstlane_b32 s3, v60\ns_cmp_eq_u32 s3, 0\ns_cbranch_scc1 {L}")
            self.stamp(5)
            e.ds(f"ds_read_b128 v[16:19], v12 offset:{LB_Q}")
            e("s_waitcnt lgkmcnt(0)")
        ch.append((-1, c_q))
        def c_qk(t):
            def f():
                b = KR + 16 * t
                if t < nt:
                    for i in range(4): e(f"v_mfma_f32_16x16x32_bf16 {vr(44+4*i)}, {vr(b+4*i)}, v[16:19], 0")
                    self.quadsum([(44 + 4 * i, b + i) for i in range(4)])
                    if t == 0: e(f"v_max3_f32 v60, v{b}, v{b+1}, v{b+2}\nv_max_f32 v60, v60, v{b+3}")
                    else: e(f"v_max3_f32 v60, v60, v{b}, v{b+1}\nv_max3_f32 v60, v60, v{b+2}, v{b+3}")
                if t == nt:
                    self.allred_G([60], [61], "v_max_f32")
                    e(f"v_mul_f32 v62, {sCS}, v60")
            return f
        for t in range(nt + 1): ch.append((min(t, nt - 1), c_qk(t)))
        def c_exp(t):
            def f():
                b = KR + 16 * t
                for r in range(4): e(f"v_fma_f32 v{b+r}, v{b+r}, {sCS}, -v62")
                for r in range(4): e(f"v_exp_f32 v{b+r}, v{b+r}")
                if t == 0: e(f"v_add_f32 v63, v{b}, v{b+1}")
                else: e(f"v_add_f32 v63, v63, v{b}\nv_add_f32 v63, v63, v{b+1}")
                e(f"v_cvt_pk_bf16_f32 v{b+4}, v{b}, v{b+1}\nv_add_f32 v63, v63, v{b+2}\nv_cvt_pk_bf16_f32 v{b+5}, v{b+2}, v{b+3}\nv_add_f32 v63, v63, v{b+3}")
            return f
        for t in range(nt): ch.append((nt - 1, c_exp(t)))
        def c_l():
            self.allred_G([63], [61], "v_add_f32")
            if bias: e(f"v_add_f32 v62, {bias}, v62")
            e("v_mov_b32 v61, 1")
            self.exec_mask(0x1111, 0)
            e.ds(f"ds_write_b32 v14, v62 offset:{LB_MX}")
            e.ds(f"ds_write_b32 v14, v63 offset:{LB_LS}")
            e("s_mov_b32 exec_lo, 1")
            e.ds(f"ds_add_u32 v15, v61 offset:{LB_FLAG+4}")
            self.exec_full()
            self.stamp(6)
        ch.append((nt - 1, c_l))
        return ch
    def b_pv_prep(self, KR, n):
        t, i = n >> 2, n & 3
        E = 44 + 2 * (n & 3)
        for q in range(2): self.e(f"v_perm_b32 v{E+q}, v{KR+16*t+4+(i>>1)}, v{KR+16*t+4+(i>>1)}, v{SELA+2*(i&1)+q}")
    def b_pv_mma(self, VR, n):
        t, i = n >> 2, n & 3
        E = 44 + 2 * (n & 3)
        b = VR + 16 * t + 4 * i
        for h in range(2):
            acc = 24 + 4 * h
            self.e(f"v_mfma_f32_16x16x16_bf16 {vr(acc)}, v[{E}:{E+1}], v[{b+2*h}:{b+2*h+1}], {'0' if n == 0 else vr(acc)}")
    def b_owrite(self):
        e = self.e
        e(f"s_lshl_b32 s3, s{sW}, 11\nv_add_u32 v11, s3, v10")
        e.ds(f"ds_write_b128 v11, v[24:27] offset:{LB_R4}")
        e.ds(f"ds_write_b128 v11, v[28:31] offset:{LB_R4+1024}")
        e("s_waitcnt lgkmcnt(0)")
        e("s_branch L_btail")

    def b_ctrl(self):
        e = self.e
        KR, VR = 64, 160
        self.WO = [72, 88, 104, 120]
        self.b_ids()
        e("s_cmp_ge_u32 s64, 16\ns_cselect_b32 s50, s50, 0\ns_cselect_b32 s54, s54, 0")
        e(f"s_cselect_b32 s61, 0, {f32(-1e30)}")
        e(f"s_lshl_b32 s14, s{sX}, 22\ns_lshl_b32 s3, s64, 1\ns_add_u32 s3, s3, {1008-32}\ns_lshl_b32 s3, s3, 12\ns_cmp_ge_u32 s64, 16\ns_cselect_b32 s3, s3, 0\ns_add_u32 s14, s14, s3\ns_mov_b32 s15, s14")
        for t in range(2):
            for n in range(4): self.b_kload(KR, t, n)
            if t == 0: e("s_addk_i32 s14, 0x1000")
        for t in range(2):
            for n in range(4): self.b_vload(VR, t, n)
            if t == 0: e("s_addk_i32 s15, 0x1000")
        e("s_waitcnt vmcnt(0) lgkmcnt(0)")
        for _, f in self.b_chunks(2, KR, "s61", False): f()
        for n in range(8):
            self.b_pv_prep(KR, n)
            self.b_pv_mma(VR, n)
        self.bo_warm() if self.p["WARMB"] else self.bo_addr()
        e(f"s_lshl_b32 s12, s{sX}, 11\ns_lshl_b32 s3, s64, 4\ns_add_u32 s12, s12, s3\ns_add_u32 s12, s12, {WS_BML}")
        e(f"v_lshlrev_b32 v11, 4, v13\nv_mov_b32 v53, s{sT}\nv_mov_b32 v55, s{sT}")
        if self.p["NL"]:
            L = self.lab("wtk")
            e.label(L)
            e("s_sleep 2")
            e.ds(f"ds_read_b32 v60, v15 offset:{LB_FLAG+20}")
            e(f"s_waitcnt lgkmcnt(0)\nv_readfirstlane_b32 s3, v60\ns_cmp_eq_u32 s3, 0\ns_cbranch_scc1 {L}")
            e("v_mov_b32 v144, 1\ns_mov_b64 exec, 1")
            e("global_atomic_add v145, v15, v144, s[40:41] sc0 sc1")
            e(f"s_waitcnt vmcnt(0)\nv_cmp_gt_u32 vcc, {self.p['RK']}, v145\nv_cndmask_b32 v145, 0, 1, vcc")
            e.ds(f"ds_write_b32 v15, v145 offset:{LB_FLAG+16}")
            self.exec_full()
        L = self.lab("wml")
        e.label(L)
        e("s_sleep 2")
        e.ds(f"ds_read_b32 v60, v15 offset:{LB_FLAG+4}")
        e(f"s_waitcnt lgkmcnt(0)\nv_readfirstlane_b32 s3, v60\ns_cmp_lt_u32 s3, 8\ns_cbranch_scc1 {L}")
        e.ds(f"ds_read_b128 v[128:131], v13 offset:{LB_MX}")
        e.ds(f"ds_read_b128 v[132:135], v13 offset:{LB_MX+16}")
        e.ds(f"ds_read_b128 v[136:139], v13 offset:{LB_LS}")
        e.ds(f"ds_read_b128 v[140:143], v13 offset:{LB_LS+16}")
        e("s_waitcnt lgkmcnt(0)")
        e("v_max3_f32 v52, v128, v129, v130\nv_max3_f32 v52, v52, v131, v132\nv_max3_f32 v52, v52, v133, v134\nv_max_f32 v52, v52, v135")
        for r in range(128, 136): e(f"v_sub_f32 v{r}, v{r}, v52")
        for r in range(128, 136): e(f"v_exp_f32 v{r}, v{r}")
        e("v_mul_f32 v54, v128, v136")
        for r in range(1, 8): e(f"v_fmac_f32 v54, v{128+r}, v{136+r}")
        self.exec_mask(0x1111, 0)
        e.ds(f"ds_write_b128 v13, v[128:131] offset:{LB_G}")
        e.ds(f"ds_write_b128 v13, v[132:135] offset:{LB_G+16}")
        e.vmem(f"buffer_store_dwordx4 v[52:55], v11, {WS}, s12 offen")
        e(f"s_add_u32 s12, s12, {SLOW}")
        e.vmem(f"buffer_store_dwordx4 v[52:55], v11, {WS}, s12 offen sc1")
        self.exec_full()
        e("s_cmp_lt_u32 s64, 16\ns_cbranch_scc0 L_bc_nod")
        if self.p["WOK"] <= 23: self.b_woloads()
        e(f"v_and_b32 v15, 31, v{vL}\nv_min_u32 v11, 23, v15\nv_lshlrev_b32 v11, 4, v11\ns_lshl_b32 s12, s65, 9\ns_add_u32 s12, s12, {WS_BML}")
        def gm(): e.vmem(f"buffer_load_dwordx4 v[52:55], v11, {WS}, s12 offen sc1")
        self.poll(gm, [53, 55], 60, "gml", fast="s12")
        e("v_mov_b32 v56, v52")
        self.rowred([56], "v_max_f32", (8, 4, 2, 1))
        self.allred_G([56], [57], "v_max_f32", steps=(16,))
        e("v_sub_f32 v52, v52, v56\nv_exp_f32 v52, v52\nv_cmp_gt_u32 vcc, 24, v15\nv_cndmask_b32 v52, 0, v52, vcc\nv_mul_f32 v54, v54, v52")
        self.rowred([54], "v_add_f32", (8, 4, 2, 1))
        self.allred_G([54], [57], "v_add_f32", steps=(16,))
        e("v_rcp_f32 v54, v54\nv_lshlrev_b32 v15, 2, v15\nv_mul_f32 v52, v52, v54")
        e.ds(f"ds_write_b32 v15, v52 offset:{LB_F}")
        e.label("L_bc_nod")
        self.b_owrite()

    def b_stream(self):
        e, p = self.e, self.p
        KR, VR, NT_ = 64, 160, 6
        self.WO = [72, 88, 104, 120]
        self.b_ids()
        e(f"s_mul_i32 s3, s64, 7\ns_add_u32 s3, s3, s{sW}\ns_lshl_b32 s3, s3, {10 if p['ILV1'] else 12}\ns_lshl_b32 s14, s{sX}, 22\ns_add_u32 s14, s14, s3\ns_mov_b32 s15, s14\ns_mov_b32 s67, {168*(1024 if p['ILV1'] else 4096)}")
        self.ilv = bool(p["ILV1"])
        Df = lambda n: p["D_B0"] if n < p["NB0"] else p["D_B"] if n < p["NB2"] else p["D_B2"]
        D = p["D_B"]
        tok = []
        ch = []
        def issue(n, throttle=True):
            if throttle and n >= Df(n):
                if n < p["NDUTY"]:
                    L = self.lab("dty")
                    e(f"s_cbranch_vccnz {L}")
                    e.wait_vm(tok[n - Df(n)])
                    e.label(L)
                    if n > Df(n): e.wait_vm(tok[n - Df(n) - 1])
                elif p["NL"] and n >= p["NL"]:
                    if n == p["NL"]:
                        e(f"s_waitcnt lgkmcnt(0)\nv_readfirstlane_b32 s3, v5\ns_cmp_eq_u32 s3, 0\ns_cselect_b64 vcc, -1, 0")
                    L = self.lab("bal")
                    e(f"s_cbranch_vccnz {L}")
                    e.wait_vm(tok[n - p["DSLOW"]])
                    e.label(L)
                    e.wait_vm(tok[n - Df(n)])
                else: e.wait_vm(tok[n - Df(n)])
            if p["NL"] and n == p["NL"] - 1:
                e.ds(f"ds_read_b32 v5, v15 offset:{LB_FLAG+16}")
            if p["NL"] and n == p["NTK"]:
                assert n > p["N1"]
                L = self.lab("tk")
                e(f"s_cmp_eq_u32 s{sW}, 6\ns_cbranch_scc0 {L}")
                e(f"ds_write_b32 v15, v32 offset:{LB_FLAG+20}")
                e.label(L)
            self.prog(n, 4)
            if n < 24:
                if n and (n % 4 == 0 or self.ilv): e("s_add_u32 s14, s14, s67")
                tok.append(self.b_kload(KR, n >> 2, n & 3))
            elif n < 48:
                m = n - 24
                if m and (m % 4 == 0 or self.ilv): e("s_add_u32 s15, s15, s67")
                tok.append(self.b_vload(VR, m >> 2, m & 3))
        n = 0
        if p["PRIO"]:
            L = self.lab("prio")
            e(f"s_cmp_ge_u32 s{sW}, 4\ns_cbranch_scc0 {L}\ns_setprio {p['PRIO']}")
            e.label(L)
        def touch():
            e(f"s_mul_i32 s3, s64, 7\ns_add_u32 s3, s3, s{sW}\ns_and_b32 s12, s3, 7\ns_lshl_b32 s12, s12, 13\ns_lshr_b32 s3, s3, 3\ns_add_u32 s3, s3, {p['TOUCH']}\ns_lshl_b32 s3, s3, 19\ns_add_u32 s3, s3, s12")
            e(f"s_lshl_b32 s12, s{sX}, 16\ns_add_u32 s3, s3, s12\nv_lshlrev_b32 v12, {p['TSH']}, v10\nv_add_u32 v12, s3, v12")
            for k in range(8 >> p["TSH"]):
                e.vmem(f"buffer_load_dword v5, v12, s[20:23], 0 offen {p['NT']}")
                if k + 1 < 8 >> p["TSH"]: e(f"v_add_u32 v12, {1024 << p['TSH']}, v12")
        if p["TOUCH"]:
            self.srd(20, 18, 1 << 24)
            if p["TPOS"] == 1: touch()
        tq = self.p1_compute(False)
        if p["TOUCH"] and p["TPOS"] == 0: touch()
        while n < p["D_B0"]: issue(n); n += 1
        e.wait_vm(tq)
        self.p1_gemv(19, 140, L_PRB)
        e("v_mov_b32 v12, 1\ns_mov_b64 exec, 1")
        e.ds(f"ds_add_u32 v13, v12 offset:{LB_FLAG+12}")
        self.exec_full()
        assert p["NDUTY"] <= p["N1"]
        if p["NDUTY"]:
            if p["DEEPW"] < 0: e("s_cmp_lt_u32 s64, 16\ns_cselect_b64 vcc, -1, 0")
            else: e(f"s_cmp_ge_u32 s{sW}, {7-p['DEEPW']}\ns_cselect_b64 vcc, -1, 0")
        while n < p["N1"]: issue(n); n += 1
        ch += self.b_chunks(NT_, KR, None, True)
        done = 0
        landed = -1
        while n < 48:
            if n == max(p["WARMO"], p["N1"]):
                assert n >= 24
                self.bo_warm() if p["WARMB"] else self.bo_addr()
            issue(n)
            if n == p["NWO"]:
                assert not ch
                self.b_woloads()
            landed = max(landed, n - Df(n))
            k = 0
            while ch and k < p["CPS"] and 4 * ch[0][0] + 3 <= landed:
                ch.pop(0)[1](); k += 1
            k = 0
            while not ch and done < min(landed - 24 + 1, 24) and k < p["PVK"]:
                self.b_pv_prep(KR, done); self.b_pv_mma(VR, done); done += 1; k += 1
            n += 1
        assert not ch
        assert done <= p["WOK"]
        while done < 24:
            self.b_pv_prep(KR, done)
            e.wait_vm(tok[24 + done])
            if done == p["WOK"] and not p["NWO"]:
                L = self.lab("wol")
                e(f"s_cmp_lt_u32 s{sW}, {p['WOLATE']}\ns_cbranch_scc0 {L}")
                v = e.vm
                self.b_woloads()
                e.vm = v
                e.label(L)
            self.b_pv_mma(VR, done); done += 1
        self.stamp(7)
        self.b_owrite()

    def b_tail(self):
        e = self.e
        e.label("L_btail")
        e("s_barrier")
        self.stamp(10)
        e(f"s_cmp_lt_u32 s{sW}, 2\ns_cbranch_scc0 L_bt_nored")
        e(f"s_lshl_b32 s3, s{sW}, 10\nv_add_u32 v11, s3, v10")
        e(f"v_lshlrev_b32 v13, 5, v{vG}")
        e.ds(f"ds_read_b128 v[44:47], v13 offset:{LB_G}")
        e.ds(f"ds_read_b128 v[48:51], v13 offset:{LB_G+16}")
        tk = [e.ds(f"ds_read_b128 {vr(128+4*w)}, v11 offset:{LB_R4+2048*w}") for w in range(8)]
        e(f"s_mul_i32 s15, s{sX}, {4*24*512}\ns_lshl_b32 s3, s64, 9\ns_add_u32 s15, s15, s3\ns_lshl_b32 s3, s{sW}, 8\ns_add_u32 s15, s15, s3\ns_add_u32 s15, s15, {WS_BO}")
        e(f"v_mul_u32_u24 v14, {24*512}, v{vG}\nv_lshl_add_u32 v14, v{vC}, 4, v14\nv_mov_b32 v53, s{sT}\nv_mov_b32 v55, s{sT}")
        for w in range(8):
            e.wait_lg(tk[w])
            g = 44 + (w & ~1)
            sel = f"op_sel:[0,{w&1},0] op_sel_hi:[1,{w&1},1]"
            for k in (0, 2):
                if w == 0: e(f"v_pk_mul_f32 v[{128+k}:{129+k}], v[{128+k}:{129+k}], v[{g}:{g+1}] op_sel:[0,0] op_sel_hi:[1,0]")
                else: e(f"v_pk_fma_f32 v[{128+k}:{129+k}], v[{128+4*w+k}:{129+4*w+k}], v[{g}:{g+1}], v[{128+k}:{129+k}] {sel}")
        e("v_cvt_pk_bf16_f32 v52, v128, v129\nv_cvt_pk_bf16_f32 v54, v130, v131")
        e.vmem(f"buffer_store_dwordx4 v[52:55], v14, {WS}, s15 offen")
        e(f"s_add_u32 s15, s15, {SLOW}")
        e.label("L_bt_nored")
        self.stamp(8)
        def bo_slow():
            L = self.lab("bos")
            e(f"s_cmp_lt_u32 s{sW}, 2\ns_cbranch_scc0 {L}")
            e(f"buffer_store_dwordx4 v[52:55], v14, {WS}, s15 offen sc1")
            e.label(L)
        e("s_cmp_lt_u32 s64, 16\ns_cbranch_scc1 L_bt_duty")
        bo_slow()
        self.exit()
        e.label("L_bt_duty")
        if self.p["NWO"] and self.p["B4B"]: e("s_barrier")
        if self.p["WOLATE"] < 7 and not self.p["NWO"]:
            L = self.lab("wol")
            e(f"s_barrier\ns_sub_u32 s3, s{sW}, {self.p['WOLATE']}\ns_cmp_lt_u32 s3, {7-self.p['WOLATE']}\ns_cbranch_scc0 {L}")
            self.b_woloads()
            e.label(L)
        e(f"v_and_b32 v11, 60, v{vL}")
        e.ds(f"ds_read_b32 v60, v11 offset:{LB_F}")
        e.ds(f"ds_read_b32 v61, v11 offset:{LB_F+64}")
        def g():
            e.vmem(f"buffer_load_dwordx4 v[128:131], v6, {WS}, s68 offen sc1")
            e.vmem(f"buffer_load_dwordx4 v[132:135], v9, {WS}, s68 offen sc1")
        self.poll(g, [129, 131, 133, 135], 62, "gbo", fast="s68", slowpub=bo_slow)
        self.stamp(11); self.cnt(12)
        e("s_waitcnt lgkmcnt(0)")
        for k, (src, f) in enumerate(((128, 60), (132, 61))):
            e(f"v_lshlrev_b32 v136, 16, v{src}\nv_and_b32 v137, 0xffff0000, v{src}\nv_lshlrev_b32 v138, 16, v{src+2}\nv_and_b32 v139, 0xffff0000, v{src+2}")
            for i in range(4):
                e(f"v_mul_f32 v{140+i}, v{f}, v{136+i}" if k == 0 else f"v_fmac_f32 v{140+i}, v{f}, v{136+i}")
        e("v_permlane32_swap_b32 v140, v142\nv_permlane32_swap_b32 v141, v143\nv_add_f32 v140, v140, v142\nv_add_f32 v141, v141, v143")
        e("v_permlane16_swap_b32 v140, v141\nv_add_f32 v140, v140, v141")
        self.rowred([140], "v_add_f32", (8, 4))
        e("v_cvt_pk_bf16_f32 v140, v140, v140")
        for i in range(4): e(f"v_mov_b32_dpp v{144+i}, v140 quad_perm:[{i},{i},{i},{i}] row_mask:0xf bank_mask:0xf")
        for i in range(4): self.expand4(148 + 4 * i, 144 + i, 0)
        for i in range(4):
            e(f"v_mfma_f32_16x16x32_bf16 v[24:27], {vr(148+4*i)}, {vr(self.WO[i])}, {'0' if i == 0 else 'v[24:27]'}")
        e(f"s_lshl_b32 s3, s{sW}, 10\nv_add_u32 v11, s3, v10")
        e.ds(f"ds_write_b128 v11, v[24:27] offset:{LB_R5}")
        e("s_waitcnt lgkmcnt(0)")
        self.stamp(13)
        e("s_barrier")
        self.stamp(14)
        e(f"s_cmp_eq_u32 s{sW}, 0\ns_cbranch_scc1 L_bt_fin")
        self.exit()
        e.label("L_bt_fin")
        e(f"v_and_b32 v11, 31, v{vL}\nv_lshlrev_b32 v11, 4, v11\nv_lshrrev_b32 v12, 5, v{vL}\nv_lshl_add_u32 v11, v12, 12, v11")
        tk = [e.ds(f"ds_read_b128 {vr(128+4*w)}, v11 offset:{LB_R5+1024*w}") for w in range(4)]
        e(f"s_lshl_b32 s12, s65, 12\ns_lshl_b32 s3, s66, 10\ns_add_u32 s12, s12, s3\ns_add_u32 s12, s12, {WS_OUTB}")
        e(f"v_and_b32 v13, 1, v{vG}\nv_lshlrev_b32 v13, 5, v13\nv_lshl_add_u32 v13, v{vC}, 6, v13\nv_lshl_add_u32 v13, v12, 4, v13\nv_mov_b32 v53, s{sT}\nv_mov_b32 v55, s{sT}")
        for w in range(1, 4):
            e.wait_lg(tk[w])
            e(f"v_pk_add_f32 v[128:129], v[128:129], v[{128+4*w}:{129+4*w}]\nv_pk_add_f32 v[130:131], v[130:131], v[{130+4*w}:{131+4*w}]")
        e("v_permlane32_swap_b32 v128, v130\nv_permlane32_swap_b32 v129, v131")
        e("v_add_f32 v52, v128, v130\nv_add_f32 v54, v129, v131")
        e.vmem(f"buffer_store_dwordx4 v[52:55], v13, {WS}, s12 offen sc1")
        self.stamp(9)
        e(f"s_lshl_b32 s3, s66, 7\ns_lshl_b32 s14, s65, 2\ns_add_u32 s14, s14, s3\ns_lshl_b32 s12, s14, 3\ns_add_u32 s12, s12, {WS_OUTB}")
        e(f"v_lshrrev_b32 v11, 1, v{vL}\nv_lshlrev_b32 v11, 12, v11\nv_and_b32 v12, 1, v{vL}\nv_lshl_add_u32 v11, v12, 4, v11")
        self.srd(48, 38, 2048)
        if self.p["WOSP"]:
            e(f"s_lshr_b32 s14, s65, 4\ns_lshl_b32 s14, s14, 8\ns_and_b32 s3, s66, 1\ns_lshl_b32 s3, s3, 7\ns_add_u32 s14, s14, s3\ns_lshr_b32 s3, s66, 1\ns_lshl_b32 s3, s3, 6\ns_add_u32 s14, s14, s3\ns_and_b32 s3, s65, 15\ns_lshl_b32 s3, s3, 2\ns_add_u32 s14, s14, s3")
        e(f"s_lshl_b32 s14, s14, 1\ns_add_u32 s14, s14, 1024\nv_lshlrev_b32 v12, 2, v12")
        def fin(R):
            self.stamp(15); self.cnt(16)
            self.rowred([R, R + 2], "v_add_f32", (8, 4, 2))
            self.allred_G([R, R + 2], [144, 145], "v_add_f32")
            e(f"v_cvt_pk_bf16_f32 v146, v{R}, v{R+2}")
            self.exec_mask(3, 0)
            e("buffer_store_dword v146, v12, s[48:51], s14 offen")
            if self.p["TIMING"]: self.exec_full(); e("s_waitcnt vmcnt(0)")
            self.exit()
        ld = lambda r: e(f"buffer_load_dwordx4 {vr(r)}, v11, {WS}, s12 offen sc1")
        if self.p["DPOLL"]: self.poll2(ld, 1, 128, 136, 62, "gob", fin)
        else:
            self.poll(lambda: ld(128), [129, 131], 62, "gob")
            fin(128)

    def a_setup(self):
        e = self.e
        e(f"s_lshl_b32 s64, s{sX}, 3\ns_add_u32 s64, s64, s{sSLOT}\ns_lshr_b32 s65, s64, 1\ns_and_b32 s66, s64, 1")
        e("s_waitcnt lgkmcnt(0)")
        e(f"s_load_dword s{sT}, s[42:43], 0")
        self.srd(48, 18, 1 << 24)
        e(f"s_lshl_b32 s14, s64, 13\ns_lshl_b32 s3, s{sW}, 10\ns_add_u32 s14, s14, s3\ns_mov_b32 s61, 0x80000")
        e(f"s_lshl_b32 s15, s{sW}, 13\ns_add_u32 s15, s15, {WS_QABS}")
        e(f"s_lshl_b32 s67, s{sW}, 14")
        e(f"v_and_b32 v11, 3, v{vC}\nv_lshlrev_b32 v11, 2, v11")
        e(f"v_lshrrev_b32 v12, 2, v{vC}\nv_and_b32 v13, 1, v12\nv_or_b32 v11, v11, v13")
        e(f"v_xor_b32 v12, v12, v{vC}\nv_and_b32 v12, 2, v12\nv_or_b32 v11, v11, v12")
        e(f"v_lshlrev_b32 v11, 4, v11\nv_lshl_add_u32 v11, v{vG}, 8, v11\nv_lshl_add_u32 v11, v{vC}, 10, v11")
        e(f"v_add_u32 v6, s67, v11\nv_add_u32 v7, {LA_Q}, v11")
        e(f"v_add_u32 v9, s67, v10")
    def a_issue(self, depthf, p1at=None):
        e, p = self.e, self.p
        T1, T0, QG = 64, 128, 192
        seq = [("t1", i) for i in range(16)] + [("t0", i) for i in range(16)]
        q = p["QPOS"]
        seq = seq[:q] + [("q", i) for i in range(8)] + seq[q:]
        tok, done = [], 0
        tokof = {}
        def landed_action(it):
            kind, i = it
            if p["ANODS"]: return
            if kind == "t1":
                e(f"v_xor_b32 v12, {16*fswz(i)}, v9")
                e.ds(f"ds_write_b128 v12, {vr(T1+4*i)} offset:{1024*i}")
                if i == 15:
                    e("s_waitcnt lgkmcnt(0)")
                    for ks in range(16):
                        e(f"v_xor_b32 v12, {16*ks}, v6")
                        e.ds(f"ds_read_b128 {vr(T1+4*ks)}, v12")
            elif kind == "t0":
                e(f"v_xor_b32 v12, {16*fswz(i)}, v9")
                e.ds(f"ds_write_b128 v12, {vr(T0+4*i)} offset:{1024*i}")
        def qload(i):
            if i % 4 == 0: e(f"s_add_u32 s12, s15, {1024*i}")
            return e.vmem(f"buffer_load_dwordx4 {vr(QG+4*i)}, v10, {WS}, s12 offen offset:{1024*(i&3)} sc1")
        for n, it in enumerate(seq):
            if n == p1at: self.selectors(); self.a_addrs(); self.tagmake(); self.stamp(1)
            D = depthf(n)
            if n >= D:
                e.wait_vm(tok[n - D])
            self.prog(n, 4)
            kind, i = it
            if kind == "q":
                t = qload(i)
            else:
                t = e.vmem(f"buffer_load_dwordx4 {vr((T1 if kind == 't1' else T0)+4*i)}, v10, s[48:51], s14 offen {p['NT']}")
                if not (kind == "t0" and i == 15): e("s_add_u32 s14, s14, s61")
            tok.append(t); tokof[it] = t
            while done <= n - D and done < len(seq) and n >= D:
                landed_action(seq[done]); done += 1
        e.wait_vm(tokof[("q", 7)])
        while done < len(seq) and tok[done] <= tokof[("q", 7)]:
            landed_action(seq[done]); done += 1
        self.stamp(2)
        tags = [QG + 4 * i + k for i in range(8) for k in (1, 3)]
        self.tagcheck(tags, 60)
        R, B = self.lab("aqr"), self.lab("aqb")
        e(f"s_cbranch_vccnz {R}")
        e.label(B)
        def ool():
            e.label(R)
            e("s_mov_b32 s13, 0")
            L = self.lab("aql")
            e.label(L)
            e("s_mov_b32 s4, 0")
            for i in range(8):
                S = self.lab("aqs")
                self.tagcheck([QG + 4 * i + 1, QG + 4 * i + 3], 60)
                e(f"s_cbranch_vccz {S}\ns_add_u32 s12, s15, {1024*i}\ns_mov_b32 s4, 1")
                e(f"buffer_load_dwordx4 {vr(QG+4*i)}, v10, {WS}, s12 offen sc1")
                e.label(S)
            e(f"s_cmp_eq_u32 s4, 0\ns_cbranch_scc1 {B}\ns_add_u32 s13, s13, 1\ns_waitcnt vmcnt(0)\ns_cmp_gt_u32 s13, {p['MAXPOLL']}\ns_cbranch_scc0 {L}\ns_branch {B}")
        self.ool.append(ool)
        self.stamp(3)
        for i in range(8):
            e(f"v_mov_b32 v{QG+4*i+1}, v{QG+4*i+2}")
            if i % 2 == 0: e(f"v_xor_b32 v12, {16*fswz(i>>1)}, v4")
            e.ds(f"ds_write_b64 v12, v[{QG+4*i}:{QG+4*i+1}] offset:{1024*(i>>1)+512*(i&1)}")
        if p["QKE"]:
            FR = (224, 236, 44)
            e("s_waitcnt lgkmcnt(0)\ns_barrier")
            self.stamp(4)
            if p["AKILL"] == 1: self.exit()
            def rd(ks):
                f = FR[ks % 3]
                e(f"v_xor_b32 v13, {16*ks}, v7")
                e.ds(f"ds_read_b128 {vr(f)}, v13")
                return e.ds(f"ds_read_b128 {vr(f+4)}, v13 offset:16384")
            tk = {0: rd(0), 1: rd(1)}
            left = len(seq) - done
            for ks in range(16):
                f = FR[ks % 3]
                e.wait_lg(tk[ks])
                c = lambda r: "0" if ks == 0 else vr(r)
                e(f"v_mfma_f32_16x16x32_bf16 {vr(24)}, {vr(T1+4*ks)}, {vr(f)}, {c(24)}")
                if ks + 2 < 16: tk[ks + 2] = rd(ks + 2)
                e(f"v_mfma_f32_16x16x32_bf16 {vr(28)}, {vr(T1+4*ks)}, {vr(f+4)}, {c(28)}")
                if left and done < len(seq) and (ks + 1) * left >= (done - (len(seq) - left) + 1) * 16:
                    e.wait_vm(tok[done]); landed_action(seq[done]); done += 1
        while done < len(seq):
            e.wait_vm(tok[done]); landed_action(seq[done]); done += 1
        e("s_waitcnt lgkmcnt(0)")

    def a_addrs(self):
        e = self.e
        e(f"v_lshlrev_b32 v250, 5, v{vC}\ns_lshl_b32 s3, s{sW}, 2\nv_add_u32 v250, {LA_MX}, v250\nv_add_u32 v251, s3, v250")
        e(f"v_lshrrev_b32 v252, 1, v{vG}\ns_lshl_b32 s3, s{sW}, 1\nv_add_u32 v252, s3, v252\nv_xor_b32 v252, v252, v{vC}\nv_lshlrev_b32 v252, 4, v252\nv_lshl_add_u32 v252, v{vC}, 9, v252")
        e(f"v_and_b32 v56, 1, v{vG}\nv_lshl_add_u32 v252, v56, 3, v252\nv_add_u32 v252, {LA_P}, v252")
        e(f"v_and_b32 v14, 31, v{vL}\nv_lshrrev_b32 v15, 5, v{vL}")
        e(f"v_xor_b32 v253, v15, v{vC}\nv_lshlrev_b32 v253, 4, v253\nv_lshl_add_u32 v253, v14, 9, v253\nv_add_u32 v253, {LA_P}, v253")
        e(f"v_bfe_u32 v57, v{vL}, 2, 2\nv_lshlrev_b32 v58, 2, v57\nv_lshrrev_b32 v59, 1, v57\nv_xor_b32 v59, v59, v15\nv_lshl_add_u32 v58, v59, 1, v58")
        e(f"v_bfe_u32 v59, v{vL}, 1, 1\nv_lshl_add_u32 v59, v56, 1, v59\ns_and_b32 s3, s{sW}, 1\ns_lshl_b32 s3, s3, 3\nv_add_u32 v59, s3, v59\nv_xor_b32 v58, v58, v59")
        e(f"v_lshlrev_b32 v58, 4, v58\nv_and_b32 v59, 1, v{vL}\nv_lshl_add_u32 v58, v59, 3, v58\nv_lshl_add_u32 v58, v57, 10, v58\nv_lshl_add_u32 v58, v15, 13, v58")
        e(f"s_lshr_b32 s3, s{sW}, 1\ns_lshl_b32 s3, s3, 8\nv_add_u32 v32, s3, v58")
        e("v_xor_b32 v33, 16, v32\nv_add_u32 v33, 0x1000, v33\nv_xor_b32 v34, 64, v32\nv_xor_b32 v35, 64, v33")
        e(f"v_and_b32 v254, 7, v14\nv_lshlrev_b32 v254, 4, v254\nv_lshl_add_u32 v254, v14, 10, v254\nv_lshl_add_u32 v254, v15, 3, v254\ns_lshl_b32 s3, s{sW}, 7\nv_add_u32 v254, s3, v254")
        e(f"s_lshl_b32 s3, s{sW}, 13\nv_add_u32 v255, s3, v10")
        e(f"v_lshlrev_b32 v4, 3, v{vL}\ns_lshl_b32 s3, s{sW}, 12\ns_add_u32 s3, s3, {LA_Q}\nv_add_u32 v4, s3, v4\ns_and_b32 s3, s{sW}, 3\ns_lshl_b32 s3, s3, 4\nv_xor_b32 v4, s3, v4")
        e(f"s_lshl_b32 s16, s{sW}, 19\ns_lshl_b32 s3, s64, 10\ns_add_u32 s16, s16, s3\ns_add_u32 s16, s16, {WS_AO}\ns_mov_b32 s17, 0x10000")
        self.a_wsetup()
    def a_wsetup(self):
        e, nt = self.e, self.p["NT"]
        UV, WO = 160, 192
        self.srd(52, 24, 1 << 22); self.srd(56, 26, 1 << 22)
        e(f"s_lshl_b32 s68, s{sW}, 19\ns_lshl_b32 s3, s65, 8\ns_add_u32 s68, s68, s3\ns_lshl_b32 s3, s66, 7\ns_add_u32 s68, s68, s3")
        e(f"v_bfe_u32 v248, v{vL}, 3, 1\nv_lshlrev_b32 v248, 16, v248\nv_lshl_add_u32 v248, v{vG}, 17, v248\nv_lshl_add_u32 v248, v8, 4, v248")
        e(f"s_lshl_b32 s69, s64, 16\ns_lshr_b32 s3, s{sW}, 2\ns_lshl_b32 s3, s3, 15\ns_add_u32 s69, s69, s3\ns_and_b32 s3, s{sW}, 3\ns_lshl_b32 s3, s3, 8\ns_add_u32 s69, s69, s3")
        e(f"v_lshlrev_b32 v249, 13, v{vG}\nv_lshl_add_u32 v249, v{vC}, 4, v249")
        self.wq = []
        for i in range(8):
            self.wq.append((f"buffer_load_dwordx4 {vr(UV+4*i)}, v248, s[52:55], s68 offen {nt}", "s_addk_i32 s68, 0x2000" if i < 7 else ""))
        for i in range(8):
            self.wq.append((f"buffer_load_dwordx4 {vr(WO+4*i)}, v249, s[56:59], s69 offen offset:{1024*(i&3)} {nt}", "s_addk_i32 s69, 0x1000" if i == 3 else ""))
    def wtick(self, n=1, late=False):
        for _ in range(n):
            if self.wq and (late or len(self.wq) > 16 - self.p["NWE"]):
                a, b = self.wq.pop(0)
                self.e.vmem(a); self.e(b)

    def a_tail_addrs(self):
        e = self.e
        e(f"v_and_b32 v20, 1, v{vG}\nv_lshlrev_b32 v252, 5, v20\nv_lshl_add_u32 v252, v{vC}, 6, v252\nv_lshl_add_u32 v252, v15, 4, v252")
        e(f"s_and_b32 s3, s{sW}, 3\ns_lshl_b32 s14, s3, 8\nv_lshrrev_b32 v22, 2, v252\nv_add_u32 v22, s14, v22")
        e(f"s_lshl_b32 s12, s65, 16\ns_add_u32 s12, s12, s14\ns_add_u32 s12, s12, {WS_AO}")
        e(f"v_lshlrev_b32 v15, 10, v{vG}\nv_lshl_add_u32 v15, v{vC}, 4, v15")
        e(f"v_bfe_u32 v16, v{vL}, 3, 1\nv_lshlrev_b32 v17, 7, v16\nv_lshl_add_u32 v17, v{vG}, 5, v17\nv_add_u32 v17, s14, v17")
        e(f"s_lshl_b32 s3, s{sW}, 10\nv_add_u32 v18, s3, v10")
        e(f"v_and_b32 v19, 3, v{vL}\nv_lshlrev_b32 v19, 4, v19\nv_lshrrev_b32 v23, 2, v{vL}\nv_add_u32 v19, v19, v23\nv_lshlrev_b32 v19, 1, v19\nv_add_u32 v19, s14, v19")
        e(f"v_lshlrev_b32 v20, 4, v16\nv_lshl_add_u32 v20, v{vG}, 5, v20\ns_lshl_b32 s3, s{sW}, 7\nv_add_u32 v20, s3, v20")
        e(f"v_lshlrev_b32 v23, 8, v16\nv_lshl_add_u32 v23, v8, 4, v23\nv_lshl_add_u32 v23, v{vG}, 11, v23")
        e(f"v_lshlrev_b32 v250, 3, v16\nv_lshl_add_u32 v250, v8, 4, v250\nv_add_u32 v250, s3, v250")
        e(f"s_lshr_b32 s14, s{sW}, 2\ns_lshl_b32 s14, s14, 6\ns_add_u32 s3, s3, s14\nv_lshlrev_b32 v251, 4, v{vG}\nv_add_u32 v251, s3, v251")
        e(f"s_lshl_b32 s15, s65, 10\ns_add_u32 s15, s15, {WS_AML}\ns_mov_b32 s18, 0x11111111\ns_mov_b32 s19, 0x11111111\ns_mov_b32 s13, 0")
        e(f"s_lshl_b32 s61, s64, 12\ns_lshl_b32 s3, s{sW}, 10\ns_add_u32 s61, s61, s3\ns_add_u32 s61, s61, {WS_OUTA}")

    def a_main(self):
        e, p = self.e, self.p
        T1 = 64
        FR = (224, 236, 44)
        qke = p["QKE"]
        if not qke:
            e("s_barrier")
            self.stamp(4); self.cyc(23)
            if p["AKILL"] == 1: self.exit()
        else: self.stamp(17)
        def rd(ks):
            f = FR[ks % 3]
            e(f"v_xor_b32 v12, {16*ks}, v6\nv_xor_b32 v13, {16*ks}, v7")
            e.ds(f"ds_read_b128 {vr(f)}, v13")
            e.ds(f"ds_read_b128 {vr(f+4)}, v13 offset:16384")
            return e.ds(f"ds_read_b128 {vr(f+8)}, v12")
        tk = {0: rd(0), 1: rd(1)}
        for ks in range(16):
            f = FR[ks % 3]
            e.wait_lg(tk[ks])
            c = lambda r: "0" if ks == 0 else vr(r)
            if not qke:
                e(f"v_mfma_f32_16x16x32_bf16 {vr(24)}, {vr(T1+4*ks)}, {vr(f)}, {c(24)}")
                e(f"v_mfma_f32_16x16x32_bf16 {vr(28)}, {vr(T1+4*ks)}, {vr(f+4)}, {c(28)}")
            else: e(f"v_mfma_f32_16x16x32_bf16 {vr(16)}, {vr(f+8)}, {vr(f)}, {c(16)}")
            if ks + 2 < 16: tk[ks + 2] = rd(ks + 2)
            if ks % 3 == 0: self.wtick()
            if not qke: e(f"v_mfma_f32_16x16x32_bf16 {vr(16)}, {vr(f+8)}, {vr(f)}, {c(16)}")
            e(f"v_mfma_f32_16x16x32_bf16 {vr(20)}, {vr(f+8)}, {vr(f+4)}, {c(20)}")
        self.wtick()
        for hh in range(2):
            a, b = 16 + 4 * hh, 24 + 4 * hh
            e(f"v_max3_f32 v{56+hh}, v{a}, v{a+1}, v{a+2}\nv_max3_f32 v{56+hh}, v{56+hh}, v{a+3}, v{b}\nv_max3_f32 v{56+hh}, v{56+hh}, v{b+1}, v{b+2}\nv_max_f32 v{56+hh}, v{56+hh}, v{b+3}")
        self.allred_G([56, 57], [58, 59], "v_max_f32")
        e("s_barrier")
        self.stamp(10)
        self.exec_mask(0xffff, 0)
        e.ds("ds_write_b32 v251, v56")
        e.ds("ds_write_b32 v251, v57 offset:512")
        self.exec_full()
        e("s_waitcnt lgkmcnt(0)\ns_barrier")
        for hh in range(2):
            e.ds(f"ds_read_b128 {vr(224+8*hh)}, v250 offset:{512*hh}")
            e.ds(f"ds_read_b128 {vr(228+8*hh)}, v250 offset:{512*hh+16}")
        e("s_waitcnt lgkmcnt(0)")
        for hh in range(2):
            m = 224 + 8 * hh
            e(f"v_max3_f32 v{56+hh}, v{m}, v{m+1}, v{m+2}\nv_max3_f32 v{56+hh}, v{56+hh}, v{m+3}, v{m+4}\nv_max3_f32 v{56+hh}, v{56+hh}, v{m+5}, v{m+6}\nv_max_f32 v{56+hh}, v{56+hh}, v{m+7}")
            e(f"v_mul_f32 v{56+hh}, {sCS}, v{56+hh}")
        for T in range(2):
            for hh in range(2):
                for r in range(4):
                    s = 16 + 8 * T + 4 * hh + r
                    e(f"v_fma_f32 v{s}, v{s}, {sCS}, -v{56+hh}")
        self.wtick()
        for s in range(16, 32): e(f"v_exp_f32 v{s}, v{s}")
        for T in range(2):
            for hh in range(2):
                s, d = 16 + 8 * T + 4 * hh, 56 + 4 * T + 2 * hh
                e(f"v_cvt_pk_bf16_f32 v{d}, v{s}, v{s+1}\nv_cvt_pk_bf16_f32 v{d+1}, v{s+2}, v{s+3}")
                e.ds(f"ds_write_b64 v252, v[{d}:{d+1}] offset:{256*T+8192*hh}")
        HI = (4, 5, 11, 13)
        for k in range(4): e(f"v_add_u32 v{HI[k]}, 0x10000, v{32+k}")
        e("s_waitcnt lgkmcnt(0)\ns_barrier")
        self.stamp(5)
        ACC = (128, 144)
        fill = Emit()
        sv, self.e = self.e, fill
        for hh in range(2):
            a, b = 16 + 4 * hh, 24 + 4 * hh
            for s in (a + 1, a + 2, a + 3, b, b + 1, b + 2, b + 3): fill(f"v_add_f32 v{a}, v{a}, v{s}")
        self.allred_G([16, 20], [17, 21], "v_add_f32")
        lsum = list(fill.L); fill.L = []
        fill(f"v_lshlrev_b32 v21, 5, v8\ns_lshl_b32 s3, s{sW}, 8\ns_add_u32 s3, s3, {LA_MX}\nv_add_u32 v21, s3, v21")
        self.a_tail_addrs()
        taddr = list(fill.L)
        self.e = sv
        def rdp(R, n):
            f = FR[n % 3]
            e(f"v_xor_b32 v12, {32*n}, v253")
            e.ds(f"ds_read_b128 {vr(f)}, v12 offset:{256*R}")
            for t in range(2):
                for nn in range(2):
                    a = 32 + 2 * t + nn if n < 4 else HI[2 * t + nn]
                    tkk = e.ds(f"ds_read_b64_tr_b16 v[{f+4+4*t+2*nn}:{f+5+4*t+2*nn}], v{a} offset:{16384*(n&3)}")
            return tkk
        def half(R, h, tk, write, filler, carry):
            n0 = 4 * h
            for n in range(n0, n0 + 2):
                if n not in tk: tk[n] = rdp(R, n)
            per = -(-len(filler) // 8)
            for n in range(n0, n0 + 4):
                f = FR[n % 3]
                e.wait_lg(tk[n])
                first = (R == 0 and n == 0)
                e(f"v_mfma_f32_32x32x16_bf16 {vr(ACC[0],16)}, {vr(f+4)}, {vr(f)}, {'0' if first else vr(ACC[0],16)}")
                if n + 2 < n0 + 4 or carry: tk[n + 2] = rdp(R, n + 2)
                for _ in range(per):
                    if filler: e(filler.pop(0))
                e(f"v_mfma_f32_32x32x16_bf16 {vr(ACC[1],16)}, {vr(f+8)}, {vr(f)}, {'0' if first else vr(ACC[1],16)}")
                if write:
                    for ks in range(4 * (n - n0), 4 * (n - n0) + 4):
                        e(f"v_xor_b32 v12, {16*ks}, v6")
                        e.ds(f"ds_write_b128 v12, {vr(T1+4*ks)}")
                for _ in range(per):
                    if filler: e(filler.pop(0))
        tk = {}
        half(0, 0, tk, False, lsum, True)
        self.exec_mask(0xffff, 0)
        e(f"ds_write_b32 v251, v16 offset:{LA_LS-LA_MX}\nds_write_b32 v251, v20 offset:{LA_LS-LA_MX+512}")
        e.lg += 2
        self.exec_full()
        self.wtick()
        e("s_barrier")
        self.stamp(11)
        for R, h in ((0, 1), (1, 0)):
            LW, LJ = self.lab("pvw"), self.lab("pvj")
            e(f"s_cmp_lt_u32 s{sW}, 4\ns_cbranch_scc{1 if R == 0 else 0} {LW}")
            lg0 = e.lg
            half(R, h, dict(tk) if R == 0 else {}, False, [], False)
            e(f"s_branch {LJ}")
            e.label(LW)
            e.lg = lg0
            half(R, h, dict(tk) if R == 0 else {}, True, [], False)
            e("s_waitcnt lgkmcnt(0)")
            e.label(LJ)
            self.wtick()
            e("s_barrier")
            self.stamp(12 if R == 0 else 25)
        half(1, 1, {}, False, taddr, False)
        e("s_barrier")
        self.stamp(13)
        self.wtick(16)
        e(f"s_cmp_lt_u32 s{sW}, 4\ns_cbranch_scc1 L_ast")
        e(f"buffer_load_dwordx4 v[224:227], v10, {WS}, s15 offen sc1")
        e.label("L_ast")
        for t in range(2):
            for q in range(4):
                a = ACC[t] + 4 * q
                e(f"v_cvt_pk_bf16_f32 v{a}, v{a}, v{a+1}\nv_cvt_pk_bf16_f32 v{a+1}, v{a+2}, v{a+3}\nv_xor_b32 v12, {16*(4*t+q)}, v254")
                e.ds(f"ds_write_b64 v12, v[{a}:{a+1}]")
        e("s_waitcnt lgkmcnt(0)\ns_barrier")
        self.stamp(14); self.cyc(24)
        if p["AKILL"] == 8: self.exit()
        e(f"v_mov_b32 v53, s{sT}\nv_mov_b32 v55, s{sT}\ns_cbranch_scc0 L_agl2")
        tk = []
        for i in range(8):
            e(f"v_xor_b32 v12, {16*i}, v255")
            tk.append(e.ds(f"ds_read_b128 {vr(64+4*i)}, v12 offset:{1024*i}"))
        for k in range(2):
            e.ds(f"ds_read_b128 {vr(96+8*k)}, v21 offset:{1024*k}")
            e.ds(f"ds_read_b128 {vr(100+8*k)}, v21 offset:{1024*k+16}")
        for i in range(8):
            e.wait_lg(tk[i])
            e.vmem(f"buffer_store_dwordx4 {vr(64+4*i)}, v10, {WS}, s16 offen sc1")
            if i < 7: e("s_add_u32 s16, s16, s17")
        e(f"v_lshlrev_b32 v13, 10, v8\ns_lshl_b32 s16, s64, 4\ns_lshl_b32 s3, s{sW}, 13\ns_add_u32 s16, s16, s3\ns_add_u32 s16, s16, {WS_AML}")
        e("s_waitcnt lgkmcnt(0)")
        e("v_max3_f32 v52, v96, v97, v98\nv_max3_f32 v52, v52, v99, v100\nv_max3_f32 v52, v52, v101, v102\nv_max_f32 v52, v52, v103")
        e(f"v_mul_f32 v52, {sCS}, v52\nv_add_f32 v54, v104, v105")
        for r in range(106, 112): e(f"v_add_f32 v54, v54, v{r}")
        e("s_mov_b64 exec, 0xff\ns_waitcnt vmcnt(0)")
        e(f"buffer_store_dwordx4 v[52:55], v13, {WS}, s16 offen sc1")
        self.exec_full()
        self.stamp(6)
        if p["AKILL"] == 9: self.exit()
        wsave = list(self.wq)
        e("s_barrier")
        self.wtick(16, late=True)
        e("s_branch L_alat")
        e.label("L_agl")
        e(f"buffer_load_dwordx4 v[224:227], v10, {WS}, s15 offen sc1")
        e.label("L_agl2")
        e("s_add_u32 s13, s13, 1\ns_waitcnt vmcnt(0)")
        e(f"v_xor_b32 v60, s{sT}, v225\nv_bitop3_b32 v60, v227, s{sT}, v60 bitop3:0xbe\nv_cmp_eq_u32 vcc, 0, v60")
        e(f"s_cmp_gt_u32 s13, {p['MAXPOLL']}\ns_cselect_b64 vcc, -1, vcc")
        e("s_lshr_b64 s[4:5], vcc, 1\ns_and_b64 s[4:5], s[4:5], vcc\ns_lshr_b64 s[20:21], s[4:5], 2\ns_and_b64 s[4:5], s[4:5], s[20:21]\ns_and_b64 s[4:5], s[4:5], s[18:19]\ns_andn2_b64 s[18:19], s[18:19], s[4:5]")
        for i in range(16):
            L = self.lab("agi")
            e(f"s_bitcmp1_b64 s[4:5], {4*i}\ns_cbranch_scc0 {L}\ns_add_u32 s3, s12, {4096*i}")
            e(f"buffer_load_dwordx4 {vr(64+4*i)}, v15, {WS}, s3 offen sc1")
            e.label(L)
        e("s_cmp_eq_u64 vcc, -1\ns_cbranch_scc0 L_agl")
        self.stamp(7)
        if p["AKILL"] == 9: self.exit()
        e("s_barrier")
        tg = e.vm
        e(f"s_cmp_eq_u32 s64, 0\ns_cbranch_scc0 L_noep")
        e(f"v_mov_b32 v12, s{sT}\nv_mov_b32 v13, 0")
        self.exec_mask(1, 0)
        e(f"buffer_store_dword v12, v13, {WS}, 0 offen sc1")
        self.exec_full()
        e.label("L_noep")
        e("v_mov_b32 v56, v224")
        self.rowred([56], "v_max_f32", (8, 4, 2, 1))
        self.allred_G([56], [57], "v_max_f32")
        e("v_sub_f32 v224, v224, v56\nv_exp_f32 v224, v224\nv_mul_f32 v226, v226, v224")
        self.rowred([226], "v_add_f32", (8, 4, 2, 1))
        self.allred_G([226], [57], "v_add_f32")
        e("v_rcp_f32 v226, v226\nv_mul_f32 v224, v224, v226\nv_cvt_pk_bf16_f32 v225, v224, v224\nv_and_b32 v226, 0xffff0000, v225\nv_sub_f32 v226, v224, v226\nv_cvt_pk_bf16_f32 v226, v226, v226")
        e.ds(f"ds_write_b16 v19, v225 offset:{LA_F}")
        e.ds(f"ds_write_b16 v19, v226 offset:{LA_F+128}")
        e("s_waitcnt lgkmcnt(0)")
        e.ds(f"ds_read_b128 v[228:231], v17 offset:{LA_F}")
        e.ds(f"ds_read_b128 v[232:235], v17 offset:{LA_F+16}")
        e("s_waitcnt lgkmcnt(0)")
        for i in range(8): self.expand4(128 + 4 * i, 228 + (i >> 1), i & 1)
        e.wait_vm(tg)
        for i in range(16):
            if i < 8: e(f"v_mfma_f32_16x16x32_bf16 v[24:27], {vr(128+4*i)}, {vr(64+4*i)}, {'0' if i == 0 else 'v[24:27]'}")
            else: e(f"v_mfma_f32_16x16x32_bf16 v[24:27], {vr((44,48)[i&1])}, {vr(64+4*i)}, v[24:27]")
            if 6 <= i < 14: self.expand4((44, 48)[i & 1], 228 + ((i + 2) >> 1), i & 1)
        e("v_permlane32_swap_b32 v24, v26\nv_permlane32_swap_b32 v25, v27\nv_add_f32 v24, v24, v26\nv_add_f32 v25, v25, v27\nv_cvt_pk_bf16_f32 v24, v24, v25")
        e.ds(f"ds_write_b32 v22, v24 offset:{LA_LAT}")
        self.wq = wsave
        self.wtick(16, late=True)
        tkw = e.vm
        e("s_waitcnt lgkmcnt(0)")
        e.label("L_alat")
        e("s_barrier")
        self.stamp(15)
        e.ds(f"ds_read_b128 v[28:31], v20 offset:{LA_LAT}")
        e("s_waitcnt lgkmcnt(0)")
        nlate = 16 - self.p["NWE"]
        wt = lambda k: (tkw - (15 - k)) if (15 - k) < nlate else None
        self.gemv8(24, 28, 160, [wt(k) for k in range(8)])
        e.ds(f"ds_write_b128 v18, v[24:27] offset:{LA_R2}")
        e("s_waitcnt lgkmcnt(0)\ns_barrier")
        self.stamp(16)
        for k in range(4): e.ds(f"ds_read_b128 {vr(64+4*k)}, v23 offset:{LA_R2+1024*(k>>1)+(512+128)*(k&1)}")
        e("s_waitcnt lgkmcnt(0)")
        for k in range(1, 4):
            e(f"v_pk_add_f32 v[64:65], v[64:65], v[{64+4*k}:{65+4*k}]\nv_pk_add_f32 v[66:67], v[66:67], v[{66+4*k}:{67+4*k}]")
        self.allred_G([64, 65, 66, 67], [68, 69, 70, 71], "v_add_f32")
        e("v_cvt_pk_bf16_f32 v64, v64, v65\nv_cvt_pk_bf16_f32 v65, v66, v67")
        e.ds(f"ds_write_b64 v250, v[64:65] offset:{LA_CTX}")
        e("s_waitcnt lgkmcnt(0)")
        e.ds(f"ds_read_b128 v[28:31], v251 offset:{LA_CTX}")
        e("s_waitcnt lgkmcnt(0)")
        self.gemv8(24, 28, 192, [wt(8 + k) for k in range(8)])
        e(f"s_cmp_lt_u32 s{sW}, 4\ns_cbranch_scc1 L_at_o")
        e.ds(f"ds_write_b128 v18, v[24:27] offset:{LA_R1}")
        e("s_waitcnt lgkmcnt(0)\ns_barrier")
        self.exit()
        e.label("L_at_o")
        e("s_barrier")
        e.ds(f"ds_read_b128 v[64:67], v18 offset:{LA_R1+4096}")
        e("s_waitcnt lgkmcnt(0)")
        e("v_pk_add_f32 v[24:25], v[24:25], v[64:65]\nv_pk_add_f32 v[26:27], v[26:27], v[66:67]")
        e(f"v_cndmask_b32 v52, v24, v26, {sHI}\nv_cndmask_b32 v54, v25, v27, {sHI}")
        e(f"buffer_store_dwordx4 v[52:55], v252, {WS}, s61 offen sc1")
        self.stamp(8)
        e(f"s_cmp_eq_u32 s{sW}, 0\ns_cbranch_scc1 L_at_fin")
        self.exit()
        e.label("L_at_fin")
        e(f"s_lshl_b32 s12, s64, 6\ns_add_u32 s12, s12, {WS_OUTA}\nv_lshrrev_b32 v11, 2, v{vL}\nv_lshlrev_b32 v11, 12, v11\nv_and_b32 v12, 3, v{vL}\nv_lshl_add_u32 v11, v12, 4, v11")
        self.srd(48, 38, 2048)
        e(f"s_lshl_b32 s14, s64, 4\nv_lshlrev_b32 v12, 2, v12\ns_mov_b32 s15, 0x10000")
        def g(R):
            e("s_mov_b32 s3, s12")
            for k in range(4):
                e(f"buffer_load_dwordx4 {vr(R+4*k)}, v11, {WS}, s3 offen sc1")
                if k < 3: e("s_add_u32 s3, s3, s15")
        def fin(R):
            for k in range(1, 4): e(f"v_add_f32 v{R}, v{R}, v{R+4*k}\nv_add_f32 v{R+2}, v{R+2}, v{R+4*k+2}")
            self.rowred([R, R + 2], "v_add_f32", (8, 4))
            self.allred_G([R, R + 2], [100, 101], "v_add_f32")
            e(f"v_cvt_pk_bf16_f32 v102, v{R}, v{R+2}")
            self.exec_mask(15, 0)
            e("buffer_store_dword v102, v12, s[48:51], s14 offen")
            if self.p["TIMING"]: self.exec_full(); e("s_waitcnt vmcnt(0)"); self.stamp(9)
            self.exit()
        if self.p["DPOLL"]: self.poll2(g, 4, 64, 80, 60, "goa", fin)
        else:
            self.poll(lambda: g(64), [65, 67, 69, 71, 73, 75, 77, 79], 60, "goa")
            fin(64)

    def build(self):
        e, p = self.e, self.p
        self.prologue()
        vm0 = e.vm
        self.phase1()
        self.b_ctrl()
        e.label("L_notctrl")
        e.vm = vm0
        self.b_stream()
        self.b_tail()
        e.label("L_astream")
        self.role = "A"
        e.vm = 1
        self.a_setup()
        self.a_issue(lambda n: p["D_A1"] if n < p["NA1"] else p["D_A2"], p1at=p["D_A1"])
        self.a_main()
        while self.ool: self.ool.pop(0)()
        if p["TIMING"]:
            e.label("L_exit")
            e("s_mov_b64 exec, -1\ns_memrealtime s[98:99]\ns_getreg_b32 s100, hwreg(HW_REG_XCC_ID)\ns_waitcnt lgkmcnt(0)\nv_mov_b32 v44, 0")
            for i in range(28): e(f"v_writelane_b32 v44, s{70+i}, {i}")
            e("v_writelane_b32 v44, s98, 30\nv_writelane_b32 v44, s100, 31")
            e(f"s_lshl_b32 s3, s2, 3\ns_add_u32 s3, s3, s{sW}\ns_lshl_b32 s3, s3, 7\ns_add_u32 s3, s3, {WS_STAMP}\nv_lshlrev_b32 v45, 2, v{vL}\ns_mov_b32 exec_hi, 0")
            e(f"buffer_store_dword v44, v45, {WS}, s3 offen")
        if p["PAD"]:
            e.label("L_exit")
            if p["PADEV"] == 99:
                e(f"s_cmp_{'lt' if p['PADROLE'] == 'A' else 'ge'}_u32 s{sSLOT}, 8\ns_cbranch_scc0 L_padn\ns_memrealtime s[82:83]\ns_waitcnt lgkmcnt(0)")
                e.label("L_padn")
            e(f"s_cmp_eq_u32 s82, 0\ns_cselect_b32 s80, s80, s82\ns_add_u32 s80, s80, {p['PAD']}")
            e.label("L_padl")
            e("s_sleep 4\ns_memrealtime s[68:69]\ns_waitcnt lgkmcnt(0)\ns_sub_u32 s68, s68, s80\ns_cmp_lt_i32 s68, 0\ns_cbranch_scc1 L_padl")
        e.label("L_end")
        e("s_endpgm")
        e.label("L_codeend")
        if p["NOSLOW"]:
            out, k = [], 0
            for i, l in enumerate(e.L):
                if "store" in l and l.endswith("sc1") and ("v14, " in l or "v11, " in l or "dwordx2" in l or ("v10, " in l and "s15" in l)): continue
                out.append(l)
            e.L = out
        gm, sm = p["GM"].replace("_", " "), p["SM"].replace("_", " ")
        e.L = [(l[:-3] + (gm if "load" in l else sm)) if l.endswith(" sc1") else l for l in e.L]
        body = pad_hazards(e.L)
        ref = open(f"cdna_kernels/{NAME}.s.ref").read().split("\n")
        head = [l for l in ref if l.startswith(";") and "@launch" not in l]
        out = head + ["; @launch grid=(256,1,1) block=(512,1,1) lds=163840",
                      '.amdgcn_target "amdgcn-amd-amdhsa--gfx950"', ".text", f".globl {NAME}_kernel", ".p2align 8",
                      f".type {NAME}_kernel,@function", f"{NAME}_kernel:"]
        out += [("" if l.endswith(":") else "    ") + l for l in body]
        out += ['.section .rodata,"a"', ".p2align 6", f".amdhsa_kernel {NAME}_kernel", "  .amdhsa_next_free_vgpr 256",
                "  .amdhsa_next_free_sgpr 102", "  .amdhsa_accum_offset 256", "  .amdhsa_group_segment_fixed_size 0",
                "  .amdhsa_kernarg_size 112", "  .amdhsa_user_sgpr_count 2", "  .amdhsa_user_sgpr_kernarg_segment_ptr 1",
                "  .amdhsa_system_sgpr_workgroup_id_x 1", ".end_amdhsa_kernel", ""]
        return "\n".join(out)

if __name__ == "__main__":
    kw = {}
    for a in sys.argv[2:]:
        k, v = a.split("=")
        kw[k] = (v == "True") if v in ("True", "False") else (int(v) if v.lstrip("-").isdigit() else v)
    open(sys.argv[1], "w").write(K(**kw).build())
```

```python
import sys, struct
from asmlib import Emit, pad_hazards

NAME = "concat_heads__compressed_kv_cla__gqa_block_cached__decode"
DEF = dict(D_B0=3, NB0=20, D_B=5, N1=24, PVK=3, D_A1=4, NA1=6, D_A2=5, QPOS=32, TIMING=False, MAXPOLL=400000,
           NT="nt", PAD=0, PADEV=-1, PADROLE="", NWE=8, LIGHT=False, PROG=False, GDELAY=0, GM="sc1", SM="sc1", SDELAY=0, NFAST=48, CPS=3, D_B2=12, NB2=38, WARMQ=1, WARMO=30, WARMB=0, WOK=23, NDUTY=0, WOLATE=4, NWO=40, B4B=1, ANODS=0, QKE=0, RLATE=1, HROT=2, CPF=0, JIT=0, CYC=0, TLBP=0, DPOLL=0, PSL=6, ILV1=0, WOSP=1, TOUCH=0, TPOS=0, TSH=3, NL=0, RK=64, DSLOW=3, NTK=24, LSET=(4, 6, 7, 10), DEEPW=-1, GSL=0, NU=-1, WQ0=3, PRIO=1, NOSLOW=0, AKILL=0, PTRACE="", WM="nt")

def f32(x): return "0x%08x" % struct.unpack("<I", struct.pack("<f", x))[0]
CS = 1.4426950408889634 * 128 ** -0.5

WS_QP, WS_QABS, WS_QB, WS_BML, WS_AML = 0x10000, 0x90000, 0xA0000, 0xA8000, 0xB0000
WS_BO, WS_OUTB, WS_OUTA, WS_AO, WS_STAMP = 0xC0000, 0x120000, 0x140000, 0x200000, 0x400000
WS_SIZE = 0x800000
SLOW = 0x500000
L_PR = 32768
L_PRB = 49152
L_LQ = 40960
LB_Q, LB_MX, LB_LS, LB_F, LB_G, LB_FLAG, LB_R4, LB_R5 = 0, 1024, 1152, 1280, 1408, 1536, 2048, 20480
LA_Q = 131072
LA_P, LA_MX, LA_LS = 131072, 147456, 148480
LA_F, LA_R1, LA_LAT, LA_R2, LA_CTX = 32768, 36864, 49152, 53248, 61440

vL, vC, vG = 1, 2, 3
SELA, SELB = 32, 36
sW, sX, sSLOT, sH1, sJ, sT = 6, 7, 8, 9, 10, 11
WS = "s[44:47]"
sHI = "s[62:63]"
sCS = "s60"

def fswz(k):
    k0, k1, k2, k3 = k & 1, (k >> 1) & 1, (k >> 2) & 1, (k >> 3) & 1
    return (k1 << 3) | (k0 << 2) | ((k1 ^ k3) << 1) | k2

def vr(a, n=4): return f"v[{a}:{a+n-1}]"

class K:
    def __init__(self, **kw):
        self.p = dict(DEF); self.p.update(kw)
        self.e = Emit()
        self.nlab = 0
        self.role = "B"
        self.ilv = False
        self.ool = []
    def lab(self, s):
        self.nlab += 1
        return f"L_{s}_{self.nlab}"
    def stamp(self, i):
        if self.p["PAD"] and i == self.p["PADEV"] and self.role in self.p["PADROLE"]:
            self.e("s_memrealtime s[82:83]\ns_waitcnt lgkmcnt(0)")
        if self.p["TIMING"] and not self.p["PROG"] and (not self.p["LIGHT"] or i in self.p["LSET"]):
            self.e(f"s_memrealtime s[98:99]\ns_waitcnt lgkmcnt(0)\ns_mov_b32 s{70+i}, s98")
    def cyc(self, i):
        if self.p["TIMING"] and self.p["CYC"]:
            self.e(f"s_memtime s[98:99]\ns_waitcnt lgkmcnt(0)\ns_mov_b32 s{70+i}, s98")
    def prog(self, n, step):
        if self.p["PROG"] and (n + 1) % step == 0 and (n + 1) // step <= 13:
            k = 72 + 2 * ((n + 1) // step - 1)
            self.e(f"s_memrealtime s[{k}:{k+1}]")
    def cnt(self, i):
        if self.p["TIMING"] and not self.p["PROG"]: self.e(f"s_mov_b32 s{70+i}, s13")
    def exit(self):
        self.e("s_branch L_exit" if self.p["TIMING"] or self.p["PAD"] else "s_endpgm")
    def srd(self, s, ptr, size):
        self.e(f"s_mov_b32 s{s}, s{ptr}\ns_mov_b32 s{s+1}, s{ptr+1}\ns_mov_b32 s{s+2}, {size}\ns_mov_b32 s{s+3}, 0x20000")
    def exec_full(self): self.e("s_mov_b64 exec, -1")
    def exec_mask(self, lo, hi): self.e(f"s_mov_b32 exec_lo, {lo:#x}\ns_mov_b32 exec_hi, {hi:#x}")
    def allred_G(self, vals, tmps, op, steps=(32, 16)):
        e = self.e
        for st in steps:
            for v, t in zip(vals, tmps): e(f"v_mov_b32 v{t}, v{v}")
            for v, t in zip(vals, tmps): e(f"v_permlane{st}_swap_b32 v{t}, v{v}")
            for v, t in zip(vals, tmps): e(f"{op} v{v}, v{t}, v{v}")
    def rowred(self, vals, op, rors):
        for r in rors:
            for v in vals: self.e(f"{op}_dpp v{v}, v{v}, v{v} row_ror:{r} row_mask:0xf bank_mask:0xf")
    def tagcheck(self, tags, acc):
        e = self.e
        e(f"v_xor_b32 v{acc}, s{sT}, v{tags[0]}")
        for t in tags[1:]: e(f"v_bitop3_b32 v{acc}, v{t}, s{sT}, v{acc} bitop3:0xbe")
        e(f"v_cmp_ne_u32 vcc, 0, v{acc}")
    def poll(self, issue, tags, acc, name, fast=None, slowpub=None):
        e = self.e
        L, D, F = self.lab(name), self.lab(name + "d"), self.lab(name + "f")
        e("s_mov_b32 s13, 0")
        e.label(L)
        issue()
        e(f"s_add_u32 s13, s13, 1\ns_waitcnt vmcnt(0)")
        if self.p["TIMING"] and self.p["PTRACE"] == name:
            e("s_memrealtime s[98:99]\ns_waitcnt lgkmcnt(0)")
            for k in range(1, 7): e(f"s_cmp_eq_u32 s13, {k}\ns_cselect_b32 s{90+k}, s98, s{90+k}")
        self.tagcheck(tags, acc)
        if fast:
            e(f"s_cbranch_vccnz {F}")
            def ool():
                e.label(F)
                e(f"s_cmp_gt_u32 s13, {self.p['MAXPOLL']}\ns_cbranch_scc1 {D}\ns_cmp_eq_u32 s13, {self.p['NFAST']}\ns_cbranch_scc0 {L}")
                if slowpub: slowpub()
                e(f"s_add_u32 {fast}, {fast}, {SLOW}\ns_branch {L}")
            self.ool.append(ool)
        else:
            e(f"s_cmp_gt_u32 s13, {self.p['MAXPOLL']}\ns_cbranch_scc1 {D}\ns_cbranch_vccnz {L}")
        e.label(D)
        if slowpub: slowpub()
    def poll2(self, issue, nl, RA, RB, acc, name, finish):
        e = self.e
        L, DA = self.lab(name), self.lab(name + "a")
        tags = lambda R: [R + 4 * i + k for i in range(nl) for k in (1, 3)]
        e("s_mov_b32 s13, 0")
        issue(RA)
        e(f"s_sleep {self.p['PSL']}")
        e.label(L)
        issue(RB)
        e(f"s_add_u32 s13, s13, 1\ns_waitcnt vmcnt({nl})")
        self.tagcheck(tags(RA), acc)
        e(f"s_cmp_gt_u32 s13, {self.p['MAXPOLL']}\ns_cbranch_scc1 {DA}\ns_cbranch_vccz {DA}")
        issue(RA)
        e(f"s_waitcnt vmcnt({nl})")
        self.tagcheck(tags(RB), acc)
        e(f"s_cbranch_vccnz {L}")
        finish(RB)
        e.label(DA)
        finish(RA)
    def expand4(self, dst, src, pi):
        for q in range(4): self.e(f"v_perm_b32 v{dst+q}, v{src}, v{src}, v{SELB+4*pi+q}")
    def gemv8(self, acc, frag, data, toks, E=(44, 48)):
        e = self.e
        self.expand4(E[0], frag, 0)
        for i in range(8):
            if i + 1 < 8: self.expand4(E[(i + 1) & 1], frag + ((i + 1) >> 1), (i + 1) & 1)
            if toks is not None and toks[i] is not None: e.wait_vm(toks[i])
            e(f"v_mfma_f32_16x16x32_bf16 {vr(acc)}, {vr(E[i&1])}, {vr(data+4*i)}, {'0' if i == 0 else vr(acc)}")

    def prologue(self):
        e, nt = self.e, self.p["NT"]
        e("s_cmp_ge_u32 s2, 256\ns_cbranch_scc1 L_end")
        e("s_load_dwordx16 s[16:31], s[0:1], 0\ns_load_dwordx8 s[32:39], s[0:1], 64\ns_load_dwordx4 s[40:43], s[0:1], 96")
        if self.p["TIMING"]:
            for i in range(72, 98): e(f"s_mov_b32 s{i}, 0")
            e("s_memrealtime s[70:71]")
        if self.p["PAD"]: e("s_memrealtime s[80:81]\ns_mov_b32 s82, 0")
        e("s_getpc_b64 s[4:5]")
        e.label("L_pc")
        if self.p["CPF"] == 1:
            e("v_lshlrev_b32 v4, 6, v0\nv_min_u32 v4, L_codeend-L_pc-4, v4")
            e.vmem("global_load_dword v5, v4, s[4:5]")
        elif self.p["CPF"] == 2:
            e("v_lshlrev_b32 v4, 7, v0\nv_cmp_gt_u32 vcc, L_codeend-L_pc-4, v4\ns_and_saveexec_b64 s[12:13], vcc\ns_cbranch_execz L_nopf")
            e("global_load_dword v5, v4, s[4:5]")
            e.label("L_nopf")
            e("s_mov_b64 exec, -1")
        elif self.p["CPF"] == 3:
            e("s_cmp_lt_u32 s2, 224\ns_cbranch_scc1 L_nopf")
            e("v_lshlrev_b32 v4, 6, v0\nv_min_u32 v4, L_codeend-L_pc-4, v4")
            e("global_load_dword v5, v4, s[4:5]")
            e.label("L_nopf")
        e(f"v_lshrrev_b32 v6, 6, v0\nv_and_b32 v{vL}, 63, v0\nv_and_b32 v{vC}, 15, v0\nv_bfe_u32 v{vG}, v0, 4, 2")
        e(f"v_readfirstlane_b32 s{sW}, v6")
        e(f"s_and_b32 s{sX}, s2, 7\ns_lshr_b32 s{sSLOT}, s2, 3")
        e(f"v_and_b32 v7, 3, v0\nv_lshlrev_b32 v7, 4, v7\nv_lshl_add_u32 v7, v{vG}, 6, v7\nv_and_b32 v8, 7, v0\nv_lshlrev_b32 v10, 4, v{vL}")
        e(f"s_cmp_lt_u32 s{sSLOT}, 8\ns_cbranch_scc1 L_astream")
        e(f"s_sub_u32 s64, s{sSLOT}, 8\ns_mul_i32 s{sH1}, s64, 43\ns_lshr_b32 s{sH1}, s{sH1}, 8\ns_mul_i32 s3, s{sH1}, 6\ns_sub_u32 s{sJ}, s64, s3\n" + (f"s_add_u32 s{sH1}, s{sH1}, {self.p['HROT']}\ns_and_b32 s{sH1}, s{sH1}, 3\n" if self.p["HROT"] else "") + f"s_lshl_b32 s3, s{sX}, 2\ns_add_u32 s{sH1}, s{sH1}, s3")
        e(f"s_mul_i32 s3, s{sJ}, {96*8192}\ns_lshl_b32 s12, s{sH1}, 8\ns_add_u32 s61, s3, s12")
        e(f"v_lshrrev_b32 v6, 4, v0\nv_lshlrev_b32 v4, 13, v6\nv_lshl_add_u32 v4, v{vC}, 4, v4\nv_add_u32 v4, s61, v4\nv_add_u32 v11, 0x40000, v4\nv_add_u32 v12, 0x80000, v4")
        e(f"s_mul_i32 s12, s{sJ}, 192\nv_lshl_add_u32 v6, v6, 1, s12")
        e("s_mov_b32 s50, 0x400000\ns_mov_b32 s51, 0x20000")
        e("s_movk_i32 s58, 0x400\ns_mov_b32 s59, 0x20000\ns_movk_i32 s46, 0x400\ns_mov_b32 s47, 0x20000")
        e(f"s_cmp_eq_u32 s{sW}, 7\ns_waitcnt lgkmcnt(0)")
        if self.p["WARMQ"]:
            wm = self.p["WM"].replace("_", " ")
            e("s_cbranch_scc0 L_nowarm")
            e(f"s_lshl_b32 s14, s{sH1}, 14\ns_add_u32 s14, s14, {WS_QP}\ns_add_u32 s4, s42, s14\ns_addc_u32 s5, s43, 0\nv_lshlrev_b32 v9, 3, v10\nv_add_u32 v13, 0x2000, v9")
            e(f"global_load_dword v5, v9, s[4:5] {wm}\ns_mov_b32 exec_hi, 0\nglobal_load_dword v5, v13, s[4:5] {wm}")
            e(f"s_lshl_b32 s14, s{sX}, 11\ns_add_u32 s14, s14, {WS_BML}\ns_add_u32 s4, s42, s14\ns_addc_u32 s5, s43, 0\ns_mov_b32 exec_lo, 0xffff\nglobal_load_dword v5, v9, s[4:5] {wm}\ns_mov_b64 exec, -1\ns_cmp_eq_u32 s{sW}, 7")
            e.label("L_nowarm")
        e("s_mov_b32 s48, s20\ns_mov_b32 s49, s21\ns_mov_b32 s56, s16\ns_mov_b32 s57, s17")
        for i in range(3): e.vmem(f"buffer_load_ushort v{16+i}, v6, s[56:59], 0 offen offset:{64*i}")
        for i in range(3): self.tA = e.vmem(f"buffer_load_dwordx4 {vr(128+4*i)}, v{(4,11,12)[i]}, s[48:51], 0 offen {nt}")
        e("s_mov_b32 s44, s28\ns_mov_b32 s45, s29")
        for i in range(3): e.vmem(f"buffer_load_ushort v{19+i}, v6, s[44:47], 0 offen offset:{64*i}")
        e("v_mov_b32 v22, v4\ns_cbranch_scc0 L_notctrl")

    def wq_load(self, i):
        e = self.e
        if i == 0: self.srd(72, 34, 1 << 22)
        t = e.vmem(f"buffer_load_dwordx4 {vr(140+4*i)}, v22, s[16:19], 0 offen {self.p['NT']}")
        if i < 2: e("v_add_u32 v22, 0x40000, v22")
        return t
    def p1_gemv(self, X, W, dst):
        e = self.e
        for i in range(3): self.expand4(44 + 4 * i, X + i, 0)
        for i in range(3): e(f"v_mfma_f32_16x16x32_bf16 v[152:155], {vr(44+4*i)}, {vr(W+4*i)}, {'0' if i == 0 else 'v[152:155]'}")
        e(f"v_lshlrev_b32 v11, 4, v0")
        e.ds(f"ds_write_b128 v11, v[152:155] offset:{dst}")
    def p1_reduce(self, src, R, pub):
        e = self.e
        e(f"v_and_b32 v11, 31, v{vL}\nv_lshlrev_b32 v11, 4, v11\nv_lshrrev_b32 v12, 5, v{vL}\nv_lshl_add_u32 v11, v12, 12, v11")
        tk = [e.ds(f"ds_read_b128 {vr(R+4*w)}, v11 offset:{src+1024*w}") for w in range(4)]
        e(f"v_mov_b32 v{pub+1}, s{sT}\nv_mov_b32 v{pub+3}, s{sT}")
        for w in range(1, 4):
            e.wait_lg(tk[w])
            e(f"v_pk_add_f32 v[{R}:{R+1}], v[{R}:{R+1}], v[{R+4*w}:{R+4*w+1}]\nv_pk_add_f32 v[{R+2}:{R+3}], v[{R+2}:{R+3}], v[{R+4*w+2}:{R+4*w+3}]")
        e(f"v_permlane32_swap_b32 v{R}, v{R+2}\nv_permlane32_swap_b32 v{R+1}, v{R+3}\nv_add_f32 v{pub}, v{R}, v{R+2}\nv_add_f32 v{pub+2}, v{R+1}, v{R+3}")

    def selectors(self):
        e = self.e
        e(f"s_mov_b32 s62, 0\ns_mov_b32 s63, -1\ns_mov_b32 {sCS}, {f32(CS)}")
        self.srd(44, 42, WS_SIZE)
        e("v_and_b32 v15, 3, v0\nv_lshlrev_b32 v15, 4, v15\nv_mov_b32 v13, 0\nv_mov_b32 v11, 0x0c0c0c0c\nv_and_b32 v14, 4, v0\nv_cmp_ne_u32 vcc, 0, v14")
        for pi, d in ((0, 0x0d0c), (1, 0x0f0e)):
            a = SELA + 2 * pi
            e(f"v_mov_b32 v12, {d:#x}\nv_lshlrev_b64 v[{a}:{a+1}], v15, v[12:13]\nv_xor_b32 v{a}, v11, v{a}\nv_xor_b32 v{a+1}, v11, v{a+1}")
            b = SELB + 4 * pi
            e(f"v_cndmask_b32 v{b}, v{a}, v11, vcc\nv_cndmask_b32 v{b+1}, v{a+1}, v11, vcc\nv_cndmask_b32 v{b+2}, v11, v{a}, vcc\nv_cndmask_b32 v{b+3}, v11, v{a+1}, vcc")
    def tagmake(self):
        self.e(f"s_waitcnt lgkmcnt(0)\ns_mul_i32 s{sT}, s{sT}, 0x9e3779b1\ns_add_u32 s{sT}, s{sT}, 0x7f4a7c15")

    def p1_compute(self, ctrl):
        e = self.e
        self.selectors()
        if ctrl:
            self.tagmake()
            e(f"v_mov_b32 v57, s{sT}\nv_mov_b32 v59, s{sT}")
            e.ds(f"ds_write_b32 v13, v57 offset:{LB_FLAG+8}")
            for k in (0, 4, 12, 16, 20): e.ds(f"ds_write_b32 v13, v13 offset:{LB_FLAG+k}")
        e.wait_vm(self.tA)
        self.p1_gemv(16, 128, L_PR)
        e("s_waitcnt lgkmcnt(0)\ns_barrier")
        self.stamp(1)
        if not ctrl:
            e.ds(f"ds_read_b32 v12, v13 offset:{LB_FLAG+8}")
            tq = [self.wq_load(i) for i in range(self.p["WQ0"])]
            e(f"s_waitcnt lgkmcnt(0)\nv_readfirstlane_b32 s{sT}, v12")
            e("s_barrier")
            tq += [self.wq_load(i) for i in range(self.p["WQ0"], 3)]
            return tq[2]

    def phase1(self):
        e, nt = self.e, self.p["NT"]
        WQ, WU = 64, 160
        e(f"s_load_dword s{sT}, s[42:43], 0")
        e(f"v_bfe_u32 v14, v0, 2, 2\nv_lshl_add_u32 v9, v14, 15, v7\nv_add_u32 v9, s61, v9\nv_lshl_add_u32 v14, v14, 14, v7\nv_add_u32 v14, s61, v14")
        self.srd(56, 22, 1 << 22)
        tu = []
        for t in range(4):
            for a in range(4):
                tu.append(e.vmem(f"buffer_load_dwordx4 {vr(WU+16*a+4*t)}, v9, s[56:59], 0 offen {nt}"))
                if (t, a) != (3, 3): e(f"v_add_u32 v9, {0x2000 if a < 3 else 0x20000-0x6000:#x}, v9")
        e("v_add_u32 v14, 0x80000, v14")
        for t in range(4):
            for a in range(2):
                tu.append(e.vmem(f"buffer_load_dwordx4 {vr(WU+64+16*a+4*t)}, v14, s[56:59], 0 offen {nt}"))
                if (t, a) != (3, 1): e(f"v_add_u32 v14, {0x2000 if a < 1 else 0x10000-0x2000:#x}, v14")
        self.p1_compute(True)
        e(f"s_lshl_b32 s14, s{sH1}, 14\ns_add_u32 s14, s14, {WS_QP}\ns_lshl_b32 s15, s{sJ}, 11\ns_add_u32 s15, s15, s14")
        self.p1_reduce(L_PR, WQ, 52)
        tst = e.vmem(f"buffer_store_dwordx4 v[52:55], v10, {WS}, s15 offen")
        self.stamp(2)
        e(f"s_add_u32 s68, s15, {SLOW}")
        def qp_slow():
            e.vmem(f"buffer_store_dwordx4 v[52:55], v10, {WS}, s68 offen sc1")
        QF = [24, 28, 120, 124]
        for b in QF:
            for r in range(4): e(f"v_mov_b32 v{b+r}, 0")
        e(f"v_and_b32 v9, 1, v{vG}\nv_lshlrev_b32 v9, 3, v9\nv_lshl_add_u32 v9, v{vC}, 4, v9\nv_lshrrev_b32 v12, 1, v{vG}\nv_lshl_add_u32 v9, v12, 2, v9")
        e(f"v_add_u32 v13, {L_LQ}, v9\nv_add_u32 v14, {L_LQ}, v7")
        def gat(base, mat):
            def f():
                for jj in range(6):
                    if jj % 2 == 0: e(f"s_add_u32 s12, {base}, {jj*2048}")
                    t = e.vmem(f"buffer_load_dwordx4 {vr(WQ+4*jj)}, v10, {WS}, s12 offen offset:{(jj&1)*2048+1024*mat} sc1")
                return t
            return f
        tags = [WQ + 4 * jj + k for jj in range(6) for k in (1, 3)]
        def sum6():
            for jj in range(1, 6):
                e(f"v_add_f32 v{WQ}, v{WQ}, v{WQ+4*jj}\nv_add_f32 v{WQ+2}, v{WQ+2}, v{WQ+4*jj+2}")
        if self.p["TIMING"]:
            e.wait_vm(tu[min(23, 23 - self.p["NU"])]); self.stamp(22)
        e.wait_vm(tu[23 - self.p["NU"]] if self.p["NU"] >= 0 else tst)
        if self.p["NU"] < 0 and self.p["TIMING"]:
            pass
        self.stamp(21)
        for _ in range(self.p["GSL"]): e("s_sleep 2")
        tg = gat("s14", 0)()
        if not self.p["RLATE"]: e("s_barrier")
        for i in range(3): tq = self.wq_load(i)
        e.wait_vm(tg)
        self.tagcheck(tags, 60)
        e("s_cbranch_vccnz L_p1_retry")
        if self.p["TIMING"]: e("s_mov_b32 s13, 0")
        qp_slow()
        e.label("L_p1_got")
        if self.p["RLATE"]: e("s_barrier")
        def ool():
            e.label("L_p1_retry")
            self.poll(gat("s14", 0), tags, 60, "gqa", fast="s14", slowpub=qp_slow)
            e("s_branch L_p1_got")
        self.ool.append(ool)
        self.stamp(3); self.cnt(20)
        sum6()
        e(f"v_cvt_pk_bf16_f32 v60, v{WQ}, v{WQ+2}")
        e.ds(f"ds_write_b32 v13, v60")
        e("s_waitcnt lgkmcnt(0)")
        for t in range(4):
            m = 0x000f000f << (4 * t)
            self.exec_mask(m, m)
            e.ds(f"ds_read_b128 {vr(QF[t])}, v14")
        self.exec_full()
        e("s_waitcnt lgkmcnt(0)")
        for a in range(6):
            for t in range(4):
                e(f"v_mfma_f32_16x16x32_bf16 {vr(64+4*a)}, {vr(WU+16*a+4*t)}, {vr(QF[t])}, {'0' if t == 0 else vr(64+4*a)}")
        e(f"s_lshl_b32 s12, s{sH1}, 11\ns_mul_i32 s3, s{sJ}, 384\ns_add_u32 s12, s12, s3\ns_add_u32 s12, s12, {WS_QABS}")
        e(f"v_and_b32 v15, 12, v{vC}\nv_add_u32 v15, v15, v{vG}\nv_lshlrev_b32 v14, 3, v15\nv_lshlrev_b32 v15, 4, v15")
        e(f"s_mov_b32 s3, 0x00110011\ns_cmp_lt_u32 s{sJ}, 5\ns_cselect_b32 s3, 0x11111111, s3")
        self.quadsum([(64 + 4 * a, 44 + a) for a in range(6)])
        e(f"v_cvt_pk_bf16_f32 v56, v44, v45\nv_cvt_pk_bf16_f32 v58, v46, v47\nv_cvt_pk_bf16_f32 v62, v48, v49\nv_mov_b32 v63, s{sT}")
        e("s_mov_b32 exec_lo, s3\ns_mov_b32 exec_hi, s3")
        e.vmem(f"buffer_store_dwordx4 v[56:59], v15, {WS}, s12 offen sc1")
        e("s_cbranch_scc0 L_p1done")
        e(f"buffer_store_dwordx2 v[62:63], v14, {WS}, s12 offen offset:256 sc1")
        e.label("L_p1done")
        self.exec_full()
        self.stamp(4)
        e.wait_vm(tq)
        self.p1_gemv(19, 140, L_PRB)
        e("v_mov_b32 v15, 0")
        L = self.lab("wqb")
        e.label(L)
        e.ds(f"ds_read_b32 v60, v15 offset:{LB_FLAG+12}")
        e(f"s_waitcnt lgkmcnt(0)\nv_readfirstlane_b32 s3, v60\ns_cmp_lt_u32 s3, 7\ns_cbranch_scc1 {L}")
        self.p1_reduce(L_PRB, WQ, 52)
        e.vmem(f"buffer_store_dwordx4 v[52:55], v10, {WS}, s15 offen offset:1024")
        e.vmem(f"buffer_store_dwordx4 v[52:55], v10, {WS}, s68 offen offset:1024 sc1")
        R = 160
        e(f"s_lshl_b32 s67, s{sX}, 16\ns_add_u32 s67, s67, {WS_QP}")
        def gb():
            for hh in range(4):
                for jj in range(6):
                    if jj % 2 == 0: e(f"s_add_u32 s12, s67, {hh*16384+jj*2048}")
                    e.vmem(f"buffer_load_dwordx4 {vr(R+24*hh+4*jj)}, v10, {WS}, s12 offen offset:{(jj&1)*2048+1024} sc1")
        self.poll(gb, [R + 4 * i + k for i in range(24) for k in (1, 3)], 60, "gqb", fast="s67")
        for jj in range(1, 6):
            for hh in range(4):
                b = R + 24 * hh
                e(f"v_add_f32 v{b}, v{b}, v{b+4*jj}\nv_add_f32 v{b+2}, v{b+2}, v{b+4*jj+2}")
        e("v_mov_b32 v15, 0\nv_mov_b32 v61, 1")
        for hh in range(4):
            b = R + 24 * hh
            e(f"v_cvt_pk_bf16_f32 v{b}, v{b}, v{b+2}")
            e.ds(f"ds_write_b32 v9, v{b} offset:{LB_Q+256*hh}")
        e.ds(f"ds_write_b32 v15, v61 offset:{LB_FLAG}")
        e("s_waitcnt lgkmcnt(0)")
        self.stamp(18); self.cnt(19)
        if self.p["TLBP"]:
            e(f"s_lshl_b32 s3, s{sX}, 22\ns_add_u32 s4, s32, s3\ns_addc_u32 s5, s33, 0\ns_load_dword s12, s[4:5], 0")
            e("s_add_u32 s4, s4, 0x200000\ns_addc_u32 s5, s5, 0\ns_load_dword s12, s[4:5], 0")
            e("s_add_u32 s4, s4, 0x1ffffc\ns_addc_u32 s5, s5, 0\ns_load_dword s12, s[4:5], 0")
            e(f"s_lshl_b32 s3, s{sX}, 19\ns_add_u32 s4, s36, s3\ns_addc_u32 s5, s37, 0\ns_load_dword s12, s[4:5], 0\ns_load_dword s12, s[38:39], 0")
            e(f"s_add_u32 s4, s42, {WS_AO}\ns_addc_u32 s5, s43, 0\ns_load_dword s12, s[4:5], 0\ns_waitcnt lgkmcnt(0)")

    def quadsum(self, pairs):
        e = self.e
        for D, S in pairs: e(f"v_mov_b32_dpp v{S}, v{D} quad_perm:[0,0,0,0] row_mask:0xf bank_mask:0xf")
        for r in range(1, 4):
            for D, S in pairs: e(f"v_add_f32_dpp v{S}, v{D+r}, v{S} quad_perm:[{r},{r},{r},{r}] row_mask:0xf bank_mask:0xf")

    def b_ids(self):
        e = self.e
        e(f"s_lshr_b32 s65, s64, 2\ns_lshl_b32 s3, s{sX}, 2\ns_add_u32 s65, s65, s3\ns_and_b32 s66, s64, 3")
        e(f"v_bfe_u32 v6, v{vL}, 2, 2\nv_lshl_add_u32 v6, v6, 8, v7")
        e(f"s_lshl_b32 s3, s65, 7\ns_and_b32 s12, s{sW}, 3\ns_lshl_b32 s12, s12, 5\ns_add_u32 s3, s3, s12\ns_lshr_b32 s12, s{sW}, 2\ns_lshl_b32 s12, s12, 2\ns_add_u32 s3, s3, s12")
        if self.p["WOSP"]:
            e(f"s_lshl_b32 s3, s3, 10\ns_and_b32 s12, s66, 1\ns_lshl_b32 s12, s12, 8\ns_add_u32 s3, s3, s12\ns_lshr_b32 s12, s66, 1\ns_lshl_b32 s12, s12, 7\ns_add_u32 s69, s3, s12")
            e(f"v_bfe_u32 v4, v{vL}, 3, 1\nv_lshlrev_b32 v4, 9, v4\nv_lshl_add_u32 v4, v{vG}, 10, v4\nv_lshl_add_u32 v4, v8, 4, v4")
        else:
            e(f"s_lshl_b32 s3, s3, 10\ns_lshl_b32 s12, s66, 8\ns_add_u32 s69, s3, s12")
            e(f"v_lshlrev_b32 v4, 10, v{vG}\nv_lshl_add_u32 v4, v{vC}, 4, v4")
        self.srd(48, 30, 1 << 25); self.srd(52, 32, 1 << 25); self.srd(56, 36, 1 << 22)
        e("s_cmp_lt_u32 s64, 16\ns_cselect_b32 s58, s58, 0")
    def bo_addr(self):
        e = self.e
        e(f"s_mul_i32 s68, s65, {24*512}\ns_lshl_b32 s3, s{sW}, 6\ns_add_u32 s68, s68, s3\ns_add_u32 s68, s68, {WS_BO}")
        e(f"v_and_b32 v9, 3, v{vL}\nv_lshlrev_b32 v9, 4, v9\nv_lshrrev_b32 v6, 2, v{vL}\nv_lshl_add_u32 v6, v6, 9, v9\nv_and_b32 v9, 0xfff, v6\nv_add_u32 v9, {16*512}, v9")
    def bo_warm(self):
        e = self.e
        self.bo_addr()
        L = self.lab("bow")
        e(f"s_cmp_lt_u32 s64, 16\ns_cbranch_scc0 {L}")
        e(f"buffer_load_dword v5, v6, {WS}, s68 offen {self.p['WM'].replace('_',' ')}")
        e(f"buffer_load_dword v5, v9, {WS}, s68 offen {self.p['WM'].replace('_',' ')}")
        e.label(L)
    def b_kload(self, KR, t, n):
        return self.e.vmem(f"buffer_load_dwordx4 {vr(KR+16*t+4*n)}, v6, s[48:51], s14 offen offset:{0 if self.ilv else n*1024} {self.p['NT']}")
    def b_vload(self, VR, t, n):
        return self.e.vmem(f"buffer_load_dwordx4 {vr(VR+16*t+4*n)}, v10, s[52:55], s15 offen offset:{0 if self.ilv else n*1024} {self.p['NT']}")
    def b_woloads(self):
        for i in range(4):
            self.e.vmem(f"buffer_load_dwordx4 {vr(self.WO[i])}, v4, s[56:59], s69 offen {self.p['NT']}")
            if i < 3: self.e("s_addk_i32 s69, 0x2000")
    def b_chunks(self, nt, KR, bias, wait_q):
        e = self.e
        ch = []
        def c_q():
            e(f"v_lshrrev_b32 v11, 2, v{vC}\nv_lshl_add_u32 v12, v11, 8, v7")
            e(f"v_lshlrev_b32 v13, 5, v11\ns_lshl_b32 s3, s{sW}, 2\nv_add_u32 v14, s3, v13\nv_mov_b32 v15, 0")
            if wait_q:
                L = self.lab("wq")
                e.label(L)
                e.ds(f"ds_read_b32 v60, v15 offset:{LB_FLAG}")
                e(f"s_waitcnt lgkmcnt(0)\nv_readfirstlane_b32 s3, v60\ns_cmp_eq_u32 s3, 0\ns_cbranch_scc1 {L}")
            self.stamp(5)
            e.ds(f"ds_read_b128 v[16:19], v12 offset:{LB_Q}")
            e("s_waitcnt lgkmcnt(0)")
        ch.append((-1, c_q))
        def c_qk(t):
            def f():
                b = KR + 16 * t
                if t < nt:
                    for i in range(4): e(f"v_mfma_f32_16x16x32_bf16 {vr(44+4*i)}, {vr(b+4*i)}, v[16:19], 0")
                    self.quadsum([(44 + 4 * i, b + i) for i in range(4)])
                    if t == 0: e(f"v_max3_f32 v60, v{b}, v{b+1}, v{b+2}\nv_max_f32 v60, v60, v{b+3}")
                    else: e(f"v_max3_f32 v60, v60, v{b}, v{b+1}\nv_max3_f32 v60, v60, v{b+2}, v{b+3}")
                if t == nt:
                    self.allred_G([60], [61], "v_max_f32")
                    e(f"v_mul_f32 v62, {sCS}, v60")
            return f
        for t in range(nt + 1): ch.append((min(t, nt - 1), c_qk(t)))
        def c_exp(t):
            def f():
                b = KR + 16 * t
                for r in range(4): e(f"v_fma_f32 v{b+r}, v{b+r}, {sCS}, -v62")
                for r in range(4): e(f"v_exp_f32 v{b+r}, v{b+r}")
                if t == 0: e(f"v_add_f32 v63, v{b}, v{b+1}")
                else: e(f"v_add_f32 v63, v63, v{b}\nv_add_f32 v63, v63, v{b+1}")
                e(f"v_cvt_pk_bf16_f32 v{b+4}, v{b}, v{b+1}\nv_add_f32 v63, v63, v{b+2}\nv_cvt_pk_bf16_f32 v{b+5}, v{b+2}, v{b+3}\nv_add_f32 v63, v63, v{b+3}")
            return f
        for t in range(nt): ch.append((nt - 1, c_exp(t)))
        def c_l():
            self.allred_G([63], [61], "v_add_f32")
            if bias: e(f"v_add_f32 v62, {bias}, v62")
            e("v_mov_b32 v61, 1")
            self.exec_mask(0x1111, 0)
            e.ds(f"ds_write_b32 v14, v62 offset:{LB_MX}")
            e.ds(f"ds_write_b32 v14, v63 offset:{LB_LS}")
            e("s_mov_b32 exec_lo, 1")
            e.ds(f"ds_add_u32 v15, v61 offset:{LB_FLAG+4}")
            self.exec_full()
            self.stamp(6)
        ch.append((nt - 1, c_l))
        return ch
    def b_pv_prep(self, KR, n):
        t, i = n >> 2, n & 3
        E = 44 + 2 * (n & 3)
        for q in range(2): self.e(f"v_perm_b32 v{E+q}, v{KR+16*t+4+(i>>1)}, v{KR+16*t+4+(i>>1)}, v{SELA+2*(i&1)+q}")
    def b_pv_mma(self, VR, n):
        t, i = n >> 2, n & 3
        E = 44 + 2 * (n & 3)
        b = VR + 16 * t + 4 * i
        for h in range(2):
            acc = 24 + 4 * h
            self.e(f"v_mfma_f32_16x16x16_bf16 {vr(acc)}, v[{E}:{E+1}], v[{b+2*h}:{b+2*h+1}], {'0' if n == 0 else vr(acc)}")
    def b_owrite(self):
        e = self.e
        e(f"s_lshl_b32 s3, s{sW}, 11\nv_add_u32 v11, s3, v10")
        e.ds(f"ds_write_b128 v11, v[24:27] offset:{LB_R4}")
        e.ds(f"ds_write_b128 v11, v[28:31] offset:{LB_R4+1024}")
        e("s_waitcnt lgkmcnt(0)")
        e("s_branch L_btail")

    def b_ctrl(self):
        e = self.e
        KR, VR = 64, 160
        self.WO = [72, 88, 104, 120]
        self.b_ids()
        e("s_cmp_ge_u32 s64, 16\ns_cselect_b32 s50, s50, 0\ns_cselect_b32 s54, s54, 0")
        e(f"s_cselect_b32 s61, 0, {f32(-1e30)}")
        e(f"s_lshl_b32 s14, s{sX}, 22\ns_lshl_b32 s3, s64, 1\ns_add_u32 s3, s3, {1008-32}\ns_lshl_b32 s3, s3, 12\ns_cmp_ge_u32 s64, 16\ns_cselect_b32 s3, s3, 0\ns_add_u32 s14, s14, s3\ns_mov_b32 s15, s14")
        for t in range(2):
            for n in range(4): self.b_kload(KR, t, n)
            if t == 0: e("s_addk_i32 s14, 0x1000")
        for t in range(2):
            for n in range(4): self.b_vload(VR, t, n)
            if t == 0: e("s_addk_i32 s15, 0x1000")
        e("s_waitcnt vmcnt(0) lgkmcnt(0)")
        for _, f in self.b_chunks(2, KR, "s61", False): f()
        for n in range(8):
            self.b_pv_prep(KR, n)
            self.b_pv_mma(VR, n)
        self.bo_warm() if self.p["WARMB"] else self.bo_addr()
        e(f"s_lshl_b32 s12, s{sX}, 11\ns_lshl_b32 s3, s64, 4\ns_add_u32 s12, s12, s3\ns_add_u32 s12, s12, {WS_BML}")
        e(f"v_lshlrev_b32 v11, 4, v13\nv_mov_b32 v53, s{sT}\nv_mov_b32 v55, s{sT}")
        if self.p["NL"]:
            L = self.lab("wtk")
            e.label(L)
            e("s_sleep 2")
            e.ds(f"ds_read_b32 v60, v15 offset:{LB_FLAG+20}")
            e(f"s_waitcnt lgkmcnt(0)\nv_readfirstlane_b32 s3, v60\ns_cmp_eq_u32 s3, 0\ns_cbranch_scc1 {L}")
            e("v_mov_b32 v144, 1\ns_mov_b64 exec, 1")
            e("global_atomic_add v145, v15, v144, s[40:41] sc0 sc1")
            e(f"s_waitcnt vmcnt(0)\nv_cmp_gt_u32 vcc, {self.p['RK']}, v145\nv_cndmask_b32 v145, 0, 1, vcc")
            e.ds(f"ds_write_b32 v15, v145 offset:{LB_FLAG+16}")
            self.exec_full()
        L = self.lab("wml")
        e.label(L)
        e("s_sleep 2")
        e.ds(f"ds_read_b32 v60, v15 offset:{LB_FLAG+4}")
        e(f"s_waitcnt lgkmcnt(0)\nv_readfirstlane_b32 s3, v60\ns_cmp_lt_u32 s3, 8\ns_cbranch_scc1 {L}")
        e.ds(f"ds_read_b128 v[128:131], v13 offset:{LB_MX}")
        e.ds(f"ds_read_b128 v[132:135], v13 offset:{LB_MX+16}")
        e.ds(f"ds_read_b128 v[136:139], v13 offset:{LB_LS}")
        e.ds(f"ds_read_b128 v[140:143], v13 offset:{LB_LS+16}")
        e("s_waitcnt lgkmcnt(0)")
        e("v_max3_f32 v52, v128, v129, v130\nv_max3_f32 v52, v52, v131, v132\nv_max3_f32 v52, v52, v133, v134\nv_max_f32 v52, v52, v135")
        for r in range(128, 136): e(f"v_sub_f32 v{r}, v{r}, v52")
        for r in range(128, 136): e(f"v_exp_f32 v{r}, v{r}")
        e("v_mul_f32 v54, v128, v136")
        for r in range(1, 8): e(f"v_fmac_f32 v54, v{128+r}, v{136+r}")
        self.exec_mask(0x1111, 0)
        e.ds(f"ds_write_b128 v13, v[128:131] offset:{LB_G}")
        e.ds(f"ds_write_b128 v13, v[132:135] offset:{LB_G+16}")
        e.vmem(f"buffer_store_dwordx4 v[52:55], v11, {WS}, s12 offen")
        e(f"s_add_u32 s12, s12, {SLOW}")
        e.vmem(f"buffer_store_dwordx4 v[52:55], v11, {WS}, s12 offen sc1")
        self.exec_full()
        e("s_cmp_lt_u32 s64, 16\ns_cbranch_scc0 L_bc_nod")
        if self.p["WOK"] <= 23: self.b_woloads()
        e(f"v_and_b32 v15, 31, v{vL}\nv_min_u32 v11, 23, v15\nv_lshlrev_b32 v11, 4, v11\ns_lshl_b32 s12, s65, 9\ns_add_u32 s12, s12, {WS_BML}")
        def gm(): e.vmem(f"buffer_load_dwordx4 v[52:55], v11, {WS}, s12 offen sc1")
        self.poll(gm, [53, 55], 60, "gml", fast="s12")
        e("v_mov_b32 v56, v52")
        self.rowred([56], "v_max_f32", (8, 4, 2, 1))
        self.allred_G([56], [57], "v_max_f32", steps=(16,))
        e("v_sub_f32 v52, v52, v56\nv_exp_f32 v52, v52\nv_cmp_gt_u32 vcc, 24, v15\nv_cndmask_b32 v52, 0, v52, vcc\nv_mul_f32 v54, v54, v52")
        self.rowred([54], "v_add_f32", (8, 4, 2, 1))
        self.allred_G([54], [57], "v_add_f32", steps=(16,))
        e("v_rcp_f32 v54, v54\nv_lshlrev_b32 v15, 2, v15\nv_mul_f32 v52, v52, v54")
        e.ds(f"ds_write_b32 v15, v52 offset:{LB_F}")
        e.label("L_bc_nod")
        self.b_owrite()

    def b_stream(self):
        e, p = self.e, self.p
        KR, VR, NT_ = 64, 160, 6
        self.WO = [72, 88, 104, 120]
        self.b_ids()
        e(f"s_mul_i32 s3, s64, 7\ns_add_u32 s3, s3, s{sW}\ns_lshl_b32 s3, s3, {10 if p['ILV1'] else 12}\ns_lshl_b32 s14, s{sX}, 22\ns_add_u32 s14, s14, s3\ns_mov_b32 s15, s14\ns_mov_b32 s67, {168*(1024 if p['ILV1'] else 4096)}")
        self.ilv = bool(p["ILV1"])
        Df = lambda n: p["D_B0"] if n < p["NB0"] else p["D_B"] if n < p["NB2"] else p["D_B2"]
        D = p["D_B"]
        tok = []
        ch = []
        def issue(n, throttle=True):
            if throttle and n >= Df(n):
                if n < p["NDUTY"]:
                    L = self.lab("dty")
                    e(f"s_cbranch_vccnz {L}")
                    e.wait_vm(tok[n - Df(n)])
                    e.label(L)
                    if n > Df(n): e.wait_vm(tok[n - Df(n) - 1])
                elif p["NL"] and n >= p["NL"]:
                    if n == p["NL"]:
                        e(f"s_waitcnt lgkmcnt(0)\nv_readfirstlane_b32 s3, v5\ns_cmp_eq_u32 s3, 0\ns_cselect_b64 vcc, -1, 0")
                    L = self.lab("bal")
                    e(f"s_cbranch_vccnz {L}")
                    e.wait_vm(tok[n - p["DSLOW"]])
                    e.label(L)
                    e.wait_vm(tok[n - Df(n)])
                else: e.wait_vm(tok[n - Df(n)])
            if p["NL"] and n == p["NL"] - 1:
                e.ds(f"ds_read_b32 v5, v15 offset:{LB_FLAG+16}")
            if p["NL"] and n == p["NTK"]:
                assert n > p["N1"]
                L = self.lab("tk")
                e(f"s_cmp_eq_u32 s{sW}, 6\ns_cbranch_scc0 {L}")
                e(f"ds_write_b32 v15, v32 offset:{LB_FLAG+20}")
                e.label(L)
            self.prog(n, 4)
            if n < 24:
                if n and (n % 4 == 0 or self.ilv): e("s_add_u32 s14, s14, s67")
                tok.append(self.b_kload(KR, n >> 2, n & 3))
            elif n < 48:
                m = n - 24
                if m and (m % 4 == 0 or self.ilv): e("s_add_u32 s15, s15, s67")
                tok.append(self.b_vload(VR, m >> 2, m & 3))
        n = 0
        if p["PRIO"]:
            L = self.lab("prio")
            e(f"s_cmp_ge_u32 s{sW}, 4\ns_cbranch_scc0 {L}\ns_setprio {p['PRIO']}")
            e.label(L)
        def touch():
            e(f"s_mul_i32 s3, s64, 7\ns_add_u32 s3, s3, s{sW}\ns_and_b32 s12, s3, 7\ns_lshl_b32 s12, s12, 13\ns_lshr_b32 s3, s3, 3\ns_add_u32 s3, s3, {p['TOUCH']}\ns_lshl_b32 s3, s3, 19\ns_add_u32 s3, s3, s12")
            e(f"s_lshl_b32 s12, s{sX}, 16\ns_add_u32 s3, s3, s12\nv_lshlrev_b32 v12, {p['TSH']}, v10\nv_add_u32 v12, s3, v12")
            for k in range(8 >> p["TSH"]):
                e.vmem(f"buffer_load_dword v5, v12, s[20:23], 0 offen {p['NT']}")
                if k + 1 < 8 >> p["TSH"]: e(f"v_add_u32 v12, {1024 << p['TSH']}, v12")
        if p["TOUCH"]:
            self.srd(20, 18, 1 << 24)
            if p["TPOS"] == 1: touch()
        tq = self.p1_compute(False)
        if p["TOUCH"] and p["TPOS"] == 0: touch()
        while n < p["D_B0"]: issue(n); n += 1
        e.wait_vm(tq)
        self.p1_gemv(19, 140, L_PRB)
        e("v_mov_b32 v12, 1\ns_mov_b64 exec, 1")
        e.ds(f"ds_add_u32 v13, v12 offset:{LB_FLAG+12}")
        self.exec_full()
        assert p["NDUTY"] <= p["N1"]
        if p["NDUTY"]:
            if p["DEEPW"] < 0: e("s_cmp_lt_u32 s64, 16\ns_cselect_b64 vcc, -1, 0")
            else: e(f"s_cmp_ge_u32 s{sW}, {7-p['DEEPW']}\ns_cselect_b64 vcc, -1, 0")
        while n < p["N1"]: issue(n); n += 1
        ch += self.b_chunks(NT_, KR, None, True)
        done = 0
        landed = -1
        while n < 48:
            if n == max(p["WARMO"], p["N1"]):
                assert n >= 24
                self.bo_warm() if p["WARMB"] else self.bo_addr()
            issue(n)
            if n == p["NWO"]:
                assert not ch
                self.b_woloads()
            landed = max(landed, n - Df(n))
            k = 0
            while ch and k < p["CPS"] and 4 * ch[0][0] + 3 <= landed:
                ch.pop(0)[1](); k += 1
            k = 0
            while not ch and done < min(landed - 24 + 1, 24) and k < p["PVK"]:
                self.b_pv_prep(KR, done); self.b_pv_mma(VR, done); done += 1; k += 1
            n += 1
        assert not ch
        assert done <= p["WOK"]
        while done < 24:
            self.b_pv_prep(KR, done)
            e.wait_vm(tok[24 + done])
            if done == p["WOK"] and not p["NWO"]:
                L = self.lab("wol")
                e(f"s_cmp_lt_u32 s{sW}, {p['WOLATE']}\ns_cbranch_scc0 {L}")
                v = e.vm
                self.b_woloads()
                e.vm = v
                e.label(L)
            self.b_pv_mma(VR, done); done += 1
        self.stamp(7)
        self.b_owrite()

    def b_tail(self):
        e = self.e
        e.label("L_btail")
        e("s_barrier")
        self.stamp(10)
        e(f"s_cmp_lt_u32 s{sW}, 2\ns_cbranch_scc0 L_bt_nored")
        e(f"s_lshl_b32 s3, s{sW}, 10\nv_add_u32 v11, s3, v10")
        e(f"v_lshlrev_b32 v13, 5, v{vG}")
        e.ds(f"ds_read_b128 v[44:47], v13 offset:{LB_G}")
        e.ds(f"ds_read_b128 v[48:51], v13 offset:{LB_G+16}")
        tk = [e.ds(f"ds_read_b128 {vr(128+4*w)}, v11 offset:{LB_R4+2048*w}") for w in range(8)]
        e(f"s_mul_i32 s15, s{sX}, {4*24*512}\ns_lshl_b32 s3, s64, 9\ns_add_u32 s15, s15, s3\ns_lshl_b32 s3, s{sW}, 8\ns_add_u32 s15, s15, s3\ns_add_u32 s15, s15, {WS_BO}")
        e(f"v_mul_u32_u24 v14, {24*512}, v{vG}\nv_lshl_add_u32 v14, v{vC}, 4, v14\nv_mov_b32 v53, s{sT}\nv_mov_b32 v55, s{sT}")
        for w in range(8):
            e.wait_lg(tk[w])
            g = 44 + (w & ~1)
            sel = f"op_sel:[0,{w&1},0] op_sel_hi:[1,{w&1},1]"
            for k in (0, 2):
                if w == 0: e(f"v_pk_mul_f32 v[{128+k}:{129+k}], v[{128+k}:{129+k}], v[{g}:{g+1}] op_sel:[0,0] op_sel_hi:[1,0]")
                else: e(f"v_pk_fma_f32 v[{128+k}:{129+k}], v[{128+4*w+k}:{129+4*w+k}], v[{g}:{g+1}], v[{128+k}:{129+k}] {sel}")
        e("v_cvt_pk_bf16_f32 v52, v128, v129\nv_cvt_pk_bf16_f32 v54, v130, v131")
        e.vmem(f"buffer_store_dwordx4 v[52:55], v14, {WS}, s15 offen")
        e(f"s_add_u32 s15, s15, {SLOW}")
        e.label("L_bt_nored")
        self.stamp(8)
        def bo_slow():
            L = self.lab("bos")
            e(f"s_cmp_lt_u32 s{sW}, 2\ns_cbranch_scc0 {L}")
            e(f"buffer_store_dwordx4 v[52:55], v14, {WS}, s15 offen sc1")
            e.label(L)
        e("s_cmp_lt_u32 s64, 16\ns_cbranch_scc1 L_bt_duty")
        bo_slow()
        self.exit()
        e.label("L_bt_duty")
        if self.p["NWO"] and self.p["B4B"]: e("s_barrier")
        if self.p["WOLATE"] < 7 and not self.p["NWO"]:
            L = self.lab("wol")
            e(f"s_barrier\ns_sub_u32 s3, s{sW}, {self.p['WOLATE']}\ns_cmp_lt_u32 s3, {7-self.p['WOLATE']}\ns_cbranch_scc0 {L}")
            self.b_woloads()
            e.label(L)
        e(f"v_and_b32 v11, 60, v{vL}")
        e.ds(f"ds_read_b32 v60, v11 offset:{LB_F}")
        e.ds(f"ds_read_b32 v61, v11 offset:{LB_F+64}")
        def g():
            e.vmem(f"buffer_load_dwordx4 v[128:131], v6, {WS}, s68 offen sc1")
            e.vmem(f"buffer_load_dwordx4 v[132:135], v9, {WS}, s68 offen sc1")
        self.poll(g, [129, 131, 133, 135], 62, "gbo", fast="s68", slowpub=bo_slow)
        self.stamp(11); self.cnt(12)
        e("s_waitcnt lgkmcnt(0)")
        for k, (src, f) in enumerate(((128, 60), (132, 61))):
            e(f"v_lshlrev_b32 v136, 16, v{src}\nv_and_b32 v137, 0xffff0000, v{src}\nv_lshlrev_b32 v138, 16, v{src+2}\nv_and_b32 v139, 0xffff0000, v{src+2}")
            for i in range(4):
                e(f"v_mul_f32 v{140+i}, v{f}, v{136+i}" if k == 0 else f"v_fmac_f32 v{140+i}, v{f}, v{136+i}")
        e("v_permlane32_swap_b32 v140, v142\nv_permlane32_swap_b32 v141, v143\nv_add_f32 v140, v140, v142\nv_add_f32 v141, v141, v143")
        e("v_permlane16_swap_b32 v140, v141\nv_add_f32 v140, v140, v141")
        self.rowred([140], "v_add_f32", (8, 4))
        e("v_cvt_pk_bf16_f32 v140, v140, v140")
        for i in range(4): e(f"v_mov_b32_dpp v{144+i}, v140 quad_perm:[{i},{i},{i},{i}] row_mask:0xf bank_mask:0xf")
        for i in range(4): self.expand4(148 + 4 * i, 144 + i, 0)
        for i in range(4):
            e(f"v_mfma_f32_16x16x32_bf16 v[24:27], {vr(148+4*i)}, {vr(self.WO[i])}, {'0' if i == 0 else 'v[24:27]'}")
        e(f"s_lshl_b32 s3, s{sW}, 10\nv_add_u32 v11, s3, v10")
        e.ds(f"ds_write_b128 v11, v[24:27] offset:{LB_R5}")
        e("s_waitcnt lgkmcnt(0)")
        self.stamp(13)
        e("s_barrier")
        self.stamp(14)
        e(f"s_cmp_eq_u32 s{sW}, 0\ns_cbranch_scc1 L_bt_fin")
        self.exit()
        e.label("L_bt_fin")
        e(f"v_and_b32 v11, 31, v{vL}\nv_lshlrev_b32 v11, 4, v11\nv_lshrrev_b32 v12, 5, v{vL}\nv_lshl_add_u32 v11, v12, 12, v11")
        tk = [e.ds(f"ds_read_b128 {vr(128+4*w)}, v11 offset:{LB_R5+1024*w}") for w in range(4)]
        e(f"s_lshl_b32 s12, s65, 12\ns_lshl_b32 s3, s66, 10\ns_add_u32 s12, s12, s3\ns_add_u32 s12, s12, {WS_OUTB}")
        e(f"v_and_b32 v13, 1, v{vG}\nv_lshlrev_b32 v13, 5, v13\nv_lshl_add_u32 v13, v{vC}, 6, v13\nv_lshl_add_u32 v13, v12, 4, v13\nv_mov_b32 v53, s{sT}\nv_mov_b32 v55, s{sT}")
        for w in range(1, 4):
            e.wait_lg(tk[w])
            e(f"v_pk_add_f32 v[128:129], v[128:129], v[{128+4*w}:{129+4*w}]\nv_pk_add_f32 v[130:131], v[130:131], v[{130+4*w}:{131+4*w}]")
        e("v_permlane32_swap_b32 v128, v130\nv_permlane32_swap_b32 v129, v131")
        e("v_add_f32 v52, v128, v130\nv_add_f32 v54, v129, v131")
        e.vmem(f"buffer_store_dwordx4 v[52:55], v13, {WS}, s12 offen sc1")
        self.stamp(9)
        e(f"s_lshl_b32 s3, s66, 7\ns_lshl_b32 s14, s65, 2\ns_add_u32 s14, s14, s3\ns_lshl_b32 s12, s14, 3\ns_add_u32 s12, s12, {WS_OUTB}")
        e(f"v_lshrrev_b32 v11, 1, v{vL}\nv_lshlrev_b32 v11, 12, v11\nv_and_b32 v12, 1, v{vL}\nv_lshl_add_u32 v11, v12, 4, v11")
        self.srd(48, 38, 2048)
        if self.p["WOSP"]:
            e(f"s_lshr_b32 s14, s65, 4\ns_lshl_b32 s14, s14, 8\ns_and_b32 s3, s66, 1\ns_lshl_b32 s3, s3, 7\ns_add_u32 s14, s14, s3\ns_lshr_b32 s3, s66, 1\ns_lshl_b32 s3, s3, 6\ns_add_u32 s14, s14, s3\ns_and_b32 s3, s65, 15\ns_lshl_b32 s3, s3, 2\ns_add_u32 s14, s14, s3")
        e(f"s_lshl_b32 s14, s14, 1\ns_add_u32 s14, s14, 1024\nv_lshlrev_b32 v12, 2, v12")
        def fin(R):
            self.stamp(15); self.cnt(16)
            self.rowred([R, R + 2], "v_add_f32", (8, 4, 2))
            self.allred_G([R, R + 2], [144, 145], "v_add_f32")
            e(f"v_cvt_pk_bf16_f32 v146, v{R}, v{R+2}")
            self.exec_mask(3, 0)
            e("buffer_store_dword v146, v12, s[48:51], s14 offen")
            if self.p["TIMING"]: self.exec_full(); e("s_waitcnt vmcnt(0)")
            self.exit()
        ld = lambda r: e(f"buffer_load_dwordx4 {vr(r)}, v11, {WS}, s12 offen sc1")
        if self.p["DPOLL"]: self.poll2(ld, 1, 128, 136, 62, "gob", fin)
        else:
            self.poll(lambda: ld(128), [129, 131], 62, "gob")
            fin(128)

    def a_setup(self):
        e = self.e
        e(f"s_lshl_b32 s64, s{sX}, 3\ns_add_u32 s64, s64, s{sSLOT}\ns_lshr_b32 s65, s64, 1\ns_and_b32 s66, s64, 1")
        e("s_waitcnt lgkmcnt(0)")
        e(f"s_load_dword s{sT}, s[42:43], 0")
        self.srd(48, 18, 1 << 24)
        e(f"s_lshl_b32 s14, s64, 13\ns_lshl_b32 s3, s{sW}, 10\ns_add_u32 s14, s14, s3\ns_mov_b32 s61, 0x80000")
        e(f"s_lshl_b32 s15, s{sW}, 13\ns_add_u32 s15, s15, {WS_QABS}")
        e(f"s_lshl_b32 s67, s{sW}, 14")
        e(f"v_and_b32 v11, 3, v{vC}\nv_lshlrev_b32 v11, 2, v11")
        e(f"v_lshrrev_b32 v12, 2, v{vC}\nv_and_b32 v13, 1, v12\nv_or_b32 v11, v11, v13")
        e(f"v_xor_b32 v12, v12, v{vC}\nv_and_b32 v12, 2, v12\nv_or_b32 v11, v11, v12")
        e(f"v_lshlrev_b32 v11, 4, v11\nv_lshl_add_u32 v11, v{vG}, 8, v11\nv_lshl_add_u32 v11, v{vC}, 10, v11")
        e(f"v_add_u32 v6, s67, v11\nv_add_u32 v7, {LA_Q}, v11")
        e(f"v_add_u32 v9, s67, v10")
    def a_issue(self, depthf, p1at=None):
        e, p = self.e, self.p
        T1, T0, QG = 64, 128, 192
        seq = [("t1", i) for i in range(16)] + [("t0", i) for i in range(16)]
        q = p["QPOS"]
        seq = seq[:q] + [("q", i) for i in range(8)] + seq[q:]
        tok, done = [], 0
        tokof = {}
        def landed_action(it):
            kind, i = it
            if p["ANODS"]: return
            if kind == "t1":
                e(f"v_xor_b32 v12, {16*fswz(i)}, v9")
                e.ds(f"ds_write_b128 v12, {vr(T1+4*i)} offset:{1024*i}")
                if i == 15:
                    e("s_waitcnt lgkmcnt(0)")
                    for ks in range(16):
                        e(f"v_xor_b32 v12, {16*ks}, v6")
                        e.ds(f"ds_read_b128 {vr(T1+4*ks)}, v12")
            elif kind == "t0":
                e(f"v_xor_b32 v12, {16*fswz(i)}, v9")
                e.ds(f"ds_write_b128 v12, {vr(T0+4*i)} offset:{1024*i}")
        def qload(i):
            if i % 4 == 0: e(f"s_add_u32 s12, s15, {1024*i}")
            return e.vmem(f"buffer_load_dwordx4 {vr(QG+4*i)}, v10, {WS}, s12 offen offset:{1024*(i&3)} sc1")
        for n, it in enumerate(seq):
            if n == p1at: self.selectors(); self.a_addrs(); self.tagmake(); self.stamp(1)
            D = depthf(n)
            if n >= D:
                e.wait_vm(tok[n - D])
            self.prog(n, 4)
            kind, i = it
            if kind == "q":
                t = qload(i)
            else:
                t = e.vmem(f"buffer_load_dwordx4 {vr((T1 if kind == 't1' else T0)+4*i)}, v10, s[48:51], s14 offen {p['NT']}")
                if not (kind == "t0" and i == 15): e("s_add_u32 s14, s14, s61")
            tok.append(t); tokof[it] = t
            while done <= n - D and done < len(seq) and n >= D:
                landed_action(seq[done]); done += 1
        e.wait_vm(tokof[("q", 7)])
        while done < len(seq) and tok[done] <= tokof[("q", 7)]:
            landed_action(seq[done]); done += 1
        self.stamp(2)
        tags = [QG + 4 * i + k for i in range(8) for k in (1, 3)]
        self.tagcheck(tags, 60)
        R, B = self.lab("aqr"), self.lab("aqb")
        e(f"s_cbranch_vccnz {R}")
        e.label(B)
        def ool():
            e.label(R)
            e("s_mov_b32 s13, 0")
            L = self.lab("aql")
            e.label(L)
            e("s_mov_b32 s4, 0")
            for i in range(8):
                S = self.lab("aqs")
                self.tagcheck([QG + 4 * i + 1, QG + 4 * i + 3], 60)
                e(f"s_cbranch_vccz {S}\ns_add_u32 s12, s15, {1024*i}\ns_mov_b32 s4, 1")
                e(f"buffer_load_dwordx4 {vr(QG+4*i)}, v10, {WS}, s12 offen sc1")
                e.label(S)
            e(f"s_cmp_eq_u32 s4, 0\ns_cbranch_scc1 {B}\ns_add_u32 s13, s13, 1\ns_waitcnt vmcnt(0)\ns_cmp_gt_u32 s13, {p['MAXPOLL']}\ns_cbranch_scc0 {L}\ns_branch {B}")
        self.ool.append(ool)
        self.stamp(3)
        for i in range(8):
            e(f"v_mov_b32 v{QG+4*i+1}, v{QG+4*i+2}")
            if i % 2 == 0: e(f"v_xor_b32 v12, {16*fswz(i>>1)}, v4")
            e.ds(f"ds_write_b64 v12, v[{QG+4*i}:{QG+4*i+1}] offset:{1024*(i>>1)+512*(i&1)}")
        if p["QKE"]:
            FR = (224, 236, 44)
            e("s_waitcnt lgkmcnt(0)\ns_barrier")
            self.stamp(4)
            if p["AKILL"] == 1: self.exit()
            def rd(ks):
                f = FR[ks % 3]
                e(f"v_xor_b32 v13, {16*ks}, v7")
                e.ds(f"ds_read_b128 {vr(f)}, v13")
                return e.ds(f"ds_read_b128 {vr(f+4)}, v13 offset:16384")
            tk = {0: rd(0), 1: rd(1)}
            left = len(seq) - done
            for ks in range(16):
                f = FR[ks % 3]
                e.wait_lg(tk[ks])
                c = lambda r: "0" if ks == 0 else vr(r)
                e(f"v_mfma_f32_16x16x32_bf16 {vr(24)}, {vr(T1+4*ks)}, {vr(f)}, {c(24)}")
                if ks + 2 < 16: tk[ks + 2] = rd(ks + 2)
                e(f"v_mfma_f32_16x16x32_bf16 {vr(28)}, {vr(T1+4*ks)}, {vr(f+4)}, {c(28)}")
                if left and done < len(seq) and (ks + 1) * left >= (done - (len(seq) - left) + 1) * 16:
                    e.wait_vm(tok[done]); landed_action(seq[done]); done += 1
        while done < len(seq):
            e.wait_vm(tok[done]); landed_action(seq[done]); done += 1
        e("s_waitcnt lgkmcnt(0)")

    def a_addrs(self):
        e = self.e
        e(f"v_lshlrev_b32 v250, 5, v{vC}\ns_lshl_b32 s3, s{sW}, 2\nv_add_u32 v250, {LA_MX}, v250\nv_add_u32 v251, s3, v250")
        e(f"v_lshrrev_b32 v252, 1, v{vG}\ns_lshl_b32 s3, s{sW}, 1\nv_add_u32 v252, s3, v252\nv_xor_b32 v252, v252, v{vC}\nv_lshlrev_b32 v252, 4, v252\nv_lshl_add_u32 v252, v{vC}, 9, v252")
        e(f"v_and_b32 v56, 1, v{vG}\nv_lshl_add_u32 v252, v56, 3, v252\nv_add_u32 v252, {LA_P}, v252")
        e(f"v_and_b32 v14, 31, v{vL}\nv_lshrrev_b32 v15, 5, v{vL}")
        e(f"v_xor_b32 v253, v15, v{vC}\nv_lshlrev_b32 v253, 4, v253\nv_lshl_add_u32 v253, v14, 9, v253\nv_add_u32 v253, {LA_P}, v253")
        e(f"v_bfe_u32 v57, v{vL}, 2, 2\nv_lshlrev_b32 v58, 2, v57\nv_lshrrev_b32 v59, 1, v57\nv_xor_b32 v59, v59, v15\nv_lshl_add_u32 v58, v59, 1, v58")
        e(f"v_bfe_u32 v59, v{vL}, 1, 1\nv_lshl_add_u32 v59, v56, 1, v59\ns_and_b32 s3, s{sW}, 1\ns_lshl_b32 s3, s3, 3\nv_add_u32 v59, s3, v59\nv_xor_b32 v58, v58, v59")
        e(f"v_lshlrev_b32 v58, 4, v58\nv_and_b32 v59, 1, v{vL}\nv_lshl_add_u32 v58, v59, 3, v58\nv_lshl_add_u32 v58, v57, 10, v58\nv_lshl_add_u32 v58, v15, 13, v58")
        e(f"s_lshr_b32 s3, s{sW}, 1\ns_lshl_b32 s3, s3, 8\nv_add_u32 v32, s3, v58")
        e("v_xor_b32 v33, 16, v32\nv_add_u32 v33, 0x1000, v33\nv_xor_b32 v34, 64, v32\nv_xor_b32 v35, 64, v33")
        e(f"v_and_b32 v254, 7, v14\nv_lshlrev_b32 v254, 4, v254\nv_lshl_add_u32 v254, v14, 10, v254\nv_lshl_add_u32 v254, v15, 3, v254\ns_lshl_b32 s3, s{sW}, 7\nv_add_u32 v254, s3, v254")
        e(f"s_lshl_b32 s3, s{sW}, 13\nv_add_u32 v255, s3, v10")
        e(f"v_lshlrev_b32 v4, 3, v{vL}\ns_lshl_b32 s3, s{sW}, 12\ns_add_u32 s3, s3, {LA_Q}\nv_add_u32 v4, s3, v4\ns_and_b32 s3, s{sW}, 3\ns_lshl_b32 s3, s3, 4\nv_xor_b32 v4, s3, v4")
        e(f"s_lshl_b32 s16, s{sW}, 19\ns_lshl_b32 s3, s64, 10\ns_add_u32 s16, s16, s3\ns_add_u32 s16, s16, {WS_AO}\ns_mov_b32 s17, 0x10000")
        self.a_wsetup()
    def a_wsetup(self):
        e, nt = self.e, self.p["NT"]
        UV, WO = 160, 192
        self.srd(52, 24, 1 << 22); self.srd(56, 26, 1 << 22)
        e(f"s_lshl_b32 s68, s{sW}, 19\ns_lshl_b32 s3, s65, 8\ns_add_u32 s68, s68, s3\ns_lshl_b32 s3, s66, 7\ns_add_u32 s68, s68, s3")
        e(f"v_bfe_u32 v248, v{vL}, 3, 1\nv_lshlrev_b32 v248, 16, v248\nv_lshl_add_u32 v248, v{vG}, 17, v248\nv_lshl_add_u32 v248, v8, 4, v248")
        e(f"s_lshl_b32 s69, s64, 16\ns_lshr_b32 s3, s{sW}, 2\ns_lshl_b32 s3, s3, 15\ns_add_u32 s69, s69, s3\ns_and_b32 s3, s{sW}, 3\ns_lshl_b32 s3, s3, 8\ns_add_u32 s69, s69, s3")
        e(f"v_lshlrev_b32 v249, 13, v{vG}\nv_lshl_add_u32 v249, v{vC}, 4, v249")
        self.wq = []
        for i in range(8):
            self.wq.append((f"buffer_load_dwordx4 {vr(UV+4*i)}, v248, s[52:55], s68 offen {nt}", "s_addk_i32 s68, 0x2000" if i < 7 else ""))
        for i in range(8):
            self.wq.append((f"buffer_load_dwordx4 {vr(WO+4*i)}, v249, s[56:59], s69 offen offset:{1024*(i&3)} {nt}", "s_addk_i32 s69, 0x1000" if i == 3 else ""))
    def wtick(self, n=1, late=False):
        for _ in range(n):
            if self.wq and (late or len(self.wq) > 16 - self.p["NWE"]):
                a, b = self.wq.pop(0)
                self.e.vmem(a); self.e(b)

    def a_tail_addrs(self):
        e = self.e
        e(f"v_and_b32 v20, 1, v{vG}\nv_lshlrev_b32 v252, 5, v20\nv_lshl_add_u32 v252, v{vC}, 6, v252\nv_lshl_add_u32 v252, v15, 4, v252")
        e(f"s_and_b32 s3, s{sW}, 3\ns_lshl_b32 s14, s3, 8\nv_lshrrev_b32 v22, 2, v252\nv_add_u32 v22, s14, v22")
        e(f"s_lshl_b32 s12, s65, 16\ns_add_u32 s12, s12, s14\ns_add_u32 s12, s12, {WS_AO}")
        e(f"v_lshlrev_b32 v15, 10, v{vG}\nv_lshl_add_u32 v15, v{vC}, 4, v15")
        e(f"v_bfe_u32 v16, v{vL}, 3, 1\nv_lshlrev_b32 v17, 7, v16\nv_lshl_add_u32 v17, v{vG}, 5, v17\nv_add_u32 v17, s14, v17")
        e(f"s_lshl_b32 s3, s{sW}, 10\nv_add_u32 v18, s3, v10")
        e(f"v_and_b32 v19, 3, v{vL}\nv_lshlrev_b32 v19, 4, v19\nv_lshrrev_b32 v23, 2, v{vL}\nv_add_u32 v19, v19, v23\nv_lshlrev_b32 v19, 1, v19\nv_add_u32 v19, s14, v19")
        e(f"v_lshlrev_b32 v20, 4, v16\nv_lshl_add_u32 v20, v{vG}, 5, v20\ns_lshl_b32 s3, s{sW}, 7\nv_add_u32 v20, s3, v20")
        e(f"v_lshlrev_b32 v23, 8, v16\nv_lshl_add_u32 v23, v8, 4, v23\nv_lshl_add_u32 v23, v{vG}, 11, v23")
        e(f"v_lshlrev_b32 v250, 3, v16\nv_lshl_add_u32 v250, v8, 4, v250\nv_add_u32 v250, s3, v250")
        e(f"s_lshr_b32 s14, s{sW}, 2\ns_lshl_b32 s14, s14, 6\ns_add_u32 s3, s3, s14\nv_lshlrev_b32 v251, 4, v{vG}\nv_add_u32 v251, s3, v251")
        e(f"s_lshl_b32 s15, s65, 10\ns_add_u32 s15, s15, {WS_AML}\ns_mov_b32 s18, 0x11111111\ns_mov_b32 s19, 0x11111111\ns_mov_b32 s13, 0")
        e(f"s_lshl_b32 s61, s64, 12\ns_lshl_b32 s3, s{sW}, 10\ns_add_u32 s61, s61, s3\ns_add_u32 s61, s61, {WS_OUTA}")

    def a_main(self):
        e, p = self.e, self.p
        T1 = 64
        FR = (224, 236, 44)
        qke = p["QKE"]
        if not qke:
            e("s_barrier")
            self.stamp(4); self.cyc(23)
            if p["AKILL"] == 1: self.exit()
        else: self.stamp(17)
        def rd(ks):
            f = FR[ks % 3]
            e(f"v_xor_b32 v12, {16*ks}, v6\nv_xor_b32 v13, {16*ks}, v7")
            e.ds(f"ds_read_b128 {vr(f)}, v13")
            e.ds(f"ds_read_b128 {vr(f+4)}, v13 offset:16384")
            return e.ds(f"ds_read_b128 {vr(f+8)}, v12")
        tk = {0: rd(0), 1: rd(1)}
        for ks in range(16):
            f = FR[ks % 3]
            e.wait_lg(tk[ks])
            c = lambda r: "0" if ks == 0 else vr(r)
            if not qke:
                e(f"v_mfma_f32_16x16x32_bf16 {vr(24)}, {vr(T1+4*ks)}, {vr(f)}, {c(24)}")
                e(f"v_mfma_f32_16x16x32_bf16 {vr(28)}, {vr(T1+4*ks)}, {vr(f+4)}, {c(28)}")
            else: e(f"v_mfma_f32_16x16x32_bf16 {vr(16)}, {vr(f+8)}, {vr(f)}, {c(16)}")
            if ks + 2 < 16: tk[ks + 2] = rd(ks + 2)
            if ks % 3 == 0: self.wtick()
            if not qke: e(f"v_mfma_f32_16x16x32_bf16 {vr(16)}, {vr(f+8)}, {vr(f)}, {c(16)}")
            e(f"v_mfma_f32_16x16x32_bf16 {vr(20)}, {vr(f+8)}, {vr(f+4)}, {c(20)}")
        self.wtick()
        for hh in range(2):
            a, b = 16 + 4 * hh, 24 + 4 * hh
            e(f"v_max3_f32 v{56+hh}, v{a}, v{a+1}, v{a+2}\nv_max3_f32 v{56+hh}, v{56+hh}, v{a+3}, v{b}\nv_max3_f32 v{56+hh}, v{56+hh}, v{b+1}, v{b+2}\nv_max_f32 v{56+hh}, v{56+hh}, v{b+3}")
        self.allred_G([56, 57], [58, 59], "v_max_f32")
        e("s_barrier")
        self.stamp(10)
        self.exec_mask(0xffff, 0)
        e.ds("ds_write_b32 v251, v56")
        e.ds("ds_write_b32 v251, v57 offset:512")
        self.exec_full()
        e("s_waitcnt lgkmcnt(0)\ns_barrier")
        for hh in range(2):
            e.ds(f"ds_read_b128 {vr(224+8*hh)}, v250 offset:{512*hh}")
            e.ds(f"ds_read_b128 {vr(228+8*hh)}, v250 offset:{512*hh+16}")
        e("s_waitcnt lgkmcnt(0)")
        for hh in range(2):
            m = 224 + 8 * hh
            e(f"v_max3_f32 v{56+hh}, v{m}, v{m+1}, v{m+2}\nv_max3_f32 v{56+hh}, v{56+hh}, v{m+3}, v{m+4}\nv_max3_f32 v{56+hh}, v{56+hh}, v{m+5}, v{m+6}\nv_max_f32 v{56+hh}, v{56+hh}, v{m+7}")
            e(f"v_mul_f32 v{56+hh}, {sCS}, v{56+hh}")
        for T in range(2):
            for hh in range(2):
                for r in range(4):
                    s = 16 + 8 * T + 4 * hh + r
                    e(f"v_fma_f32 v{s}, v{s}, {sCS}, -v{56+hh}")
        self.wtick()
        for s in range(16, 32): e(f"v_exp_f32 v{s}, v{s}")
        for T in range(2):
            for hh in range(2):
                s, d = 16 + 8 * T + 4 * hh, 56 + 4 * T + 2 * hh
                e(f"v_cvt_pk_bf16_f32 v{d}, v{s}, v{s+1}\nv_cvt_pk_bf16_f32 v{d+1}, v{s+2}, v{s+3}")
                e.ds(f"ds_write_b64 v252, v[{d}:{d+1}] offset:{256*T+8192*hh}")
        HI = (4, 5, 11, 13)
        for k in range(4): e(f"v_add_u32 v{HI[k]}, 0x10000, v{32+k}")
        e("s_waitcnt lgkmcnt(0)\ns_barrier")
        self.stamp(5)
        ACC = (128, 144)
        fill = Emit()
        sv, self.e = self.e, fill
        for hh in range(2):
            a, b = 16 + 4 * hh, 24 + 4 * hh
            for s in (a + 1, a + 2, a + 3, b, b + 1, b + 2, b + 3): fill(f"v_add_f32 v{a}, v{a}, v{s}")
        self.allred_G([16, 20], [17, 21], "v_add_f32")
        lsum = list(fill.L); fill.L = []
        fill(f"v_lshlrev_b32 v21, 5, v8\ns_lshl_b32 s3, s{sW}, 8\ns_add_u32 s3, s3, {LA_MX}\nv_add_u32 v21, s3, v21")
        self.a_tail_addrs()
        taddr = list(fill.L)
        self.e = sv
        def rdp(R, n):
            f = FR[n % 3]
            e(f"v_xor_b32 v12, {32*n}, v253")
            e.ds(f"ds_read_b128 {vr(f)}, v12 offset:{256*R}")
            for t in range(2):
                for nn in range(2):
                    a = 32 + 2 * t + nn if n < 4 else HI[2 * t + nn]
                    tkk = e.ds(f"ds_read_b64_tr_b16 v[{f+4+4*t+2*nn}:{f+5+4*t+2*nn}], v{a} offset:{16384*(n&3)}")
            return tkk
        def half(R, h, tk, write, filler, carry):
            n0 = 4 * h
            for n in range(n0, n0 + 2):
                if n not in tk: tk[n] = rdp(R, n)
            per = -(-len(filler) // 8)
            for n in range(n0, n0 + 4):
                f = FR[n % 3]
                e.wait_lg(tk[n])
                first = (R == 0 and n == 0)
                e(f"v_mfma_f32_32x32x16_bf16 {vr(ACC[0],16)}, {vr(f+4)}, {vr(f)}, {'0' if first else vr(ACC[0],16)}")
                if n + 2 < n0 + 4 or carry: tk[n + 2] = rdp(R, n + 2)
                for _ in range(per):
                    if filler: e(filler.pop(0))
                e(f"v_mfma_f32_32x32x16_bf16 {vr(ACC[1],16)}, {vr(f+8)}, {vr(f)}, {'0' if first else vr(ACC[1],16)}")
                if write:
                    for ks in range(4 * (n - n0), 4 * (n - n0) + 4):
                        e(f"v_xor_b32 v12, {16*ks}, v6")
                        e.ds(f"ds_write_b128 v12, {vr(T1+4*ks)}")
                for _ in range(per):
                    if filler: e(filler.pop(0))
        tk = {}
        half(0, 0, tk, False, lsum, True)
        self.exec_mask(0xffff, 0)
        e(f"ds_write_b32 v251, v16 offset:{LA_LS-LA_MX}\nds_write_b32 v251, v20 offset:{LA_LS-LA_MX+512}")
        e.lg += 2
        self.exec_full()
        self.wtick()
        e("s_barrier")
        self.stamp(11)
        for R, h in ((0, 1), (1, 0)):
            LW, LJ = self.lab("pvw"), self.lab("pvj")
            e(f"s_cmp_lt_u32 s{sW}, 4\ns_cbranch_scc{1 if R == 0 else 0} {LW}")
            lg0 = e.lg
            half(R, h, dict(tk) if R == 0 else {}, False, [], False)
            e(f"s_branch {LJ}")
            e.label(LW)
            e.lg = lg0
            half(R, h, dict(tk) if R == 0 else {}, True, [], False)
            e("s_waitcnt lgkmcnt(0)")
            e.label(LJ)
            self.wtick()
            e("s_barrier")
            self.stamp(12 if R == 0 else 25)
        half(1, 1, {}, False, taddr, False)
        e("s_barrier")
        self.stamp(13)
        self.wtick(16)
        e(f"s_cmp_lt_u32 s{sW}, 4\ns_cbranch_scc1 L_ast")
        e(f"buffer_load_dwordx4 v[224:227], v10, {WS}, s15 offen sc1")
        e.label("L_ast")
        for t in range(2):
            for q in range(4):
                a = ACC[t] + 4 * q
                e(f"v_cvt_pk_bf16_f32 v{a}, v{a}, v{a+1}\nv_cvt_pk_bf16_f32 v{a+1}, v{a+2}, v{a+3}\nv_xor_b32 v12, {16*(4*t+q)}, v254")
                e.ds(f"ds_write_b64 v12, v[{a}:{a+1}]")
        e("s_waitcnt lgkmcnt(0)\ns_barrier")
        self.stamp(14); self.cyc(24)
        if p["AKILL"] == 8: self.exit()
        e(f"v_mov_b32 v53, s{sT}\nv_mov_b32 v55, s{sT}\ns_cbranch_scc0 L_agl2")
        tk = []
        for i in range(8):
            e(f"v_xor_b32 v12, {16*i}, v255")
            tk.append(e.ds(f"ds_read_b128 {vr(64+4*i)}, v12 offset:{1024*i}"))
        for k in range(2):
            e.ds(f"ds_read_b128 {vr(96+8*k)}, v21 offset:{1024*k}")
            e.ds(f"ds_read_b128 {vr(100+8*k)}, v21 offset:{1024*k+16}")
        for i in range(8):
            e.wait_lg(tk[i])
            e.vmem(f"buffer_store_dwordx4 {vr(64+4*i)}, v10, {WS}, s16 offen sc1")
            if i < 7: e("s_add_u32 s16, s16, s17")
        e(f"v_lshlrev_b32 v13, 10, v8\ns_lshl_b32 s16, s64, 4\ns_lshl_b32 s3, s{sW}, 13\ns_add_u32 s16, s16, s3\ns_add_u32 s16, s16, {WS_AML}")
        e("s_waitcnt lgkmcnt(0)")
        e("v_max3_f32 v52, v96, v97, v98\nv_max3_f32 v52, v52, v99, v100\nv_max3_f32 v52, v52, v101, v102\nv_max_f32 v52, v52, v103")
        e(f"v_mul_f32 v52, {sCS}, v52\nv_add_f32 v54, v104, v105")
        for r in range(106, 112): e(f"v_add_f32 v54, v54, v{r}")
        e("s_mov_b64 exec, 0xff\ns_waitcnt vmcnt(0)")
        e(f"buffer_store_dwordx4 v[52:55], v13, {WS}, s16 offen sc1")
        self.exec_full()
        self.stamp(6)
        if p["AKILL"] == 9: self.exit()
        wsave = list(self.wq)
        e("s_barrier")
        self.wtick(16, late=True)
        e("s_branch L_alat")
        e.label("L_agl")
        e(f"buffer_load_dwordx4 v[224:227], v10, {WS}, s15 offen sc1")
        e.label("L_agl2")
        e("s_add_u32 s13, s13, 1\ns_waitcnt vmcnt(0)")
        e(f"v_xor_b32 v60, s{sT}, v225\nv_bitop3_b32 v60, v227, s{sT}, v60 bitop3:0xbe\nv_cmp_eq_u32 vcc, 0, v60")
        e(f"s_cmp_gt_u32 s13, {p['MAXPOLL']}\ns_cselect_b64 vcc, -1, vcc")
        e("s_lshr_b64 s[4:5], vcc, 1\ns_and_b64 s[4:5], s[4:5], vcc\ns_lshr_b64 s[20:21], s[4:5], 2\ns_and_b64 s[4:5], s[4:5], s[20:21]\ns_and_b64 s[4:5], s[4:5], s[18:19]\ns_andn2_b64 s[18:19], s[18:19], s[4:5]")
        for i in range(16):
            L = self.lab("agi")
            e(f"s_bitcmp1_b64 s[4:5], {4*i}\ns_cbranch_scc0 {L}\ns_add_u32 s3, s12, {4096*i}")
            e(f"buffer_load_dwordx4 {vr(64+4*i)}, v15, {WS}, s3 offen sc1")
            e.label(L)
        e("s_cmp_eq_u64 vcc, -1\ns_cbranch_scc0 L_agl")
        self.stamp(7)
        if p["AKILL"] == 9: self.exit()
        e("s_barrier")
        tg = e.vm
        e(f"s_cmp_eq_u32 s64, 0\ns_cbranch_scc0 L_noep")
        e(f"v_mov_b32 v12, s{sT}\nv_mov_b32 v13, 0")
        self.exec_mask(1, 0)
        e(f"buffer_store_dword v12, v13, {WS}, 0 offen sc1")
        self.exec_full()
        e.label("L_noep")
        e("v_mov_b32 v56, v224")
        self.rowred([56], "v_max_f32", (8, 4, 2, 1))
        self.allred_G([56], [57], "v_max_f32")
        e("v_sub_f32 v224, v224, v56\nv_exp_f32 v224, v224\nv_mul_f32 v226, v226, v224")
        self.rowred([226], "v_add_f32", (8, 4, 2, 1))
        self.allred_G([226], [57], "v_add_f32")
        e("v_rcp_f32 v226, v226\nv_mul_f32 v224, v224, v226\nv_cvt_pk_bf16_f32 v225, v224, v224\nv_and_b32 v226, 0xffff0000, v225\nv_sub_f32 v226, v224, v226\nv_cvt_pk_bf16_f32 v226, v226, v226")
        e.ds(f"ds_write_b16 v19, v225 offset:{LA_F}")
        e.ds(f"ds_write_b16 v19, v226 offset:{LA_F+128}")
        e("s_waitcnt lgkmcnt(0)")
        e.ds(f"ds_read_b128 v[228:231], v17 offset:{LA_F}")
        e.ds(f"ds_read_b128 v[232:235], v17 offset:{LA_F+16}")
        e("s_waitcnt lgkmcnt(0)")
        for i in range(8): self.expand4(128 + 4 * i, 228 + (i >> 1), i & 1)
        e.wait_vm(tg)
        for i in range(16):
            if i < 8: e(f"v_mfma_f32_16x16x32_bf16 v[24:27], {vr(128+4*i)}, {vr(64+4*i)}, {'0' if i == 0 else 'v[24:27]'}")
            else: e(f"v_mfma_f32_16x16x32_bf16 v[24:27], {vr((44,48)[i&1])}, {vr(64+4*i)}, v[24:27]")
            if 6 <= i < 14: self.expand4((44, 48)[i & 1], 228 + ((i + 2) >> 1), i & 1)
        e("v_permlane32_swap_b32 v24, v26\nv_permlane32_swap_b32 v25, v27\nv_add_f32 v24, v24, v26\nv_add_f32 v25, v25, v27\nv_cvt_pk_bf16_f32 v24, v24, v25")
        e.ds(f"ds_write_b32 v22, v24 offset:{LA_LAT}")
        self.wq = wsave
        self.wtick(16, late=True)
        tkw = e.vm
        e("s_waitcnt lgkmcnt(0)")
        e.label("L_alat")
        e("s_barrier")
        self.stamp(15)
        e.ds(f"ds_read_b128 v[28:31], v20 offset:{LA_LAT}")
        e("s_waitcnt lgkmcnt(0)")
        nlate = 16 - self.p["NWE"]
        wt = lambda k: (tkw - (15 - k)) if (15 - k) < nlate else None
        self.gemv8(24, 28, 160, [wt(k) for k in range(8)])
        e.ds(f"ds_write_b128 v18, v[24:27] offset:{LA_R2}")
        e("s_waitcnt lgkmcnt(0)\ns_barrier")
        self.stamp(16)
        for k in range(4): e.ds(f"ds_read_b128 {vr(64+4*k)}, v23 offset:{LA_R2+1024*(k>>1)+(512+128)*(k&1)}")
        e("s_waitcnt lgkmcnt(0)")
        for k in range(1, 4):
            e(f"v_pk_add_f32 v[64:65], v[64:65], v[{64+4*k}:{65+4*k}]\nv_pk_add_f32 v[66:67], v[66:67], v[{66+4*k}:{67+4*k}]")
        self.allred_G([64, 65, 66, 67], [68, 69, 70, 71], "v_add_f32")
        e("v_cvt_pk_bf16_f32 v64, v64, v65\nv_cvt_pk_bf16_f32 v65, v66, v67")
        e.ds(f"ds_write_b64 v250, v[64:65] offset:{LA_CTX}")
        e("s_waitcnt lgkmcnt(0)")
        e.ds(f"ds_read_b128 v[28:31], v251 offset:{LA_CTX}")
        e("s_waitcnt lgkmcnt(0)")
        self.gemv8(24, 28, 192, [wt(8 + k) for k in range(8)])
        e(f"s_cmp_lt_u32 s{sW}, 4\ns_cbranch_scc1 L_at_o")
        e.ds(f"ds_write_b128 v18, v[24:27] offset:{LA_R1}")
        e("s_waitcnt lgkmcnt(0)\ns_barrier")
        self.exit()
        e.label("L_at_o")
        e("s_barrier")
        e.ds(f"ds_read_b128 v[64:67], v18 offset:{LA_R1+4096}")
        e("s_waitcnt lgkmcnt(0)")
        e("v_pk_add_f32 v[24:25], v[24:25], v[64:65]\nv_pk_add_f32 v[26:27], v[26:27], v[66:67]")
        e(f"v_cndmask_b32 v52, v24, v26, {sHI}\nv_cndmask_b32 v54, v25, v27, {sHI}")
        e(f"buffer_store_dwordx4 v[52:55], v252, {WS}, s61 offen sc1")
        self.stamp(8)
        e(f"s_cmp_eq_u32 s{sW}, 0\ns_cbranch_scc1 L_at_fin")
        self.exit()
        e.label("L_at_fin")
        e(f"s_lshl_b32 s12, s64, 6\ns_add_u32 s12, s12, {WS_OUTA}\nv_lshrrev_b32 v11, 2, v{vL}\nv_lshlrev_b32 v11, 12, v11\nv_and_b32 v12, 3, v{vL}\nv_lshl_add_u32 v11, v12, 4, v11")
        self.srd(48, 38, 2048)
        e(f"s_lshl_b32 s14, s64, 4\nv_lshlrev_b32 v12, 2, v12\ns_mov_b32 s15, 0x10000")
        def g(R):
            e("s_mov_b32 s3, s12")
            for k in range(4):
                e(f"buffer_load_dwordx4 {vr(R+4*k)}, v11, {WS}, s3 offen sc1")
                if k < 3: e("s_add_u32 s3, s3, s15")
        def fin(R):
            for k in range(1, 4): e(f"v_add_f32 v{R}, v{R}, v{R+4*k}\nv_add_f32 v{R+2}, v{R+2}, v{R+4*k+2}")
            self.rowred([R, R + 2], "v_add_f32", (8, 4))
            self.allred_G([R, R + 2], [100, 101], "v_add_f32")
            e(f"v_cvt_pk_bf16_f32 v102, v{R}, v{R+2}")
            self.exec_mask(15, 0)
            e("buffer_store_dword v102, v12, s[48:51], s14 offen")
            if self.p["TIMING"]: self.exec_full(); e("s_waitcnt vmcnt(0)"); self.stamp(9)
            self.exit()
        if self.p["DPOLL"]: self.poll2(g, 4, 64, 80, 60, "goa", fin)
        else:
            self.poll(lambda: g(64), [65, 67, 69, 71, 73, 75, 77, 79], 60, "goa")
            fin(64)

    def build(self):
        e, p = self.e, self.p
        self.prologue()
        vm0 = e.vm
        self.phase1()
        self.b_ctrl()
        e.label("L_notctrl")
        e.vm = vm0
        self.b_stream()
        self.b_tail()
        e.label("L_astream")
        self.role = "A"
        e.vm = 1
        self.a_setup()
        self.a_issue(lambda n: p["D_A1"] if n < p["NA1"] else p["D_A2"], p1at=p["D_A1"])
        self.a_main()
        while self.ool: self.ool.pop(0)()
        if p["TIMING"]:
            e.label("L_exit")
            e("s_mov_b64 exec, -1\ns_memrealtime s[98:99]\ns_getreg_b32 s100, hwreg(HW_REG_XCC_ID)\ns_waitcnt lgkmcnt(0)\nv_mov_b32 v44, 0")
            for i in range(28): e(f"v_writelane_b32 v44, s{70+i}, {i}")
            e("v_writelane_b32 v44, s98, 30\nv_writelane_b32 v44, s100, 31")
            e(f"s_lshl_b32 s3, s2, 3\ns_add_u32 s3, s3, s{sW}\ns_lshl_b32 s3, s3, 7\ns_add_u32 s3, s3, {WS_STAMP}\nv_lshlrev_b32 v45, 2, v{vL}\ns_mov_b32 exec_hi, 0")
            e(f"buffer_store_dword v44, v45, {WS}, s3 offen")
        if p["PAD"]:
            e.label("L_exit")
            if p["PADEV"] == 99:
                e(f"s_cmp_{'lt' if p['PADROLE'] == 'A' else 'ge'}_u32 s{sSLOT}, 8\ns_cbranch_scc0 L_padn\ns_memrealtime s[82:83]\ns_waitcnt lgkmcnt(0)")
                e.label("L_padn")
            e(f"s_cmp_eq_u32 s82, 0\ns_cselect_b32 s80, s80, s82\ns_add_u32 s80, s80, {p['PAD']}")
            e.label("L_padl")
            e("s_sleep 4\ns_memrealtime s[68:69]\ns_waitcnt lgkmcnt(0)\ns_sub_u32 s68, s68, s80\ns_cmp_lt_i32 s68, 0\ns_cbranch_scc1 L_padl")
        e.label("L_end")
        e("s_endpgm")
        e.label("L_codeend")
        if p["NOSLOW"]:
            out, k = [], 0
            for i, l in enumerate(e.L):
                if "store" in l and l.endswith("sc1") and ("v14, " in l or "v11, " in l or "dwordx2" in l or ("v10, " in l and "s15" in l)): continue
                out.append(l)
            e.L = out
        if p["JIT"]:
            out, k = [], 0
            for l in e.L:
                if l.startswith("s_barrier") or ("store" in l and "v44" not in l) or l.startswith("ds_add") or (l.startswith("ds_write_b32") and "v15," in l):
                    k += 1
                    out += ["s_cselect_b32 s101, 1, 0", "s_memtime s[98:99]", "s_waitcnt lgkmcnt(0)", "s_lshr_b32 s98, s98, 3", f"s_and_b32 s98, s98, {p['JIT']}",
                            f"L_jit{k}:", "s_sleep 8", "s_sub_u32 s98, s98, 1", f"s_cbranch_scc0 L_jit{k}", "s_cmp_eq_u32 s101, 1"]
                out.append(l)
            e.L = out
        gm, sm = p["GM"].replace("_", " "), p["SM"].replace("_", " ")
        e.L = [(l[:-3] + (gm if "load" in l else sm)) if l.endswith(" sc1") else l for l in e.L]
        body = pad_hazards(e.L)
        ref = open(f"cdna_kernels/{NAME}.s.ref").read().split("\n")
        head = [l for l in ref if l.startswith(";") and "@launch" not in l]
        out = head + ["; @launch grid=(256,1,1) block=(512,1,1) lds=163840",
                      '.amdgcn_target "amdgcn-amd-amdhsa--gfx950"', ".text", f".globl {NAME}_kernel", ".p2align 8",
                      f".type {NAME}_kernel,@function", f"{NAME}_kernel:"]
        out += [("" if l.endswith(":") else "    ") + l for l in body]
        out += ['.section .rodata,"a"', ".p2align 6", f".amdhsa_kernel {NAME}_kernel", "  .amdhsa_next_free_vgpr 256",
                "  .amdhsa_next_free_sgpr 102", "  .amdhsa_accum_offset 256", "  .amdhsa_group_segment_fixed_size 0",
                "  .amdhsa_kernarg_size 112", "  .amdhsa_user_sgpr_count 2", "  .amdhsa_user_sgpr_kernarg_segment_ptr 1",
                "  .amdhsa_system_sgpr_workgroup_id_x 1", ".end_amdhsa_kernel", ""]
        return "\n".join(out)

if __name__ == "__main__":
    kw = {}
    for a in sys.argv[2:]:
        k, v = a.split("=")
        kw[k] = (v == "True") if v in ("True", "False") else (int(v) if v.lstrip("-").isdigit() else v)
    open(sys.argv[1], "w").write(K(**kw).build())
```

```python
import sys, struct
from asmlib import Emit, pad_hazards

NAME = "concat_heads__compressed_kv_cla__gqa_block_cached__decode"
DEF = dict(D_B0=3, NB0=20, D_B=5, N1=24, PVK=3, D_A1=4, NA1=6, D_A2=5, QPOS=32, TIMING=False, MAXPOLL=400000,
           NT="nt", PAD=0, PADEV=-1, PADROLE="", NWE=8, LIGHT=False, PROG=False, GDELAY=0, GM="sc1", SM="sc1", SDELAY=0, NFAST=48, CPS=3, D_B2=12, NB2=38, WARMQ=1, WARMO=30, WARMB=0, WOK=23, NDUTY=0, WOLATE=4, NWO=40, B4B=1, ANODS=0, QKE=0, RLATE=1, HROT=2, WSOFF=0, INB=0, TQ=3, LPOS=0, CPF=0, JIT=0, CYC=0, TLBP=0, DPOLL=0, PSL=6, ILV1=0, WOSP=1, TOUCH=0, TPOS=0, TSH=3, NL=0, RK=64, DSLOW=3, NTK=24, LSET=(4, 6, 7, 10), DEEPW=-1, GSL=0, NU=-1, WQ0=3, PRIO=1, NOSLOW=0, AKILL=0, PTRACE="", WM="nt")

DOC = """;
; Hand-offs go through d_ws as 8-byte {value, tag} pairs (or drained rows behind tagged flags).  The tag is a hash of
; Hand-offs inside an id&7 group are stored twice: a plain copy, seen early through a shared L2, and a write-through
;"""

def f32(x): return "0x%08x" % struct.unpack("<I", struct.pack("<f", x))[0]
CS = 1.4426950408889634 * 128 ** -0.5

WS_QP, WS_QABS, WS_QB, WS_BML, WS_AML = 0x10000, 0x90000, 0xA0000, 0xA8000, 0xB0000
WS_BO, WS_OUTB, WS_OUTA, WS_AO, WS_STAMP = 0xC0000, 0x120000, 0x140000, 0x200000, 0x400000
WS_SIZE = 0x800000
SLOW = 0x500000
L_PR = 32768
L_PRB = 49152
L_LQ = 40960
LB_Q, LB_MX, LB_LS, LB_F, LB_G, LB_FLAG, LB_R4, LB_R5 = 0, 1024, 1152, 1280, 1408, 1536, 2048, 20480
LA_Q = 131072
LA_P, LA_MX, LA_LS = 131072, 147456, 148480
LA_F, LA_R1, LA_LAT, LA_R2, LA_CTX = 32768, 36864, 49152, 53248, 61440

vL, vC, vG = 1, 2, 3
SELA, SELB = 32, 36
sW, sX, sSLOT, sH1, sJ, sT = 6, 7, 8, 9, 10, 11
WS = "s[44:47]"
sHI = "s[62:63]"
sCS = "s60"

def fswz(k):
    k0, k1, k2, k3 = k & 1, (k >> 1) & 1, (k >> 2) & 1, (k >> 3) & 1
    return (k1 << 3) | (k0 << 2) | ((k1 ^ k3) << 1) | k2

def vr(a, n=4): return f"v[{a}:{a+n-1}]"

class K:
    def __init__(self, **kw):
        self.p = dict(DEF); self.p.update(kw)
        self.e = Emit()
        self.nlab = 0
        self.role = "B"
        self.ilv = False
        self.ool = []
    def lab(self, s):
        self.nlab += 1
        return f"L_{s}_{self.nlab}"
    def stamp(self, i):
        if self.p["PAD"] and i == self.p["PADEV"] and self.role in self.p["PADROLE"]:
            self.e("s_memrealtime s[82:83]\ns_waitcnt lgkmcnt(0)")
        if self.p["TIMING"] and not self.p["PROG"] and (not self.p["LIGHT"] or i in self.p["LSET"]):
            self.e(f"s_memrealtime s[98:99]\ns_waitcnt lgkmcnt(0)\ns_mov_b32 s{70+i}, s98")
    def cyc(self, i):
        if self.p["TIMING"] and self.p["CYC"]:
            self.e(f"s_memtime s[98:99]\ns_waitcnt lgkmcnt(0)\ns_mov_b32 s{70+i}, s98")
    def prog(self, n, step):
        if self.p["PROG"] and (n + 1) % step == 0 and (n + 1) // step <= 13:
            k = 72 + 2 * ((n + 1) // step - 1)
            self.e(f"s_memrealtime s[{k}:{k+1}]")
    def cnt(self, i):
        if self.p["TIMING"] and not self.p["PROG"]: self.e(f"s_mov_b32 s{70+i}, s13")
    def exit(self):
        self.e("s_branch L_exit" if self.p["TIMING"] or self.p["PAD"] else "s_endpgm")
    def srd(self, s, ptr, size):
        self.e(f"s_mov_b32 s{s}, s{ptr}\ns_mov_b32 s{s+1}, s{ptr+1}\ns_mov_b32 s{s+2}, {size}\ns_mov_b32 s{s+3}, 0x20000")
    def exec_full(self): self.e("s_mov_b64 exec, -1")
    def exec_mask(self, lo, hi): self.e(f"s_mov_b32 exec_lo, {lo:#x}\ns_mov_b32 exec_hi, {hi:#x}")
    def allred_G(self, vals, tmps, op, steps=(32, 16)):
        e = self.e
        for st in steps:
            for v, t in zip(vals, tmps): e(f"v_mov_b32 v{t}, v{v}")
            for v, t in zip(vals, tmps): e(f"v_permlane{st}_swap_b32 v{t}, v{v}")
            for v, t in zip(vals, tmps): e(f"{op} v{v}, v{t}, v{v}")
    def rowred(self, vals, op, rors):
        for r in rors:
            for v in vals: self.e(f"{op}_dpp v{v}, v{v}, v{v} row_ror:{r} row_mask:0xf bank_mask:0xf")
    def tagcheck(self, tags, acc):
        e = self.e
        e(f"v_xor_b32 v{acc}, s{sT}, v{tags[0]}")
        for t in tags[1:]: e(f"v_bitop3_b32 v{acc}, v{t}, s{sT}, v{acc} bitop3:0xbe")
        e(f"v_cmp_ne_u32 vcc, 0, v{acc}")
    def poll(self, issue, tags, acc, name, fast=None, slowpub=None):
        e = self.e
        L, D, F = self.lab(name), self.lab(name + "d"), self.lab(name + "f")
        e("s_mov_b32 s13, 0")
        e.label(L)
        issue()
        e(f"s_add_u32 s13, s13, 1\ns_waitcnt vmcnt(0)")
        if self.p["TIMING"] and self.p["PTRACE"] == name:
            e("s_memrealtime s[98:99]\ns_waitcnt lgkmcnt(0)")
            for k in range(1, 7): e(f"s_cmp_eq_u32 s13, {k}\ns_cselect_b32 s{90+k}, s98, s{90+k}")
        self.tagcheck(tags, acc)
        if fast:
            e(f"s_cbranch_vccnz {F}")
            def ool():
                e.label(F)
                e(f"s_cmp_gt_u32 s13, {self.p['MAXPOLL']}\ns_cbranch_scc1 {D}\ns_cmp_eq_u32 s13, {self.p['NFAST']}\ns_cbranch_scc0 {L}")
                if slowpub: slowpub()
                e(f"s_add_u32 {fast}, {fast}, {SLOW}\ns_branch {L}")
            self.ool.append(ool)
        else:
            e(f"s_cmp_gt_u32 s13, {self.p['MAXPOLL']}\ns_cbranch_scc1 {D}\ns_cbranch_vccnz {L}")
        e.label(D)
        if slowpub: slowpub()
    def poll2(self, issue, nl, RA, RB, acc, name, finish):
        e = self.e
        L, DA = self.lab(name), self.lab(name + "a")
        tags = lambda R: [R + 4 * i + k for i in range(nl) for k in (1, 3)]
        e("s_mov_b32 s13, 0")
        issue(RA)
        e(f"s_sleep {self.p['PSL']}")
        e.label(L)
        issue(RB)
        e(f"s_add_u32 s13, s13, 1\ns_waitcnt vmcnt({nl})")
        self.tagcheck(tags(RA), acc)
        e(f"s_cmp_gt_u32 s13, {self.p['MAXPOLL']}\ns_cbranch_scc1 {DA}\ns_cbranch_vccz {DA}")
        issue(RA)
        e(f"s_waitcnt vmcnt({nl})")
        self.tagcheck(tags(RB), acc)
        e(f"s_cbranch_vccnz {L}")
        finish(RB)
        e.label(DA)
        finish(RA)
    def expand4(self, dst, src, pi):
        for q in range(4): self.e(f"v_perm_b32 v{dst+q}, v{src}, v{src}, v{SELB+4*pi+q}")
    def gemv8(self, acc, frag, data, toks, E=(44, 48)):
        e = self.e
        self.expand4(E[0], frag, 0)
        for i in range(8):
            if i + 1 < 8: self.expand4(E[(i + 1) & 1], frag + ((i + 1) >> 1), (i + 1) & 1)
            if toks is not None and toks[i] is not None: e.wait_vm(toks[i])
            e(f"v_mfma_f32_16x16x32_bf16 {vr(acc)}, {vr(E[i&1])}, {vr(data+4*i)}, {'0' if i == 0 else vr(acc)}")

    def prologue(self):
        e, nt = self.e, self.p["NT"]
        e("s_cmp_ge_u32 s2, 256\ns_cbranch_scc1 L_end")
        e("s_load_dwordx16 s[16:31], s[0:1], 0\ns_load_dwordx8 s[32:39], s[0:1], 64\ns_load_dwordx4 s[40:43], s[0:1], 96")
        if self.p["TIMING"]:
            for i in range(72, 98): e(f"s_mov_b32 s{i}, 0")
            e("s_memrealtime s[70:71]")
        if self.p["PAD"]: e("s_memrealtime s[80:81]\ns_mov_b32 s82, 0")
        if self.p["CPF"]:
            e("s_getpc_b64 s[4:5]")
            e.label("L_pc")
        if self.p["CPF"] == 1:
            e("v_lshlrev_b32 v4, 6, v0\nv_min_u32 v4, L_codeend-L_pc-4, v4")
            e.vmem("global_load_dword v5, v4, s[4:5]")
        elif self.p["CPF"] == 2:
            e("v_lshlrev_b32 v4, 7, v0\nv_cmp_gt_u32 vcc, L_codeend-L_pc-4, v4\ns_and_saveexec_b64 s[12:13], vcc\ns_cbranch_execz L_nopf")
            e("global_load_dword v5, v4, s[4:5]")
            e.label("L_nopf")
            e("s_mov_b64 exec, -1")
        elif self.p["CPF"] == 3:
            e("s_cmp_lt_u32 s2, 224\ns_cbranch_scc1 L_nopf")
            e("v_lshlrev_b32 v4, 6, v0\nv_min_u32 v4, L_codeend-L_pc-4, v4")
            e("global_load_dword v5, v4, s[4:5]")
            e.label("L_nopf")
        e(f"v_lshrrev_b32 v6, 6, v0\nv_and_b32 v{vL}, 63, v0\nv_and_b32 v{vC}, 15, v0\nv_bfe_u32 v{vG}, v0, 4, 2")
        e(f"v_readfirstlane_b32 s{sW}, v6")
        e(f"s_and_b32 s{sX}, s2, 7\ns_lshr_b32 s{sSLOT}, s2, 3")
        e(f"v_and_b32 v7, 3, v0\nv_lshlrev_b32 v7, 4, v7\nv_lshl_add_u32 v7, v{vG}, 6, v7\nv_and_b32 v8, 7, v0\nv_lshlrev_b32 v10, 4, v{vL}")
        e(f"s_cmp_lt_u32 s{sSLOT}, 8\ns_cbranch_scc1 L_astream")
        e(f"s_sub_u32 s64, s{sSLOT}, 8\ns_mul_i32 s{sH1}, s64, 43\ns_lshr_b32 s{sH1}, s{sH1}, 8\ns_mul_i32 s3, s{sH1}, 6\ns_sub_u32 s{sJ}, s64, s3\n" + (f"s_add_u32 s{sH1}, s{sH1}, {self.p['HROT']}\ns_and_b32 s{sH1}, s{sH1}, 3\n" if self.p["HROT"] else "") + f"s_lshl_b32 s3, s{sX}, 2\ns_add_u32 s{sH1}, s{sH1}, s3")
        e(f"s_mul_i32 s3, s{sJ}, {96*8192}\ns_lshl_b32 s12, s{sH1}, 8\ns_add_u32 s61, s3, s12")
        e(f"v_lshrrev_b32 v6, 4, v0\nv_lshlrev_b32 v4, 13, v6\nv_lshl_add_u32 v4, v{vC}, 4, v4\nv_add_u32 v4, s61, v4\nv_add_u32 v11, 0x40000, v4\nv_add_u32 v12, 0x80000, v4")
        e(f"s_mul_i32 s12, s{sJ}, 192\nv_lshl_add_u32 v6, v6, 1, s12")
        e("s_mov_b32 s50, 0x400000\ns_mov_b32 s51, 0x20000")
        e("s_movk_i32 s58, 0x400\ns_mov_b32 s59, 0x20000\ns_movk_i32 s46, 0x400\ns_mov_b32 s47, 0x20000")
        if self.p["WSOFF"]:
            e(f"s_waitcnt lgkmcnt(0)\ns_add_u32 s42, s42, {self.p['WSOFF'] << 20}\ns_addc_u32 s43, s43, 0\ns_cmp_eq_u32 s{sW}, 7")
        else: e(f"s_cmp_eq_u32 s{sW}, 7\ns_waitcnt lgkmcnt(0)")
        if self.p["WARMQ"]:
            wm = self.p["WM"].replace("_", " ")
            e("s_cbranch_scc0 L_nowarm")
            e(f"s_lshl_b32 s14, s{sH1}, 14\ns_add_u32 s14, s14, {WS_QP}\ns_add_u32 s4, s42, s14\ns_addc_u32 s5, s43, 0\nv_lshlrev_b32 v9, 3, v10\nv_add_u32 v13, 0x2000, v9")
            e(f"global_load_dword v5, v9, s[4:5] {wm}\ns_mov_b32 exec_hi, 0\nglobal_load_dword v5, v13, s[4:5] {wm}")
            e(f"s_lshl_b32 s14, s{sX}, 11\ns_add_u32 s14, s14, {WS_BML}\ns_add_u32 s4, s42, s14\ns_addc_u32 s5, s43, 0\ns_mov_b32 exec_lo, 0xffff\nglobal_load_dword v5, v9, s[4:5] {wm}\ns_mov_b64 exec, -1\ns_cmp_eq_u32 s{sW}, 7")
            e.label("L_nowarm")
        e("s_mov_b32 s48, s20\ns_mov_b32 s49, s21\ns_mov_b32 s56, s16\ns_mov_b32 s57, s17")
        for i in range(3): e.vmem(f"buffer_load_ushort v{16+i}, v6, s[56:59], 0 offen offset:{64*i}")
        for i in range(3): self.tA = e.vmem(f"buffer_load_dwordx4 {vr(128+4*i)}, v{(4,11,12)[i]}, s[48:51], 0 offen {nt}")
        e("s_mov_b32 s44, s28\ns_mov_b32 s45, s29")
        for i in range(3): e.vmem(f"buffer_load_ushort v{19+i}, v6, s[44:47], 0 offen offset:{64*i}")
        e("v_mov_b32 v22, v4\ns_cbranch_scc0 L_notctrl")

    def wq_load(self, i):
        e = self.e
        if i == 0: self.srd(72, 34, 1 << 22)
        t = e.vmem(f"buffer_load_dwordx4 {vr(140+4*i)}, v22, s[16:19], 0 offen {self.p['NT']}")
        if i < 2: e("v_add_u32 v22, 0x40000, v22")
        return t
    def p1_gemv(self, X, W, dst):
        e = self.e
        for i in range(3): self.expand4(44 + 4 * i, X + i, 0)
        for i in range(3): e(f"v_mfma_f32_16x16x32_bf16 v[152:155], {vr(44+4*i)}, {vr(W+4*i)}, {'0' if i == 0 else 'v[152:155]'}")
        e(f"v_lshlrev_b32 v11, 4, v0")
        e.ds(f"ds_write_b128 v11, v[152:155] offset:{dst}")
    def p1_reduce(self, src, R, pub):
        e = self.e
        e(f"v_and_b32 v11, 31, v{vL}\nv_lshlrev_b32 v11, 4, v11\nv_lshrrev_b32 v12, 5, v{vL}\nv_lshl_add_u32 v11, v12, 12, v11")
        tk = [e.ds(f"ds_read_b128 {vr(R+4*w)}, v11 offset:{src+1024*w}") for w in range(4)]
        e(f"v_mov_b32 v{pub+1}, s{sT}\nv_mov_b32 v{pub+3}, s{sT}")
        for w in range(1, 4):
            e.wait_lg(tk[w])
            e(f"v_pk_add_f32 v[{R}:{R+1}], v[{R}:{R+1}], v[{R+4*w}:{R+4*w+1}]\nv_pk_add_f32 v[{R+2}:{R+3}], v[{R+2}:{R+3}], v[{R+4*w+2}:{R+4*w+3}]")
        e(f"v_permlane32_swap_b32 v{R}, v{R+2}\nv_permlane32_swap_b32 v{R+1}, v{R+3}\nv_add_f32 v{pub}, v{R}, v{R+2}\nv_add_f32 v{pub+2}, v{R+1}, v{R+3}")

    def selectors(self):
        e = self.e
        e(f"s_mov_b32 s62, 0\ns_mov_b32 s63, -1\ns_mov_b32 {sCS}, {f32(CS)}")
        self.srd(44, 42, WS_SIZE)
        e("v_and_b32 v15, 3, v0\nv_lshlrev_b32 v15, 4, v15\nv_mov_b32 v13, 0\nv_mov_b32 v11, 0x0c0c0c0c\nv_and_b32 v14, 4, v0\nv_cmp_ne_u32 vcc, 0, v14")
        for pi, d in ((0, 0x0d0c), (1, 0x0f0e)):
            a = SELA + 2 * pi
            e(f"v_mov_b32 v12, {d:#x}\nv_lshlrev_b64 v[{a}:{a+1}], v15, v[12:13]\nv_xor_b32 v{a}, v11, v{a}\nv_xor_b32 v{a+1}, v11, v{a+1}")
            b = SELB + 4 * pi
            e(f"v_cndmask_b32 v{b}, v{a}, v11, vcc\nv_cndmask_b32 v{b+1}, v{a+1}, v11, vcc\nv_cndmask_b32 v{b+2}, v11, v{a}, vcc\nv_cndmask_b32 v{b+3}, v11, v{a+1}, vcc")
    def tagmake(self):
        self.e(f"s_waitcnt lgkmcnt(0)\ns_mul_i32 s{sT}, s{sT}, 0x9e3779b1\ns_add_u32 s{sT}, s{sT}, 0x7f4a7c15")

    def p1_compute(self, ctrl):
        e = self.e
        self.selectors()
        if ctrl:
            self.tagmake()
            e(f"v_mov_b32 v57, s{sT}\nv_mov_b32 v59, s{sT}")
            e.ds(f"ds_write_b32 v13, v57 offset:{LB_FLAG+8}")
            for k in (0, 4, 12, 16, 20): e.ds(f"ds_write_b32 v13, v13 offset:{LB_FLAG+k}")
        e.wait_vm(self.tA)
        self.p1_gemv(16, 128, L_PR)
        e("s_waitcnt lgkmcnt(0)\ns_barrier")
        self.stamp(1)
        if not ctrl:
            e.ds(f"ds_read_b32 v12, v13 offset:{LB_FLAG+8}")
            tq = [self.wq_load(i) for i in range(self.p["WQ0"])]
            e(f"s_waitcnt lgkmcnt(0)\nv_readfirstlane_b32 s{sT}, v12")
            e("s_barrier")
            tq += [self.wq_load(i) for i in range(self.p["WQ0"], 3)]
            return tq[2]

    def phase1(self):
        e, nt = self.e, self.p["NT"]
        WQ, WU = 64, 160
        e(f"s_load_dword s{sT}, s[42:43], 0")
        e(f"v_bfe_u32 v14, v0, 2, 2\nv_lshl_add_u32 v9, v14, 15, v7\nv_add_u32 v9, s61, v9\nv_lshl_add_u32 v14, v14, 14, v7\nv_add_u32 v14, s61, v14")
        self.srd(56, 22, 1 << 22)
        tu = []
        for t in range(4):
            for a in range(4):
                tu.append(e.vmem(f"buffer_load_dwordx4 {vr(WU+16*a+4*t)}, v9, s[56:59], 0 offen {nt}"))
                if (t, a) != (3, 3): e(f"v_add_u32 v9, {0x2000 if a < 3 else 0x20000-0x6000:#x}, v9")
        e("v_add_u32 v14, 0x80000, v14")
        for t in range(4):
            for a in range(2):
                tu.append(e.vmem(f"buffer_load_dwordx4 {vr(WU+64+16*a+4*t)}, v14, s[56:59], 0 offen {nt}"))
                if (t, a) != (3, 1): e(f"v_add_u32 v14, {0x2000 if a < 1 else 0x10000-0x2000:#x}, v14")
        self.p1_compute(True)
        e(f"s_lshl_b32 s14, s{sH1}, 14\ns_add_u32 s14, s14, {WS_QP}\ns_lshl_b32 s15, s{sJ}, 11\ns_add_u32 s15, s15, s14")
        self.p1_reduce(L_PR, WQ, 52)
        tst = e.vmem(f"buffer_store_dwordx4 v[52:55], v10, {WS}, s15 offen")
        self.stamp(2)
        e(f"s_add_u32 s68, s15, {SLOW}")
        def qp_slow():
            e.vmem(f"buffer_store_dwordx4 v[52:55], v10, {WS}, s68 offen sc1")
        QF = [24, 28, 120, 124]
        for b in QF:
            for r in range(4): e(f"v_mov_b32 v{b+r}, 0")
        e(f"v_and_b32 v9, 1, v{vG}\nv_lshlrev_b32 v9, 3, v9\nv_lshl_add_u32 v9, v{vC}, 4, v9\nv_lshrrev_b32 v12, 1, v{vG}\nv_lshl_add_u32 v9, v12, 2, v9")
        e(f"v_add_u32 v13, {L_LQ}, v9\nv_add_u32 v14, {L_LQ}, v7")
        def gat(base, mat):
            def f():
                for jj in range(6):
                    if jj % 2 == 0: e(f"s_add_u32 s12, {base}, {jj*2048}")
                    t = e.vmem(f"buffer_load_dwordx4 {vr(WQ+4*jj)}, v10, {WS}, s12 offen offset:{(jj&1)*2048+1024*mat} sc1")
                return t
            return f
        tags = [WQ + 4 * jj + k for jj in range(6) for k in (1, 3)]
        def sum6():
            for jj in range(1, 6):
                e(f"v_add_f32 v{WQ}, v{WQ}, v{WQ+4*jj}\nv_add_f32 v{WQ+2}, v{WQ+2}, v{WQ+4*jj+2}")
        if self.p["TIMING"]:
            e.wait_vm(tu[min(23, 23 - self.p["NU"])]); self.stamp(22)
        e.wait_vm(tu[23 - self.p["NU"]] if self.p["NU"] >= 0 else tst)
        if self.p["NU"] < 0 and self.p["TIMING"]:
            pass
        self.stamp(21)
        for _ in range(self.p["GSL"]): e("s_sleep 2")
        tg = gat("s14", 0)()
        if not self.p["RLATE"]: e("s_barrier")
        for i in range(3): tq = self.wq_load(i)
        e.wait_vm(tg)
        self.tagcheck(tags, 60)
        e("s_cbranch_vccnz L_p1_retry")
        if self.p["TIMING"]: e("s_mov_b32 s13, 0")
        qp_slow()
        e.label("L_p1_got")
        if self.p["RLATE"]: e("s_barrier")
        def ool():
            e.label("L_p1_retry")
            self.poll(gat("s14", 0), tags, 60, "gqa", fast="s14", slowpub=qp_slow)
            e("s_branch L_p1_got")
        self.ool.append(ool)
        self.stamp(3); self.cnt(20)
        sum6()
        e(f"v_cvt_pk_bf16_f32 v60, v{WQ}, v{WQ+2}")
        e.ds(f"ds_write_b32 v13, v60")
        e("s_waitcnt lgkmcnt(0)")
        for t in range(4):
            m = 0x000f000f << (4 * t)
            self.exec_mask(m, m)
            e.ds(f"ds_read_b128 {vr(QF[t])}, v14")
        self.exec_full()
        e("s_waitcnt lgkmcnt(0)")
        for a in range(6):
            for t in range(4):
                e(f"v_mfma_f32_16x16x32_bf16 {vr(64+4*a)}, {vr(WU+16*a+4*t)}, {vr(QF[t])}, {'0' if t == 0 else vr(64+4*a)}")
        e(f"s_lshl_b32 s12, s{sH1}, 11\ns_mul_i32 s3, s{sJ}, 384\ns_add_u32 s12, s12, s3\ns_add_u32 s12, s12, {WS_QABS}")
        e(f"v_and_b32 v15, 12, v{vC}\nv_add_u32 v15, v15, v{vG}\nv_lshlrev_b32 v14, 3, v15\nv_lshlrev_b32 v15, 4, v15")
        e(f"s_mov_b32 s3, 0x00110011\ns_cmp_lt_u32 s{sJ}, 5\ns_cselect_b32 s3, 0x11111111, s3")
        self.quadsum([(64 + 4 * a, 44 + a) for a in range(6)])
        e(f"v_cvt_pk_bf16_f32 v56, v44, v45\nv_cvt_pk_bf16_f32 v58, v46, v47\nv_cvt_pk_bf16_f32 v62, v48, v49\nv_mov_b32 v63, s{sT}")
        e("s_mov_b32 exec_lo, s3\ns_mov_b32 exec_hi, s3")
        e.vmem(f"buffer_store_dwordx4 v[56:59], v15, {WS}, s12 offen sc1")
        e("s_cbranch_scc0 L_p1done")
        e(f"buffer_store_dwordx2 v[62:63], v14, {WS}, s12 offen offset:256 sc1")
        e.label("L_p1done")
        self.exec_full()
        self.stamp(4)
        e.wait_vm(tq)
        self.p1_gemv(19, 140, L_PRB)
        e("v_mov_b32 v15, 0")
        L = self.lab("wqb")
        e.label(L)
        e.ds(f"ds_read_b32 v60, v15 offset:{LB_FLAG+12}")
        e(f"s_waitcnt lgkmcnt(0)\nv_readfirstlane_b32 s3, v60\ns_cmp_lt_u32 s3, 7\ns_cbranch_scc1 {L}")
        self.p1_reduce(L_PRB, WQ, 52)
        e.vmem(f"buffer_store_dwordx4 v[52:55], v10, {WS}, s15 offen offset:1024")
        e.vmem(f"buffer_store_dwordx4 v[52:55], v10, {WS}, s68 offen offset:1024 sc1")
        R = 160
        e(f"s_lshl_b32 s67, s{sX}, 16\ns_add_u32 s67, s67, {WS_QP}")
        def gb():
            for hh in range(4):
                for jj in range(6):
                    if jj % 2 == 0: e(f"s_add_u32 s12, s67, {hh*16384+jj*2048}")
                    e.vmem(f"buffer_load_dwordx4 {vr(R+24*hh+4*jj)}, v10, {WS}, s12 offen offset:{(jj&1)*2048+1024} sc1")
        self.poll(gb, [R + 4 * i + k for i in range(24) for k in (1, 3)], 60, "gqb", fast="s67")
        for jj in range(1, 6):
            for hh in range(4):
                b = R + 24 * hh
                e(f"v_add_f32 v{b}, v{b}, v{b+4*jj}\nv_add_f32 v{b+2}, v{b+2}, v{b+4*jj+2}")
        e("v_mov_b32 v15, 0\nv_mov_b32 v61, 1")
        for hh in range(4):
            b = R + 24 * hh
            e(f"v_cvt_pk_bf16_f32 v{b}, v{b}, v{b+2}")
            e.ds(f"ds_write_b32 v9, v{b} offset:{LB_Q+256*hh}")
        e.ds(f"ds_write_b32 v15, v61 offset:{LB_FLAG}")
        e("s_waitcnt lgkmcnt(0)")
        self.stamp(18); self.cnt(19)
        if self.p["TLBP"]:
            e(f"s_lshl_b32 s3, s{sX}, 22\ns_add_u32 s4, s32, s3\ns_addc_u32 s5, s33, 0\ns_load_dword s12, s[4:5], 0")
            e("s_add_u32 s4, s4, 0x200000\ns_addc_u32 s5, s5, 0\ns_load_dword s12, s[4:5], 0")
            e("s_add_u32 s4, s4, 0x1ffffc\ns_addc_u32 s5, s5, 0\ns_load_dword s12, s[4:5], 0")
            e(f"s_lshl_b32 s3, s{sX}, 19\ns_add_u32 s4, s36, s3\ns_addc_u32 s5, s37, 0\ns_load_dword s12, s[4:5], 0\ns_load_dword s12, s[38:39], 0")
            e(f"s_add_u32 s4, s42, {WS_AO}\ns_addc_u32 s5, s43, 0\ns_load_dword s12, s[4:5], 0\ns_waitcnt lgkmcnt(0)")

    def quadsum(self, pairs):
        e = self.e
        for D, S in pairs: e(f"v_mov_b32_dpp v{S}, v{D} quad_perm:[0,0,0,0] row_mask:0xf bank_mask:0xf")
        for r in range(1, 4):
            for D, S in pairs: e(f"v_add_f32_dpp v{S}, v{D+r}, v{S} quad_perm:[{r},{r},{r},{r}] row_mask:0xf bank_mask:0xf")

    def b_ids(self):
        e = self.e
        e(f"s_lshr_b32 s65, s64, 2\ns_lshl_b32 s3, s{sX}, 2\ns_add_u32 s65, s65, s3\ns_and_b32 s66, s64, 3")
        e(f"v_bfe_u32 v6, v{vL}, 2, 2\nv_lshl_add_u32 v6, v6, 8, v7")
        e(f"s_lshl_b32 s3, s65, 7\ns_and_b32 s12, s{sW}, 3\ns_lshl_b32 s12, s12, 5\ns_add_u32 s3, s3, s12\ns_lshr_b32 s12, s{sW}, 2\ns_lshl_b32 s12, s12, 2\ns_add_u32 s3, s3, s12")
        if self.p["WOSP"]:
            e(f"s_lshl_b32 s3, s3, 10\ns_and_b32 s12, s66, 1\ns_lshl_b32 s12, s12, 8\ns_add_u32 s3, s3, s12\ns_lshr_b32 s12, s66, 1\ns_lshl_b32 s12, s12, 7\ns_add_u32 s69, s3, s12")
            e(f"v_bfe_u32 v4, v{vL}, 3, 1\nv_lshlrev_b32 v4, 9, v4\nv_lshl_add_u32 v4, v{vG}, 10, v4\nv_lshl_add_u32 v4, v8, 4, v4")
        else:
            e(f"s_lshl_b32 s3, s3, 10\ns_lshl_b32 s12, s66, 8\ns_add_u32 s69, s3, s12")
            e(f"v_lshlrev_b32 v4, 10, v{vG}\nv_lshl_add_u32 v4, v{vC}, 4, v4")
        self.srd(48, 30, 1 << 25); self.srd(52, 32, 1 << 25); self.srd(56, 36, 1 << 22)
        e("s_cmp_lt_u32 s64, 16\ns_cselect_b32 s58, s58, 0")
    def bo_addr(self):
        e = self.e
        e(f"s_mul_i32 s68, s65, {24*512}\ns_lshl_b32 s3, s{sW}, 6\ns_add_u32 s68, s68, s3\ns_add_u32 s68, s68, {WS_BO}")
        e(f"v_and_b32 v9, 3, v{vL}\nv_lshlrev_b32 v9, 4, v9\nv_lshrrev_b32 v6, 2, v{vL}\nv_lshl_add_u32 v6, v6, 9, v9\nv_and_b32 v9, 0xfff, v6\nv_add_u32 v9, {16*512}, v9")
    def bo_warm(self):
        e = self.e
        self.bo_addr()
        L = self.lab("bow")
        e(f"s_cmp_lt_u32 s64, 16\ns_cbranch_scc0 {L}")
        e(f"buffer_load_dword v5, v6, {WS}, s68 offen {self.p['WM'].replace('_',' ')}")
        e(f"buffer_load_dword v5, v9, {WS}, s68 offen {self.p['WM'].replace('_',' ')}")
        e.label(L)
    def b_kload(self, KR, t, n):
        return self.e.vmem(f"buffer_load_dwordx4 {vr(KR+16*t+4*n)}, v6, s[48:51], s14 offen offset:{0 if self.ilv else n*1024} {self.p['NT']}")
    def b_vload(self, VR, t, n):
        return self.e.vmem(f"buffer_load_dwordx4 {vr(VR+16*t+4*n)}, v10, s[52:55], s15 offen offset:{0 if self.ilv else n*1024} {self.p['NT']}")
    def b_woloads(self):
        for i in range(4):
            self.e.vmem(f"buffer_load_dwordx4 {vr(self.WO[i])}, v4, s[56:59], s69 offen {self.p['NT']}")
            if i < 3: self.e("s_addk_i32 s69, 0x2000")
    def b_chunks(self, nt, KR, bias, wait_q):
        e = self.e
        ch = []
        def c_q():
            e(f"v_lshrrev_b32 v11, 2, v{vC}\nv_lshl_add_u32 v12, v11, 8, v7")
            e(f"v_lshlrev_b32 v13, 5, v11\ns_lshl_b32 s3, s{sW}, 2\nv_add_u32 v14, s3, v13\nv_mov_b32 v15, 0")
            if wait_q:
                L = self.lab("wq")
                e.label(L)
                e.ds(f"ds_read_b32 v60, v15 offset:{LB_FLAG}")
                e(f"s_waitcnt lgkmcnt(0)\nv_readfirstlane_b32 s3, v60\ns_cmp_eq_u32 s3, 0\ns_cbranch_scc1 {L}")
            self.stamp(5)
            e.ds(f"ds_read_b128 v[16:19], v12 offset:{LB_Q}")
            e("s_waitcnt lgkmcnt(0)")
        ch.append((-1, c_q))
        def c_qk(t):
            def f():
                b = KR + 16 * t
                if t < nt:
                    for i in range(4): e(f"v_mfma_f32_16x16x32_bf16 {vr(44+4*i)}, {vr(b+4*i)}, v[16:19], 0")
                    self.quadsum([(44 + 4 * i, b + i) for i in range(4)])
                    if t == 0: e(f"v_max3_f32 v60, v{b}, v{b+1}, v{b+2}\nv_max_f32 v60, v60, v{b+3}")
                    else: e(f"v_max3_f32 v60, v60, v{b}, v{b+1}\nv_max3_f32 v60, v60, v{b+2}, v{b+3}")
                if t == nt:
                    self.allred_G([60], [61], "v_max_f32")
                    e(f"v_mul_f32 v62, {sCS}, v60")
            return f
        for t in range(nt + 1): ch.append((min(t, nt - 1), c_qk(t)))
        def c_exp(t):
            def f():
                b = KR + 16 * t
                for r in range(4): e(f"v_fma_f32 v{b+r}, v{b+r}, {sCS}, -v62")
                for r in range(4): e(f"v_exp_f32 v{b+r}, v{b+r}")
                if t == 0: e(f"v_add_f32 v63, v{b}, v{b+1}")
                else: e(f"v_add_f32 v63, v63, v{b}\nv_add_f32 v63, v63, v{b+1}")
                e(f"v_cvt_pk_bf16_f32 v{b+4}, v{b}, v{b+1}\nv_add_f32 v63, v63, v{b+2}\nv_cvt_pk_bf16_f32 v{b+5}, v{b+2}, v{b+3}\nv_add_f32 v63, v63, v{b+3}")
            return f
        for t in range(nt): ch.append((nt - 1, c_exp(t)))
        def c_l():
            self.allred_G([63], [61], "v_add_f32")
            if bias: e(f"v_add_f32 v62, {bias}, v62")
            e("v_mov_b32 v61, 1")
            self.exec_mask(0x1111, 0)
            e.ds(f"ds_write_b32 v14, v62 offset:{LB_MX}")
            e.ds(f"ds_write_b32 v14, v63 offset:{LB_LS}")
            e("s_mov_b32 exec_lo, 1")
            e.ds(f"ds_add_u32 v15, v61 offset:{LB_FLAG+4}")
            self.exec_full()
            self.stamp(6)
        ch.append((nt - 1, c_l))
        return ch
    def b_pv_prep(self, KR, n):
        t, i = n >> 2, n & 3
        E = 44 + 2 * (n & 3)
        for q in range(2): self.e(f"v_perm_b32 v{E+q}, v{KR+16*t+4+(i>>1)}, v{KR+16*t+4+(i>>1)}, v{SELA+2*(i&1)+q}")
    def b_pv_mma(self, VR, n):
        t, i = n >> 2, n & 3
        E = 44 + 2 * (n & 3)
        b = VR + 16 * t + 4 * i
        for h in range(2):
            acc = 24 + 4 * h
            self.e(f"v_mfma_f32_16x16x16_bf16 {vr(acc)}, v[{E}:{E+1}], v[{b+2*h}:{b+2*h+1}], {'0' if n == 0 else vr(acc)}")
    def b_owrite(self):
        e = self.e
        e(f"s_lshl_b32 s3, s{sW}, 11\nv_add_u32 v11, s3, v10")
        e.ds(f"ds_write_b128 v11, v[24:27] offset:{LB_R4}")
        e.ds(f"ds_write_b128 v11, v[28:31] offset:{LB_R4+1024}")
        e("s_waitcnt lgkmcnt(0)")
        e("s_branch L_btail")

    def b_ctrl(self):
        e = self.e
        KR, VR = 64, 160
        self.WO = [72, 88, 104, 120]
        self.b_ids()
        e("s_cmp_ge_u32 s64, 16\ns_cselect_b32 s50, s50, 0\ns_cselect_b32 s54, s54, 0")
        e(f"s_cselect_b32 s61, 0, {f32(-1e30)}")
        e(f"s_lshl_b32 s14, s{sX}, 22\ns_lshl_b32 s3, s64, 1\ns_add_u32 s3, s3, {1008-32}\ns_lshl_b32 s3, s3, 12\ns_cmp_ge_u32 s64, 16\ns_cselect_b32 s3, s3, 0\ns_add_u32 s14, s14, s3\ns_mov_b32 s15, s14")
        for t in range(2):
            for n in range(4): self.b_kload(KR, t, n)
            if t == 0: e("s_addk_i32 s14, 0x1000")
        for t in range(2):
            for n in range(4): self.b_vload(VR, t, n)
            if t == 0: e("s_addk_i32 s15, 0x1000")
        e("s_waitcnt vmcnt(0) lgkmcnt(0)")
        for _, f in self.b_chunks(2, KR, "s61", False): f()
        for n in range(8):
            self.b_pv_prep(KR, n)
            self.b_pv_mma(VR, n)
        self.bo_warm() if self.p["WARMB"] else self.bo_addr()
        e(f"s_lshl_b32 s12, s{sX}, 11\ns_lshl_b32 s3, s64, 4\ns_add_u32 s12, s12, s3\ns_add_u32 s12, s12, {WS_BML}")
        e(f"v_lshlrev_b32 v11, 4, v13\nv_mov_b32 v53, s{sT}\nv_mov_b32 v55, s{sT}")
        if self.p["NL"]:
            L = self.lab("wtk")
            e.label(L)
            e("s_sleep 2")
            e.ds(f"ds_read_b32 v60, v15 offset:{LB_FLAG+20}")
            e(f"s_waitcnt lgkmcnt(0)\nv_readfirstlane_b32 s3, v60\ns_cmp_eq_u32 s3, 0\ns_cbranch_scc1 {L}")
            e("v_mov_b32 v144, 1\ns_mov_b64 exec, 1")
            e("global_atomic_add v145, v15, v144, s[40:41] sc0 sc1")
            e(f"s_waitcnt vmcnt(0)\nv_cmp_gt_u32 vcc, {self.p['RK']}, v145\nv_cndmask_b32 v145, 0, 1, vcc")
            e.ds(f"ds_write_b32 v15, v145 offset:{LB_FLAG+16}")
            self.exec_full()
        L = self.lab("wml")
        e.label(L)
        e("s_sleep 2")
        e.ds(f"ds_read_b32 v60, v15 offset:{LB_FLAG+4}")
        e(f"s_waitcnt lgkmcnt(0)\nv_readfirstlane_b32 s3, v60\ns_cmp_lt_u32 s3, 8\ns_cbranch_scc1 {L}")
        e.ds(f"ds_read_b128 v[128:131], v13 offset:{LB_MX}")
        e.ds(f"ds_read_b128 v[132:135], v13 offset:{LB_MX+16}")
        e.ds(f"ds_read_b128 v[136:139], v13 offset:{LB_LS}")
        e.ds(f"ds_read_b128 v[140:143], v13 offset:{LB_LS+16}")
        e("s_waitcnt lgkmcnt(0)")
        e("v_max3_f32 v52, v128, v129, v130\nv_max3_f32 v52, v52, v131, v132\nv_max3_f32 v52, v52, v133, v134\nv_max_f32 v52, v52, v135")
        for r in range(128, 136): e(f"v_sub_f32 v{r}, v{r}, v52")
        for r in range(128, 136): e(f"v_exp_f32 v{r}, v{r}")
        e("v_mul_f32 v54, v128, v136")
        for r in range(1, 8): e(f"v_fmac_f32 v54, v{128+r}, v{136+r}")
        self.exec_mask(0x1111, 0)
        e.ds(f"ds_write_b128 v13, v[128:131] offset:{LB_G}")
        e.ds(f"ds_write_b128 v13, v[132:135] offset:{LB_G+16}")
        e.vmem(f"buffer_store_dwordx4 v[52:55], v11, {WS}, s12 offen")
        e(f"s_add_u32 s12, s12, {SLOW}")
        e.vmem(f"buffer_store_dwordx4 v[52:55], v11, {WS}, s12 offen sc1")
        self.exec_full()
        e("s_cmp_lt_u32 s64, 16\ns_cbranch_scc0 L_bc_nod")
        if self.p["WOK"] <= 23: self.b_woloads()
        e(f"v_and_b32 v15, 31, v{vL}\nv_min_u32 v11, 23, v15\nv_lshlrev_b32 v11, 4, v11\ns_lshl_b32 s12, s65, 9\ns_add_u32 s12, s12, {WS_BML}")
        def gm(): e.vmem(f"buffer_load_dwordx4 v[52:55], v11, {WS}, s12 offen sc1")
        self.poll(gm, [53, 55], 60, "gml", fast="s12")
        e("v_mov_b32 v56, v52")
        self.rowred([56], "v_max_f32", (8, 4, 2, 1))
        self.allred_G([56], [57], "v_max_f32", steps=(16,))
        e("v_sub_f32 v52, v52, v56\nv_exp_f32 v52, v52\nv_cmp_gt_u32 vcc, 24, v15\nv_cndmask_b32 v52, 0, v52, vcc\nv_mul_f32 v54, v54, v52")
        self.rowred([54], "v_add_f32", (8, 4, 2, 1))
        self.allred_G([54], [57], "v_add_f32", steps=(16,))
        e("v_rcp_f32 v54, v54\nv_lshlrev_b32 v15, 2, v15\nv_mul_f32 v52, v52, v54")
        e.ds(f"ds_write_b32 v15, v52 offset:{LB_F}")
        e.label("L_bc_nod")
        self.b_owrite()

    def b_stream(self):
        e, p = self.e, self.p
        KR, VR, NT_ = 64, 160, 6
        self.WO = [72, 88, 104, 120]
        self.b_ids()
        e(f"s_mul_i32 s3, s64, 7\ns_add_u32 s3, s3, s{sW}\ns_lshl_b32 s3, s3, {10 if p['ILV1'] else 12}\ns_lshl_b32 s14, s{sX}, 22\ns_add_u32 s14, s14, s3\ns_mov_b32 s15, s14\ns_mov_b32 s67, {168*(1024 if p['ILV1'] else 4096)}")
        self.ilv = bool(p["ILV1"])
        Df = lambda n: p["D_B0"] if n < p["NB0"] else p["D_B"] if n < p["NB2"] else p["D_B2"]
        D = p["D_B"]
        tok = []
        ch = []
        def issue(n, throttle=True):
            if throttle and n >= Df(n):
                if n < p["NDUTY"]:
                    L = self.lab("dty")
                    e(f"s_cbranch_vccnz {L}")
                    e.wait_vm(tok[n - Df(n)])
                    e.label(L)
                    if n > Df(n): e.wait_vm(tok[n - Df(n) - 1])
                elif p["NL"] and n >= p["NL"]:
                    if n == p["NL"]:
                        e(f"s_waitcnt lgkmcnt(0)\nv_readfirstlane_b32 s3, v5\ns_cmp_eq_u32 s3, 0\ns_cselect_b64 vcc, -1, 0")
                    L = self.lab("bal")
                    e(f"s_cbranch_vccnz {L}")
                    e.wait_vm(tok[n - p["DSLOW"]])
                    e.label(L)
                    e.wait_vm(tok[n - Df(n)])
                else: e.wait_vm(tok[n - Df(n)])
            if p["NL"] and n == p["NL"] - 1:
                e.ds(f"ds_read_b32 v5, v15 offset:{LB_FLAG+16}")
            if p["NL"] and n == p["NTK"]:
                assert n > p["N1"]
                L = self.lab("tk")
                e(f"s_cmp_eq_u32 s{sW}, 6\ns_cbranch_scc0 {L}")
                e(f"ds_write_b32 v15, v32 offset:{LB_FLAG+20}")
                e.label(L)
            self.prog(n, 4)
            if n < 24:
                if n and (n % 4 == 0 or self.ilv): e("s_add_u32 s14, s14, s67")
                tok.append(self.b_kload(KR, n >> 2, n & 3))
            elif n < 48:
                m = n - 24
                if m and (m % 4 == 0 or self.ilv): e("s_add_u32 s15, s15, s67")
                tok.append(self.b_vload(VR, m >> 2, m & 3))
        n = 0
        if p["PRIO"]:
            L = self.lab("prio")
            e(f"s_cmp_ge_u32 s{sW}, 4\ns_cbranch_scc0 {L}\ns_setprio {p['PRIO']}")
            e.label(L)
        def touch():
            e(f"s_mul_i32 s3, s64, 7\ns_add_u32 s3, s3, s{sW}\ns_and_b32 s12, s3, 7\ns_lshl_b32 s12, s12, 13\ns_lshr_b32 s3, s3, 3\ns_add_u32 s3, s3, {p['TOUCH']}\ns_lshl_b32 s3, s3, 19\ns_add_u32 s3, s3, s12")
            e(f"s_lshl_b32 s12, s{sX}, 16\ns_add_u32 s3, s3, s12\nv_lshlrev_b32 v12, {p['TSH']}, v10\nv_add_u32 v12, s3, v12")
            for k in range(8 >> p["TSH"]):
                e.vmem(f"buffer_load_dword v5, v12, s[20:23], 0 offen {p['NT']}")
                if k + 1 < 8 >> p["TSH"]: e(f"v_add_u32 v12, {1024 << p['TSH']}, v12")
        if p["TOUCH"]:
            self.srd(20, 18, 1 << 24)
            if p["TPOS"] == 1: touch()
        tq = self.p1_compute(False)
        if p["TOUCH"] and p["TPOS"] == 0: touch()
        while n < p["D_B0"]: issue(n); n += 1
        e.wait_vm(tq)
        self.p1_gemv(19, 140, L_PRB)
        e("v_mov_b32 v12, 1\ns_mov_b64 exec, 1")
        e.ds(f"ds_add_u32 v13, v12 offset:{LB_FLAG+12}")
        self.exec_full()
        assert p["NDUTY"] <= p["N1"]
        if p["NDUTY"]:
            if p["DEEPW"] < 0: e("s_cmp_lt_u32 s64, 16\ns_cselect_b64 vcc, -1, 0")
            else: e(f"s_cmp_ge_u32 s{sW}, {7-p['DEEPW']}\ns_cselect_b64 vcc, -1, 0")
        while n < p["N1"]: issue(n); n += 1
        ch += self.b_chunks(NT_, KR, None, True)
        done = 0
        landed = -1
        while n < 48:
            if n == max(p["WARMO"], p["N1"]):
                assert n >= 24
                self.bo_warm() if p["WARMB"] else self.bo_addr()
            issue(n)
            if n == p["NWO"]:
                assert not ch
                self.b_woloads()
            landed = max(landed, n - Df(n))
            k = 0
            while ch and k < p["CPS"] and 4 * ch[0][0] + 3 <= landed:
                ch.pop(0)[1](); k += 1
            k = 0
            while not ch and done < min(landed - 24 + 1, 24) and k < p["PVK"]:
                self.b_pv_prep(KR, done); self.b_pv_mma(VR, done); done += 1; k += 1
            n += 1
        assert not ch
        assert done <= p["WOK"]
        while done < 24:
            self.b_pv_prep(KR, done)
            e.wait_vm(tok[24 + done])
            if done == p["WOK"] and not p["NWO"]:
                L = self.lab("wol")
                e(f"s_cmp_lt_u32 s{sW}, {p['WOLATE']}\ns_cbranch_scc0 {L}")
                v = e.vm
                self.b_woloads()
                e.vm = v
                e.label(L)
            self.b_pv_mma(VR, done); done += 1
        self.stamp(7)
        self.b_owrite()

    def b_tail(self):
        e = self.e
        e.label("L_btail")
        e("s_barrier")
        self.stamp(10)
        e(f"s_cmp_lt_u32 s{sW}, 2\ns_cbranch_scc0 L_bt_nored")
        e(f"s_lshl_b32 s3, s{sW}, 10\nv_add_u32 v11, s3, v10")
        e(f"v_lshlrev_b32 v13, 5, v{vG}")
        e.ds(f"ds_read_b128 v[44:47], v13 offset:{LB_G}")
        e.ds(f"ds_read_b128 v[48:51], v13 offset:{LB_G+16}")
        tk = [e.ds(f"ds_read_b128 {vr(128+4*w)}, v11 offset:{LB_R4+2048*w}") for w in range(8)]
        e(f"s_mul_i32 s15, s{sX}, {4*24*512}\ns_lshl_b32 s3, s64, 9\ns_add_u32 s15, s15, s3\ns_lshl_b32 s3, s{sW}, 8\ns_add_u32 s15, s15, s3\ns_add_u32 s15, s15, {WS_BO}")
        e(f"v_mul_u32_u24 v14, {24*512}, v{vG}\nv_lshl_add_u32 v14, v{vC}, 4, v14\nv_mov_b32 v53, s{sT}\nv_mov_b32 v55, s{sT}")
        for w in range(8):
            e.wait_lg(tk[w])
            g = 44 + (w & ~1)
            sel = f"op_sel:[0,{w&1},0] op_sel_hi:[1,{w&1},1]"
            for k in (0, 2):
                if w == 0: e(f"v_pk_mul_f32 v[{128+k}:{129+k}], v[{128+k}:{129+k}], v[{g}:{g+1}] op_sel:[0,0] op_sel_hi:[1,0]")
                else: e(f"v_pk_fma_f32 v[{128+k}:{129+k}], v[{128+4*w+k}:{129+4*w+k}], v[{g}:{g+1}], v[{128+k}:{129+k}] {sel}")
        e("v_cvt_pk_bf16_f32 v52, v128, v129\nv_cvt_pk_bf16_f32 v54, v130, v131")
        e.vmem(f"buffer_store_dwordx4 v[52:55], v14, {WS}, s15 offen")
        e(f"s_add_u32 s15, s15, {SLOW}")
        e.label("L_bt_nored")
        self.stamp(8)
        def bo_slow():
            L = self.lab("bos")
            e(f"s_cmp_lt_u32 s{sW}, 2\ns_cbranch_scc0 {L}")
            e(f"buffer_store_dwordx4 v[52:55], v14, {WS}, s15 offen sc1")
            e.label(L)
        e("s_cmp_lt_u32 s64, 16\ns_cbranch_scc1 L_bt_duty")
        bo_slow()
        self.exit()
        e.label("L_bt_duty")
        if self.p["NWO"] and self.p["B4B"]: e("s_barrier")
        if self.p["WOLATE"] < 7 and not self.p["NWO"]:
            L = self.lab("wol")
            e(f"s_barrier\ns_sub_u32 s3, s{sW}, {self.p['WOLATE']}\ns_cmp_lt_u32 s3, {7-self.p['WOLATE']}\ns_cbranch_scc0 {L}")
            self.b_woloads()
            e.label(L)
        e(f"v_and_b32 v11, 60, v{vL}")
        e.ds(f"ds_read_b32 v60, v11 offset:{LB_F}")
        e.ds(f"ds_read_b32 v61, v11 offset:{LB_F+64}")
        def g():
            e.vmem(f"buffer_load_dwordx4 v[128:131], v6, {WS}, s68 offen sc1")
            e.vmem(f"buffer_load_dwordx4 v[132:135], v9, {WS}, s68 offen sc1")
        self.poll(g, [129, 131, 133, 135], 62, "gbo", fast="s68", slowpub=bo_slow)
        self.stamp(11); self.cnt(12)
        e("s_waitcnt lgkmcnt(0)")
        for k, (src, f) in enumerate(((128, 60), (132, 61))):
            e(f"v_lshlrev_b32 v136, 16, v{src}\nv_and_b32 v137, 0xffff0000, v{src}\nv_lshlrev_b32 v138, 16, v{src+2}\nv_and_b32 v139, 0xffff0000, v{src+2}")
            for i in range(4):
                e(f"v_mul_f32 v{140+i}, v{f}, v{136+i}" if k == 0 else f"v_fmac_f32 v{140+i}, v{f}, v{136+i}")
        e("v_permlane32_swap_b32 v140, v142\nv_permlane32_swap_b32 v141, v143\nv_add_f32 v140, v140, v142\nv_add_f32 v141, v141, v143")
        e("v_permlane16_swap_b32 v140, v141\nv_add_f32 v140, v140, v141")
        self.rowred([140], "v_add_f32", (8, 4))
        e("v_cvt_pk_bf16_f32 v140, v140, v140")
        for i in range(4): e(f"v_mov_b32_dpp v{144+i}, v140 quad_perm:[{i},{i},{i},{i}] row_mask:0xf bank_mask:0xf")
        for i in range(4): self.expand4(148 + 4 * i, 144 + i, 0)
        for i in range(4):
            e(f"v_mfma_f32_16x16x32_bf16 v[24:27], {vr(148+4*i)}, {vr(self.WO[i])}, {'0' if i == 0 else 'v[24:27]'}")
        e(f"s_lshl_b32 s3, s{sW}, 10\nv_add_u32 v11, s3, v10")
        e.ds(f"ds_write_b128 v11, v[24:27] offset:{LB_R5}")
        e("s_waitcnt lgkmcnt(0)")
        self.stamp(13)
        e("s_barrier")
        self.stamp(14)
        e(f"s_cmp_eq_u32 s{sW}, 0\ns_cbranch_scc1 L_bt_fin")
        self.exit()
        e.label("L_bt_fin")
        e(f"v_and_b32 v11, 31, v{vL}\nv_lshlrev_b32 v11, 4, v11\nv_lshrrev_b32 v12, 5, v{vL}\nv_lshl_add_u32 v11, v12, 12, v11")
        tk = [e.ds(f"ds_read_b128 {vr(128+4*w)}, v11 offset:{LB_R5+1024*w}") for w in range(4)]
        e(f"s_lshl_b32 s12, s65, 12\ns_lshl_b32 s3, s66, 10\ns_add_u32 s12, s12, s3\ns_add_u32 s12, s12, {WS_OUTB}")
        e(f"v_and_b32 v13, 1, v{vG}\nv_lshlrev_b32 v13, 5, v13\nv_lshl_add_u32 v13, v{vC}, 6, v13\nv_lshl_add_u32 v13, v12, 4, v13\nv_mov_b32 v53, s{sT}\nv_mov_b32 v55, s{sT}")
        for w in range(1, 4):
            e.wait_lg(tk[w])
            e(f"v_pk_add_f32 v[128:129], v[128:129], v[{128+4*w}:{129+4*w}]\nv_pk_add_f32 v[130:131], v[130:131], v[{130+4*w}:{131+4*w}]")
        e("v_permlane32_swap_b32 v128, v130\nv_permlane32_swap_b32 v129, v131")
        e("v_add_f32 v52, v128, v130\nv_add_f32 v54, v129, v131")
        e.vmem(f"buffer_store_dwordx4 v[52:55], v13, {WS}, s12 offen sc1")
        self.stamp(9)
        e(f"s_lshl_b32 s3, s66, 7\ns_lshl_b32 s14, s65, 2\ns_add_u32 s14, s14, s3\ns_lshl_b32 s12, s14, 3\ns_add_u32 s12, s12, {WS_OUTB}")
        e(f"v_lshrrev_b32 v11, 1, v{vL}\nv_lshlrev_b32 v11, 12, v11\nv_and_b32 v12, 1, v{vL}\nv_lshl_add_u32 v11, v12, 4, v11")
        self.srd(48, 38, 2048)
        if self.p["WOSP"]:
            e(f"s_lshr_b32 s14, s65, 4\ns_lshl_b32 s14, s14, 8\ns_and_b32 s3, s66, 1\ns_lshl_b32 s3, s3, 7\ns_add_u32 s14, s14, s3\ns_lshr_b32 s3, s66, 1\ns_lshl_b32 s3, s3, 6\ns_add_u32 s14, s14, s3\ns_and_b32 s3, s65, 15\ns_lshl_b32 s3, s3, 2\ns_add_u32 s14, s14, s3")
        e(f"s_lshl_b32 s14, s14, 1\ns_add_u32 s14, s14, 1024\nv_lshlrev_b32 v12, 2, v12")
        def fin(R):
            self.stamp(15); self.cnt(16)
            self.rowred([R, R + 2], "v_add_f32", (8, 4, 2))
            self.allred_G([R, R + 2], [144, 145], "v_add_f32")
            e(f"v_cvt_pk_bf16_f32 v146, v{R}, v{R+2}")
            self.exec_mask(3, 0)
            e("buffer_store_dword v146, v12, s[48:51], s14 offen")
            if self.p["TIMING"]: self.exec_full(); e("s_waitcnt vmcnt(0)")
            self.exit()
        ld = lambda r: e(f"buffer_load_dwordx4 {vr(r)}, v11, {WS}, s12 offen sc1")
        if self.p["DPOLL"]: self.poll2(ld, 1, 128, 136, 62, "gob", fin)
        else:
            self.poll(lambda: ld(128), [129, 131], 62, "gob")
            fin(128)

    def a_setup(self):
        e = self.e
        e(f"s_lshl_b32 s64, s{sX}, 3\ns_add_u32 s64, s64, s{sSLOT}\ns_lshr_b32 s65, s64, 1\ns_and_b32 s66, s64, 1")
        e("s_waitcnt lgkmcnt(0)")
        if self.p["WSOFF"]: e(f"s_add_u32 s42, s42, {self.p['WSOFF'] << 20}\ns_addc_u32 s43, s43, 0")
        e(f"s_load_dword s{sT}, s[42:43], 0")
        self.srd(48, 18, 1 << 24)
        e(f"s_lshl_b32 s14, s64, 13\ns_lshl_b32 s3, s{sW}, 10\ns_add_u32 s14, s14, s3\ns_mov_b32 s61, 0x80000")
        e(f"s_lshl_b32 s15, s{sW}, 13\ns_add_u32 s15, s15, {WS_QABS}")
        e(f"s_lshl_b32 s67, s{sW}, 14")
        e(f"v_and_b32 v11, 3, v{vC}\nv_lshlrev_b32 v11, 2, v11")
        e(f"v_lshrrev_b32 v12, 2, v{vC}\nv_and_b32 v13, 1, v12\nv_or_b32 v11, v11, v13")
        e(f"v_xor_b32 v12, v12, v{vC}\nv_and_b32 v12, 2, v12\nv_or_b32 v11, v11, v12")
        e(f"v_lshlrev_b32 v11, 4, v11\nv_lshl_add_u32 v11, v{vG}, 8, v11\nv_lshl_add_u32 v11, v{vC}, 10, v11")
        e(f"v_add_u32 v6, s67, v11\nv_add_u32 v7, {LA_Q}, v11")
        e(f"v_add_u32 v9, s67, v10")
    def a_issue(self, depthf, p1at=None):
        e, p = self.e, self.p
        T1, T0, QG = 64, 128, 192
        seq = [("t1", i) for i in range(16)] + [("t0", i) for i in range(16)]
        q = p["QPOS"]
        seq = seq[:q] + [("q", i) for i in range(8)] + seq[q:]
        tok, done = [], 0
        tokof = {}
        def landed_action(it):
            kind, i = it
            if p["ANODS"]: return
            if kind == "t1":
                e(f"v_xor_b32 v12, {16*fswz(i)}, v9")
                e.ds(f"ds_write_b128 v12, {vr(T1+4*i)} offset:{1024*i}")
                if i == 15:
                    e("s_waitcnt lgkmcnt(0)")
                    for ks in range(16):
                        e(f"v_xor_b32 v12, {16*ks}, v6")
                        e.ds(f"ds_read_b128 {vr(T1+4*ks)}, v12")
            elif kind == "t0":
                e(f"v_xor_b32 v12, {16*fswz(i)}, v9")
                e.ds(f"ds_write_b128 v12, {vr(T0+4*i)} offset:{1024*i}")
        def qload(i):
            if i % 4 == 0: e(f"s_add_u32 s12, s15, {1024*i}")
            return e.vmem(f"buffer_load_dwordx4 {vr(QG+4*i)}, v10, {WS}, s12 offen offset:{1024*(i&3)} sc1")
        for n, it in enumerate(seq):
            if n == p1at: self.selectors(); self.a_addrs(); self.tagmake(); self.stamp(1)
            D = depthf(n)
            if n >= D:
                e.wait_vm(tok[n - D])
            self.prog(n, 4)
            kind, i = it
            if kind == "q":
                t = qload(i)
            else:
                t = e.vmem(f"buffer_load_dwordx4 {vr((T1 if kind == 't1' else T0)+4*i)}, v10, s[48:51], s14 offen {p['NT']}")
                if not (kind == "t0" and i == 15): e("s_add_u32 s14, s14, s61")
            tok.append(t); tokof[it] = t
            while done <= n - D and done < len(seq) and n >= D:
                landed_action(seq[done]); done += 1
        e.wait_vm(tokof[("q", 7)])
        while done < len(seq) and tok[done] <= tokof[("q", 7)]:
            landed_action(seq[done]); done += 1
        self.stamp(2)
        tags = [QG + 4 * i + k for i in range(8) for k in (1, 3)]
        self.tagcheck(tags, 60)
        R, B = self.lab("aqr"), self.lab("aqb")
        e(f"s_cbranch_vccnz {R}")
        e.label(B)
        def ool():
            e.label(R)
            e("s_mov_b32 s13, 0")
            L = self.lab("aql")
            e.label(L)
            e("s_mov_b32 s4, 0")
            for i in range(8):
                S = self.lab("aqs")
                self.tagcheck([QG + 4 * i + 1, QG + 4 * i + 3], 60)
                e(f"s_cbranch_vccz {S}\ns_add_u32 s12, s15, {1024*i}\ns_mov_b32 s4, 1")
                e(f"buffer_load_dwordx4 {vr(QG+4*i)}, v10, {WS}, s12 offen sc1")
                e.label(S)
            e(f"s_cmp_eq_u32 s4, 0\ns_cbranch_scc1 {B}\ns_add_u32 s13, s13, 1\ns_waitcnt vmcnt(0)\ns_cmp_gt_u32 s13, {p['MAXPOLL']}\ns_cbranch_scc0 {L}\ns_branch {B}")
        self.ool.append(ool)
        self.stamp(3)
        for i in range(8):
            e(f"v_mov_b32 v{QG+4*i+1}, v{QG+4*i+2}")
            if i % 2 == 0: e(f"v_xor_b32 v12, {16*fswz(i>>1)}, v4")
            e.ds(f"ds_write_b64 v12, v[{QG+4*i}:{QG+4*i+1}] offset:{1024*(i>>1)+512*(i&1)}")
        if p["QKE"]:
            FR = (224, 236, 44)
            e("s_waitcnt lgkmcnt(0)\ns_barrier")
            self.stamp(4)
            if p["AKILL"] == 1: self.exit()
            def rd(ks):
                f = FR[ks % 3]
                e(f"v_xor_b32 v13, {16*ks}, v7")
                e.ds(f"ds_read_b128 {vr(f)}, v13")
                return e.ds(f"ds_read_b128 {vr(f+4)}, v13 offset:16384")
            tk = {0: rd(0), 1: rd(1)}
            left = len(seq) - done
            for ks in range(16):
                f = FR[ks % 3]
                e.wait_lg(tk[ks])
                c = lambda r: "0" if ks == 0 else vr(r)
                e(f"v_mfma_f32_16x16x32_bf16 {vr(24)}, {vr(T1+4*ks)}, {vr(f)}, {c(24)}")
                if ks + 2 < 16: tk[ks + 2] = rd(ks + 2)
                e(f"v_mfma_f32_16x16x32_bf16 {vr(28)}, {vr(T1+4*ks)}, {vr(f+4)}, {c(28)}")
                if left and done < len(seq) and (ks + 1) * left >= (done - (len(seq) - left) + 1) * 16:
                    e.wait_vm(tok[done]); landed_action(seq[done]); done += 1
        while done < len(seq):
            e.wait_vm(tok[done]); landed_action(seq[done]); done += 1
        e("s_waitcnt lgkmcnt(0)")

    def a_addrs(self):
        e = self.e
        e(f"v_lshlrev_b32 v250, 5, v{vC}\ns_lshl_b32 s3, s{sW}, 2\nv_add_u32 v250, {LA_MX}, v250\nv_add_u32 v251, s3, v250")
        e(f"v_lshrrev_b32 v252, 1, v{vG}\ns_lshl_b32 s3, s{sW}, 1\nv_add_u32 v252, s3, v252\nv_xor_b32 v252, v252, v{vC}\nv_lshlrev_b32 v252, 4, v252\nv_lshl_add_u32 v252, v{vC}, 9, v252")
        e(f"v_and_b32 v56, 1, v{vG}\nv_lshl_add_u32 v252, v56, 3, v252\nv_add_u32 v252, {LA_P}, v252")
        e(f"v_and_b32 v14, 31, v{vL}\nv_lshrrev_b32 v15, 5, v{vL}")
        e(f"v_xor_b32 v253, v15, v{vC}\nv_lshlrev_b32 v253, 4, v253\nv_lshl_add_u32 v253, v14, 9, v253\nv_add_u32 v253, {LA_P}, v253")
        e(f"v_bfe_u32 v57, v{vL}, 2, 2\nv_lshlrev_b32 v58, 2, v57\nv_lshrrev_b32 v59, 1, v57\nv_xor_b32 v59, v59, v15\nv_lshl_add_u32 v58, v59, 1, v58")
        e(f"v_bfe_u32 v59, v{vL}, 1, 1\nv_lshl_add_u32 v59, v56, 1, v59\ns_and_b32 s3, s{sW}, 1\ns_lshl_b32 s3, s3, 3\nv_add_u32 v59, s3, v59\nv_xor_b32 v58, v58, v59")
        e(f"v_lshlrev_b32 v58, 4, v58\nv_and_b32 v59, 1, v{vL}\nv_lshl_add_u32 v58, v59, 3, v58\nv_lshl_add_u32 v58, v57, 10, v58\nv_lshl_add_u32 v58, v15, 13, v58")
        e(f"s_lshr_b32 s3, s{sW}, 1\ns_lshl_b32 s3, s3, 8\nv_add_u32 v32, s3, v58")
        e("v_xor_b32 v33, 16, v32\nv_add_u32 v33, 0x1000, v33\nv_xor_b32 v34, 64, v32\nv_xor_b32 v35, 64, v33")
        e(f"v_and_b32 v254, 7, v14\nv_lshlrev_b32 v254, 4, v254\nv_lshl_add_u32 v254, v14, 10, v254\nv_lshl_add_u32 v254, v15, 3, v254\ns_lshl_b32 s3, s{sW}, 7\nv_add_u32 v254, s3, v254")
        e(f"s_lshl_b32 s3, s{sW}, 13\nv_add_u32 v255, s3, v10")
        e(f"v_lshlrev_b32 v4, 3, v{vL}\ns_lshl_b32 s3, s{sW}, 12\ns_add_u32 s3, s3, {LA_Q}\nv_add_u32 v4, s3, v4\ns_and_b32 s3, s{sW}, 3\ns_lshl_b32 s3, s3, 4\nv_xor_b32 v4, s3, v4")
        e(f"s_lshl_b32 s16, s{sW}, 19\ns_lshl_b32 s3, s64, 10\ns_add_u32 s16, s16, s3\ns_add_u32 s16, s16, {WS_AO}\ns_mov_b32 s17, 0x10000")
        self.a_wsetup()
    def a_wsetup(self):
        e, nt = self.e, self.p["NT"]
        UV, WO = 160, 192
        self.srd(52, 24, 1 << 22); self.srd(56, 26, 1 << 22)
        e(f"s_lshl_b32 s68, s{sW}, 19\ns_lshl_b32 s3, s65, 8\ns_add_u32 s68, s68, s3\ns_lshl_b32 s3, s66, 7\ns_add_u32 s68, s68, s3")
        e(f"v_bfe_u32 v248, v{vL}, 3, 1\nv_lshlrev_b32 v248, 16, v248\nv_lshl_add_u32 v248, v{vG}, 17, v248\nv_lshl_add_u32 v248, v8, 4, v248")
        e(f"s_lshl_b32 s69, s64, 16\ns_lshr_b32 s3, s{sW}, 2\ns_lshl_b32 s3, s3, 15\ns_add_u32 s69, s69, s3\ns_and_b32 s3, s{sW}, 3\ns_lshl_b32 s3, s3, 8\ns_add_u32 s69, s69, s3")
        e(f"v_lshlrev_b32 v249, 13, v{vG}\nv_lshl_add_u32 v249, v{vC}, 4, v249")
        self.wq = []
        for i in range(8):
            self.wq.append((f"buffer_load_dwordx4 {vr(UV+4*i)}, v248, s[52:55], s68 offen {nt}", "s_addk_i32 s68, 0x2000" if i < 7 else ""))
        for i in range(8):
            self.wq.append((f"buffer_load_dwordx4 {vr(WO+4*i)}, v249, s[56:59], s69 offen offset:{1024*(i&3)} {nt}", "s_addk_i32 s69, 0x1000" if i == 3 else ""))
    def wtick(self, n=1, late=False):
        for _ in range(n):
            if self.wq and (late or len(self.wq) > 16 - self.p["NWE"]):
                a, b = self.wq.pop(0)
                self.e.vmem(a); self.e(b)

    def a_tail_addrs(self):
        e = self.e
        e(f"v_and_b32 v20, 1, v{vG}\nv_lshlrev_b32 v252, 5, v20\nv_lshl_add_u32 v252, v{vC}, 6, v252\nv_lshl_add_u32 v252, v15, 4, v252")
        e(f"s_and_b32 s3, s{sW}, 3\ns_lshl_b32 s14, s3, 8\nv_lshrrev_b32 v22, 2, v252\nv_add_u32 v22, s14, v22")
        e(f"s_lshl_b32 s12, s65, 16\ns_add_u32 s12, s12, s14\ns_add_u32 s12, s12, {WS_AO}")
        e(f"v_lshlrev_b32 v15, 10, v{vG}\nv_lshl_add_u32 v15, v{vC}, 4, v15")
        e(f"v_bfe_u32 v16, v{vL}, 3, 1\nv_lshlrev_b32 v17, 7, v16\nv_lshl_add_u32 v17, v{vG}, 5, v17\nv_add_u32 v17, s14, v17")
        e(f"s_lshl_b32 s3, s{sW}, 10\nv_add_u32 v18, s3, v10")
        e(f"v_and_b32 v19, 3, v{vL}\nv_lshlrev_b32 v19, 4, v19\nv_lshrrev_b32 v23, 2, v{vL}\nv_add_u32 v19, v19, v23\nv_lshlrev_b32 v19, 1, v19\nv_add_u32 v19, s14, v19")
        e(f"v_lshlrev_b32 v20, 4, v16\nv_lshl_add_u32 v20, v{vG}, 5, v20\ns_lshl_b32 s3, s{sW}, 7\nv_add_u32 v20, s3, v20")
        e(f"v_lshlrev_b32 v23, 8, v16\nv_lshl_add_u32 v23, v8, 4, v23\nv_lshl_add_u32 v23, v{vG}, 11, v23")
        e(f"v_lshlrev_b32 v250, 3, v16\nv_lshl_add_u32 v250, v8, 4, v250\nv_add_u32 v250, s3, v250")
        e(f"s_lshr_b32 s14, s{sW}, 2\ns_lshl_b32 s14, s14, 6\ns_add_u32 s3, s3, s14\nv_lshlrev_b32 v251, 4, v{vG}\nv_add_u32 v251, s3, v251")
        e(f"s_lshl_b32 s15, s65, 10\ns_add_u32 s15, s15, {WS_AML}\ns_mov_b32 s18, 0x11111111\ns_mov_b32 s19, 0x11111111\ns_mov_b32 s13, 0")
        e(f"s_lshl_b32 s61, s64, 12\ns_lshl_b32 s3, s{sW}, 10\ns_add_u32 s61, s61, s3\ns_add_u32 s61, s61, {WS_OUTA}")

    def a_main(self):
        e, p = self.e, self.p
        T1 = 64
        FR = (224, 236, 44)
        qke = p["QKE"]
        if not qke:
            e("s_barrier")
            self.stamp(4); self.cyc(23)
            if p["AKILL"] == 1: self.exit()
        else: self.stamp(17)
        def rd(ks):
            f = FR[ks % 3]
            e(f"v_xor_b32 v12, {16*ks}, v6\nv_xor_b32 v13, {16*ks}, v7")
            e.ds(f"ds_read_b128 {vr(f)}, v13")
            e.ds(f"ds_read_b128 {vr(f+4)}, v13 offset:16384")
            return e.ds(f"ds_read_b128 {vr(f+8)}, v12")
        tk = {0: rd(0), 1: rd(1)}
        for ks in range(16):
            f = FR[ks % 3]
            e.wait_lg(tk[ks])
            c = lambda r: "0" if ks == 0 else vr(r)
            if not qke:
                e(f"v_mfma_f32_16x16x32_bf16 {vr(24)}, {vr(T1+4*ks)}, {vr(f)}, {c(24)}")
                e(f"v_mfma_f32_16x16x32_bf16 {vr(28)}, {vr(T1+4*ks)}, {vr(f+4)}, {c(28)}")
            else: e(f"v_mfma_f32_16x16x32_bf16 {vr(16)}, {vr(f+8)}, {vr(f)}, {c(16)}")
            if ks + 2 < 16: tk[ks + 2] = rd(ks + 2)
            if ks % p['TQ'] == 0: self.wtick()
            if not qke: e(f"v_mfma_f32_16x16x32_bf16 {vr(16)}, {vr(f+8)}, {vr(f)}, {c(16)}")
            e(f"v_mfma_f32_16x16x32_bf16 {vr(20)}, {vr(f+8)}, {vr(f+4)}, {c(20)}")
        self.wtick()
        for hh in range(2):
            a, b = 16 + 4 * hh, 24 + 4 * hh
            e(f"v_max3_f32 v{56+hh}, v{a}, v{a+1}, v{a+2}\nv_max3_f32 v{56+hh}, v{56+hh}, v{a+3}, v{b}\nv_max3_f32 v{56+hh}, v{56+hh}, v{b+1}, v{b+2}\nv_max_f32 v{56+hh}, v{56+hh}, v{b+3}")
        self.allred_G([56, 57], [58, 59], "v_max_f32")
        e("s_barrier")
        self.stamp(10)
        self.exec_mask(0xffff, 0)
        e.ds("ds_write_b32 v251, v56")
        e.ds("ds_write_b32 v251, v57 offset:512")
        self.exec_full()
        e("s_waitcnt lgkmcnt(0)\ns_barrier")
        for hh in range(2):
            e.ds(f"ds_read_b128 {vr(224+8*hh)}, v250 offset:{512*hh}")
            e.ds(f"ds_read_b128 {vr(228+8*hh)}, v250 offset:{512*hh+16}")
        e("s_waitcnt lgkmcnt(0)")
        for hh in range(2):
            m = 224 + 8 * hh
            e(f"v_max3_f32 v{56+hh}, v{m}, v{m+1}, v{m+2}\nv_max3_f32 v{56+hh}, v{56+hh}, v{m+3}, v{m+4}\nv_max3_f32 v{56+hh}, v{56+hh}, v{m+5}, v{m+6}\nv_max_f32 v{56+hh}, v{56+hh}, v{m+7}")
            e(f"v_mul_f32 v{56+hh}, {sCS}, v{56+hh}")
        for T in range(2):
            for hh in range(2):
                for r in range(4):
                    s = 16 + 8 * T + 4 * hh + r
                    e(f"v_fma_f32 v{s}, v{s}, {sCS}, -v{56+hh}")
        self.wtick()
        for s in range(16, 32): e(f"v_exp_f32 v{s}, v{s}")
        for T in range(2):
            for hh in range(2):
                s, d = 16 + 8 * T + 4 * hh, 56 + 4 * T + 2 * hh
                e(f"v_cvt_pk_bf16_f32 v{d}, v{s}, v{s+1}\nv_cvt_pk_bf16_f32 v{d+1}, v{s+2}, v{s+3}")
                e.ds(f"ds_write_b64 v252, v[{d}:{d+1}] offset:{256*T+8192*hh}")
        HI = (4, 5, 11, 13)
        for k in range(4): e(f"v_add_u32 v{HI[k]}, 0x10000, v{32+k}")
        e("s_waitcnt lgkmcnt(0)\ns_barrier")
        self.stamp(5)
        ACC = (128, 144)
        fill = Emit()
        sv, self.e = self.e, fill
        for hh in range(2):
            a, b = 16 + 4 * hh, 24 + 4 * hh
            for s in (a + 1, a + 2, a + 3, b, b + 1, b + 2, b + 3): fill(f"v_add_f32 v{a}, v{a}, v{s}")
        self.allred_G([16, 20], [17, 21], "v_add_f32")
        lsum = list(fill.L); fill.L = []
        fill(f"v_lshlrev_b32 v21, 5, v8\ns_lshl_b32 s3, s{sW}, 8\ns_add_u32 s3, s3, {LA_MX}\nv_add_u32 v21, s3, v21")
        if p["INB"]:
            fill(f"s_and_b32 s22, s{sT}, 0xeeeeeeee\ns_and_b32 s3, s{sT}, 1\ns_mul_i32 s3, s3, 0x1111\ns_or_b32 s22, s22, s3")
            fill(f"s_bfe_u32 s3, s{sT}, 0x10001\ns_mul_i32 s3, s3, 0x11110000\ns_or_b32 s22, s22, s3\ns_mov_b32 s23, 0x00010001")
            fill("v_lshlrev_b32 v63, 1, v15\nv_lshrrev_b32 v63, v63, s22")
            for q in range(4):
                for k in range(2):
                    if (q, k) != (3, 1): fill(f"v_lshrrev_b32 v{56+2*q+k}, {4*q+k}, v63")
            fill("v_lshrrev_b32 v63, 13, v63")
        self.a_tail_addrs()
        taddr = list(fill.L)
        self.e = sv
        def rdp(R, n):
            f = FR[n % 3]
            e(f"v_xor_b32 v12, {32*n}, v253")
            e.ds(f"ds_read_b128 {vr(f)}, v12 offset:{256*R}")
            for t in range(2):
                for nn in range(2):
                    a = 32 + 2 * t + nn if n < 4 else HI[2 * t + nn]
                    tkk = e.ds(f"ds_read_b64_tr_b16 v[{f+4+4*t+2*nn}:{f+5+4*t+2*nn}], v{a} offset:{16384*(n&3)}")
            return tkk
        def half(R, h, tk, write, filler, carry):
            n0 = 4 * h
            for n in range(n0, n0 + 2):
                if n not in tk: tk[n] = rdp(R, n)
            per = -(-len(filler) // 8)
            for n in range(n0, n0 + 4):
                f = FR[n % 3]
                e.wait_lg(tk[n])
                first = (R == 0 and n == 0)
                e(f"v_mfma_f32_32x32x16_bf16 {vr(ACC[0],16)}, {vr(f+4)}, {vr(f)}, {'0' if first else vr(ACC[0],16)}")
                if n + 2 < n0 + 4 or carry: tk[n + 2] = rdp(R, n + 2)
                for _ in range(per):
                    if filler: e(filler.pop(0))
                e(f"v_mfma_f32_32x32x16_bf16 {vr(ACC[1],16)}, {vr(f+8)}, {vr(f)}, {'0' if first else vr(ACC[1],16)}")
                if write:
                    for ks in range(4 * (n - n0), 4 * (n - n0) + 4):
                        e(f"v_xor_b32 v12, {16*ks}, v6")
                        e.ds(f"ds_write_b128 v12, {vr(T1+4*ks)}")
                for _ in range(per):
                    if filler: e(filler.pop(0))
        tk = {}
        half(0, 0, tk, False, lsum, True)
        self.exec_mask(0xffff, 0)
        e(f"ds_write_b32 v251, v16 offset:{LA_LS-LA_MX}\nds_write_b32 v251, v20 offset:{LA_LS-LA_MX+512}")
        e.lg += 2
        self.exec_full()
        self.wtick()
        e("s_barrier")
        self.stamp(11)
        for R, h in ((0, 1), (1, 0)):
            LW, LJ = self.lab("pvw"), self.lab("pvj")
            e(f"s_cmp_lt_u32 s{sW}, 4\ns_cbranch_scc{1 if R == 0 else 0} {LW}")
            lg0 = e.lg
            half(R, h, dict(tk) if R == 0 else {}, False, [], False)
            e(f"s_branch {LJ}")
            e.label(LW)
            e.lg = lg0
            half(R, h, dict(tk) if R == 0 else {}, True, [], False)
            e("s_waitcnt lgkmcnt(0)")
            e.label(LJ)
            self.wtick()
            e("s_barrier")
            self.stamp(12 if R == 0 else 25)
        half(1, 1, {}, False, taddr, False)
        e("s_barrier")
        self.stamp(13)
        self.wtick(16)
        e(f"s_cmp_lt_u32 s{sW}, 4\ns_cbranch_scc1 L_ast")
        e(f"buffer_load_dwordx4 v[224:227], v10, {WS}, s15 offen sc1")
        e.label("L_ast")
        for t in range(2):
            for q in range(4):
                a = ACC[t] + 4 * q
                e(f"v_cvt_pk_bf16_f32 v{a}, v{a}, v{a+1}\nv_cvt_pk_bf16_f32 v{a+1}, v{a+2}, v{a+3}\nv_xor_b32 v12, {16*(4*t+q)}, v254")
                if p["INB"]: e(f"v_bfi_b32 v{a}, s23, v{56+2*q}, v{a}\nv_bfi_b32 v{a+1}, s23, v{57+2*q}, v{a+1}")
                e.ds(f"ds_write_b64 v12, v[{a}:{a+1}]")
        e("s_waitcnt lgkmcnt(0)\ns_barrier")
        self.stamp(14); self.cyc(24)
        if p["AKILL"] == 8: self.exit()
        e(f"v_mov_b32 v53, s{sT}\nv_mov_b32 v55, s{sT}\ns_cbranch_scc0 L_agl2")
        tk = []
        for i in range(8):
            e(f"v_xor_b32 v12, {16*i}, v255")
            tk.append(e.ds(f"ds_read_b128 {vr(64+4*i)}, v12 offset:{1024*i}"))
        for k in range(2):
            e.ds(f"ds_read_b128 {vr(96+8*k)}, v21 offset:{1024*k}")
            e.ds(f"ds_read_b128 {vr(100+8*k)}, v21 offset:{1024*k+16}")
        for i in range(8):
            e.wait_lg(tk[i])
            e.vmem(f"buffer_store_dwordx4 {vr(64+4*i)}, v10, {WS}, s16 offen sc1")
            if i < 7: e("s_add_u32 s16, s16, s17")
        e(f"v_lshlrev_b32 v13, 10, v8\ns_lshl_b32 s16, s64, 4\ns_lshl_b32 s3, s{sW}, 13\ns_add_u32 s16, s16, s3\ns_add_u32 s16, s16, {WS_AML}")
        e("s_waitcnt lgkmcnt(0)")
        e("v_max3_f32 v52, v96, v97, v98\nv_max3_f32 v52, v52, v99, v100\nv_max3_f32 v52, v52, v101, v102\nv_max_f32 v52, v52, v103")
        e(f"v_mul_f32 v52, {sCS}, v52\nv_add_f32 v54, v104, v105")
        for r in range(106, 112): e(f"v_add_f32 v54, v54, v{r}")
        e("s_mov_b64 exec, 0xff" + ("" if p["INB"] else "\ns_waitcnt vmcnt(0)"))
        e(f"buffer_store_dwordx4 v[52:55], v13, {WS}, s16 offen sc1")
        self.exec_full()
        self.stamp(6)
        if p["AKILL"] == 9: self.exit()
        wsave = list(self.wq)
        if p["LPOS"] == 0:
            e("s_barrier")
            self.wtick(16, late=True)
        e("s_branch L_alat")
        e.label("L_agl")
        e(f"buffer_load_dwordx4 v[224:227], v10, {WS}, s15 offen sc1")
        e.label("L_agl2")
        e("s_add_u32 s13, s13, 1\ns_waitcnt vmcnt(0)")
        e(f"v_xor_b32 v60, s{sT}, v225\nv_bitop3_b32 v60, v227, s{sT}, v60 bitop3:0xbe\nv_cmp_eq_u32 vcc, 0, v60")
        e(f"s_cmp_gt_u32 s13, {p['MAXPOLL']}\ns_cselect_b64 vcc, -1, vcc")
        e("s_lshr_b64 s[4:5], vcc, 1\ns_and_b64 s[4:5], s[4:5], vcc\ns_lshr_b64 s[20:21], s[4:5], 2\ns_and_b64 s[4:5], s[4:5], s[20:21]\ns_and_b64 s[4:5], s[4:5], s[18:19]\ns_andn2_b64 s[18:19], s[18:19], s[4:5]")
        for i in range(16):
            L = self.lab("agi")
            e(f"s_bitcmp1_b64 s[4:5], {4*i}\ns_cbranch_scc0 {L}\ns_add_u32 s3, s12, {4096*i}")
            e(f"buffer_load_dwordx4 {vr(64+4*i)}, v15, {WS}, s3 offen sc1")
            e.label(L)
        e("s_cmp_eq_u64 vcc, -1\ns_cbranch_scc0 L_agl")
        self.stamp(7)
        if p["AKILL"] == 9: self.exit()
        if p["LPOS"] == 0: e("s_barrier")
        tg = e.vm
        e(f"s_cmp_eq_u32 s64, 0\ns_cbranch_scc0 L_noep")
        e(f"v_mov_b32 v12, s{sT}\nv_mov_b32 v13, 0")
        self.exec_mask(1, 0)
        e(f"buffer_store_dword v12, v13, {WS}, 0 offen sc1")
        self.exec_full()
        e.label("L_noep")
        e("v_mov_b32 v56, v224")
        self.rowred([56], "v_max_f32", (8, 4, 2, 1))
        self.allred_G([56], [57], "v_max_f32")
        e("v_sub_f32 v224, v224, v56\nv_exp_f32 v224, v224\nv_mul_f32 v226, v226, v224")
        self.rowred([226], "v_add_f32", (8, 4, 2, 1))
        self.allred_G([226], [57], "v_add_f32")
        e("v_rcp_f32 v226, v226\nv_mul_f32 v224, v224, v226\nv_cvt_pk_bf16_f32 v225, v224, v224\nv_and_b32 v226, 0xffff0000, v225\nv_sub_f32 v226, v224, v226\nv_cvt_pk_bf16_f32 v226, v226, v226")
        e.ds(f"ds_write_b16 v19, v225 offset:{LA_F}")
        e.ds(f"ds_write_b16 v19, v226 offset:{LA_F+128}")
        e("s_waitcnt lgkmcnt(0)")
        e.ds(f"ds_read_b128 v[228:231], v17 offset:{LA_F}")
        e.ds(f"ds_read_b128 v[232:235], v17 offset:{LA_F+16}")
        e("s_waitcnt lgkmcnt(0)")
        for i in range(8): self.expand4(128 + 4 * i, 228 + (i >> 1), i & 1)
        if p["INB"]:
            e(f"v_and_b32 v59, 3, v{vL}\nv_lshlrev_b32 v59, 2, v59\nv_lshrrev_b32 v56, v59, s22\nv_lshrrev_b32 v57, 1, v56\nv_lshrrev_b32 v58, 2, v56\nv_lshrrev_b32 v59, 3, v56")
        e.wait_vm(tg)
        if p["INB"]:
            def chk(rows, acc):
                first = True
                for i in rows:
                    for k in range(4):
                        e(f"v_xor_b32 v{acc}, v{56+k}, v{64+4*i+k}" if first else f"v_bitop3_b32 v{acc}, v{64+4*i+k}, v{56+k}, v{acc} bitop3:0xbe")
                        first = False
                e(f"v_and_b32 v{acc}, s23, v{acc}\nv_cmp_ne_u32 vcc, 0, v{acc}")
            chk(range(16), 60)
            e("s_cbranch_vccnz L_aor")
            e.label("L_aob")
            def ool():
                e.label("L_aor")
                e("s_mov_b32 s13, 0")
                e.label("L_aol")
                e("s_mov_b32 s4, 0")
                for i in range(16):
                    S = self.lab("aos")
                    chk([i], 60)
                    e(f"s_cbranch_vccz {S}\ns_add_u32 s3, s12, {4096*i}\ns_mov_b32 s4, 1")
                    e(f"buffer_load_dwordx4 {vr(64+4*i)}, v15, {WS}, s3 offen sc1")
                    e.label(S)
                e(f"s_cmp_eq_u32 s4, 0\ns_cbranch_scc1 L_aob\ns_add_u32 s13, s13, 1\ns_waitcnt vmcnt(0)\ns_cmp_gt_u32 s13, {p['MAXPOLL']}\ns_cbranch_scc0 L_aol\ns_branch L_aob")
            self.ool.append(ool)
        for i in range(16):
            if i < 8: e(f"v_mfma_f32_16x16x32_bf16 v[24:27], {vr(128+4*i)}, {vr(64+4*i)}, {'0' if i == 0 else 'v[24:27]'}")
            else: e(f"v_mfma_f32_16x16x32_bf16 v[24:27], {vr((44,48)[i&1])}, {vr(64+4*i)}, v[24:27]")
            if 6 <= i < 14: self.expand4((44, 48)[i & 1], 228 + ((i + 2) >> 1), i & 1)
        e("v_permlane32_swap_b32 v24, v26\nv_permlane32_swap_b32 v25, v27\nv_add_f32 v24, v24, v26\nv_add_f32 v25, v25, v27\nv_cvt_pk_bf16_f32 v24, v24, v25")
        e.ds(f"ds_write_b32 v22, v24 offset:{LA_LAT}")
        self.wq = wsave
        if p["LPOS"] == 0: self.wtick(16, late=True)
        tkw = e.vm
        e("s_waitcnt lgkmcnt(0)")
        e.label("L_alat")
        e("s_barrier")
        self.stamp(15)
        if p["LPOS"] == 1:
            self.wtick(16, late=True)
            tkw = e.vm
        e.ds(f"ds_read_b128 v[28:31], v20 offset:{LA_LAT}")
        e("s_waitcnt lgkmcnt(0)")
        nlate = 16 - self.p["NWE"]
        wt = lambda k: (tkw - (15 - k)) if (15 - k) < nlate else None
        self.gemv8(24, 28, 160, [wt(k) for k in range(8)])
        e.ds(f"ds_write_b128 v18, v[24:27] offset:{LA_R2}")
        e("s_waitcnt lgkmcnt(0)\ns_barrier")
        self.stamp(16)
        for k in range(4): e.ds(f"ds_read_b128 {vr(64+4*k)}, v23 offset:{LA_R2+1024*(k>>1)+(512+128)*(k&1)}")
        e("s_waitcnt lgkmcnt(0)")
        for k in range(1, 4):
            e(f"v_pk_add_f32 v[64:65], v[64:65], v[{64+4*k}:{65+4*k}]\nv_pk_add_f32 v[66:67], v[66:67], v[{66+4*k}:{67+4*k}]")
        self.allred_G([64, 65, 66, 67], [68, 69, 70, 71], "v_add_f32")
        e("v_cvt_pk_bf16_f32 v64, v64, v65\nv_cvt_pk_bf16_f32 v65, v66, v67")
        e.ds(f"ds_write_b64 v250, v[64:65] offset:{LA_CTX}")
        e("s_waitcnt lgkmcnt(0)")
        e.ds(f"ds_read_b128 v[28:31], v251 offset:{LA_CTX}")
        e("s_waitcnt lgkmcnt(0)")
        self.gemv8(24, 28, 192, [wt(8 + k) for k in range(8)])
        e(f"s_cmp_lt_u32 s{sW}, 4\ns_cbranch_scc1 L_at_o")
        e.ds(f"ds_write_b128 v18, v[24:27] offset:{LA_R1}")
        e("s_waitcnt lgkmcnt(0)\ns_barrier")
        self.exit()
        e.label("L_at_o")
        e("s_barrier")
        e.ds(f"ds_read_b128 v[64:67], v18 offset:{LA_R1+4096}")
        e("s_waitcnt lgkmcnt(0)")
        e("v_pk_add_f32 v[24:25], v[24:25], v[64:65]\nv_pk_add_f32 v[26:27], v[26:27], v[66:67]")
        e(f"v_cndmask_b32 v52, v24, v26, {sHI}\nv_cndmask_b32 v54, v25, v27, {sHI}")
        e(f"buffer_store_dwordx4 v[52:55], v252, {WS}, s61 offen sc1")
        self.stamp(8)
        e(f"s_cmp_eq_u32 s{sW}, 0\ns_cbranch_scc1 L_at_fin")
        self.exit()
        e.label("L_at_fin")
        e(f"s_lshl_b32 s12, s64, 6\ns_add_u32 s12, s12, {WS_OUTA}\nv_lshrrev_b32 v11, 2, v{vL}\nv_lshlrev_b32 v11, 12, v11\nv_and_b32 v12, 3, v{vL}\nv_lshl_add_u32 v11, v12, 4, v11")
        self.srd(48, 38, 2048)
        e(f"s_lshl_b32 s14, s64, 4\nv_lshlrev_b32 v12, 2, v12\ns_mov_b32 s15, 0x10000")
        def g(R):
            e("s_mov_b32 s3, s12")
            for k in range(4):
                e(f"buffer_load_dwordx4 {vr(R+4*k)}, v11, {WS}, s3 offen sc1")
                if k < 3: e("s_add_u32 s3, s3, s15")
        def fin(R):
            for k in range(1, 4): e(f"v_add_f32 v{R}, v{R}, v{R+4*k}\nv_add_f32 v{R+2}, v{R+2}, v{R+4*k+2}")
            self.rowred([R, R + 2], "v_add_f32", (8, 4))
            self.allred_G([R, R + 2], [100, 101], "v_add_f32")
            e(f"v_cvt_pk_bf16_f32 v102, v{R}, v{R+2}")
            self.exec_mask(15, 0)
            e("buffer_store_dword v102, v12, s[48:51], s14 offen")
            if self.p["TIMING"]: self.exec_full(); e("s_waitcnt vmcnt(0)"); self.stamp(9)
            self.exit()
        if self.p["DPOLL"]: self.poll2(g, 4, 64, 80, 60, "goa", fin)
        else:
            self.poll(lambda: g(64), [65, 67, 69, 71, 73, 75, 77, 79], 60, "goa")
            fin(64)

    def build(self):
        e, p = self.e, self.p
        self.prologue()
        vm0 = e.vm
        self.phase1()
        self.b_ctrl()
        e.label("L_notctrl")
        e.vm = vm0
        self.b_stream()
        self.b_tail()
        e.label("L_astream")
        self.role = "A"
        e.vm = 1
        self.a_setup()
        self.a_issue(lambda n: p["D_A1"] if n < p["NA1"] else p["D_A2"], p1at=p["D_A1"])
        self.a_main()
        while self.ool: self.ool.pop(0)()
        if p["TIMING"]:
            e.label("L_exit")
            e("s_mov_b64 exec, -1\ns_memrealtime s[98:99]\ns_getreg_b32 s100, hwreg(HW_REG_XCC_ID)\ns_waitcnt lgkmcnt(0)\nv_mov_b32 v44, 0")
            for i in range(28): e(f"v_writelane_b32 v44, s{70+i}, {i}")
            e("v_writelane_b32 v44, s98, 30\nv_writelane_b32 v44, s100, 31")
            e(f"s_lshl_b32 s3, s2, 3\ns_add_u32 s3, s3, s{sW}\ns_lshl_b32 s3, s3, 7\ns_add_u32 s3, s3, {WS_STAMP}\nv_lshlrev_b32 v45, 2, v{vL}\ns_mov_b32 exec_hi, 0")
            e(f"buffer_store_dword v44, v45, {WS}, s3 offen")
        if p["PAD"]:
            e.label("L_exit")
            if p["PADEV"] == 99:
                e(f"s_cmp_{'lt' if p['PADROLE'] == 'A' else 'ge'}_u32 s{sSLOT}, 8\ns_cbranch_scc0 L_padn\ns_memrealtime s[82:83]\ns_waitcnt lgkmcnt(0)")
                e.label("L_padn")
            e(f"s_cmp_eq_u32 s82, 0\ns_cselect_b32 s80, s80, s82\ns_add_u32 s80, s80, {p['PAD']}")
            e.label("L_padl")
            e("s_sleep 4\ns_memrealtime s[68:69]\ns_waitcnt lgkmcnt(0)\ns_sub_u32 s68, s68, s80\ns_cmp_lt_i32 s68, 0\ns_cbranch_scc1 L_padl")
        e.label("L_end")
        e("s_endpgm")
        e.label("L_codeend")
        if p["NOSLOW"]:
            out, k = [], 0
            for i, l in enumerate(e.L):
                if "store" in l and l.endswith("sc1") and ("v14, " in l or "v11, " in l or "dwordx2" in l or ("v10, " in l and "s15" in l)): continue
                out.append(l)
            e.L = out
        if p["JIT"]:
            out, k = [], 0
            for l in e.L:
                if l.startswith("s_barrier") or ("store" in l and "v44" not in l) or l.startswith("ds_add") or (l.startswith("ds_write_b32") and "v15," in l):
                    k += 1
                    out += ["s_cselect_b32 s101, 1, 0", "s_memtime s[98:99]", "s_waitcnt lgkmcnt(0)", "s_lshr_b32 s98, s98, 3", f"s_and_b32 s98, s98, {p['JIT']}",
                            f"L_jit{k}:", "s_sleep 8", "s_sub_u32 s98, s98, 1", f"s_cbranch_scc0 L_jit{k}", "s_cmp_eq_u32 s101, 1"]
                out.append(l)
            e.L = out
        gm, sm = p["GM"].replace("_", " "), p["SM"].replace("_", " ")
        e.L = [(l[:-3] + (gm if "load" in l else sm)) if l.endswith(" sc1") else l for l in e.L]
        body = pad_hazards(e.L)
        ref = open(f"cdna_kernels/{NAME}.s.ref").read().split("\n")
        head = [l for l in ref if l.startswith(";") and "@launch" not in l]
        out = head + ["; @launch grid=(256,1,1) block=(512,1,1) lds=163840"] + DOC.split("\n") + [
                      '.amdgcn_target "amdgcn-amd-amdhsa--gfx950"', ".text", f".globl {NAME}_kernel", ".p2align 8",
                      f".type {NAME}_kernel,@function", f"{NAME}_kernel:"]
        out += [("" if l.endswith(":") else "    ") + l for l in body]
        out += ['.section .rodata,"a"', ".p2align 6", f".amdhsa_kernel {NAME}_kernel", "  .amdhsa_next_free_vgpr 256",
                "  .amdhsa_next_free_sgpr 102", "  .amdhsa_accum_offset 256", "  .amdhsa_group_segment_fixed_size 0",
                "  .amdhsa_kernarg_size 112", "  .amdhsa_user_sgpr_count 2", "  .amdhsa_user_sgpr_kernarg_segment_ptr 1",
                "  .amdhsa_system_sgpr_workgroup_id_x 1", ".end_amdhsa_kernel", ""]
        return "\n".join(out)

if __name__ == "__main__":
    kw = {}
    for a in sys.argv[2:]:
        k, v = a.split("=")
        kw[k] = (v == "True") if v in ("True", "False") else (int(v) if v.lstrip("-").isdigit() else v)
    open(sys.argv[1], "w").write(K(**kw).build())
```

```python
import sys, struct
from asmlib import Emit, pad_hazards

NAME = "concat_heads__compressed_kv_cla__gqa_block_cached__decode"
DEF = dict(D_B0=3, NB0=20, D_B=5, N1=24, PVK=3, D_A1=4, NA1=6, D_A2=5, QPOS=32, TIMING=False, MAXPOLL=400000,
           NT="nt", PAD=0, PADEV=-1, PADROLE="", NWE=12, LIGHT=False, PROG=False, GDELAY=0, GM="sc1", SM="sc1", SDELAY=0, NFAST=48, CPS=3, D_B2=12, NB2=38, WARMQ=1, WARMO=30, WARMB=0, WOK=23, NDUTY=0, WOLATE=4, NWO=40, B4B=1, ANODS=0, QKE=0, RLATE=1, HROT=2, FSM="", AMS=4, CPA=0, CPB=0, AINL=0, QBW=0, WSOFF=0, INB=0, TQ=3, LPOS=0, CPF=0, JIT=0, CYC=0, TLBP=0, DPOLL=0, PSL=6, ILV1=0, WOSP=1, TOUCH=0, TPOS=0, TSH=3, NL=0, RK=64, DSLOW=3, NTK=24, LSET=(4, 6, 7, 10), DEEPW=-1, GSL=0, NU=-1, WQ0=3, PRIO=1, NOSLOW=0, AKILL=0, PTRACE="", WM="nt")

DOC = """;
; Hand-offs go through d_ws as 8-byte {value, tag} pairs (or drained rows behind tagged flags).  The tag is a hash of
; Hand-offs inside an id&7 group are stored twice: a plain copy, seen early through a shared L2, and a write-through
;"""

def f32(x): return "0x%08x" % struct.unpack("<I", struct.pack("<f", x))[0]
CS = 1.4426950408889634 * 128 ** -0.5

WS_QP, WS_QABS, WS_QB, WS_BML, WS_AML = 0x10000, 0x90000, 0xA0000, 0xA8000, 0xB0000
WS_BO, WS_OUTB, WS_OUTA, WS_AO, WS_STAMP = 0xC0000, 0x120000, 0x140000, 0x200000, 0x400000
WS_AML2 = 0x180000
WS_SIZE = 0x800000
SLOW = 0x500000
L_PR = 32768
L_PRB = 49152
L_LQ = 40960
LB_Q, LB_MX, LB_LS, LB_F, LB_G, LB_FLAG, LB_R4, LB_R5 = 0, 1024, 1152, 1280, 1408, 1536, 2048, 20480
LA_Q = 131072
LA_P, LA_MX, LA_LS = 131072, 147456, 148480
LA_F, LA_R1, LA_LAT, LA_R2, LA_CTX = 32768, 36864, 49152, 53248, 61440

vL, vC, vG = 1, 2, 3
SELA, SELB = 32, 36
sW, sX, sSLOT, sH1, sJ, sT = 6, 7, 8, 9, 10, 11
WS = "s[44:47]"
sHI = "s[62:63]"
sCS = "s60"

def fswz(k):
    k0, k1, k2, k3 = k & 1, (k >> 1) & 1, (k >> 2) & 1, (k >> 3) & 1
    return (k1 << 3) | (k0 << 2) | ((k1 ^ k3) << 1) | k2

def vr(a, n=4): return f"v[{a}:{a+n-1}]"

class K:
    def __init__(self, **kw):
        self.p = dict(DEF); self.p.update(kw)
        self.e = Emit()
        self.nlab = 0
        self.role = "B"
        self.ilv = False
        self.ool = []
    def lab(self, s):
        self.nlab += 1
        return f"L_{s}_{self.nlab}"
    def stamp(self, i):
        if self.p["PAD"] and i == self.p["PADEV"] and self.role in self.p["PADROLE"]:
            self.e("s_memrealtime s[82:83]\ns_waitcnt lgkmcnt(0)")
        if self.p["TIMING"] and not self.p["PROG"] and (not self.p["LIGHT"] or i in self.p["LSET"]):
            self.e(f"s_memrealtime s[98:99]\ns_waitcnt lgkmcnt(0)\ns_mov_b32 s{70+i}, s98")
    def cyc(self, i):
        if self.p["TIMING"] and self.p["CYC"]:
            self.e(f"s_memtime s[98:99]\ns_waitcnt lgkmcnt(0)\ns_mov_b32 s{70+i}, s98")
    def prog(self, n, step):
        if self.p["PROG"] and (n + 1) % step == 0 and (n + 1) // step <= 13:
            k = 72 + 2 * ((n + 1) // step - 1)
            self.e(f"s_memrealtime s[{k}:{k+1}]")
    def cnt(self, i):
        if self.p["TIMING"] and not self.p["PROG"]: self.e(f"s_mov_b32 s{70+i}, s13")
    def exit(self):
        self.e("s_branch L_exit" if self.p["TIMING"] or self.p["PAD"] else "s_endpgm")
    def srd(self, s, ptr, size):
        self.e(f"s_mov_b32 s{s}, s{ptr}\ns_mov_b32 s{s+1}, s{ptr+1}\ns_mov_b32 s{s+2}, {size}\ns_mov_b32 s{s+3}, 0x20000")
    def exec_full(self): self.e("s_mov_b64 exec, -1")
    def exec_mask(self, lo, hi): self.e(f"s_mov_b32 exec_lo, {lo:#x}\ns_mov_b32 exec_hi, {hi:#x}")
    def allred_G(self, vals, tmps, op, steps=(32, 16)):
        e = self.e
        for st in steps:
            for v, t in zip(vals, tmps): e(f"v_mov_b32 v{t}, v{v}")
            for v, t in zip(vals, tmps): e(f"v_permlane{st}_swap_b32 v{t}, v{v}")
            for v, t in zip(vals, tmps): e(f"{op} v{v}, v{t}, v{v}")
    def rowred(self, vals, op, rors):
        for r in rors:
            for v in vals: self.e(f"{op}_dpp v{v}, v{v}, v{v} row_ror:{r} row_mask:0xf bank_mask:0xf")
    def tagcheck(self, tags, acc):
        e = self.e
        e(f"v_xor_b32 v{acc}, s{sT}, v{tags[0]}")
        for t in tags[1:]: e(f"v_bitop3_b32 v{acc}, v{t}, s{sT}, v{acc} bitop3:0xbe")
        e(f"v_cmp_ne_u32 vcc, 0, v{acc}")
    def poll(self, issue, tags, acc, name, fast=None, slowpub=None):
        e = self.e
        L, D, F = self.lab(name), self.lab(name + "d"), self.lab(name + "f")
        e("s_mov_b32 s13, 0")
        e.label(L)
        issue()
        e(f"s_add_u32 s13, s13, 1\ns_waitcnt vmcnt(0)")
        if self.p["TIMING"] and self.p["PTRACE"] == name:
            e("s_memrealtime s[98:99]\ns_waitcnt lgkmcnt(0)")
            for k in range(1, 7): e(f"s_cmp_eq_u32 s13, {k}\ns_cselect_b32 s{90+k}, s98, s{90+k}")
        self.tagcheck(tags, acc)
        if fast:
            e(f"s_cbranch_vccnz {F}")
            def ool():
                e.label(F)
                e(f"s_cmp_gt_u32 s13, {self.p['MAXPOLL']}\ns_cbranch_scc1 {D}\ns_cmp_eq_u32 s13, {self.p['NFAST']}\ns_cbranch_scc0 {L}")
                if slowpub: slowpub()
                e(f"s_add_u32 {fast}, {fast}, {SLOW}\ns_branch {L}")
            self.ool.append(ool)
        else:
            e(f"s_cmp_gt_u32 s13, {self.p['MAXPOLL']}\ns_cbranch_scc1 {D}\ns_cbranch_vccnz {L}")
        e.label(D)
        if slowpub: slowpub()
    def poll2(self, issue, nl, RA, RB, acc, name, finish):
        e = self.e
        L, DA = self.lab(name), self.lab(name + "a")
        tags = lambda R: [R + 4 * i + k for i in range(nl) for k in (1, 3)]
        e("s_mov_b32 s13, 0")
        issue(RA)
        e(f"s_sleep {self.p['PSL']}")
        e.label(L)
        issue(RB)
        e(f"s_add_u32 s13, s13, 1\ns_waitcnt vmcnt({nl})")
        self.tagcheck(tags(RA), acc)
        e(f"s_cmp_gt_u32 s13, {self.p['MAXPOLL']}\ns_cbranch_scc1 {DA}\ns_cbranch_vccz {DA}")
        issue(RA)
        e(f"s_waitcnt vmcnt({nl})")
        self.tagcheck(tags(RB), acc)
        e(f"s_cbranch_vccnz {L}")
        finish(RB)
        e.label(DA)
        finish(RA)
    def expand4(self, dst, src, pi):
        for q in range(4): self.e(f"v_perm_b32 v{dst+q}, v{src}, v{src}, v{SELB+4*pi+q}")
    def gemv8(self, acc, frag, data, toks, E=(44, 48)):
        e = self.e
        self.expand4(E[0], frag, 0)
        for i in range(8):
            if i + 1 < 8: self.expand4(E[(i + 1) & 1], frag + ((i + 1) >> 1), (i + 1) & 1)
            if toks is not None and toks[i] is not None: e.wait_vm(toks[i])
            e(f"v_mfma_f32_16x16x32_bf16 {vr(acc)}, {vr(E[i&1])}, {vr(data+4*i)}, {'0' if i == 0 else vr(acc)}")

    def prologue(self):
        e, nt = self.e, self.p["NT"]
        e("s_cmp_ge_u32 s2, 256\ns_cbranch_scc1 L_end")
        e("s_load_dwordx16 s[16:31], s[0:1], 0\ns_load_dwordx8 s[32:39], s[0:1], 64\ns_load_dwordx4 s[40:43], s[0:1], 96")
        if self.p["TIMING"]:
            for i in range(72, 98): e(f"s_mov_b32 s{i}, 0")
            e("s_memrealtime s[70:71]")
        if self.p["PAD"]: e("s_memrealtime s[80:81]\ns_mov_b32 s82, 0")
        if self.p["CPF"]:
            e("s_getpc_b64 s[4:5]")
            e.label("L_pc")
        if self.p["CPF"] == 1:
            e("v_lshlrev_b32 v4, 6, v0\nv_min_u32 v4, L_codeend-L_pc-4, v4")
            e.vmem("global_load_dword v5, v4, s[4:5]")
        elif self.p["CPF"] == 2:
            e("v_lshlrev_b32 v4, 7, v0\nv_cmp_gt_u32 vcc, L_codeend-L_pc-4, v4\ns_and_saveexec_b64 s[12:13], vcc\ns_cbranch_execz L_nopf")
            e("global_load_dword v5, v4, s[4:5]")
            e.label("L_nopf")
            e("s_mov_b64 exec, -1")
        elif self.p["CPF"] == 3:
            e("s_cmp_lt_u32 s2, 224\ns_cbranch_scc1 L_nopf")
            e("v_lshlrev_b32 v4, 6, v0\nv_min_u32 v4, L_codeend-L_pc-4, v4")
            e("global_load_dword v5, v4, s[4:5]")
            e.label("L_nopf")
        e(f"v_lshrrev_b32 v6, 6, v0\nv_and_b32 v{vL}, 63, v0\nv_and_b32 v{vC}, 15, v0\nv_bfe_u32 v{vG}, v0, 4, 2")
        e(f"v_readfirstlane_b32 s{sW}, v6")
        e(f"s_and_b32 s{sX}, s2, 7\ns_lshr_b32 s{sSLOT}, s2, 3")
        e(f"v_and_b32 v7, 3, v0\nv_lshlrev_b32 v7, 4, v7\nv_lshl_add_u32 v7, v{vG}, 6, v7\nv_and_b32 v8, 7, v0\nv_lshlrev_b32 v10, 4, v{vL}")
        e(f"s_cmp_lt_u32 s{sSLOT}, 8\ns_cbranch_scc1 L_astream")
        e(f"s_sub_u32 s64, s{sSLOT}, 8\ns_mul_i32 s{sH1}, s64, 43\ns_lshr_b32 s{sH1}, s{sH1}, 8\ns_mul_i32 s3, s{sH1}, 6\ns_sub_u32 s{sJ}, s64, s3\n" + (f"s_add_u32 s{sH1}, s{sH1}, {self.p['HROT']}\ns_and_b32 s{sH1}, s{sH1}, 3\n" if self.p["HROT"] else "") + f"s_lshl_b32 s3, s{sX}, 2\ns_add_u32 s{sH1}, s{sH1}, s3")
        e(f"s_mul_i32 s3, s{sJ}, {96*8192}\ns_lshl_b32 s12, s{sH1}, 8\ns_add_u32 s61, s3, s12")
        e(f"v_lshrrev_b32 v6, 4, v0\nv_lshlrev_b32 v4, 13, v6\nv_lshl_add_u32 v4, v{vC}, 4, v4\nv_add_u32 v4, s61, v4\nv_add_u32 v11, 0x40000, v4\nv_add_u32 v12, 0x80000, v4")
        e(f"s_mul_i32 s12, s{sJ}, 192\nv_lshl_add_u32 v6, v6, 1, s12")
        e("s_mov_b32 s50, 0x400000\ns_mov_b32 s51, 0x20000")
        e("s_movk_i32 s58, 0x400\ns_mov_b32 s59, 0x20000\ns_movk_i32 s46, 0x400\ns_mov_b32 s47, 0x20000")
        if self.p["WSOFF"]:
            e(f"s_waitcnt lgkmcnt(0)\ns_add_u32 s42, s42, {self.p['WSOFF'] << 20}\ns_addc_u32 s43, s43, 0\ns_cmp_eq_u32 s{sW}, 7")
        else: e(f"s_cmp_eq_u32 s{sW}, 7\ns_waitcnt lgkmcnt(0)")
        if self.p["WARMQ"]:
            wm = self.p["WM"].replace("_", " ")
            e("s_cbranch_scc0 L_nowarm")
            e(f"s_lshl_b32 s14, s{sH1}, 14\ns_add_u32 s14, s14, {WS_QP}\ns_add_u32 s4, s42, s14\ns_addc_u32 s5, s43, 0\nv_lshlrev_b32 v9, 3, v10\nv_add_u32 v13, 0x2000, v9")
            e(f"global_load_dword v5, v9, s[4:5] {wm}\ns_mov_b32 exec_hi, 0\nglobal_load_dword v5, v13, s[4:5] {wm}")
            e(f"s_lshl_b32 s14, s{sX}, 11\ns_add_u32 s14, s14, {WS_BML}\ns_add_u32 s4, s42, s14\ns_addc_u32 s5, s43, 0\ns_mov_b32 exec_lo, 0xffff\nglobal_load_dword v5, v9, s[4:5] {wm}\ns_mov_b64 exec, -1\ns_cmp_eq_u32 s{sW}, 7")
            e.label("L_nowarm")
        e("s_mov_b32 s48, s20\ns_mov_b32 s49, s21\ns_mov_b32 s56, s16\ns_mov_b32 s57, s17")
        for i in range(3): e.vmem(f"buffer_load_ushort v{16+i}, v6, s[56:59], 0 offen offset:{64*i}")
        for i in range(3): self.tA = e.vmem(f"buffer_load_dwordx4 {vr(128+4*i)}, v{(4,11,12)[i]}, s[48:51], 0 offen {nt}")
        e("s_mov_b32 s44, s28\ns_mov_b32 s45, s29")
        for i in range(3): e.vmem(f"buffer_load_ushort v{19+i}, v6, s[44:47], 0 offen offset:{64*i}")
        e("v_mov_b32 v22, v4\ns_cbranch_scc0 L_notctrl")

    def wq_load(self, i):
        e = self.e
        if i == 0: self.srd(72, 34, 1 << 22)
        t = e.vmem(f"buffer_load_dwordx4 {vr(140+4*i)}, v22, s[16:19], 0 offen {self.p['NT']}")
        if i < 2: e("v_add_u32 v22, 0x40000, v22")
        return t
    def p1_gemv(self, X, W, dst):
        e = self.e
        for i in range(3): self.expand4(44 + 4 * i, X + i, 0)
        for i in range(3): e(f"v_mfma_f32_16x16x32_bf16 v[152:155], {vr(44+4*i)}, {vr(W+4*i)}, {'0' if i == 0 else 'v[152:155]'}")
        e(f"v_lshlrev_b32 v11, 4, v0")
        e.ds(f"ds_write_b128 v11, v[152:155] offset:{dst}")
    def p1_reduce(self, src, R, pub):
        e = self.e
        e(f"v_and_b32 v11, 31, v{vL}\nv_lshlrev_b32 v11, 4, v11\nv_lshrrev_b32 v12, 5, v{vL}\nv_lshl_add_u32 v11, v12, 12, v11")
        tk = [e.ds(f"ds_read_b128 {vr(R+4*w)}, v11 offset:{src+1024*w}") for w in range(4)]
        e(f"v_mov_b32 v{pub+1}, s{sT}\nv_mov_b32 v{pub+3}, s{sT}")
        for w in range(1, 4):
            e.wait_lg(tk[w])
            e(f"v_pk_add_f32 v[{R}:{R+1}], v[{R}:{R+1}], v[{R+4*w}:{R+4*w+1}]\nv_pk_add_f32 v[{R+2}:{R+3}], v[{R+2}:{R+3}], v[{R+4*w+2}:{R+4*w+3}]")
        e(f"v_permlane32_swap_b32 v{R}, v{R+2}\nv_permlane32_swap_b32 v{R+1}, v{R+3}\nv_add_f32 v{pub}, v{R}, v{R+2}\nv_add_f32 v{pub+2}, v{R+1}, v{R+3}")

    def code_pf(self, first, last, name, lanes):
        e = self.e
        e("s_getpc_b64 s[4:5]")
        e.label(name)
        e(f"s_add_u32 s4, s4, {first}-{name}\ns_addc_u32 s5, s5, {0 if first != 'L_btail' else 0}")
        e(f"v_lshlrev_b32 v12, 7, {lanes}\nv_min_u32 v12, {last}-{first}-4, v12")
        return e.vmem("global_load_dword v5, v12, s[4:5]")
    def selectors(self):
        e = self.e
        e(f"s_mov_b32 s62, 0\ns_mov_b32 s63, -1\ns_mov_b32 {sCS}, {f32(CS)}")
        self.srd(44, 42, WS_SIZE)
        e("v_and_b32 v15, 3, v0\nv_lshlrev_b32 v15, 4, v15\nv_mov_b32 v13, 0\nv_mov_b32 v11, 0x0c0c0c0c\nv_and_b32 v14, 4, v0\nv_cmp_ne_u32 vcc, 0, v14")
        for pi, d in ((0, 0x0d0c), (1, 0x0f0e)):
            a = SELA + 2 * pi
            e(f"v_mov_b32 v12, {d:#x}\nv_lshlrev_b64 v[{a}:{a+1}], v15, v[12:13]\nv_xor_b32 v{a}, v11, v{a}\nv_xor_b32 v{a+1}, v11, v{a+1}")
            b = SELB + 4 * pi
            e(f"v_cndmask_b32 v{b}, v{a}, v11, vcc\nv_cndmask_b32 v{b+1}, v{a+1}, v11, vcc\nv_cndmask_b32 v{b+2}, v11, v{a}, vcc\nv_cndmask_b32 v{b+3}, v11, v{a+1}, vcc")
    def tagmake(self):
        self.e(f"s_waitcnt lgkmcnt(0)\ns_mul_i32 s{sT}, s{sT}, 0x9e3779b1\ns_add_u32 s{sT}, s{sT}, 0x7f4a7c15")

    def p1_compute(self, ctrl):
        e = self.e
        self.selectors()
        if ctrl:
            self.tagmake()
            e(f"v_mov_b32 v57, s{sT}\nv_mov_b32 v59, s{sT}")
            e.ds(f"ds_write_b32 v13, v57 offset:{LB_FLAG+8}")
            for k in (0, 4, 12, 16, 20): e.ds(f"ds_write_b32 v13, v13 offset:{LB_FLAG+k}")
        e.wait_vm(self.tA)
        self.p1_gemv(16, 128, L_PR)
        e("s_waitcnt lgkmcnt(0)\ns_barrier")
        self.stamp(1)
        if not ctrl:
            e.ds(f"ds_read_b32 v12, v13 offset:{LB_FLAG+8}")
            tq = [self.wq_load(i) for i in range(self.p["WQ0"])]
            e(f"s_waitcnt lgkmcnt(0)\nv_readfirstlane_b32 s{sT}, v12")
            e("s_barrier")
            tq += [self.wq_load(i) for i in range(self.p["WQ0"], 3)]
            return tq[2]

    def phase1(self):
        e, nt = self.e, self.p["NT"]
        WQ, WU = 64, 160
        e(f"s_load_dword s{sT}, s[42:43], 0")
        e(f"v_bfe_u32 v14, v0, 2, 2\nv_lshl_add_u32 v9, v14, 15, v7\nv_add_u32 v9, s61, v9\nv_lshl_add_u32 v14, v14, 14, v7\nv_add_u32 v14, s61, v14")
        self.srd(56, 22, 1 << 22)
        tu = []
        for t in range(4):
            for a in range(4):
                tu.append(e.vmem(f"buffer_load_dwordx4 {vr(WU+16*a+4*t)}, v9, s[56:59], 0 offen {nt}"))
                if (t, a) != (3, 3): e(f"v_add_u32 v9, {0x2000 if a < 3 else 0x20000-0x6000:#x}, v9")
        e("v_add_u32 v14, 0x80000, v14")
        for t in range(4):
            for a in range(2):
                tu.append(e.vmem(f"buffer_load_dwordx4 {vr(WU+64+16*a+4*t)}, v14, s[56:59], 0 offen {nt}"))
                if (t, a) != (3, 1): e(f"v_add_u32 v14, {0x2000 if a < 1 else 0x10000-0x2000:#x}, v14")
        self.p1_compute(True)
        e(f"s_lshl_b32 s14, s{sH1}, 14\ns_add_u32 s14, s14, {WS_QP}\ns_lshl_b32 s15, s{sJ}, 11\ns_add_u32 s15, s15, s14")
        self.p1_reduce(L_PR, WQ, 52)
        tst = e.vmem(f"buffer_store_dwordx4 v[52:55], v10, {WS}, s15 offen")
        self.stamp(2)
        e(f"s_add_u32 s68, s15, {SLOW}")
        def qp_slow():
            e.vmem(f"buffer_store_dwordx4 v[52:55], v10, {WS}, s68 offen sc1")
        QF = [24, 28, 120, 124]
        for b in QF:
            for r in range(4): e(f"v_mov_b32 v{b+r}, 0")
        e(f"v_and_b32 v9, 1, v{vG}\nv_lshlrev_b32 v9, 3, v9\nv_lshl_add_u32 v9, v{vC}, 4, v9\nv_lshrrev_b32 v12, 1, v{vG}\nv_lshl_add_u32 v9, v12, 2, v9")
        e(f"v_add_u32 v13, {L_LQ}, v9\nv_add_u32 v14, {L_LQ}, v7")
        def gat(base, mat):
            def f():
                for jj in range(6):
                    if jj % 2 == 0: e(f"s_add_u32 s12, {base}, {jj*2048}")
                    t = e.vmem(f"buffer_load_dwordx4 {vr(WQ+4*jj)}, v10, {WS}, s12 offen offset:{(jj&1)*2048+1024*mat} sc1")
                return t
            return f
        tags = [WQ + 4 * jj + k for jj in range(6) for k in (1, 3)]
        def sum6():
            for jj in range(1, 6):
                e(f"v_add_f32 v{WQ}, v{WQ}, v{WQ+4*jj}\nv_add_f32 v{WQ+2}, v{WQ+2}, v{WQ+4*jj+2}")
        if self.p["TIMING"]:
            e.wait_vm(tu[min(23, 23 - self.p["NU"])]); self.stamp(22)
        e.wait_vm(tu[23 - self.p["NU"]] if self.p["NU"] >= 0 else tst)
        if self.p["NU"] < 0 and self.p["TIMING"]:
            pass
        self.stamp(21)
        for _ in range(self.p["GSL"]): e("s_sleep 2")
        tg = gat("s14", 0)()
        if not self.p["RLATE"]: e("s_barrier")
        for i in range(3): tq = self.wq_load(i)
        e.wait_vm(tg)
        self.tagcheck(tags, 60)
        e("s_cbranch_vccnz L_p1_retry")
        if self.p["TIMING"]: e("s_mov_b32 s13, 0")
        qp_slow()
        e.label("L_p1_got")
        if self.p["RLATE"]: e("s_barrier")
        def ool():
            e.label("L_p1_retry")
            self.poll(gat("s14", 0), tags, 60, "gqa", fast="s14", slowpub=qp_slow)
            e("s_branch L_p1_got")
        self.ool.append(ool)
        self.stamp(3); self.cnt(20)
        sum6()
        e(f"v_cvt_pk_bf16_f32 v60, v{WQ}, v{WQ+2}")
        e.ds(f"ds_write_b32 v13, v60")
        e("s_waitcnt lgkmcnt(0)")
        for t in range(4):
            m = 0x000f000f << (4 * t)
            self.exec_mask(m, m)
            e.ds(f"ds_read_b128 {vr(QF[t])}, v14")
        self.exec_full()
        e("s_waitcnt lgkmcnt(0)")
        for a in range(6):
            for t in range(4):
                e(f"v_mfma_f32_16x16x32_bf16 {vr(64+4*a)}, {vr(WU+16*a+4*t)}, {vr(QF[t])}, {'0' if t == 0 else vr(64+4*a)}")
        e(f"s_lshl_b32 s12, s{sH1}, 11\ns_mul_i32 s3, s{sJ}, 384\ns_add_u32 s12, s12, s3\ns_add_u32 s12, s12, {WS_QABS}")
        e(f"v_and_b32 v15, 12, v{vC}\nv_add_u32 v15, v15, v{vG}\nv_lshlrev_b32 v14, 3, v15\nv_lshlrev_b32 v15, 4, v15")
        e(f"s_mov_b32 s3, 0x00110011\ns_cmp_lt_u32 s{sJ}, 5\ns_cselect_b32 s3, 0x11111111, s3")
        self.quadsum([(64 + 4 * a, 44 + a) for a in range(6)])
        e(f"v_cvt_pk_bf16_f32 v56, v44, v45\nv_cvt_pk_bf16_f32 v58, v46, v47\nv_cvt_pk_bf16_f32 v62, v48, v49\nv_mov_b32 v63, s{sT}")
        e("s_mov_b32 exec_lo, s3\ns_mov_b32 exec_hi, s3")
        e.vmem(f"buffer_store_dwordx4 v[56:59], v15, {WS}, s12 offen sc1")
        e("s_cbranch_scc0 L_p1done")
        e(f"buffer_store_dwordx2 v[62:63], v14, {WS}, s12 offen offset:256 sc1")
        e.label("L_p1done")
        self.exec_full()
        self.stamp(4)
        e.wait_vm(tq)
        self.p1_gemv(19, 140, L_PRB)
        e("v_mov_b32 v15, 0")
        L = self.lab("wqb")
        e.label(L)
        e.ds(f"ds_read_b32 v60, v15 offset:{LB_FLAG+12}")
        e(f"s_waitcnt lgkmcnt(0)\nv_readfirstlane_b32 s3, v60\ns_cmp_lt_u32 s3, 7\ns_cbranch_scc1 {L}")
        self.p1_reduce(L_PRB, WQ, 52)
        tb = e.vmem(f"buffer_store_dwordx4 v[52:55], v10, {WS}, s15 offen offset:1024")
        tb2 = e.vmem(f"buffer_store_dwordx4 v[52:55], v10, {WS}, s68 offen offset:1024 sc1")
        if self.p["QBW"]: e.wait_vm(tb if self.p["QBW"] == 1 else tb2)
        R = 160
        e(f"s_lshl_b32 s67, s{sX}, 16\ns_add_u32 s67, s67, {WS_QP}")
        def gb():
            for hh in range(4):
                for jj in range(6):
                    if jj % 2 == 0: e(f"s_add_u32 s12, s67, {hh*16384+jj*2048}")
                    e.vmem(f"buffer_load_dwordx4 {vr(R+24*hh+4*jj)}, v10, {WS}, s12 offen offset:{(jj&1)*2048+1024} sc1")
        self.poll(gb, [R + 4 * i + k for i in range(24) for k in (1, 3)], 60, "gqb", fast="s67")
        for jj in range(1, 6):
            for hh in range(4):
                b = R + 24 * hh
                e(f"v_add_f32 v{b}, v{b}, v{b+4*jj}\nv_add_f32 v{b+2}, v{b+2}, v{b+4*jj+2}")
        e("v_mov_b32 v15, 0\nv_mov_b32 v61, 1")
        for hh in range(4):
            b = R + 24 * hh
            e(f"v_cvt_pk_bf16_f32 v{b}, v{b}, v{b+2}")
            e.ds(f"ds_write_b32 v9, v{b} offset:{LB_Q+256*hh}")
        e.ds(f"ds_write_b32 v15, v61 offset:{LB_FLAG}")
        e("s_waitcnt lgkmcnt(0)")
        self.stamp(18); self.cnt(19)
        if self.p["CPB"]: self.code_pf("L_notctrl", "L_arest", "L_pcb", "v1")
        if self.p["TLBP"]:
            e(f"s_lshl_b32 s3, s{sX}, 22\ns_add_u32 s4, s32, s3\ns_addc_u32 s5, s33, 0\ns_load_dword s12, s[4:5], 0")
            e("s_add_u32 s4, s4, 0x200000\ns_addc_u32 s5, s5, 0\ns_load_dword s12, s[4:5], 0")
            e("s_add_u32 s4, s4, 0x1ffffc\ns_addc_u32 s5, s5, 0\ns_load_dword s12, s[4:5], 0")
            e(f"s_lshl_b32 s3, s{sX}, 19\ns_add_u32 s4, s36, s3\ns_addc_u32 s5, s37, 0\ns_load_dword s12, s[4:5], 0\ns_load_dword s12, s[38:39], 0")
            e(f"s_add_u32 s4, s42, {WS_AO}\ns_addc_u32 s5, s43, 0\ns_load_dword s12, s[4:5], 0\ns_waitcnt lgkmcnt(0)")

    def quadsum(self, pairs):
        e = self.e
        for D, S in pairs: e(f"v_mov_b32_dpp v{S}, v{D} quad_perm:[0,0,0,0] row_mask:0xf bank_mask:0xf")
        for r in range(1, 4):
            for D, S in pairs: e(f"v_add_f32_dpp v{S}, v{D+r}, v{S} quad_perm:[{r},{r},{r},{r}] row_mask:0xf bank_mask:0xf")

    def b_ids(self):
        e = self.e
        e(f"s_lshr_b32 s65, s64, 2\ns_lshl_b32 s3, s{sX}, 2\ns_add_u32 s65, s65, s3\ns_and_b32 s66, s64, 3")
        e(f"v_bfe_u32 v6, v{vL}, 2, 2\nv_lshl_add_u32 v6, v6, 8, v7")
        e(f"s_lshl_b32 s3, s65, 7\ns_and_b32 s12, s{sW}, 3\ns_lshl_b32 s12, s12, 5\ns_add_u32 s3, s3, s12\ns_lshr_b32 s12, s{sW}, 2\ns_lshl_b32 s12, s12, 2\ns_add_u32 s3, s3, s12")
        if self.p["WOSP"]:
            e(f"s_lshl_b32 s3, s3, 10\ns_and_b32 s12, s66, 1\ns_lshl_b32 s12, s12, 8\ns_add_u32 s3, s3, s12\ns_lshr_b32 s12, s66, 1\ns_lshl_b32 s12, s12, 7\ns_add_u32 s69, s3, s12")
            e(f"v_bfe_u32 v4, v{vL}, 3, 1\nv_lshlrev_b32 v4, 9, v4\nv_lshl_add_u32 v4, v{vG}, 10, v4\nv_lshl_add_u32 v4, v8, 4, v4")
        else:
            e(f"s_lshl_b32 s3, s3, 10\ns_lshl_b32 s12, s66, 8\ns_add_u32 s69, s3, s12")
            e(f"v_lshlrev_b32 v4, 10, v{vG}\nv_lshl_add_u32 v4, v{vC}, 4, v4")
        self.srd(48, 30, 1 << 25); self.srd(52, 32, 1 << 25); self.srd(56, 36, 1 << 22)
        e("s_cmp_lt_u32 s64, 16\ns_cselect_b32 s58, s58, 0")
    def bo_addr(self):
        e = self.e
        e(f"s_mul_i32 s68, s65, {24*512}\ns_lshl_b32 s3, s{sW}, 6\ns_add_u32 s68, s68, s3\ns_add_u32 s68, s68, {WS_BO}")
        e(f"v_and_b32 v9, 3, v{vL}\nv_lshlrev_b32 v9, 4, v9\nv_lshrrev_b32 v6, 2, v{vL}\nv_lshl_add_u32 v6, v6, 9, v9\nv_and_b32 v9, 0xfff, v6\nv_add_u32 v9, {16*512}, v9")
    def bo_warm(self):
        e = self.e
        self.bo_addr()
        L = self.lab("bow")
        e(f"s_cmp_lt_u32 s64, 16\ns_cbranch_scc0 {L}")
        e(f"buffer_load_dword v5, v6, {WS}, s68 offen {self.p['WM'].replace('_',' ')}")
        e(f"buffer_load_dword v5, v9, {WS}, s68 offen {self.p['WM'].replace('_',' ')}")
        e.label(L)
    def b_kload(self, KR, t, n):
        return self.e.vmem(f"buffer_load_dwordx4 {vr(KR+16*t+4*n)}, v6, s[48:51], s14 offen offset:{0 if self.ilv else n*1024} {self.p['NT']}")
    def b_vload(self, VR, t, n):
        return self.e.vmem(f"buffer_load_dwordx4 {vr(VR+16*t+4*n)}, v10, s[52:55], s15 offen offset:{0 if self.ilv else n*1024} {self.p['NT']}")
    def b_woloads(self):
        for i in range(4):
            self.e.vmem(f"buffer_load_dwordx4 {vr(self.WO[i])}, v4, s[56:59], s69 offen {self.p['NT']}")
            if i < 3: self.e("s_addk_i32 s69, 0x2000")
    def b_chunks(self, nt, KR, bias, wait_q):
        e = self.e
        ch = []
        def c_q():
            e(f"v_lshrrev_b32 v11, 2, v{vC}\nv_lshl_add_u32 v12, v11, 8, v7")
            e(f"v_lshlrev_b32 v13, 5, v11\ns_lshl_b32 s3, s{sW}, 2\nv_add_u32 v14, s3, v13\nv_mov_b32 v15, 0")
            if wait_q:
                L = self.lab("wq")
                e.label(L)
                e.ds(f"ds_read_b32 v60, v15 offset:{LB_FLAG}")
                e(f"s_waitcnt lgkmcnt(0)\nv_readfirstlane_b32 s3, v60\ns_cmp_eq_u32 s3, 0\ns_cbranch_scc1 {L}")
            self.stamp(5)
            e.ds(f"ds_read_b128 v[16:19], v12 offset:{LB_Q}")
            e("s_waitcnt lgkmcnt(0)")
        ch.append((-1, c_q))
        def c_qk(t):
            def f():
                b = KR + 16 * t
                if t < nt:
                    for i in range(4): e(f"v_mfma_f32_16x16x32_bf16 {vr(44+4*i)}, {vr(b+4*i)}, v[16:19], 0")
                    self.quadsum([(44 + 4 * i, b + i) for i in range(4)])
                    if t == 0: e(f"v_max3_f32 v60, v{b}, v{b+1}, v{b+2}\nv_max_f32 v60, v60, v{b+3}")
                    else: e(f"v_max3_f32 v60, v60, v{b}, v{b+1}\nv_max3_f32 v60, v60, v{b+2}, v{b+3}")
                if t == nt:
                    self.allred_G([60], [61], "v_max_f32")
                    e(f"v_mul_f32 v62, {sCS}, v60")
            return f
        for t in range(nt + 1): ch.append((min(t, nt - 1), c_qk(t)))
        def c_exp(t):
            def f():
                b = KR + 16 * t
                for r in range(4): e(f"v_fma_f32 v{b+r}, v{b+r}, {sCS}, -v62")
                for r in range(4): e(f"v_exp_f32 v{b+r}, v{b+r}")
                if t == 0: e(f"v_add_f32 v63, v{b}, v{b+1}")
                else: e(f"v_add_f32 v63, v63, v{b}\nv_add_f32 v63, v63, v{b+1}")
                e(f"v_cvt_pk_bf16_f32 v{b+4}, v{b}, v{b+1}\nv_add_f32 v63, v63, v{b+2}\nv_cvt_pk_bf16_f32 v{b+5}, v{b+2}, v{b+3}\nv_add_f32 v63, v63, v{b+3}")
            return f
        for t in range(nt): ch.append((nt - 1, c_exp(t)))
        def c_l():
            self.allred_G([63], [61], "v_add_f32")
            if bias: e(f"v_add_f32 v62, {bias}, v62")
            e("v_mov_b32 v61, 1")
            self.exec_mask(0x1111, 0)
            e.ds(f"ds_write_b32 v14, v62 offset:{LB_MX}")
            e.ds(f"ds_write_b32 v14, v63 offset:{LB_LS}")
            e("s_mov_b32 exec_lo, 1")
            e.ds(f"ds_add_u32 v15, v61 offset:{LB_FLAG+4}")
            self.exec_full()
            self.stamp(6)
        ch.append((nt - 1, c_l))
        return ch
    def b_pv_prep(self, KR, n):
        t, i = n >> 2, n & 3
        E = 44 + 2 * (n & 3)
        for q in range(2): self.e(f"v_perm_b32 v{E+q}, v{KR+16*t+4+(i>>1)}, v{KR+16*t+4+(i>>1)}, v{SELA+2*(i&1)+q}")
    def b_pv_mma(self, VR, n):
        t, i = n >> 2, n & 3
        E = 44 + 2 * (n & 3)
        b = VR + 16 * t + 4 * i
        for h in range(2):
            acc = 24 + 4 * h
            self.e(f"v_mfma_f32_16x16x16_bf16 {vr(acc)}, v[{E}:{E+1}], v[{b+2*h}:{b+2*h+1}], {'0' if n == 0 else vr(acc)}")
    def b_owrite(self):
        e = self.e
        e(f"s_lshl_b32 s3, s{sW}, 11\nv_add_u32 v11, s3, v10")
        e.ds(f"ds_write_b128 v11, v[24:27] offset:{LB_R4}")
        e.ds(f"ds_write_b128 v11, v[28:31] offset:{LB_R4+1024}")
        e("s_waitcnt lgkmcnt(0)")
        e("s_branch L_btail")

    def b_ctrl(self):
        e = self.e
        KR, VR = 64, 160
        self.WO = [72, 88, 104, 120]
        self.b_ids()
        e("s_cmp_ge_u32 s64, 16\ns_cselect_b32 s50, s50, 0\ns_cselect_b32 s54, s54, 0")
        e(f"s_cselect_b32 s61, 0, {f32(-1e30)}")
        e(f"s_lshl_b32 s14, s{sX}, 22\ns_lshl_b32 s3, s64, 1\ns_add_u32 s3, s3, {1008-32}\ns_lshl_b32 s3, s3, 12\ns_cmp_ge_u32 s64, 16\ns_cselect_b32 s3, s3, 0\ns_add_u32 s14, s14, s3\ns_mov_b32 s15, s14")
        for t in range(2):
            for n in range(4): self.b_kload(KR, t, n)
            if t == 0: e("s_addk_i32 s14, 0x1000")
        for t in range(2):
            for n in range(4): self.b_vload(VR, t, n)
            if t == 0: e("s_addk_i32 s15, 0x1000")
        e("s_waitcnt vmcnt(0) lgkmcnt(0)")
        for _, f in self.b_chunks(2, KR, "s61", False): f()
        for n in range(8):
            self.b_pv_prep(KR, n)
            self.b_pv_mma(VR, n)
        self.bo_warm() if self.p["WARMB"] else self.bo_addr()
        e(f"s_lshl_b32 s12, s{sX}, 11\ns_lshl_b32 s3, s64, 4\ns_add_u32 s12, s12, s3\ns_add_u32 s12, s12, {WS_BML}")
        e(f"v_lshlrev_b32 v11, 4, v13\nv_mov_b32 v53, s{sT}\nv_mov_b32 v55, s{sT}")
        if self.p["NL"]:
            L = self.lab("wtk")
            e.label(L)
            e("s_sleep 2")
            e.ds(f"ds_read_b32 v60, v15 offset:{LB_FLAG+20}")
            e(f"s_waitcnt lgkmcnt(0)\nv_readfirstlane_b32 s3, v60\ns_cmp_eq_u32 s3, 0\ns_cbranch_scc1 {L}")
            e("v_mov_b32 v144, 1\ns_mov_b64 exec, 1")
            e("global_atomic_add v145, v15, v144, s[40:41] sc0 sc1")
            e(f"s_waitcnt vmcnt(0)\nv_cmp_gt_u32 vcc, {self.p['RK']}, v145\nv_cndmask_b32 v145, 0, 1, vcc")
            e.ds(f"ds_write_b32 v15, v145 offset:{LB_FLAG+16}")
            self.exec_full()
        L = self.lab("wml")
        e.label(L)
        e("s_sleep 2")
        e.ds(f"ds_read_b32 v60, v15 offset:{LB_FLAG+4}")
        e(f"s_waitcnt lgkmcnt(0)\nv_readfirstlane_b32 s3, v60\ns_cmp_lt_u32 s3, 8\ns_cbranch_scc1 {L}")
        e.ds(f"ds_read_b128 v[128:131], v13 offset:{LB_MX}")
        e.ds(f"ds_read_b128 v[132:135], v13 offset:{LB_MX+16}")
        e.ds(f"ds_read_b128 v[136:139], v13 offset:{LB_LS}")
        e.ds(f"ds_read_b128 v[140:143], v13 offset:{LB_LS+16}")
        e("s_waitcnt lgkmcnt(0)")
        e("v_max3_f32 v52, v128, v129, v130\nv_max3_f32 v52, v52, v131, v132\nv_max3_f32 v52, v52, v133, v134\nv_max_f32 v52, v52, v135")
        for r in range(128, 136): e(f"v_sub_f32 v{r}, v{r}, v52")
        for r in range(128, 136): e(f"v_exp_f32 v{r}, v{r}")
        e("v_mul_f32 v54, v128, v136")
        for r in range(1, 8): e(f"v_fmac_f32 v54, v{128+r}, v{136+r}")
        self.exec_mask(0x1111, 0)
        e.ds(f"ds_write_b128 v13, v[128:131] offset:{LB_G}")
        e.ds(f"ds_write_b128 v13, v[132:135] offset:{LB_G+16}")
        e.vmem(f"buffer_store_dwordx4 v[52:55], v11, {WS}, s12 offen")
        e(f"s_add_u32 s12, s12, {SLOW}")
        e.vmem(f"buffer_store_dwordx4 v[52:55], v11, {WS}, s12 offen sc1")
        self.exec_full()
        e("s_cmp_lt_u32 s64, 16\ns_cbranch_scc0 L_bc_nod")
        if self.p["WOK"] <= 23: self.b_woloads()
        e(f"v_and_b32 v15, 31, v{vL}\nv_min_u32 v11, 23, v15\nv_lshlrev_b32 v11, 4, v11\ns_lshl_b32 s12, s65, 9\ns_add_u32 s12, s12, {WS_BML}")
        def gm(): e.vmem(f"buffer_load_dwordx4 v[52:55], v11, {WS}, s12 offen sc1")
        self.poll(gm, [53, 55], 60, "gml", fast="s12")
        e("v_mov_b32 v56, v52")
        self.rowred([56], "v_max_f32", (8, 4, 2, 1))
        self.allred_G([56], [57], "v_max_f32", steps=(16,))
        e("v_sub_f32 v52, v52, v56\nv_exp_f32 v52, v52\nv_cmp_gt_u32 vcc, 24, v15\nv_cndmask_b32 v52, 0, v52, vcc\nv_mul_f32 v54, v54, v52")
        self.rowred([54], "v_add_f32", (8, 4, 2, 1))
        self.allred_G([54], [57], "v_add_f32", steps=(16,))
        e("v_rcp_f32 v54, v54\nv_lshlrev_b32 v15, 2, v15\nv_mul_f32 v52, v52, v54")
        e.ds(f"ds_write_b32 v15, v52 offset:{LB_F}")
        e.label("L_bc_nod")
        self.b_owrite()

    def b_stream(self):
        e, p = self.e, self.p
        KR, VR, NT_ = 64, 160, 6
        self.WO = [72, 88, 104, 120]
        self.b_ids()
        e(f"s_mul_i32 s3, s64, 7\ns_add_u32 s3, s3, s{sW}\ns_lshl_b32 s3, s3, {10 if p['ILV1'] else 12}\ns_lshl_b32 s14, s{sX}, 22\ns_add_u32 s14, s14, s3\ns_mov_b32 s15, s14\ns_mov_b32 s67, {168*(1024 if p['ILV1'] else 4096)}")
        self.ilv = bool(p["ILV1"])
        Df = lambda n: p["D_B0"] if n < p["NB0"] else p["D_B"] if n < p["NB2"] else p["D_B2"]
        D = p["D_B"]
        tok = []
        ch = []
        def issue(n, throttle=True):
            if throttle and n >= Df(n):
                if n < p["NDUTY"]:
                    L = self.lab("dty")
                    e(f"s_cbranch_vccnz {L}")
                    e.wait_vm(tok[n - Df(n)])
                    e.label(L)
                    if n > Df(n): e.wait_vm(tok[n - Df(n) - 1])
                elif p["NL"] and n >= p["NL"]:
                    if n == p["NL"]:
                        e(f"s_waitcnt lgkmcnt(0)\nv_readfirstlane_b32 s3, v5\ns_cmp_eq_u32 s3, 0\ns_cselect_b64 vcc, -1, 0")
                    L = self.lab("bal")
                    e(f"s_cbranch_vccnz {L}")
                    e.wait_vm(tok[n - p["DSLOW"]])
                    e.label(L)
                    e.wait_vm(tok[n - Df(n)])
                else: e.wait_vm(tok[n - Df(n)])
            if p["NL"] and n == p["NL"] - 1:
                e.ds(f"ds_read_b32 v5, v15 offset:{LB_FLAG+16}")
            if p["NL"] and n == p["NTK"]:
                assert n > p["N1"]
                L = self.lab("tk")
                e(f"s_cmp_eq_u32 s{sW}, 6\ns_cbranch_scc0 {L}")
                e(f"ds_write_b32 v15, v32 offset:{LB_FLAG+20}")
                e.label(L)
            self.prog(n, 4)
            if n < 24:
                if n and (n % 4 == 0 or self.ilv): e("s_add_u32 s14, s14, s67")
                tok.append(self.b_kload(KR, n >> 2, n & 3))
            elif n < 48:
                m = n - 24
                if m and (m % 4 == 0 or self.ilv): e("s_add_u32 s15, s15, s67")
                tok.append(self.b_vload(VR, m >> 2, m & 3))
        n = 0
        if p["PRIO"]:
            L = self.lab("prio")
            e(f"s_cmp_ge_u32 s{sW}, 4\ns_cbranch_scc0 {L}\ns_setprio {p['PRIO']}")
            e.label(L)
        def touch():
            e(f"s_mul_i32 s3, s64, 7\ns_add_u32 s3, s3, s{sW}\ns_and_b32 s12, s3, 7\ns_lshl_b32 s12, s12, 13\ns_lshr_b32 s3, s3, 3\ns_add_u32 s3, s3, {p['TOUCH']}\ns_lshl_b32 s3, s3, 19\ns_add_u32 s3, s3, s12")
            e(f"s_lshl_b32 s12, s{sX}, 16\ns_add_u32 s3, s3, s12\nv_lshlrev_b32 v12, {p['TSH']}, v10\nv_add_u32 v12, s3, v12")
            for k in range(8 >> p["TSH"]):
                e.vmem(f"buffer_load_dword v5, v12, s[20:23], 0 offen {p['NT']}")
                if k + 1 < 8 >> p["TSH"]: e(f"v_add_u32 v12, {1024 << p['TSH']}, v12")
        if p["TOUCH"]:
            self.srd(20, 18, 1 << 24)
            if p["TPOS"] == 1: touch()
        tq = self.p1_compute(False)
        if p["TOUCH"] and p["TPOS"] == 0: touch()
        while n < p["D_B0"]: issue(n); n += 1
        e.wait_vm(tq)
        self.p1_gemv(19, 140, L_PRB)
        e("v_mov_b32 v12, 1\ns_mov_b64 exec, 1")
        e.ds(f"ds_add_u32 v13, v12 offset:{LB_FLAG+12}")
        self.exec_full()
        assert p["NDUTY"] <= p["N1"]
        if p["NDUTY"]:
            if p["DEEPW"] < 0: e("s_cmp_lt_u32 s64, 16\ns_cselect_b64 vcc, -1, 0")
            else: e(f"s_cmp_ge_u32 s{sW}, {7-p['DEEPW']}\ns_cselect_b64 vcc, -1, 0")
        while n < p["N1"]: issue(n); n += 1
        ch += self.b_chunks(NT_, KR, None, True)
        done = 0
        landed = -1
        while n < 48:
            if n == max(p["WARMO"], p["N1"]):
                assert n >= 24
                self.bo_warm() if p["WARMB"] else self.bo_addr()
            issue(n)
            if n == p["NWO"]:
                assert not ch
                self.b_woloads()
            landed = max(landed, n - Df(n))
            k = 0
            while ch and k < p["CPS"] and 4 * ch[0][0] + 3 <= landed:
                ch.pop(0)[1](); k += 1
            k = 0
            while not ch and done < min(landed - 24 + 1, 24) and k < p["PVK"]:
                self.b_pv_prep(KR, done); self.b_pv_mma(VR, done); done += 1; k += 1
            n += 1
        assert not ch
        assert done <= p["WOK"]
        while done < 24:
            self.b_pv_prep(KR, done)
            e.wait_vm(tok[24 + done])
            if done == p["WOK"] and not p["NWO"]:
                L = self.lab("wol")
                e(f"s_cmp_lt_u32 s{sW}, {p['WOLATE']}\ns_cbranch_scc0 {L}")
                v = e.vm
                self.b_woloads()
                e.vm = v
                e.label(L)
            self.b_pv_mma(VR, done); done += 1
        self.stamp(7)
        self.b_owrite()

    def b_tail(self):
        e = self.e
        e.label("L_btail")
        e("s_barrier")
        self.stamp(10)
        e(f"s_cmp_lt_u32 s{sW}, 2\ns_cbranch_scc0 L_bt_nored")
        e(f"s_lshl_b32 s3, s{sW}, 10\nv_add_u32 v11, s3, v10")
        e(f"v_lshlrev_b32 v13, 5, v{vG}")
        e.ds(f"ds_read_b128 v[44:47], v13 offset:{LB_G}")
        e.ds(f"ds_read_b128 v[48:51], v13 offset:{LB_G+16}")
        tk = [e.ds(f"ds_read_b128 {vr(128+4*w)}, v11 offset:{LB_R4+2048*w}") for w in range(8)]
        e(f"s_mul_i32 s15, s{sX}, {4*24*512}\ns_lshl_b32 s3, s64, 9\ns_add_u32 s15, s15, s3\ns_lshl_b32 s3, s{sW}, 8\ns_add_u32 s15, s15, s3\ns_add_u32 s15, s15, {WS_BO}")
        e(f"v_mul_u32_u24 v14, {24*512}, v{vG}\nv_lshl_add_u32 v14, v{vC}, 4, v14\nv_mov_b32 v53, s{sT}\nv_mov_b32 v55, s{sT}")
        for w in range(8):
            e.wait_lg(tk[w])
            g = 44 + (w & ~1)
            sel = f"op_sel:[0,{w&1},0] op_sel_hi:[1,{w&1},1]"
            for k in (0, 2):
                if w == 0: e(f"v_pk_mul_f32 v[{128+k}:{129+k}], v[{128+k}:{129+k}], v[{g}:{g+1}] op_sel:[0,0] op_sel_hi:[1,0]")
                else: e(f"v_pk_fma_f32 v[{128+k}:{129+k}], v[{128+4*w+k}:{129+4*w+k}], v[{g}:{g+1}], v[{128+k}:{129+k}] {sel}")
        e("v_cvt_pk_bf16_f32 v52, v128, v129\nv_cvt_pk_bf16_f32 v54, v130, v131")
        e.vmem(f"buffer_store_dwordx4 v[52:55], v14, {WS}, s15 offen")
        e(f"s_add_u32 s15, s15, {SLOW}")
        e.label("L_bt_nored")
        self.stamp(8)
        def bo_slow():
            L = self.lab("bos")
            e(f"s_cmp_lt_u32 s{sW}, 2\ns_cbranch_scc0 {L}")
            e(f"buffer_store_dwordx4 v[52:55], v14, {WS}, s15 offen sc1")
            e.label(L)
        e("s_cmp_lt_u32 s64, 16\ns_cbranch_scc1 L_bt_duty")
        bo_slow()
        self.exit()
        e.label("L_bt_duty")
        if self.p["NWO"] and self.p["B4B"]: e("s_barrier")
        if self.p["WOLATE"] < 7 and not self.p["NWO"]:
            L = self.lab("wol")
            e(f"s_barrier\ns_sub_u32 s3, s{sW}, {self.p['WOLATE']}\ns_cmp_lt_u32 s3, {7-self.p['WOLATE']}\ns_cbranch_scc0 {L}")
            self.b_woloads()
            e.label(L)
        e(f"v_and_b32 v11, 60, v{vL}")
        e.ds(f"ds_read_b32 v60, v11 offset:{LB_F}")
        e.ds(f"ds_read_b32 v61, v11 offset:{LB_F+64}")
        def g():
            e.vmem(f"buffer_load_dwordx4 v[128:131], v6, {WS}, s68 offen sc1")
            e.vmem(f"buffer_load_dwordx4 v[132:135], v9, {WS}, s68 offen sc1")
        self.poll(g, [129, 131, 133, 135], 62, "gbo", fast="s68", slowpub=bo_slow)
        self.stamp(11); self.cnt(12)
        e("s_waitcnt lgkmcnt(0)")
        for k, (src, f) in enumerate(((128, 60), (132, 61))):
            e(f"v_lshlrev_b32 v136, 16, v{src}\nv_and_b32 v137, 0xffff0000, v{src}\nv_lshlrev_b32 v138, 16, v{src+2}\nv_and_b32 v139, 0xffff0000, v{src+2}")
            for i in range(4):
                e(f"v_mul_f32 v{140+i}, v{f}, v{136+i}" if k == 0 else f"v_fmac_f32 v{140+i}, v{f}, v{136+i}")
        e("v_permlane32_swap_b32 v140, v142\nv_permlane32_swap_b32 v141, v143\nv_add_f32 v140, v140, v142\nv_add_f32 v141, v141, v143")
        e("v_permlane16_swap_b32 v140, v141\nv_add_f32 v140, v140, v141")
        self.rowred([140], "v_add_f32", (8, 4))
        e("v_cvt_pk_bf16_f32 v140, v140, v140")
        for i in range(4): e(f"v_mov_b32_dpp v{144+i}, v140 quad_perm:[{i},{i},{i},{i}] row_mask:0xf bank_mask:0xf")
        for i in range(4): self.expand4(148 + 4 * i, 144 + i, 0)
        for i in range(4):
            e(f"v_mfma_f32_16x16x32_bf16 v[24:27], {vr(148+4*i)}, {vr(self.WO[i])}, {'0' if i == 0 else 'v[24:27]'}")
        e(f"s_lshl_b32 s3, s{sW}, 10\nv_add_u32 v11, s3, v10")
        e.ds(f"ds_write_b128 v11, v[24:27] offset:{LB_R5}")
        e("s_waitcnt lgkmcnt(0)")
        self.stamp(13)
        e("s_barrier")
        self.stamp(14)
        e(f"s_cmp_eq_u32 s{sW}, 0\ns_cbranch_scc1 L_bt_fin")
        self.exit()
        e.label("L_bt_fin")
        e(f"v_and_b32 v11, 31, v{vL}\nv_lshlrev_b32 v11, 4, v11\nv_lshrrev_b32 v12, 5, v{vL}\nv_lshl_add_u32 v11, v12, 12, v11")
        tk = [e.ds(f"ds_read_b128 {vr(128+4*w)}, v11 offset:{LB_R5+1024*w}") for w in range(4)]
        e(f"s_lshl_b32 s12, s65, 12\ns_lshl_b32 s3, s66, 10\ns_add_u32 s12, s12, s3\ns_add_u32 s12, s12, {WS_OUTB}")
        e(f"v_and_b32 v13, 1, v{vG}\nv_lshlrev_b32 v13, 5, v13\nv_lshl_add_u32 v13, v{vC}, 6, v13\nv_lshl_add_u32 v13, v12, 4, v13\nv_mov_b32 v53, s{sT}\nv_mov_b32 v55, s{sT}")
        for w in range(1, 4):
            e.wait_lg(tk[w])
            e(f"v_pk_add_f32 v[128:129], v[128:129], v[{128+4*w}:{129+4*w}]\nv_pk_add_f32 v[130:131], v[130:131], v[{130+4*w}:{131+4*w}]")
        e("v_permlane32_swap_b32 v128, v130\nv_permlane32_swap_b32 v129, v131")
        e("v_add_f32 v52, v128, v130\nv_add_f32 v54, v129, v131")
        e.vmem(f"buffer_store_dwordx4 v[52:55], v13, {WS}, s12 offen sc1")
        self.stamp(9)
        e(f"s_lshl_b32 s3, s66, 7\ns_lshl_b32 s14, s65, 2\ns_add_u32 s14, s14, s3\ns_lshl_b32 s12, s14, 3\ns_add_u32 s12, s12, {WS_OUTB}")
        e(f"v_lshrrev_b32 v11, 1, v{vL}\nv_lshlrev_b32 v11, 12, v11\nv_and_b32 v12, 1, v{vL}\nv_lshl_add_u32 v11, v12, 4, v11")
        self.srd(48, 38, 2048)
        if self.p["WOSP"]:
            e(f"s_lshr_b32 s14, s65, 4\ns_lshl_b32 s14, s14, 8\ns_and_b32 s3, s66, 1\ns_lshl_b32 s3, s3, 7\ns_add_u32 s14, s14, s3\ns_lshr_b32 s3, s66, 1\ns_lshl_b32 s3, s3, 6\ns_add_u32 s14, s14, s3\ns_and_b32 s3, s65, 15\ns_lshl_b32 s3, s3, 2\ns_add_u32 s14, s14, s3")
        e(f"s_lshl_b32 s14, s14, 1\ns_add_u32 s14, s14, 1024\nv_lshlrev_b32 v12, 2, v12")
        def fin(R):
            self.stamp(15); self.cnt(16)
            self.rowred([R, R + 2], "v_add_f32", (8, 4, 2))
            self.allred_G([R, R + 2], [144, 145], "v_add_f32")
            e(f"v_cvt_pk_bf16_f32 v146, v{R}, v{R+2}")
            self.exec_mask(3, 0)
            e("buffer_store_dword v146, v12, s[48:51], s14 offen")
            if self.p["TIMING"]: self.exec_full(); e("s_waitcnt vmcnt(0)")
            self.exit()
        ld = lambda r: e(f"buffer_load_dwordx4 {vr(r)}, v11, {WS}, s12 offen sc1")
        if self.p["DPOLL"]: self.poll2(ld, 1, 128, 136, 62, "gob", fin)
        else:
            self.poll(lambda: ld(128), [129, 131], 62, "gob")
            fin(128)

    def a_setup(self):
        e = self.e
        e(f"s_lshl_b32 s64, s{sX}, 3\ns_add_u32 s64, s64, s{sSLOT}\ns_lshr_b32 s65, s64, 1\ns_and_b32 s66, s64, 1")
        e(f"s_lshl_b32 s14, s64, 13\ns_lshl_b32 s3, s{sW}, 10\ns_add_u32 s14, s14, s3\ns_mov_b32 s61, 0x80000")
        e(f"s_lshl_b32 s15, s{sW}, 13\ns_add_u32 s15, s15, {WS_QABS}")
        e(f"s_lshl_b32 s67, s{sW}, 14")
        e(f"v_and_b32 v11, 3, v{vC}\nv_lshlrev_b32 v11, 2, v11")
        e(f"v_lshrrev_b32 v12, 2, v{vC}\nv_and_b32 v13, 1, v12\nv_or_b32 v11, v11, v13")
        e(f"v_xor_b32 v12, v12, v{vC}\nv_and_b32 v12, 2, v12\nv_or_b32 v11, v11, v12")
        e(f"v_lshlrev_b32 v11, 4, v11\nv_lshl_add_u32 v11, v{vG}, 8, v11\nv_lshl_add_u32 v11, v{vC}, 10, v11")
        e(f"v_add_u32 v6, s67, v11\nv_add_u32 v7, {LA_Q}, v11")
        e(f"v_add_u32 v9, s67, v10")
        e("s_waitcnt lgkmcnt(0)")
        if self.p["WSOFF"]: e(f"s_add_u32 s42, s42, {self.p['WSOFF'] << 20}\ns_addc_u32 s43, s43, 0")
        e(f"s_load_dword s{sT}, s[42:43], 0")
        self.srd(48, 18, 1 << 24)
    def a_issue(self, depthf, p1at=None):
        e, p = self.e, self.p
        T1, T0, QG = 64, 128, 192
        seq = [("t1", i) for i in range(16)] + [("t0", i) for i in range(16)]
        q = p["QPOS"]
        seq = seq[:q] + [("q", i) for i in range(8)] + seq[q:]
        tok, done = [], 0
        tokof = {}
        def landed_action(it):
            kind, i = it
            if p["ANODS"]: return
            if kind == "t1":
                e(f"v_xor_b32 v12, {16*fswz(i)}, v9")
                e.ds(f"ds_write_b128 v12, {vr(T1+4*i)} offset:{1024*i}")
                if i == 15:
                    e("s_waitcnt lgkmcnt(0)")
                    for ks in range(16):
                        e(f"v_xor_b32 v12, {16*ks}, v6")
                        e.ds(f"ds_read_b128 {vr(T1+4*ks)}, v12")
            elif kind == "t0":
                e(f"v_xor_b32 v12, {16*fswz(i)}, v9")
                e.ds(f"ds_write_b128 v12, {vr(T0+4*i)} offset:{1024*i}")
        def qload(i):
            if i % 4 == 0: e(f"s_add_u32 s12, s15, {1024*i}")
            return e.vmem(f"buffer_load_dwordx4 {vr(QG+4*i)}, v10, {WS}, s12 offen offset:{1024*(i&3)} sc1")
        for n, it in enumerate(seq):
            if n == p1at: e.label('L_arest'); self.selectors(); self.a_addrs(); self.tagmake(); self.stamp(1)
            if p["CPA"] and n == p["CPA"]:
                L = self.lab("cpa")
                e(f"s_cmp_lt_u32 s{sW}, 2\ns_cbranch_scc0 {L}")
                v = e.vm
                self.code_pf("L_acomp", "L_codeend", "L_pca", "v0")
                e.vm = v
                e.label(L)
            D = depthf(n)
            if n >= D:
                e.wait_vm(tok[n - D])
            self.prog(n, 4)
            kind, i = it
            if kind == "q":
                t = qload(i)
            else:
                t = e.vmem(f"buffer_load_dwordx4 {vr((T1 if kind == 't1' else T0)+4*i)}, v10, s[48:51], s14 offen {p['NT']}")
                if not (kind == "t0" and i == 15): e("s_add_u32 s14, s14, s61")
            tok.append(t); tokof[it] = t
            while done <= n - D and done < len(seq) and n >= D:
                landed_action(seq[done]); done += 1
        e.wait_vm(tokof[("q", 7)])
        while done < len(seq) and tok[done] <= tokof[("q", 7)]:
            landed_action(seq[done]); done += 1
        self.stamp(2)
        tags = [QG + 4 * i + k for i in range(8) for k in (1, 3)]
        self.tagcheck(tags, 60)
        R, B = self.lab("aqr"), self.lab("aqb")
        e(f"s_cbranch_vccnz {R}")
        e.label(B)
        def ool():
            e.label(R)
            e("s_mov_b32 s13, 0")
            L = self.lab("aql")
            e.label(L)
            e("s_mov_b32 s4, 0")
            for i in range(8):
                S = self.lab("aqs")
                self.tagcheck([QG + 4 * i + 1, QG + 4 * i + 3], 60)
                e(f"s_cbranch_vccz {S}\ns_add_u32 s12, s15, {1024*i}\ns_mov_b32 s4, 1")
                e(f"buffer_load_dwordx4 {vr(QG+4*i)}, v10, {WS}, s12 offen sc1")
                e.label(S)
            e(f"s_cmp_eq_u32 s4, 0\ns_cbranch_scc1 {B}\ns_add_u32 s13, s13, 1\ns_waitcnt vmcnt(0)\ns_cmp_gt_u32 s13, {p['MAXPOLL']}\ns_cbranch_scc0 {L}\ns_branch {B}")
        self.ool.append(ool)
        self.stamp(3)
        for i in range(8):
            e(f"v_mov_b32 v{QG+4*i+1}, v{QG+4*i+2}")
            if i % 2 == 0: e(f"v_xor_b32 v12, {16*fswz(i>>1)}, v4")
            e.ds(f"ds_write_b64 v12, v[{QG+4*i}:{QG+4*i+1}] offset:{1024*(i>>1)+512*(i&1)}")
        if p["QKE"]:
            FR = (224, 236, 44)
            e("s_waitcnt lgkmcnt(0)\ns_barrier")
            self.stamp(4)
            if p["AKILL"] == 1: self.exit()
            def rd(ks):
                f = FR[ks % 3]
                e(f"v_xor_b32 v13, {16*ks}, v7")
                e.ds(f"ds_read_b128 {vr(f)}, v13")
                return e.ds(f"ds_read_b128 {vr(f+4)}, v13 offset:16384")
            tk = {0: rd(0), 1: rd(1)}
            left = len(seq) - done
            for ks in range(16):
                f = FR[ks % 3]
                e.wait_lg(tk[ks])
                c = lambda r: "0" if ks == 0 else vr(r)
                e(f"v_mfma_f32_16x16x32_bf16 {vr(24)}, {vr(T1+4*ks)}, {vr(f)}, {c(24)}")
                if ks + 2 < 16: tk[ks + 2] = rd(ks + 2)
                e(f"v_mfma_f32_16x16x32_bf16 {vr(28)}, {vr(T1+4*ks)}, {vr(f+4)}, {c(28)}")
                if left and done < len(seq) and (ks + 1) * left >= (done - (len(seq) - left) + 1) * 16:
                    e.wait_vm(tok[done]); landed_action(seq[done]); done += 1
        while done < len(seq):
            e.wait_vm(tok[done]); landed_action(seq[done]); done += 1
        e("s_waitcnt lgkmcnt(0)")

    def a_addrs(self):
        e = self.e
        e(f"v_lshlrev_b32 v250, 5, v{vC}\ns_lshl_b32 s3, s{sW}, 2\nv_add_u32 v250, {LA_MX}, v250\nv_add_u32 v251, s3, v250")
        e(f"v_lshrrev_b32 v252, 1, v{vG}\ns_lshl_b32 s3, s{sW}, 1\nv_add_u32 v252, s3, v252\nv_xor_b32 v252, v252, v{vC}\nv_lshlrev_b32 v252, 4, v252\nv_lshl_add_u32 v252, v{vC}, 9, v252")
        e(f"v_and_b32 v56, 1, v{vG}\nv_lshl_add_u32 v252, v56, 3, v252\nv_add_u32 v252, {LA_P}, v252")
        e(f"v_and_b32 v14, 31, v{vL}\nv_lshrrev_b32 v15, 5, v{vL}")
        e(f"v_xor_b32 v253, v15, v{vC}\nv_lshlrev_b32 v253, 4, v253\nv_lshl_add_u32 v253, v14, 9, v253\nv_add_u32 v253, {LA_P}, v253")
        e(f"v_bfe_u32 v57, v{vL}, 2, 2\nv_lshlrev_b32 v58, 2, v57\nv_lshrrev_b32 v59, 1, v57\nv_xor_b32 v59, v59, v15\nv_lshl_add_u32 v58, v59, 1, v58")
        e(f"v_bfe_u32 v59, v{vL}, 1, 1\nv_lshl_add_u32 v59, v56, 1, v59\ns_and_b32 s3, s{sW}, 1\ns_lshl_b32 s3, s3, 3\nv_add_u32 v59, s3, v59\nv_xor_b32 v58, v58, v59")
        e(f"v_lshlrev_b32 v58, 4, v58\nv_and_b32 v59, 1, v{vL}\nv_lshl_add_u32 v58, v59, 3, v58\nv_lshl_add_u32 v58, v57, 10, v58\nv_lshl_add_u32 v58, v15, 13, v58")
        e(f"s_lshr_b32 s3, s{sW}, 1\ns_lshl_b32 s3, s3, 8\nv_add_u32 v32, s3, v58")
        e("v_xor_b32 v33, 16, v32\nv_add_u32 v33, 0x1000, v33\nv_xor_b32 v34, 64, v32\nv_xor_b32 v35, 64, v33")
        e(f"v_and_b32 v254, 7, v14\nv_lshlrev_b32 v254, 4, v254\nv_lshl_add_u32 v254, v14, 10, v254\nv_lshl_add_u32 v254, v15, 3, v254\ns_lshl_b32 s3, s{sW}, 7\nv_add_u32 v254, s3, v254")
        e(f"s_lshl_b32 s3, s{sW}, 13\nv_add_u32 v255, s3, v10")
        e(f"v_lshlrev_b32 v4, 3, v{vL}\ns_lshl_b32 s3, s{sW}, 12\ns_add_u32 s3, s3, {LA_Q}\nv_add_u32 v4, s3, v4\ns_and_b32 s3, s{sW}, 3\ns_lshl_b32 s3, s3, 4\nv_xor_b32 v4, s3, v4")
        e(f"s_lshl_b32 s16, s{sW}, 19\ns_lshl_b32 s3, s64, 10\ns_add_u32 s16, s16, s3\ns_add_u32 s16, s16, {WS_AO}\ns_mov_b32 s17, 0x10000")
        self.a_wsetup()
    def a_wsetup(self):
        e, nt = self.e, self.p["NT"]
        UV, WO = 160, 192
        self.srd(52, 24, 1 << 22); self.srd(56, 26, 1 << 22)
        e(f"s_lshl_b32 s68, s{sW}, 19\ns_lshl_b32 s3, s65, 8\ns_add_u32 s68, s68, s3\ns_lshl_b32 s3, s66, 7\ns_add_u32 s68, s68, s3")
        e(f"v_bfe_u32 v248, v{vL}, 3, 1\nv_lshlrev_b32 v248, 16, v248\nv_lshl_add_u32 v248, v{vG}, 17, v248\nv_lshl_add_u32 v248, v8, 4, v248")
        e(f"s_lshl_b32 s69, s64, 16\ns_lshr_b32 s3, s{sW}, 2\ns_lshl_b32 s3, s3, 15\ns_add_u32 s69, s69, s3\ns_and_b32 s3, s{sW}, 3\ns_lshl_b32 s3, s3, 8\ns_add_u32 s69, s69, s3")
        e(f"v_lshlrev_b32 v249, 13, v{vG}\nv_lshl_add_u32 v249, v{vC}, 4, v249")
        self.wq = []
        for i in range(8):
            self.wq.append((f"buffer_load_dwordx4 {vr(UV+4*i)}, v248, s[52:55], s68 offen {nt}", "s_addk_i32 s68, 0x2000" if i < 7 else ""))
        for i in range(8):
            self.wq.append((f"buffer_load_dwordx4 {vr(WO+4*i)}, v249, s[56:59], s69 offen offset:{1024*(i&3)} {nt}", "s_addk_i32 s69, 0x1000" if i == 3 else ""))
    def wtick(self, n=1, late=False):
        for _ in range(n):
            if self.wq and (late or len(self.wq) > 16 - self.p["NWE"]):
                a, b = self.wq.pop(0)
                self.e.vmem(a); self.e(b)

    def a_tail_addrs(self):
        e = self.e
        e(f"v_and_b32 v20, 1, v{vG}\nv_lshlrev_b32 v252, 5, v20\nv_lshl_add_u32 v252, v{vC}, 6, v252\nv_lshl_add_u32 v252, v15, 4, v252")
        e(f"s_and_b32 s3, s{sW}, 3\ns_lshl_b32 s14, s3, 8\nv_lshrrev_b32 v22, 2, v252\nv_add_u32 v22, s14, v22")
        e(f"s_lshl_b32 s12, s65, 16\ns_add_u32 s12, s12, s14\ns_add_u32 s12, s12, {WS_AO}")
        e(f"v_lshlrev_b32 v15, 10, v{vG}\nv_lshl_add_u32 v15, v{vC}, 4, v15")
        e(f"v_bfe_u32 v16, v{vL}, 3, 1\nv_lshlrev_b32 v17, 7, v16\nv_lshl_add_u32 v17, v{vG}, 5, v17\nv_add_u32 v17, s14, v17")
        e(f"s_lshl_b32 s3, s{sW}, 10\nv_add_u32 v18, s3, v10")
        e(f"v_and_b32 v19, 3, v{vL}\nv_lshlrev_b32 v19, 4, v19\nv_lshrrev_b32 v23, 2, v{vL}\nv_add_u32 v19, v19, v23\nv_lshlrev_b32 v19, 1, v19\nv_add_u32 v19, s14, v19")
        e(f"v_lshlrev_b32 v20, 4, v16\nv_lshl_add_u32 v20, v{vG}, 5, v20\ns_lshl_b32 s3, s{sW}, 7\nv_add_u32 v20, s3, v20")
        e(f"v_lshlrev_b32 v23, 8, v16\nv_lshl_add_u32 v23, v8, 4, v23\nv_lshl_add_u32 v23, v{vG}, 11, v23")
        e(f"v_lshlrev_b32 v250, 3, v16\nv_lshl_add_u32 v250, v8, 4, v250\nv_add_u32 v250, s3, v250")
        e(f"s_lshr_b32 s14, s{sW}, 2\ns_lshl_b32 s14, s14, 6\ns_add_u32 s3, s3, s14\nv_lshlrev_b32 v251, 4, v{vG}\nv_add_u32 v251, s3, v251")
        sh = self.p["AMS"]
        e(f"v_lshlrev_b32 v14, {sh}, v{vL}")
        e(f"s_lshl_b32 s15, s65, {6+sh}\ns_add_u32 s15, s15, {WS_AML if sh == 4 else WS_AML2}\ns_mov_b32 s18, 0x11111111\ns_mov_b32 s19, 0x11111111\ns_mov_b32 s13, 0")
        e(f"s_lshl_b32 s61, s64, 12\ns_lshl_b32 s3, s{sW}, 10\ns_add_u32 s61, s61, s3\ns_add_u32 s61, s61, {WS_OUTA}")

    def a_main(self):
        e, p = self.e, self.p
        T1 = 64
        FR = (224, 236, 44)
        qke = p["QKE"]
        e.label("L_acomp")
        if not qke:
            e("s_barrier")
            self.stamp(4); self.cyc(23)
            if p["AKILL"] == 1: self.exit()
        else: self.stamp(17)
        def rd(ks):
            f = FR[ks % 3]
            e(f"v_xor_b32 v12, {16*ks}, v6\nv_xor_b32 v13, {16*ks}, v7")
            e.ds(f"ds_read_b128 {vr(f)}, v13")
            e.ds(f"ds_read_b128 {vr(f+4)}, v13 offset:16384")
            return e.ds(f"ds_read_b128 {vr(f+8)}, v12")
        tk = {0: rd(0), 1: rd(1)}
        for ks in range(16):
            f = FR[ks % 3]
            e.wait_lg(tk[ks])
            c = lambda r: "0" if ks == 0 else vr(r)
            if not qke:
                e(f"v_mfma_f32_16x16x32_bf16 {vr(24)}, {vr(T1+4*ks)}, {vr(f)}, {c(24)}")
                e(f"v_mfma_f32_16x16x32_bf16 {vr(28)}, {vr(T1+4*ks)}, {vr(f+4)}, {c(28)}")
            else: e(f"v_mfma_f32_16x16x32_bf16 {vr(16)}, {vr(f+8)}, {vr(f)}, {c(16)}")
            if ks + 2 < 16: tk[ks + 2] = rd(ks + 2)
            if ks % p['TQ'] == 0: self.wtick()
            if not qke: e(f"v_mfma_f32_16x16x32_bf16 {vr(16)}, {vr(f+8)}, {vr(f)}, {c(16)}")
            e(f"v_mfma_f32_16x16x32_bf16 {vr(20)}, {vr(f+8)}, {vr(f+4)}, {c(20)}")
        self.wtick()
        for hh in range(2):
            a, b = 16 + 4 * hh, 24 + 4 * hh
            e(f"v_max3_f32 v{56+hh}, v{a}, v{a+1}, v{a+2}\nv_max3_f32 v{56+hh}, v{56+hh}, v{a+3}, v{b}\nv_max3_f32 v{56+hh}, v{56+hh}, v{b+1}, v{b+2}\nv_max_f32 v{56+hh}, v{56+hh}, v{b+3}")
        self.allred_G([56, 57], [58, 59], "v_max_f32")
        e("s_barrier")
        self.stamp(10)
        self.exec_mask(0xffff, 0)
        e.ds("ds_write_b32 v251, v56")
        e.ds("ds_write_b32 v251, v57 offset:512")
        self.exec_full()
        e("s_waitcnt lgkmcnt(0)\ns_barrier")
        for hh in range(2):
            e.ds(f"ds_read_b128 {vr(224+8*hh)}, v250 offset:{512*hh}")
            e.ds(f"ds_read_b128 {vr(228+8*hh)}, v250 offset:{512*hh+16}")
        e("s_waitcnt lgkmcnt(0)")
        for hh in range(2):
            m = 224 + 8 * hh
            e(f"v_max3_f32 v{56+hh}, v{m}, v{m+1}, v{m+2}\nv_max3_f32 v{56+hh}, v{56+hh}, v{m+3}, v{m+4}\nv_max3_f32 v{56+hh}, v{56+hh}, v{m+5}, v{m+6}\nv_max_f32 v{56+hh}, v{56+hh}, v{m+7}")
            e(f"v_mul_f32 v{56+hh}, {sCS}, v{56+hh}")
        for T in range(2):
            for hh in range(2):
                for r in range(4):
                    s = 16 + 8 * T + 4 * hh + r
                    e(f"v_fma_f32 v{s}, v{s}, {sCS}, -v{56+hh}")
        self.wtick()
        for s in range(16, 32): e(f"v_exp_f32 v{s}, v{s}")
        for T in range(2):
            for hh in range(2):
                s, d = 16 + 8 * T + 4 * hh, 56 + 4 * T + 2 * hh
                e(f"v_cvt_pk_bf16_f32 v{d}, v{s}, v{s+1}\nv_cvt_pk_bf16_f32 v{d+1}, v{s+2}, v{s+3}")
                e.ds(f"ds_write_b64 v252, v[{d}:{d+1}] offset:{256*T+8192*hh}")
        HI = (4, 5, 11, 13)
        for k in range(4): e(f"v_add_u32 v{HI[k]}, 0x10000, v{32+k}")
        e("s_waitcnt lgkmcnt(0)\ns_barrier")
        self.stamp(5)
        ACC = (128, 144)
        fill = Emit()
        sv, self.e = self.e, fill
        for hh in range(2):
            a, b = 16 + 4 * hh, 24 + 4 * hh
            for s in (a + 1, a + 2, a + 3, b, b + 1, b + 2, b + 3): fill(f"v_add_f32 v{a}, v{a}, v{s}")
        self.allred_G([16, 20], [17, 21], "v_add_f32")
        lsum = list(fill.L); fill.L = []
        fill(f"v_lshlrev_b32 v21, 5, v8\ns_lshl_b32 s3, s{sW}, 8\ns_add_u32 s3, s3, {LA_MX}\nv_add_u32 v21, s3, v21")
        if p["INB"]:
            fill(f"s_and_b32 s22, s{sT}, 0xeeeeeeee\ns_and_b32 s3, s{sT}, 1\ns_mul_i32 s3, s3, 0x1111\ns_or_b32 s22, s22, s3")
            fill(f"s_bfe_u32 s3, s{sT}, 0x10001\ns_mul_i32 s3, s3, 0x11110000\ns_or_b32 s22, s22, s3\ns_mov_b32 s23, 0x00010001")
            fill("v_lshlrev_b32 v63, 1, v15\nv_lshrrev_b32 v63, v63, s22")
            for q in range(4):
                for k in range(2):
                    if (q, k) != (3, 1): fill(f"v_lshrrev_b32 v{56+2*q+k}, {4*q+k}, v63")
            fill("v_lshrrev_b32 v63, 13, v63")
        self.a_tail_addrs()
        taddr = list(fill.L)
        self.e = sv
        def rdp(R, n):
            f = FR[n % 3]
            e(f"v_xor_b32 v12, {32*n}, v253")
            e.ds(f"ds_read_b128 {vr(f)}, v12 offset:{256*R}")
            for t in range(2):
                for nn in range(2):
                    a = 32 + 2 * t + nn if n < 4 else HI[2 * t + nn]
                    tkk = e.ds(f"ds_read_b64_tr_b16 v[{f+4+4*t+2*nn}:{f+5+4*t+2*nn}], v{a} offset:{16384*(n&3)}")
            return tkk
        def half(R, h, tk, write, filler, carry):
            n0 = 4 * h
            for n in range(n0, n0 + 2):
                if n not in tk: tk[n] = rdp(R, n)
            per = -(-len(filler) // 8)
            for n in range(n0, n0 + 4):
                f = FR[n % 3]
                e.wait_lg(tk[n])
                first = (R == 0 and n == 0)
                e(f"v_mfma_f32_32x32x16_bf16 {vr(ACC[0],16)}, {vr(f+4)}, {vr(f)}, {'0' if first else vr(ACC[0],16)}")
                if n + 2 < n0 + 4 or carry: tk[n + 2] = rdp(R, n + 2)
                if n == n0 + 1: self.wtick()
                for _ in range(per):
                    if filler: e(filler.pop(0))
                e(f"v_mfma_f32_32x32x16_bf16 {vr(ACC[1],16)}, {vr(f+8)}, {vr(f)}, {'0' if first else vr(ACC[1],16)}")
                if write:
                    for ks in range(4 * (n - n0), 4 * (n - n0) + 4):
                        e(f"v_xor_b32 v12, {16*ks}, v6")
                        e.ds(f"ds_write_b128 v12, {vr(T1+4*ks)}")
                for _ in range(per):
                    if filler: e(filler.pop(0))
        tk = {}
        half(0, 0, tk, False, lsum, True)
        self.exec_mask(0xffff, 0)
        e(f"ds_write_b32 v251, v16 offset:{LA_LS-LA_MX}\nds_write_b32 v251, v20 offset:{LA_LS-LA_MX+512}")
        e.lg += 2
        self.exec_full()
        self.wtick()
        e("s_barrier")
        self.stamp(11)
        for R, h in ((0, 1), (1, 0)):
            LW, LJ = self.lab("pvw"), self.lab("pvj")
            e(f"s_cmp_lt_u32 s{sW}, 4\ns_cbranch_scc{1 if R == 0 else 0} {LW}")
            lg0, vm0, wq0 = e.lg, e.vm, list(self.wq)
            half(R, h, dict(tk) if R == 0 else {}, False, [], False)
            e(f"s_branch {LJ}")
            e.label(LW)
            e.lg, e.vm, self.wq = lg0, vm0, wq0
            half(R, h, dict(tk) if R == 0 else {}, True, [], False)
            e("s_waitcnt lgkmcnt(0)")
            e.label(LJ)
            self.wtick()
            e("s_barrier")
            self.stamp(12 if R == 0 else 25)
        half(1, 1, {}, False, taddr, False)
        e("s_barrier")
        self.stamp(13)
        self.wtick(16)
        e(f"s_cmp_lt_u32 s{sW}, 4\ns_cbranch_scc1 L_ast")
        e(f"buffer_load_dwordx4 v[224:227], v14, {WS}, s15 offen sc1")
        e.label("L_ast")
        for t in range(2):
            for q in range(4):
                a = ACC[t] + 4 * q
                e(f"v_cvt_pk_bf16_f32 v{a}, v{a}, v{a+1}\nv_cvt_pk_bf16_f32 v{a+1}, v{a+2}, v{a+3}\nv_xor_b32 v12, {16*(4*t+q)}, v254")
                if p["INB"]: e(f"v_bfi_b32 v{a}, s23, v{56+2*q}, v{a}\nv_bfi_b32 v{a+1}, s23, v{57+2*q}, v{a+1}")
                e.ds(f"ds_write_b64 v12, v[{a}:{a+1}]")
        e("s_waitcnt lgkmcnt(0)\ns_barrier")
        self.stamp(14); self.cyc(24)
        if p["AKILL"] == 8: self.exit()
        e(f"v_mov_b32 v53, s{sT}\nv_mov_b32 v55, s{sT}\ns_cbranch_scc0 L_agl2")
        tk = []
        for i in range(8):
            e(f"v_xor_b32 v12, {16*i}, v255")
            tk.append(e.ds(f"ds_read_b128 {vr(64+4*i)}, v12 offset:{1024*i}"))
        for k in range(2):
            e.ds(f"ds_read_b128 {vr(96+8*k)}, v21 offset:{1024*k}")
            e.ds(f"ds_read_b128 {vr(100+8*k)}, v21 offset:{1024*k+16}")
        for i in range(8):
            e.wait_lg(tk[i])
            e.vmem(f"buffer_store_dwordx4 {vr(64+4*i)}, v10, {WS}, s16 offen sc1")
            if i < 7: e("s_add_u32 s16, s16, s17")
        sh = p["AMS"]
        e(f"v_lshlrev_b32 v13, {6+sh}, v8\ns_lshl_b32 s16, s64, {sh}\ns_lshl_b32 s3, s{sW}, {9+sh}\ns_add_u32 s16, s16, s3\ns_add_u32 s16, s16, {WS_AML if sh == 4 else WS_AML2}")
        e("s_waitcnt lgkmcnt(0)")
        e("v_max3_f32 v52, v96, v97, v98\nv_max3_f32 v52, v52, v99, v100\nv_max3_f32 v52, v52, v101, v102\nv_max_f32 v52, v52, v103")
        e(f"v_mul_f32 v52, {sCS}, v52\nv_add_f32 v54, v104, v105")
        for r in range(106, 112): e(f"v_add_f32 v54, v54, v{r}")
        e("s_mov_b64 exec, 0xff" + ("" if p["INB"] else "\ns_waitcnt vmcnt(0)"))
        e(f"buffer_store_dwordx4 v[52:55], v13, {WS}, s16 offen sc1")
        self.exec_full()
        self.stamp(6)
        if p["AKILL"] == 9: self.exit()
        wsave = list(self.wq)
        if p["LPOS"] == 0:
            e("s_barrier")
            self.wtick(16, late=True)
        e("s_branch L_alat")
        e.label("L_agl")
        e(f"buffer_load_dwordx4 v[224:227], v14, {WS}, s15 offen sc1")
        e.label("L_agl2")
        e("s_add_u32 s13, s13, 1\ns_waitcnt vmcnt(0)")
        e(f"v_xor_b32 v60, s{sT}, v225\nv_bitop3_b32 v60, v227, s{sT}, v60 bitop3:0xbe\nv_cmp_eq_u32 vcc, 0, v60")
        e(f"s_cmp_gt_u32 s13, {p['MAXPOLL']}\ns_cselect_b64 vcc, -1, vcc")
        e("s_lshr_b64 s[4:5], vcc, 1\ns_and_b64 s[4:5], s[4:5], vcc\ns_lshr_b64 s[20:21], s[4:5], 2\ns_and_b64 s[4:5], s[4:5], s[20:21]\ns_and_b64 s[4:5], s[4:5], s[18:19]\ns_andn2_b64 s[18:19], s[18:19], s[4:5]")
        for i in range(16):
            L = self.lab("agi")
            e(f"s_bitcmp1_b64 s[4:5], {4*i}\ns_cbranch_scc0 {L}\ns_add_u32 s3, s12, {4096*i}")
            e(f"buffer_load_dwordx4 {vr(64+4*i)}, v15, {WS}, s3 offen sc1")
            e.label(L)
        e("s_cmp_eq_u64 vcc, -1\ns_cbranch_scc0 L_agl")
        self.stamp(7)
        if p["AKILL"] == 9: self.exit()
        if p["LPOS"] == 0: e("s_barrier")
        tg = e.vm
        e(f"s_cmp_eq_u32 s64, 0\ns_cbranch_scc0 L_noep")
        e(f"v_mov_b32 v12, s{sT}\nv_mov_b32 v13, 0")
        self.exec_mask(1, 0)
        e(f"buffer_store_dword v12, v13, {WS}, 0 offen sc1")
        self.exec_full()
        e.label("L_noep")
        e("v_mov_b32 v56, v224")
        self.rowred([56], "v_max_f32", (8, 4, 2, 1))
        self.allred_G([56], [57], "v_max_f32")
        e("v_sub_f32 v224, v224, v56\nv_exp_f32 v224, v224\nv_mul_f32 v226, v226, v224")
        self.rowred([226], "v_add_f32", (8, 4, 2, 1))
        self.allred_G([226], [57], "v_add_f32")
        e("v_rcp_f32 v226, v226\nv_mul_f32 v224, v224, v226\nv_cvt_pk_bf16_f32 v225, v224, v224\nv_and_b32 v226, 0xffff0000, v225\nv_sub_f32 v226, v224, v226\nv_cvt_pk_bf16_f32 v226, v226, v226")
        e.ds(f"ds_write_b16 v19, v225 offset:{LA_F}")
        e.ds(f"ds_write_b16 v19, v226 offset:{LA_F+128}")
        e("s_waitcnt lgkmcnt(0)")
        e.ds(f"ds_read_b128 v[228:231], v17 offset:{LA_F}")
        e.ds(f"ds_read_b128 v[232:235], v17 offset:{LA_F+16}")
        e("s_waitcnt lgkmcnt(0)")
        for i in range(8): self.expand4(128 + 4 * i, 228 + (i >> 1), i & 1)
        if p["INB"]:
            e(f"v_and_b32 v59, 3, v{vL}\nv_lshlrev_b32 v59, 2, v59\nv_lshrrev_b32 v56, v59, s22\nv_lshrrev_b32 v57, 1, v56\nv_lshrrev_b32 v58, 2, v56\nv_lshrrev_b32 v59, 3, v56")
        e.wait_vm(tg)
        if p["INB"]:
            def chk(rows, acc):
                first = True
                for i in rows:
                    for k in range(4):
                        e(f"v_xor_b32 v{acc}, v{56+k}, v{64+4*i+k}" if first else f"v_bitop3_b32 v{acc}, v{64+4*i+k}, v{56+k}, v{acc} bitop3:0xbe")
                        first = False
                e(f"v_and_b32 v{acc}, s23, v{acc}\nv_cmp_ne_u32 vcc, 0, v{acc}")
            chk(range(16), 60)
            e("s_cbranch_vccnz L_aor")
            e.label("L_aob")
            def ool():
                e.label("L_aor")
                e("s_mov_b32 s13, 0")
                e.label("L_aol")
                e("s_mov_b32 s4, 0")
                for i in range(16):
                    S = self.lab("aos")
                    chk([i], 60)
                    e(f"s_cbranch_vccz {S}\ns_add_u32 s3, s12, {4096*i}\ns_mov_b32 s4, 1")
                    e(f"buffer_load_dwordx4 {vr(64+4*i)}, v15, {WS}, s3 offen sc1")
                    e.label(S)
                e(f"s_cmp_eq_u32 s4, 0\ns_cbranch_scc1 L_aob\ns_add_u32 s13, s13, 1\ns_waitcnt vmcnt(0)\ns_cmp_gt_u32 s13, {p['MAXPOLL']}\ns_cbranch_scc0 L_aol\ns_branch L_aob")
            self.ool.append(ool)
        for i in range(16):
            if i < 8: e(f"v_mfma_f32_16x16x32_bf16 v[24:27], {vr(128+4*i)}, {vr(64+4*i)}, {'0' if i == 0 else 'v[24:27]'}")
            else: e(f"v_mfma_f32_16x16x32_bf16 v[24:27], {vr((44,48)[i&1])}, {vr(64+4*i)}, v[24:27]")
            if 6 <= i < 14: self.expand4((44, 48)[i & 1], 228 + ((i + 2) >> 1), i & 1)
        e("v_permlane32_swap_b32 v24, v26\nv_permlane32_swap_b32 v25, v27\nv_add_f32 v24, v24, v26\nv_add_f32 v25, v25, v27\nv_cvt_pk_bf16_f32 v24, v24, v25")
        e.ds(f"ds_write_b32 v22, v24 offset:{LA_LAT}")
        self.wq = wsave
        if p["LPOS"] == 0: self.wtick(16, late=True)
        tkw = e.vm
        e("s_waitcnt lgkmcnt(0)")
        e.label("L_alat")
        e("s_barrier")
        self.stamp(15)
        if p["LPOS"] == 1:
            self.wtick(16, late=True)
            tkw = e.vm
        e.ds(f"ds_read_b128 v[28:31], v20 offset:{LA_LAT}")
        e("s_waitcnt lgkmcnt(0)")
        nlate = 16 - self.p["NWE"]
        wt = lambda k: (tkw - (15 - k)) if (15 - k) < nlate else None
        self.gemv8(24, 28, 160, [wt(k) for k in range(8)])
        e.ds(f"ds_write_b128 v18, v[24:27] offset:{LA_R2}")
        e("s_waitcnt lgkmcnt(0)\ns_barrier")
        self.stamp(16)
        for k in range(4): e.ds(f"ds_read_b128 {vr(64+4*k)}, v23 offset:{LA_R2+1024*(k>>1)+(512+128)*(k&1)}")
        e("s_waitcnt lgkmcnt(0)")
        for k in range(1, 4):
            e(f"v_pk_add_f32 v[64:65], v[64:65], v[{64+4*k}:{65+4*k}]\nv_pk_add_f32 v[66:67], v[66:67], v[{66+4*k}:{67+4*k}]")
        self.allred_G([64, 65, 66, 67], [68, 69, 70, 71], "v_add_f32")
        e("v_cvt_pk_bf16_f32 v64, v64, v65\nv_cvt_pk_bf16_f32 v65, v66, v67")
        e.ds(f"ds_write_b64 v250, v[64:65] offset:{LA_CTX}")
        e("s_waitcnt lgkmcnt(0)")
        e.ds(f"ds_read_b128 v[28:31], v251 offset:{LA_CTX}")
        e("s_waitcnt lgkmcnt(0)")
        self.gemv8(24, 28, 192, [wt(8 + k) for k in range(8)])
        e(f"s_cmp_lt_u32 s{sW}, 4\ns_cbranch_scc1 L_at_o")
        e.ds(f"ds_write_b128 v18, v[24:27] offset:{LA_R1}")
        e("s_waitcnt lgkmcnt(0)\ns_barrier")
        self.exit()
        e.label("L_at_o")
        e("s_barrier")
        e.ds(f"ds_read_b128 v[64:67], v18 offset:{LA_R1+4096}")
        e("s_waitcnt lgkmcnt(0)")
        e("v_pk_add_f32 v[24:25], v[24:25], v[64:65]\nv_pk_add_f32 v[26:27], v[26:27], v[66:67]")
        e(f"v_cndmask_b32 v52, v24, v26, {sHI}\nv_cndmask_b32 v54, v25, v27, {sHI}")
        e(f"buffer_store_dwordx4 v[52:55], v252, {WS}, s61 offen sc1")
        self.stamp(8)
        e(f"s_cmp_eq_u32 s{sW}, 0\ns_cbranch_scc1 L_at_fin")
        self.exit()
        e.label("L_at_fin")
        e(f"s_lshl_b32 s12, s64, 6\ns_add_u32 s12, s12, {WS_OUTA}\nv_lshrrev_b32 v11, 2, v{vL}\nv_lshlrev_b32 v11, 12, v11\nv_and_b32 v12, 3, v{vL}\nv_lshl_add_u32 v11, v12, 4, v11")
        self.srd(48, 38, 2048)
        e(f"s_lshl_b32 s14, s64, 4\nv_lshlrev_b32 v12, 2, v12\ns_mov_b32 s15, 0x10000")
        def g(R):
            e("s_mov_b32 s3, s12")
            for k in range(4):
                e(f"buffer_load_dwordx4 {vr(R+4*k)}, v11, {WS}, s3 offen sc1")
                if k < 3: e("s_add_u32 s3, s3, s15")
        def fin(R):
            for k in range(1, 4): e(f"v_add_f32 v{R}, v{R}, v{R+4*k}\nv_add_f32 v{R+2}, v{R+2}, v{R+4*k+2}")
            self.rowred([R, R + 2], "v_add_f32", (8, 4))
            self.allred_G([R, R + 2], [100, 101], "v_add_f32")
            e(f"v_cvt_pk_bf16_f32 v102, v{R}, v{R+2}")
            self.exec_mask(15, 0)
            e("buffer_store_dword v102, v12, s[48:51], s14 offen")
            if self.p["TIMING"]: self.exec_full(); e("s_waitcnt vmcnt(0)"); self.stamp(9)
            self.exit()
        if self.p["DPOLL"]: self.poll2(g, 4, 64, 80, 60, "goa", fin)
        else:
            self.poll(lambda: g(64), [65, 67, 69, 71, 73, 75, 77, 79], 60, "goa")
            fin(64)

    def build(self):
        e, p = self.e, self.p
        self.prologue()
        vm0 = e.vm
        self.phase1()
        self.b_ctrl()
        e.label("L_notctrl")
        e.vm = vm0
        self.b_stream()
        self.b_tail()
        e.label("L_astream")
        self.role = "A"
        e.vm = 1
        self.a_setup()
        self.a_issue(lambda n: p["D_A1"] if n < p["NA1"] else p["D_A2"], p1at=p["D_A1"])
        self.a_main()
        while self.ool: self.ool.pop(0)()
        if p["TIMING"]:
            e.label("L_exit")
            e("s_mov_b64 exec, -1\ns_memrealtime s[98:99]\ns_getreg_b32 s100, hwreg(HW_REG_XCC_ID)\ns_waitcnt lgkmcnt(0)\nv_mov_b32 v44, 0")
            for i in range(28): e(f"v_writelane_b32 v44, s{70+i}, {i}")
            e("v_writelane_b32 v44, s98, 30\nv_writelane_b32 v44, s100, 31")
            e(f"s_lshl_b32 s3, s2, 3\ns_add_u32 s3, s3, s{sW}\ns_lshl_b32 s3, s3, 7\ns_add_u32 s3, s3, {WS_STAMP}\nv_lshlrev_b32 v45, 2, v{vL}\ns_mov_b32 exec_hi, 0")
            e(f"buffer_store_dword v44, v45, {WS}, s3 offen")
        if p["PAD"]:
            e.label("L_exit")
            if p["PADEV"] == 99:
                e(f"s_cmp_{'lt' if p['PADROLE'] == 'A' else 'ge'}_u32 s{sSLOT}, 8\ns_cbranch_scc0 L_padn\ns_memrealtime s[82:83]\ns_waitcnt lgkmcnt(0)")
                e.label("L_padn")
            e(f"s_cmp_eq_u32 s82, 0\ns_cselect_b32 s80, s80, s82\ns_add_u32 s80, s80, {p['PAD']}")
            e.label("L_padl")
            e("s_sleep 4\ns_memrealtime s[68:69]\ns_waitcnt lgkmcnt(0)\ns_sub_u32 s68, s68, s80\ns_cmp_lt_i32 s68, 0\ns_cbranch_scc1 L_padl")
        e.label("L_end")
        e("s_endpgm")
        e.label("L_codeend")
        if p["NOSLOW"]:
            out, k = [], 0
            for i, l in enumerate(e.L):
                if "store" in l and l.endswith("sc1") and ("v14, " in l or "v11, " in l or "dwordx2" in l or ("v10, " in l and "s15" in l)): continue
                out.append(l)
            e.L = out
        if p["AINL"]:
            a, b = e.L.index("L_astream:"), e.L.index("L_arest:")
            blk = e.L[a + 1:b]
            del e.L[a:b]
            k = e.L.index("s_cbranch_scc1 L_astream")
            e.L[k:k + 1] = ["s_cbranch_scc0 L_bstart"] + blk + ["s_branch L_arest", "L_bstart:"]
        if p["JIT"]:
            out, k = [], 0
            for l in e.L:
                if l.startswith("s_barrier") or ("store" in l and "v44" not in l) or l.startswith("ds_add") or (l.startswith("ds_write_b32") and "v15," in l):
                    k += 1
                    out += ["s_cselect_b32 s101, 1, 0", "s_memtime s[98:99]", "s_waitcnt lgkmcnt(0)", "s_lshr_b32 s98, s98, 3", f"s_and_b32 s98, s98, {p['JIT']}",
                            f"L_jit{k}:", "s_sleep 8", "s_sub_u32 s98, s98, 1", f"s_cbranch_scc0 L_jit{k}", "s_cmp_eq_u32 s101, 1"]
                out.append(l)
            e.L = out
        gm, sm = p["GM"].replace("_", " "), p["SM"].replace("_", " ")
        e.L = [(l[:-3] + (gm if "load" in l else sm)) if l.endswith(" sc1") else l for l in e.L]
        if p["FSM"]:
            e.L = [l + " " + p["FSM"].replace("_", " ") if ("store" in l and "s[44:47]" in l and not l.endswith("sc1") and "v44" not in l) else l for l in e.L]
        body = pad_hazards(e.L)
        ref = open(f"cdna_kernels/{NAME}.s.ref").read().split("\n")
        head = [l for l in ref if l.startswith(";") and "@launch" not in l]
        out = head + ["; @launch grid=(256,1,1) block=(512,1,1) lds=163840"] + DOC.split("\n") + [
                      '.amdgcn_target "amdgcn-amd-amdhsa--gfx950"', ".text", f".globl {NAME}_kernel", ".p2align 8",
                      f".type {NAME}_kernel,@function", f"{NAME}_kernel:"]
        out += [("" if l.endswith(":") else "    ") + l for l in body]
        out += ['.section .rodata,"a"', ".p2align 6", f".amdhsa_kernel {NAME}_kernel", "  .amdhsa_next_free_vgpr 256",
                "  .amdhsa_next_free_sgpr 102", "  .amdhsa_accum_offset 256", "  .amdhsa_group_segment_fixed_size 0",
                "  .amdhsa_kernarg_size 112", "  .amdhsa_user_sgpr_count 2", "  .amdhsa_user_sgpr_kernarg_segment_ptr 1",
                "  .amdhsa_system_sgpr_workgroup_id_x 1", ".end_amdhsa_kernel", ""]
        return "\n".join(out)

if __name__ == "__main__":
    kw = {}
    for a in sys.argv[2:]:
        k, v = a.split("=")
        kw[k] = (v == "True") if v in ("True", "False") else (int(v) if v.lstrip("-").isdigit() else v)
    open(sys.argv[1], "w").write(K(**kw).build())
```

```python
import sys, struct
from asmlib import Emit, pad_hazards

NAME = "concat_heads__compressed_kv_cla__gqa_block_cached__decode"
DEF = dict(D_B0=3, NB0=20, D_B=5, N1=24, PVK=3, D_A1=4, NA1=6, D_A2=5, QPOS=32, TIMING=False, MAXPOLL=400000,
           NT="nt", PAD=0, PADEV=-1, PADROLE="", NWE=10, LIGHT=False, PROG=False, GDELAY=0, GM="sc1", SM="sc1", SDELAY=0, NFAST=48, CPS=3, D_B2=12, NB2=38, WARMQ=1, WARMO=30, WARMB=0, WOK=23, NDUTY=20, WOLATE=4, NWO=0, B4B=1, ANODS=0, QKE=0, RLATE=1, HROT=2, TKM=250, AOP=0, UK0=24, UKP=0, FSM="", AMS=4, CPA=0, CPB=0, AINL=0, QBW=0, WSOFF=0, INB=0, TQ=4, LPOS=0, CPF=0, JIT=0, CYC=0, TLBP=0, DPOLL=0, PSL=6, ILV1=0, WOSP=1, TOUCH=0, TPOS=0, TSH=3, NL=0, RK=64, DSLOW=3, NTK=24, LSET=(4, 6, 7, 10), DEEPW=3, GSL=0, NU=-1, WQ0=3, PRIO=0, NOSLOW=0, AKILL=0, PTRACE="", WM="nt")

DOC = """;
; Hand-offs go through d_ws as 8-byte {value, tag} pairs (or drained rows behind tagged flags).  The tag is a hash of
; Hand-offs inside an id&7 group use plain stores tagged with the writer's XCC id: a reader accepts them only from its own
;"""

def f32(x): return "0x%08x" % struct.unpack("<I", struct.pack("<f", x))[0]
CS = 1.4426950408889634 * 128 ** -0.5

WS_QP, WS_QABS, WS_QB, WS_BML, WS_AML = 0x10000, 0x90000, 0xA0000, 0xA8000, 0xB0000
WS_BO, WS_OUTB, WS_OUTA, WS_AO, WS_STAMP = 0xC0000, 0x120000, 0x140000, 0x200000, 0x400000
WS_AML2 = 0x180000
WS_SIZE = 0x800000
SLOW = 0x500000
L_PR = 32768
L_PRB = 49152
L_LQ = 40960
LB_Q, LB_MX, LB_LS, LB_F, LB_G, LB_FLAG, LB_R4, LB_R5 = 0, 1024, 1152, 1280, 1408, 1536, 2048, 20480
LA_Q = 131072
LA_P, LA_MX, LA_LS = 131072, 147456, 148480
LA_F, LA_R1, LA_LAT, LA_R2, LA_CTX = 32768, 36864, 49152, 53248, 61440

vL, vC, vG = 1, 2, 3
SELA, SELB = 32, 36
sW, sX, sSLOT, sH1, sJ, sT = 6, 7, 8, 9, 10, 11
WS = "s[44:47]"
sHI = "s[62:63]"
sCS = "s60"
sXC, sTX, sTF, sM, sNC = "s24", "s25", "s26", "s27", "s28"

def fswz(k):
    k0, k1, k2, k3 = k & 1, (k >> 1) & 1, (k >> 2) & 1, (k >> 3) & 1
    return (k1 << 3) | (k0 << 2) | ((k1 ^ k3) << 1) | k2

def vr(a, n=4): return f"v[{a}:{a+n-1}]"

class K:
    def __init__(self, **kw):
        self.p = dict(DEF); self.p.update(kw)
        self.e = Emit()
        self.nlab = 0
        self.role = "B"
        self.ilv = False
        self.ool = []
    def lab(self, s):
        self.nlab += 1
        return f"L_{s}_{self.nlab}"
    def stamp(self, i):
        if self.p["PAD"] and i == self.p["PADEV"] and self.role in self.p["PADROLE"]:
            self.e("s_memrealtime s[82:83]\ns_waitcnt lgkmcnt(0)")
        if self.p["TIMING"] and not self.p["PROG"] and (not self.p["LIGHT"] or i in self.p["LSET"]):
            self.e(f"s_memrealtime s[98:99]\ns_waitcnt lgkmcnt(0)\ns_mov_b32 s{70+i}, s98")
    def cyc(self, i):
        if self.p["TIMING"] and self.p["CYC"]:
            self.e(f"s_memtime s[98:99]\ns_waitcnt lgkmcnt(0)\ns_mov_b32 s{70+i}, s98")
    def prog(self, n, step):
        if self.p["PROG"] and (n + 1) % step == 0 and (n + 1) // step <= 13:
            k = 72 + 2 * ((n + 1) // step - 1)
            self.e(f"s_memrealtime s[{k}:{k+1}]")
    def cnt(self, i):
        if self.p["TIMING"] and not self.p["PROG"]: self.e(f"s_mov_b32 s{70+i}, s13")
    def exit(self):
        self.e("s_branch L_exit" if self.p["TIMING"] or self.p["PAD"] else "s_endpgm")
    def srd(self, s, ptr, size):
        self.e(f"s_mov_b32 s{s}, s{ptr}\ns_mov_b32 s{s+1}, s{ptr+1}\ns_mov_b32 s{s+2}, {size}\ns_mov_b32 s{s+3}, 0x20000")
    def exec_full(self): self.e("s_mov_b64 exec, -1")
    def exec_mask(self, lo, hi): self.e(f"s_mov_b32 exec_lo, {lo:#x}\ns_mov_b32 exec_hi, {hi:#x}")
    def allred_G(self, vals, tmps, op, steps=(32, 16)):
        e = self.e
        for st in steps:
            for v, t in zip(vals, tmps): e(f"v_mov_b32 v{t}, v{v}")
            for v, t in zip(vals, tmps): e(f"v_permlane{st}_swap_b32 v{t}, v{v}")
            for v, t in zip(vals, tmps): e(f"{op} v{v}, v{t}, v{v}")
    def rowred(self, vals, op, rors):
        for r in rors:
            for v in vals: self.e(f"{op}_dpp v{v}, v{v}, v{v} row_ror:{r} row_mask:0xf bank_mask:0xf")
    def tagcheck(self, tags, acc, T=f"s{sT}"):
        e = self.e
        e(f"v_xor_b32 v{acc}, {T}, v{tags[0]}")
        for t in tags[1:]: e(f"v_bitop3_b32 v{acc}, v{t}, {T}, v{acc} bitop3:0xbe")
        e(f"v_cmp_ne_u32 vcc, 0, v{acc}")
    def poll(self, issue, tags, acc, name, fast=None, slowpub=None, shadow=None):
        e = self.e
        L, D, F = self.lab(name), self.lab(name + "d"), self.lab(name + "f")
        e("s_mov_b32 s13, 0")
        if fast: e(f"s_mov_b32 {sTF}, {sTX}")
        if shadow:
            W = self.lab(name + "w")
            issue(); shadow()
            e(f"s_branch {W}")
        e.label(L)
        issue()
        if shadow: e.label(W)
        e(f"s_add_u32 s13, s13, 1\ns_waitcnt vmcnt(0)")
        if self.p["TIMING"] and self.p["PTRACE"] == name:
            e("s_memrealtime s[98:99]\ns_waitcnt lgkmcnt(0)")
            for k in range(1, 7): e(f"s_cmp_eq_u32 s13, {k}\ns_cselect_b32 s{90+k}, s98, s{90+k}")
        self.tagcheck(tags, acc, sTF if fast else f"s{sT}")
        if fast:
            e(f"s_cbranch_vccnz {F}")
            def ool():
                G = self.lab(name + "g")
                e.label(F)
                e(f"s_cmp_gt_u32 s13, {self.p['MAXPOLL']}\ns_cbranch_scc1 {D}\ns_cmp_lt_u32 s13, {self.p['NFAST']}\ns_cbranch_scc1 {L}")
                e(f"s_cmp_eq_u32 s13, {self.p['NFAST']}\ns_cbranch_scc0 {G}")
                if slowpub: slowpub()
                e(f"s_add_u32 {sM}, {fast}, {SLOW}\ns_xor_b32 {sM}, {sM}, {fast}")
                e.label(G)
                e(f"s_xor_b32 {fast}, {fast}, {sM}\ns_xor_b32 {sTF}, {sTF}, {sXC}\ns_branch {L}")
            self.ool.append(ool)
        else:
            e(f"s_cmp_gt_u32 s13, {self.p['MAXPOLL']}\ns_cbranch_scc1 {D}\ns_cbranch_vccnz {L}")
        e.label(D)
    def poll2(self, issue, nl, RA, RB, acc, name, finish):
        e = self.e
        L, DA = self.lab(name), self.lab(name + "a")
        tags = lambda R: [R + 4 * i + k for i in range(nl) for k in (1, 3)]
        e("s_mov_b32 s13, 0")
        issue(RA)
        e(f"s_sleep {self.p['PSL']}")
        e.label(L)
        issue(RB)
        e(f"s_add_u32 s13, s13, 1\ns_waitcnt vmcnt({nl})")
        self.tagcheck(tags(RA), acc)
        e(f"s_cmp_gt_u32 s13, {self.p['MAXPOLL']}\ns_cbranch_scc1 {DA}\ns_cbranch_vccz {DA}")
        issue(RA)
        e(f"s_waitcnt vmcnt({nl})")
        self.tagcheck(tags(RB), acc)
        e(f"s_cbranch_vccnz {L}")
        finish(RB)
        e.label(DA)
        finish(RA)
    def expand4(self, dst, src, pi):
        for q in range(4): self.e(f"v_perm_b32 v{dst+q}, v{src}, v{src}, v{SELB+4*pi+q}")
    def gemv8(self, acc, frag, data, toks, E=(44, 48)):
        e = self.e
        self.expand4(E[0], frag, 0)
        for i in range(8):
            if i + 1 < 8: self.expand4(E[(i + 1) & 1], frag + ((i + 1) >> 1), (i + 1) & 1)
            if toks is not None and toks[i] is not None: e.wait_vm(toks[i])
            e(f"v_mfma_f32_16x16x32_bf16 {vr(acc)}, {vr(E[i&1])}, {vr(data+4*i)}, {'0' if i == 0 else vr(acc)}")

    def prologue(self):
        e, nt = self.e, self.p["NT"]
        e("s_cmp_ge_u32 s2, 256\ns_cbranch_scc1 L_end")
        e("s_load_dwordx16 s[16:31], s[0:1], 0\ns_load_dwordx8 s[32:39], s[0:1], 64\ns_load_dwordx4 s[40:43], s[0:1], 96")
        if self.p["TIMING"]:
            for i in range(72, 98): e(f"s_mov_b32 s{i}, 0")
            e("s_memrealtime s[70:71]")
        if self.p["PAD"]: e("s_memrealtime s[80:81]\ns_mov_b32 s82, 0")
        if self.p["CPF"]:
            e("s_getpc_b64 s[4:5]")
            e.label("L_pc")
        if self.p["CPF"] == 1:
            e("v_lshlrev_b32 v4, 6, v0\nv_min_u32 v4, L_codeend-L_pc-4, v4")
            e.vmem("global_load_dword v5, v4, s[4:5]")
        elif self.p["CPF"] == 2:
            e("v_lshlrev_b32 v4, 7, v0\nv_cmp_gt_u32 vcc, L_codeend-L_pc-4, v4\ns_and_saveexec_b64 s[12:13], vcc\ns_cbranch_execz L_nopf")
            e("global_load_dword v5, v4, s[4:5]")
            e.label("L_nopf")
            e("s_mov_b64 exec, -1")
        elif self.p["CPF"] == 3:
            e("s_cmp_lt_u32 s2, 224\ns_cbranch_scc1 L_nopf")
            e("v_lshlrev_b32 v4, 6, v0\nv_min_u32 v4, L_codeend-L_pc-4, v4")
            e("global_load_dword v5, v4, s[4:5]")
            e.label("L_nopf")
        e(f"v_lshrrev_b32 v6, 6, v0\nv_and_b32 v{vL}, 63, v0\nv_and_b32 v{vC}, 15, v0\nv_bfe_u32 v{vG}, v0, 4, 2")
        e(f"v_readfirstlane_b32 s{sW}, v6")
        e(f"s_and_b32 s{sX}, s2, 7\ns_lshr_b32 s{sSLOT}, s2, 3")
        e(f"v_and_b32 v7, 3, v0\nv_lshlrev_b32 v7, 4, v7\nv_lshl_add_u32 v7, v{vG}, 6, v7\nv_and_b32 v8, 7, v0\nv_lshlrev_b32 v10, 4, v{vL}")
        e(f"s_cmp_lt_u32 s{sSLOT}, 8\ns_cbranch_scc1 L_astream")
        e(f"s_sub_u32 s64, s{sSLOT}, 8\ns_mul_i32 s{sH1}, s64, 43\ns_lshr_b32 s{sH1}, s{sH1}, 8\ns_mul_i32 s3, s{sH1}, 6\ns_sub_u32 s{sJ}, s64, s3\n" + (f"s_add_u32 s{sH1}, s{sH1}, {self.p['HROT']}\ns_and_b32 s{sH1}, s{sH1}, 3\n" if self.p["HROT"] else "") + f"s_lshl_b32 s3, s{sX}, 2\ns_add_u32 s{sH1}, s{sH1}, s3")
        e(f"s_mul_i32 s3, s{sJ}, {96*8192}\ns_lshl_b32 s12, s{sH1}, 8\ns_add_u32 s61, s3, s12")
        e(f"v_lshrrev_b32 v6, 4, v0\nv_lshlrev_b32 v4, 13, v6\nv_lshl_add_u32 v4, v{vC}, 4, v4\nv_add_u32 v4, s61, v4\nv_add_u32 v11, 0x40000, v4\nv_add_u32 v12, 0x80000, v4")
        e(f"s_mul_i32 s12, s{sJ}, 192\nv_lshl_add_u32 v6, v6, 1, s12")
        e("s_mov_b32 s50, 0x400000\ns_mov_b32 s51, 0x20000")
        e("s_movk_i32 s58, 0x400\ns_mov_b32 s59, 0x20000\ns_movk_i32 s46, 0x400\ns_mov_b32 s47, 0x20000")
        if self.p["WSOFF"]:
            e(f"s_waitcnt lgkmcnt(0)\ns_add_u32 s42, s42, {self.p['WSOFF'] << 20}\ns_addc_u32 s43, s43, 0\ns_cmp_eq_u32 s{sW}, 7")
        else: e(f"s_cmp_eq_u32 s{sW}, 7\ns_waitcnt lgkmcnt(0)")
        if self.p["WARMQ"]:
            wm = self.p["WM"].replace("_", " ")
            e("s_cbranch_scc0 L_nowarm")
            e(f"s_lshl_b32 s14, s{sH1}, 14\ns_add_u32 s14, s14, {WS_QP}\ns_add_u32 s4, s42, s14\ns_addc_u32 s5, s43, 0\nv_lshlrev_b32 v9, 3, v10\nv_add_u32 v13, 0x2000, v9")
            e(f"global_load_dword v5, v9, s[4:5] {wm}\ns_mov_b32 exec_hi, 0\nglobal_load_dword v5, v13, s[4:5] {wm}")
            e(f"s_lshl_b32 s14, s{sX}, 11\ns_add_u32 s14, s14, {WS_BML}\ns_add_u32 s4, s42, s14\ns_addc_u32 s5, s43, 0\ns_mov_b32 exec_lo, 0xffff\nglobal_load_dword v5, v9, s[4:5] {wm}\ns_mov_b64 exec, -1\ns_cmp_eq_u32 s{sW}, 7")
            e.label("L_nowarm")
        e("s_mov_b32 s48, s20\ns_mov_b32 s49, s21\ns_mov_b32 s56, s16\ns_mov_b32 s57, s17")
        for i in range(3): e.vmem(f"buffer_load_ushort v{16+i}, v6, s[56:59], 0 offen offset:{64*i}")
        for i in range(3): self.tA = e.vmem(f"buffer_load_dwordx4 {vr(128+4*i)}, v{(4,11,12)[i]}, s[48:51], 0 offen {nt}")
        e("s_mov_b32 s44, s28\ns_mov_b32 s45, s29")
        for i in range(3): e.vmem(f"buffer_load_ushort v{19+i}, v6, s[44:47], 0 offen offset:{64*i}")
        e("v_mov_b32 v22, v4\ns_cbranch_scc0 L_notctrl")

    def wq_load(self, i):
        e = self.e
        if i == 0: self.srd(72, 34, 1 << 22)
        t = e.vmem(f"buffer_load_dwordx4 {vr(140+4*i)}, v22, s[16:19], 0 offen {self.p['NT']}")
        if i < 2: e("v_add_u32 v22, 0x40000, v22")
        return t
    def p1_gemv(self, X, W, dst):
        e = self.e
        for i in range(3): self.expand4(44 + 4 * i, X + i, 0)
        for i in range(3): e(f"v_mfma_f32_16x16x32_bf16 v[152:155], {vr(44+4*i)}, {vr(W+4*i)}, {'0' if i == 0 else 'v[152:155]'}")
        e(f"v_lshlrev_b32 v11, 4, v0")
        e.ds(f"ds_write_b128 v11, v[152:155] offset:{dst}")
    def p1_reduce(self, src, R, pub):
        e = self.e
        e(f"v_and_b32 v11, 31, v{vL}\nv_lshlrev_b32 v11, 4, v11\nv_lshrrev_b32 v12, 5, v{vL}\nv_lshl_add_u32 v11, v12, 12, v11")
        tk = [e.ds(f"ds_read_b128 {vr(R+4*w)}, v11 offset:{src+1024*w}") for w in range(4)]
        e(f"v_mov_b32 v{pub+1}, {sTX}\nv_mov_b32 v{pub+3}, {sTX}")
        for w in range(1, 4):
            e.wait_lg(tk[w])
            e(f"v_pk_add_f32 v[{R}:{R+1}], v[{R}:{R+1}], v[{R+4*w}:{R+4*w+1}]\nv_pk_add_f32 v[{R+2}:{R+3}], v[{R+2}:{R+3}], v[{R+4*w+2}:{R+4*w+3}]")
        e(f"v_permlane32_swap_b32 v{R}, v{R+2}\nv_permlane32_swap_b32 v{R+1}, v{R+3}\nv_add_f32 v{pub}, v{R}, v{R+2}\nv_add_f32 v{pub+2}, v{R+1}, v{R+3}")

    def code_pf(self, first, last, name, lanes):
        e = self.e
        e("s_getpc_b64 s[4:5]")
        e.label(name)
        e(f"s_add_u32 s4, s4, {first}-{name}\ns_addc_u32 s5, s5, {0 if first != 'L_btail' else 0}")
        e(f"v_lshlrev_b32 v12, 7, {lanes}\nv_min_u32 v12, {last}-{first}-4, v12")
        return e.vmem("global_load_dword v5, v12, s[4:5]")
    def selectors(self):
        e = self.e
        e(f"s_mov_b32 s62, 0\ns_mov_b32 s63, -1\ns_mov_b32 {sCS}, {f32(CS)}")
        self.srd(44, 42, WS_SIZE)
        e("v_and_b32 v15, 3, v0\nv_lshlrev_b32 v15, 4, v15\nv_mov_b32 v13, 0\nv_mov_b32 v11, 0x0c0c0c0c\nv_and_b32 v14, 4, v0\nv_cmp_ne_u32 vcc, 0, v14")
        for pi, d in ((0, 0x0d0c), (1, 0x0f0e)):
            a = SELA + 2 * pi
            e(f"v_mov_b32 v12, {d:#x}\nv_lshlrev_b64 v[{a}:{a+1}], v15, v[12:13]\nv_xor_b32 v{a}, v11, v{a}\nv_xor_b32 v{a+1}, v11, v{a+1}")
            b = SELB + 4 * pi
            e(f"v_cndmask_b32 v{b}, v{a}, v11, vcc\nv_cndmask_b32 v{b+1}, v{a+1}, v11, vcc\nv_cndmask_b32 v{b+2}, v11, v{a}, vcc\nv_cndmask_b32 v{b+3}, v11, v{a+1}, vcc")
    def tagmake(self):
        self.e(f"s_waitcnt lgkmcnt(0)\ns_mul_i32 s{sT}, s{sT}, 0x9e3779b1\ns_add_u32 s{sT}, s{sT}, 0x7f4a7c15")

    def p1_compute(self, ctrl):
        e = self.e
        self.selectors()
        if ctrl:
            self.tagmake()
            e(f"s_getreg_b32 {sXC}, hwreg(HW_REG_XCC_ID, 0, 4)\ns_xor_b32 {sTX}, s{sT}, {sXC}\ns_mov_b32 {sNC}, 0")
            e(f"v_mov_b32 v57, s{sT}\nv_mov_b32 v59, s{sT}")
            e.ds(f"ds_write_b32 v13, v57 offset:{LB_FLAG+8}")
            for k in (0, 4, 12, 16, 20): e.ds(f"ds_write_b32 v13, v13 offset:{LB_FLAG+k}")
        e.wait_vm(self.tA)
        self.p1_gemv(16, 128, L_PR)
        e("s_waitcnt lgkmcnt(0)\ns_barrier")
        self.stamp(1)
        if not ctrl:
            e.ds(f"ds_read_b32 v12, v13 offset:{LB_FLAG+8}")
            tq = [self.wq_load(i) for i in range(self.p["WQ0"])]
            e(f"s_waitcnt lgkmcnt(0)\nv_readfirstlane_b32 s{sT}, v12")
            e(f"s_getreg_b32 {sXC}, hwreg(HW_REG_XCC_ID, 0, 4)\ns_xor_b32 {sTX}, s{sT}, {sXC}")
            e("s_barrier")
            tq += [self.wq_load(i) for i in range(self.p["WQ0"], 3)]
            return tq[2]

    def phase1(self):
        e, nt = self.e, self.p["NT"]
        WQ, WU = 64, 160
        e(f"s_load_dword s{sT}, s[42:43], 0")
        e(f"v_bfe_u32 v14, v0, 2, 2\nv_lshl_add_u32 v9, v14, 15, v7\nv_add_u32 v9, s61, v9\nv_lshl_add_u32 v14, v14, 14, v7\nv_add_u32 v14, s61, v14")
        self.srd(56, 22, 1 << 22)
        tu, ukq = [], []
        for t in range(4):
            for a in range(4):
                ukq.append((f"buffer_load_dwordx4 {vr(WU+16*a+4*t)}, v9, s[56:59], 0 offen {nt}",
                            f"v_add_u32 v9, {0x2000 if a < 3 else 0x20000-0x6000:#x}, v9" if (t, a) != (3, 3) else ""))
        for t in range(4):
            for a in range(2):
                ukq.append((f"buffer_load_dwordx4 {vr(WU+64+16*a+4*t)}, v23, s[56:59], 0 offen {nt}",
                            f"v_add_u32 v23, {0x2000 if a < 1 else 0x10000-0x2000:#x}, v23" if (t, a) != (3, 1) else ""))
        e("v_add_u32 v23, 0x80000, v14")
        def uk(n):
            for _ in range(n):
                if ukq:
                    a, b = ukq.pop(0)
                    tu.append(e.vmem(a)); e(b)
        uk(self.p["UK0"])
        self.p1_compute(True)
        if self.p["UK0"] < 24 and self.p["UKP"] == 0: uk(24)
        e(f"s_lshl_b32 s14, s{sH1}, 14\ns_add_u32 s14, s14, {WS_QP}\ns_lshl_b32 s15, s{sJ}, 11\ns_add_u32 s15, s15, s14")
        self.p1_reduce(L_PR, WQ, 112)
        tst = e.vmem(f"buffer_store_dwordx4 v[112:115], v10, {WS}, s15 offen")
        self.stamp(2)
        uk(24)
        e(f"s_add_u32 s68, s15, {SLOW}")
        def qp_slow(mats=(0,)):
            for m in mats:
                r = 112 + 4 * m
                e(f"v_mov_b32 v{r+1}, s{sT}\nv_mov_b32 v{r+3}, s{sT}")
                e(f"buffer_store_dwordx4 {vr(r)}, v10, {WS}, s68 offen offset:{1024*m} sc1")
            e(f"s_mov_b32 {sNC}, 1")
        QF = [24, 28, 120, 124]
        for b in QF:
            for r in range(4): e(f"v_mov_b32 v{b+r}, 0")
        e(f"v_and_b32 v9, 1, v{vG}\nv_lshlrev_b32 v9, 3, v9\nv_lshl_add_u32 v9, v{vC}, 4, v9\nv_lshrrev_b32 v12, 1, v{vG}\nv_lshl_add_u32 v9, v12, 2, v9")
        e(f"v_add_u32 v13, {L_LQ}, v9\nv_add_u32 v14, {L_LQ}, v7")
        def gat(base, mat):
            def f():
                for jj in range(6):
                    if jj % 2 == 0: e(f"s_add_u32 s12, {base}, {jj*2048}")
                    t = e.vmem(f"buffer_load_dwordx4 {vr(WQ+4*jj)}, v10, {WS}, s12 offen offset:{(jj&1)*2048+1024*mat} sc1")
                return t
            return f
        tags = [WQ + 4 * jj + k for jj in range(6) for k in (1, 3)]
        def sum6():
            for jj in range(1, 6):
                e(f"v_add_f32 v{WQ}, v{WQ}, v{WQ+4*jj}\nv_add_f32 v{WQ+2}, v{WQ+2}, v{WQ+4*jj+2}")
        if self.p["TIMING"]:
            e.wait_vm(tu[min(23, 23 - self.p["NU"])]); self.stamp(22)
        e.wait_vm(tu[23 - self.p["NU"]] if self.p["NU"] >= 0 else max(tst, tu[23]))
        if self.p["NU"] < 0 and self.p["TIMING"]:
            pass
        self.stamp(21)
        for _ in range(self.p["GSL"]): e("s_sleep 2")
        tg = gat("s14", 0)()
        if not self.p["RLATE"]: e("s_barrier")
        for i in range(3): tq = self.wq_load(i)
        e.wait_vm(tg)
        self.tagcheck(tags, 60, sTX)
        e("s_cbranch_vccnz L_p1_retry")
        if self.p["TIMING"]: e("s_mov_b32 s13, 0")
        e.label("L_p1_got")
        if self.p["RLATE"]: e("s_barrier")
        def ool():
            e.label("L_p1_retry")
            self.poll(gat("s14", 0), tags, 60, "gqa", fast="s14", slowpub=qp_slow)
            e("s_branch L_p1_got")
        self.ool.append(ool)
        self.stamp(3); self.cnt(20)
        sum6()
        e(f"v_cvt_pk_bf16_f32 v60, v{WQ}, v{WQ+2}")
        e.ds(f"ds_write_b32 v13, v60")
        e("s_waitcnt lgkmcnt(0)")
        for t in range(4):
            m = 0x000f000f << (4 * t)
            self.exec_mask(m, m)
            e.ds(f"ds_read_b128 {vr(QF[t])}, v14")
        self.exec_full()
        e("s_waitcnt lgkmcnt(0)")
        for a in range(6):
            for t in range(4):
                e(f"v_mfma_f32_16x16x32_bf16 {vr(64+4*a)}, {vr(WU+16*a+4*t)}, {vr(QF[t])}, {'0' if t == 0 else vr(64+4*a)}")
        e(f"s_lshl_b32 s12, s{sH1}, 11\ns_mul_i32 s3, s{sJ}, 384\ns_add_u32 s12, s12, s3\ns_add_u32 s12, s12, {WS_QABS}")
        e(f"v_and_b32 v15, 12, v{vC}\nv_add_u32 v15, v15, v{vG}\nv_lshlrev_b32 v14, 3, v15\nv_lshlrev_b32 v15, 4, v15")
        e(f"s_mov_b32 s3, 0x00110011\ns_cmp_lt_u32 s{sJ}, 5\ns_cselect_b32 s3, 0x11111111, s3")
        self.quadsum([(64 + 4 * a, 44 + a) for a in range(6)])
        e(f"v_cvt_pk_bf16_f32 v56, v44, v45\nv_cvt_pk_bf16_f32 v58, v46, v47\nv_cvt_pk_bf16_f32 v62, v48, v49\nv_mov_b32 v63, s{sT}")
        e("s_mov_b32 exec_lo, s3\ns_mov_b32 exec_hi, s3")
        e.vmem(f"buffer_store_dwordx4 v[56:59], v15, {WS}, s12 offen sc1")
        e("s_cbranch_scc0 L_p1done")
        e(f"buffer_store_dwordx2 v[62:63], v14, {WS}, s12 offen offset:256 sc1")
        e.label("L_p1done")
        self.exec_full()
        self.stamp(4)
        e.wait_vm(tq)
        self.p1_gemv(19, 140, L_PRB)
        e("v_mov_b32 v15, 0")
        L = self.lab("wqb")
        e.label(L)
        e.ds(f"ds_read_b32 v60, v15 offset:{LB_FLAG+12}")
        e(f"s_waitcnt lgkmcnt(0)\nv_readfirstlane_b32 s3, v60\ns_cmp_lt_u32 s3, 7\ns_cbranch_scc1 {L}")
        self.p1_reduce(L_PRB, WQ, 116)
        tb = e.vmem(f"buffer_store_dwordx4 v[116:119], v10, {WS}, s15 offen offset:1024")
        if self.p["QBW"]: e.wait_vm(tb)
        R = 160
        e(f"s_lshl_b32 s67, s{sX}, 16\ns_add_u32 s67, s67, {WS_QP}")
        def gb():
            for hh in range(4):
                for jj in range(6):
                    if jj % 2 == 0: e(f"s_add_u32 s12, s67, {hh*16384+jj*2048}")
                    e.vmem(f"buffer_load_dwordx4 {vr(R+24*hh+4*jj)}, v10, {WS}, s12 offen offset:{(jj&1)*2048+1024} sc1")
        self.poll(gb, [R + 4 * i + k for i in range(24) for k in (1, 3)], 60, "gqb", fast="s67", slowpub=lambda: qp_slow((0, 1)))
        for jj in range(1, 6):
            for hh in range(4):
                b = R + 24 * hh
                e(f"v_add_f32 v{b}, v{b}, v{b+4*jj}\nv_add_f32 v{b+2}, v{b+2}, v{b+4*jj+2}")
        e(f"v_mov_b32 v15, 0\nv_mov_b32 v61, 1\nv_mov_b32 v62, {sNC}")
        e.ds(f"ds_write_b32 v15, v62 offset:{LB_FLAG+24}")
        for hh in range(4):
            b = R + 24 * hh
            e(f"v_cvt_pk_bf16_f32 v{b}, v{b}, v{b+2}")
            e.ds(f"ds_write_b32 v9, v{b} offset:{LB_Q+256*hh}")
        e.ds(f"ds_write_b32 v15, v61 offset:{LB_FLAG}")
        e("s_waitcnt lgkmcnt(0)")
        self.stamp(18); self.cnt(19)
        if self.p["CPB"]: self.code_pf("L_notctrl", "L_arest", "L_pcb", "v1")
        if self.p["TLBP"]:
            e(f"s_lshl_b32 s3, s{sX}, 22\ns_add_u32 s4, s32, s3\ns_addc_u32 s5, s33, 0\ns_load_dword s12, s[4:5], 0")
            e("s_add_u32 s4, s4, 0x200000\ns_addc_u32 s5, s5, 0\ns_load_dword s12, s[4:5], 0")
            e("s_add_u32 s4, s4, 0x1ffffc\ns_addc_u32 s5, s5, 0\ns_load_dword s12, s[4:5], 0")
            e(f"s_lshl_b32 s3, s{sX}, 19\ns_add_u32 s4, s36, s3\ns_addc_u32 s5, s37, 0\ns_load_dword s12, s[4:5], 0\ns_load_dword s12, s[38:39], 0")
            e(f"s_add_u32 s4, s42, {WS_AO}\ns_addc_u32 s5, s43, 0\ns_load_dword s12, s[4:5], 0\ns_waitcnt lgkmcnt(0)")

    def quadsum(self, pairs):
        e = self.e
        for D, S in pairs: e(f"v_mov_b32_dpp v{S}, v{D} quad_perm:[0,0,0,0] row_mask:0xf bank_mask:0xf")
        for r in range(1, 4):
            for D, S in pairs: e(f"v_add_f32_dpp v{S}, v{D+r}, v{S} quad_perm:[{r},{r},{r},{r}] row_mask:0xf bank_mask:0xf")

    def b_ids(self):
        e = self.e
        e(f"s_lshr_b32 s65, s64, 2\ns_lshl_b32 s3, s{sX}, 2\ns_add_u32 s65, s65, s3\ns_and_b32 s66, s64, 3")
        e(f"v_bfe_u32 v6, v{vL}, 2, 2\nv_lshl_add_u32 v6, v6, 8, v7")
        e(f"s_lshl_b32 s3, s65, 7\ns_and_b32 s12, s{sW}, 3\ns_lshl_b32 s12, s12, 5\ns_add_u32 s3, s3, s12\ns_lshr_b32 s12, s{sW}, 2\ns_lshl_b32 s12, s12, 2\ns_add_u32 s3, s3, s12")
        if self.p["WOSP"]:
            e(f"s_lshl_b32 s3, s3, 10\ns_and_b32 s12, s66, 1\ns_lshl_b32 s12, s12, 8\ns_add_u32 s3, s3, s12\ns_lshr_b32 s12, s66, 1\ns_lshl_b32 s12, s12, 7\ns_add_u32 s69, s3, s12")
            e(f"v_bfe_u32 v4, v{vL}, 3, 1\nv_lshlrev_b32 v4, 9, v4\nv_lshl_add_u32 v4, v{vG}, 10, v4\nv_lshl_add_u32 v4, v8, 4, v4")
        else:
            e(f"s_lshl_b32 s3, s3, 10\ns_lshl_b32 s12, s66, 8\ns_add_u32 s69, s3, s12")
            e(f"v_lshlrev_b32 v4, 10, v{vG}\nv_lshl_add_u32 v4, v{vC}, 4, v4")
        self.srd(48, 30, 1 << 25); self.srd(52, 32, 1 << 25); self.srd(56, 36, 1 << 22)
        e("s_cmp_lt_u32 s64, 16\ns_cselect_b32 s58, s58, 0")
    def bo_addr(self):
        e = self.e
        e(f"s_mul_i32 s68, s65, {24*512}\ns_lshl_b32 s3, s{sW}, 6\ns_add_u32 s68, s68, s3\ns_add_u32 s68, s68, {WS_BO}")
        e(f"v_and_b32 v9, 3, v{vL}\nv_lshlrev_b32 v9, 4, v9\nv_lshrrev_b32 v6, 2, v{vL}\nv_lshl_add_u32 v6, v6, 9, v9\nv_and_b32 v9, 0xfff, v6\nv_add_u32 v9, {16*512}, v9")
    def bo_warm(self):
        e = self.e
        self.bo_addr()
        L = self.lab("bow")
        e(f"s_cmp_lt_u32 s64, 16\ns_cbranch_scc0 {L}")
        e(f"buffer_load_dword v5, v6, {WS}, s68 offen {self.p['WM'].replace('_',' ')}")
        e(f"buffer_load_dword v5, v9, {WS}, s68 offen {self.p['WM'].replace('_',' ')}")
        e.label(L)
    def b_tail_addrs(self):
        e = self.e
        for q in range(4): e(f"v_perm_b32 v{20+q}, -1, -1, v{SELB+q}")
        e(f"s_lshl_b32 s3, s{sW}, 10\nv_add_u32 v16, s3, v10")
        e(f"v_and_b32 v17, 31, v{vL}\nv_lshlrev_b32 v17, 4, v17\nv_lshrrev_b32 v12, 5, v{vL}\nv_lshl_add_u32 v17, v12, 12, v17")
        e(f"s_lshl_b32 s16, s65, 12\ns_lshl_b32 s3, s66, 10\ns_add_u32 s16, s16, s3\ns_add_u32 s16, s16, {WS_OUTB}")
        e(f"v_and_b32 v18, 1, v{vG}\nv_lshlrev_b32 v18, 5, v18\nv_lshl_add_u32 v18, v{vC}, 6, v18\nv_lshl_add_u32 v18, v12, 4, v18\nv_mov_b32 v57, s{sT}\nv_mov_b32 v59, s{sT}")
        e(f"s_lshl_b32 s3, s66, 7\ns_lshl_b32 s14, s65, 2\ns_add_u32 s14, s14, s3\ns_lshl_b32 s17, s14, 3\ns_add_u32 s17, s17, {WS_OUTB}")
        e(f"v_lshrrev_b32 v19, 1, v{vL}\nv_lshlrev_b32 v19, 12, v19\nv_and_b32 v15, 1, v{vL}\nv_lshl_add_u32 v19, v15, 4, v19")
        self.srd(48, 38, 2048)
        if self.p["WOSP"]:
            e(f"s_lshr_b32 s14, s65, 4\ns_lshl_b32 s14, s14, 8\ns_and_b32 s3, s66, 1\ns_lshl_b32 s3, s3, 7\ns_add_u32 s14, s14, s3\ns_lshr_b32 s3, s66, 1\ns_lshl_b32 s3, s3, 6\ns_add_u32 s14, s14, s3\ns_and_b32 s3, s65, 15\ns_lshl_b32 s3, s3, 2\ns_add_u32 s14, s14, s3")
        e(f"s_lshl_b32 s14, s14, 1\ns_add_u32 s14, s14, 1024\nv_lshlrev_b32 v15, 2, v15\nv_and_b32 v63, 60, v{vL}")
    def b_kload(self, KR, t, n):
        return self.e.vmem(f"buffer_load_dwordx4 {vr(KR+16*t+4*n)}, v6, s[48:51], s14 offen offset:{0 if self.ilv else n*1024} {self.p['NT']}")
    def b_vload(self, VR, t, n):
        return self.e.vmem(f"buffer_load_dwordx4 {vr(VR+16*t+4*n)}, v10, s[52:55], s15 offen offset:{0 if self.ilv else n*1024} {self.p['NT']}")
    def b_woloads(self):
        for i in range(4):
            self.e.vmem(f"buffer_load_dwordx4 {vr(self.WO[i])}, v4, s[56:59], s69 offen {self.p['NT']}")
            if i < 3: self.e("s_addk_i32 s69, 0x2000")
    def b_chunks(self, nt, KR, bias, wait_q):
        e = self.e
        ch = []
        def c_q():
            e(f"v_lshrrev_b32 v11, 2, v{vC}\nv_lshl_add_u32 v12, v11, 8, v7")
            e(f"v_lshlrev_b32 v13, 5, v11\ns_lshl_b32 s3, s{sW}, 2\nv_add_u32 v14, s3, v13\nv_mov_b32 v15, 0")
            if wait_q:
                L = self.lab("wq")
                e.label(L)
                e.ds(f"ds_read_b32 v60, v15 offset:{LB_FLAG}")
                e(f"s_waitcnt lgkmcnt(0)\nv_readfirstlane_b32 s3, v60\ns_cmp_eq_u32 s3, 0\ns_cbranch_scc1 {L}")
            self.stamp(5)
            e.ds(f"ds_read_b128 v[16:19], v12 offset:{LB_Q}")
            e("s_waitcnt lgkmcnt(0)")
        ch.append((-1, c_q))
        def c_qk(t):
            def f():
                b = KR + 16 * t
                if t < nt:
                    for i in range(4): e(f"v_mfma_f32_16x16x32_bf16 {vr(44+4*i)}, {vr(b+4*i)}, v[16:19], 0")
                    self.quadsum([(44 + 4 * i, b + i) for i in range(4)])
                    if t == 0: e(f"v_max3_f32 v60, v{b}, v{b+1}, v{b+2}\nv_max_f32 v60, v60, v{b+3}")
                    else: e(f"v_max3_f32 v60, v60, v{b}, v{b+1}\nv_max3_f32 v60, v60, v{b+2}, v{b+3}")
                if t == nt:
                    self.allred_G([60], [61], "v_max_f32")
                    e(f"v_mul_f32 v62, {sCS}, v60")
            return f
        for t in range(nt + 1): ch.append((min(t, nt - 1), c_qk(t)))
        def c_exp(t):
            def f():
                b = KR + 16 * t
                for r in range(4): e(f"v_fma_f32 v{b+r}, v{b+r}, {sCS}, -v62")
                for r in range(4): e(f"v_exp_f32 v{b+r}, v{b+r}")
                if t == 0: e(f"v_add_f32 v63, v{b}, v{b+1}")
                else: e(f"v_add_f32 v63, v63, v{b}\nv_add_f32 v63, v63, v{b+1}")
                e(f"v_cvt_pk_bf16_f32 v{b+4}, v{b}, v{b+1}\nv_add_f32 v63, v63, v{b+2}\nv_cvt_pk_bf16_f32 v{b+5}, v{b+2}, v{b+3}\nv_add_f32 v63, v63, v{b+3}")
            return f
        for t in range(nt): ch.append((nt - 1, c_exp(t)))
        def c_l():
            self.allred_G([63], [61], "v_add_f32")
            if bias: e(f"v_add_f32 v62, {bias}, v62")
            e("v_mov_b32 v61, 1")
            self.exec_mask(0x1111, 0)
            e.ds(f"ds_write_b32 v14, v62 offset:{LB_MX}")
            e.ds(f"ds_write_b32 v14, v63 offset:{LB_LS}")
            e("s_mov_b32 exec_lo, 1")
            e.ds(f"ds_add_u32 v15, v61 offset:{LB_FLAG+4}")
            self.exec_full()
            self.stamp(6)
        ch.append((nt - 1, c_l))
        return ch
    def b_pv_prep(self, KR, n):
        t, i = n >> 2, n & 3
        E = 44 + 2 * (n & 3)
        for q in range(2): self.e(f"v_perm_b32 v{E+q}, v{KR+16*t+4+(i>>1)}, v{KR+16*t+4+(i>>1)}, v{SELA+2*(i&1)+q}")
    def b_pv_mma(self, VR, n):
        t, i = n >> 2, n & 3
        E = 44 + 2 * (n & 3)
        b = VR + 16 * t + 4 * i
        for h in range(2):
            acc = 24 + 4 * h
            self.e(f"v_mfma_f32_16x16x16_bf16 {vr(acc)}, v[{E}:{E+1}], v[{b+2*h}:{b+2*h+1}], {'0' if n == 0 else vr(acc)}")
    def b_owrite(self):
        e = self.e
        e(f"s_lshl_b32 s3, s{sW}, 11\nv_add_u32 v11, s3, v10")
        e.ds(f"ds_write_b128 v11, v[24:27] offset:{LB_R4}")
        e.ds(f"ds_write_b128 v11, v[28:31] offset:{LB_R4+1024}")
        e("s_waitcnt lgkmcnt(0)")
        e("s_branch L_btail")

    def b_ctrl(self):
        e = self.e
        KR, VR = 64, 160
        self.WO = [72, 88, 104, 120]
        self.b_ids()
        e("s_cmp_ge_u32 s64, 16\ns_cselect_b32 s50, s50, 0\ns_cselect_b32 s54, s54, 0")
        e(f"s_cselect_b32 s61, 0, {f32(-1e30)}")
        e(f"s_lshl_b32 s14, s{sX}, 22\ns_lshl_b32 s3, s64, 1\ns_add_u32 s3, s3, {1008-32}\ns_lshl_b32 s3, s3, 12\ns_cmp_ge_u32 s64, 16\ns_cselect_b32 s3, s3, 0\ns_add_u32 s14, s14, s3\ns_mov_b32 s15, s14")
        for t in range(2):
            for n in range(4): self.b_kload(KR, t, n)
            if t == 0: e("s_addk_i32 s14, 0x1000")
        for t in range(2):
            for n in range(4): self.b_vload(VR, t, n)
            if t == 0: e("s_addk_i32 s15, 0x1000")
        e("s_waitcnt vmcnt(0) lgkmcnt(0)")
        for _, f in self.b_chunks(2, KR, "s61", False): f()
        for n in range(8):
            self.b_pv_prep(KR, n)
            self.b_pv_mma(VR, n)
        self.bo_warm() if self.p["WARMB"] else self.bo_addr()
        e(f"s_lshl_b32 s12, s{sX}, 11\ns_lshl_b32 s3, s64, 4\ns_add_u32 s12, s12, s3\ns_add_u32 s12, s12, {WS_BML}")
        e(f"v_lshlrev_b32 v11, 4, v13\nv_mov_b32 v53, {sTX}\nv_mov_b32 v55, {sTX}")
        if self.p["NL"]:
            L = self.lab("wtk")
            e.label(L)
            e("s_sleep 2")
            e.ds(f"ds_read_b32 v60, v15 offset:{LB_FLAG+20}")
            e(f"s_waitcnt lgkmcnt(0)\nv_readfirstlane_b32 s3, v60\ns_cmp_eq_u32 s3, 0\ns_cbranch_scc1 {L}")
            e("v_mov_b32 v144, 1\ns_mov_b64 exec, 1")
            e("global_atomic_add v145, v15, v144, s[40:41] sc0 sc1")
            e(f"s_waitcnt vmcnt(0)\nv_cmp_gt_u32 vcc, {self.p['RK']}, v145\nv_cndmask_b32 v145, 0, 1, vcc")
            e.ds(f"ds_write_b32 v15, v145 offset:{LB_FLAG+16}")
            self.exec_full()
        L = self.lab("wml")
        e.label(L)
        e("s_sleep 2")
        e.ds(f"ds_read_b32 v60, v15 offset:{LB_FLAG+4}")
        e(f"s_waitcnt lgkmcnt(0)\nv_readfirstlane_b32 s3, v60\ns_cmp_lt_u32 s3, 8\ns_cbranch_scc1 {L}")
        e.ds(f"ds_read_b128 v[128:131], v13 offset:{LB_MX}")
        e.ds(f"ds_read_b128 v[132:135], v13 offset:{LB_MX+16}")
        e.ds(f"ds_read_b128 v[136:139], v13 offset:{LB_LS}")
        e.ds(f"ds_read_b128 v[140:143], v13 offset:{LB_LS+16}")
        e("s_waitcnt lgkmcnt(0)")
        e("v_max3_f32 v52, v128, v129, v130\nv_max3_f32 v52, v52, v131, v132\nv_max3_f32 v52, v52, v133, v134\nv_max_f32 v52, v52, v135")
        for r in range(128, 136): e(f"v_sub_f32 v{r}, v{r}, v52")
        for r in range(128, 136): e(f"v_exp_f32 v{r}, v{r}")
        e("v_mul_f32 v54, v128, v136")
        for r in range(1, 8): e(f"v_fmac_f32 v54, v{128+r}, v{136+r}")
        self.exec_mask(0x1111, 0)
        e.ds(f"ds_write_b128 v13, v[128:131] offset:{LB_G}")
        e.ds(f"ds_write_b128 v13, v[132:135] offset:{LB_G+16}")
        e.vmem(f"buffer_store_dwordx4 v[52:55], v11, {WS}, s12 offen")
        e(f"s_cmp_eq_u32 {sNC}, 0\ns_cbranch_scc1 L_bml_ns\ns_add_u32 s12, s12, {SLOW}\nv_mov_b32 v53, s{sT}\nv_mov_b32 v55, s{sT}")
        e(f"buffer_store_dwordx4 v[52:55], v11, {WS}, s12 offen sc1")
        e.label("L_bml_ns")
        self.exec_full()
        e("s_cmp_lt_u32 s64, 16\ns_cbranch_scc0 L_bc_nod")
        if self.p["WOK"] <= 23: self.b_woloads()
        e(f"v_and_b32 v15, 31, v{vL}\nv_min_u32 v11, 23, v15\nv_lshlrev_b32 v11, 4, v11\ns_lshl_b32 s12, s65, 9\ns_add_u32 s12, s12, {WS_BML}")
        def gm(): e.vmem(f"buffer_load_dwordx4 v[52:55], v11, {WS}, s12 offen sc1")
        self.poll(gm, [53, 55], 60, "gml", fast="s12")
        e("v_mov_b32 v56, v52")
        self.rowred([56], "v_max_f32", (8, 4, 2, 1))
        self.allred_G([56], [57], "v_max_f32", steps=(16,))
        e("v_sub_f32 v52, v52, v56\nv_exp_f32 v52, v52\nv_cmp_gt_u32 vcc, 24, v15\nv_cndmask_b32 v52, 0, v52, vcc\nv_mul_f32 v54, v54, v52")
        self.rowred([54], "v_add_f32", (8, 4, 2, 1))
        self.allred_G([54], [57], "v_add_f32", steps=(16,))
        e("v_rcp_f32 v54, v54\nv_lshlrev_b32 v15, 2, v15\nv_mul_f32 v52, v52, v54")
        e.ds(f"ds_write_b32 v15, v52 offset:{LB_F}")
        e.label("L_bc_nod")
        self.b_tail_addrs()
        self.b_owrite()

    def b_stream(self):
        e, p = self.e, self.p
        KR, VR, NT_ = 64, 160, 6
        self.WO = [72, 88, 104, 120]
        self.b_ids()
        e(f"s_mul_i32 s3, s64, 7\ns_add_u32 s3, s3, s{sW}\ns_lshl_b32 s3, s3, {10 if p['ILV1'] else 12}\ns_lshl_b32 s14, s{sX}, 22\ns_add_u32 s14, s14, s3\ns_mov_b32 s15, s14\ns_mov_b32 s67, {168*(1024 if p['ILV1'] else 4096)}")
        self.ilv = bool(p["ILV1"])
        Df = lambda n: p["D_B0"] if n < p["NB0"] else p["D_B"] if n < p["NB2"] else p["D_B2"]
        D = p["D_B"]
        tok = []
        ch = []
        def issue(n, throttle=True):
            if throttle and n >= Df(n):
                if n < p["NDUTY"]:
                    L = self.lab("dty")
                    e(f"s_cbranch_vccnz {L}")
                    e.wait_vm(tok[n - Df(n)])
                    e.label(L)
                    if n > Df(n): e.wait_vm(tok[n - Df(n) - 1])
                elif p["NL"] and n >= p["NL"]:
                    if n == p["NL"]:
                        e(f"s_waitcnt lgkmcnt(0)\nv_readfirstlane_b32 s3, v5\ns_cmp_eq_u32 s3, 0\ns_cselect_b64 vcc, -1, 0")
                    L = self.lab("bal")
                    e(f"s_cbranch_vccnz {L}")
                    e.wait_vm(tok[n - p["DSLOW"]])
                    e.label(L)
                    e.wait_vm(tok[n - Df(n)])
                else: e.wait_vm(tok[n - Df(n)])
            if p["NL"] and n == p["NL"] - 1:
                e.ds(f"ds_read_b32 v5, v15 offset:{LB_FLAG+16}")
            if p["NL"] and n == p["NTK"]:
                assert n > p["N1"]
                L = self.lab("tk")
                e(f"s_cmp_eq_u32 s{sW}, 6\ns_cbranch_scc0 {L}")
                e(f"ds_write_b32 v15, v32 offset:{LB_FLAG+20}")
                e.label(L)
            self.prog(n, 4)
            if n < 24:
                if n and (n % 4 == 0 or self.ilv): e("s_add_u32 s14, s14, s67")
                tok.append(self.b_kload(KR, n >> 2, n & 3))
            elif n < 48:
                m = n - 24
                if m and (m % 4 == 0 or self.ilv): e("s_add_u32 s15, s15, s67")
                tok.append(self.b_vload(VR, m >> 2, m & 3))
        n = 0
        if p["PRIO"]:
            L = self.lab("prio")
            e(f"s_cmp_ge_u32 s{sW}, 4\ns_cbranch_scc0 {L}\ns_setprio {p['PRIO']}")
            e.label(L)
        def touch():
            e(f"s_mul_i32 s3, s64, 7\ns_add_u32 s3, s3, s{sW}\ns_and_b32 s12, s3, 7\ns_lshl_b32 s12, s12, 13\ns_lshr_b32 s3, s3, 3\ns_add_u32 s3, s3, {p['TOUCH']}\ns_lshl_b32 s3, s3, 19\ns_add_u32 s3, s3, s12")
            e(f"s_lshl_b32 s12, s{sX}, 16\ns_add_u32 s3, s3, s12\nv_lshlrev_b32 v12, {p['TSH']}, v10\nv_add_u32 v12, s3, v12")
            for k in range(8 >> p["TSH"]):
                e.vmem(f"buffer_load_dword v5, v12, s[20:23], 0 offen {p['NT']}")
                if k + 1 < 8 >> p["TSH"]: e(f"v_add_u32 v12, {1024 << p['TSH']}, v12")
        if p["TOUCH"]:
            self.srd(20, 18, 1 << 24)
            if p["TPOS"] == 1: touch()
        tq = self.p1_compute(False)
        if p["TOUCH"] and p["TPOS"] == 0: touch()
        while n < p["D_B0"]: issue(n); n += 1
        e.wait_vm(tq)
        self.p1_gemv(19, 140, L_PRB)
        e("v_mov_b32 v12, 1\ns_mov_b64 exec, 1")
        e.ds(f"ds_add_u32 v13, v12 offset:{LB_FLAG+12}")
        self.exec_full()
        assert p["NDUTY"] <= p["N1"]
        if p["NDUTY"]:
            if p["DEEPW"] < 0: e("s_cmp_lt_u32 s64, 16\ns_cselect_b64 vcc, -1, 0")
            else: e(f"s_cmp_ge_u32 s{sW}, {7-p['DEEPW']}\ns_cselect_b64 vcc, -1, 0")
        while n < p["N1"]: issue(n); n += 1
        ch += self.b_chunks(NT_, KR, None, True)
        done = 0
        landed = -1
        while n < 48:
            if n == max(p["WARMO"], p["N1"]):
                assert n >= 24
                self.bo_warm() if p["WARMB"] else self.bo_addr()
            issue(n)
            if n == p["NWO"]:
                assert not ch
                self.b_woloads()
            landed = max(landed, n - Df(n))
            k = 0
            while ch and k < p["CPS"] and 4 * ch[0][0] + 3 <= landed:
                ch.pop(0)[1](); k += 1
            k = 0
            while not ch and done < min(landed - 24 + 1, 24) and k < p["PVK"]:
                self.b_pv_prep(KR, done); self.b_pv_mma(VR, done); done += 1; k += 1
            n += 1
        assert not ch
        assert done <= p["WOK"]
        self.b_tail_addrs()
        while done < 24:
            self.b_pv_prep(KR, done)
            e.wait_vm(tok[24 + done])
            if done == p["WOK"] and not p["NWO"]:
                L = self.lab("wol")
                e(f"s_cmp_lt_u32 s{sW}, {p['WOLATE']}\ns_cbranch_scc0 {L}")
                v = e.vm
                self.b_woloads()
                e.vm = v
                e.label(L)
            self.b_pv_mma(VR, done); done += 1
        self.stamp(7)
        self.b_owrite()

    def b_tail(self):
        e = self.e
        e.label("L_btail")
        e("s_barrier")
        self.stamp(10)
        e(f"s_cmp_lt_u32 s{sW}, 2\ns_cbranch_scc0 L_bt_nored")
        e(f"s_lshl_b32 s3, s{sW}, 10\nv_add_u32 v11, s3, v10")
        e(f"v_lshlrev_b32 v13, 5, v{vG}")
        e("v_mov_b32 v12, 0")
        e.ds(f"ds_read_b32 v62, v12 offset:{LB_FLAG+24}")
        e.ds(f"ds_read_b128 v[44:47], v13 offset:{LB_G}")
        e.ds(f"ds_read_b128 v[48:51], v13 offset:{LB_G+16}")
        tk = [e.ds(f"ds_read_b128 {vr(128+4*w)}, v11 offset:{LB_R4+2048*w}") for w in range(8)]
        e(f"s_mul_i32 s15, s{sX}, {4*24*512}\ns_lshl_b32 s3, s64, 9\ns_add_u32 s15, s15, s3\ns_lshl_b32 s3, s{sW}, 8\ns_add_u32 s15, s15, s3\ns_add_u32 s15, s15, {WS_BO}")
        e(f"v_mul_u32_u24 v14, {24*512}, v{vG}\nv_lshl_add_u32 v14, v{vC}, 4, v14\nv_mov_b32 v53, {sTX}\nv_mov_b32 v55, {sTX}")
        for w in range(8):
            e.wait_lg(tk[w])
            g = 44 + (w & ~1)
            sel = f"op_sel:[0,{w&1},0] op_sel_hi:[1,{w&1},1]"
            for k in (0, 2):
                if w == 0: e(f"v_pk_mul_f32 v[{128+k}:{129+k}], v[{128+k}:{129+k}], v[{g}:{g+1}] op_sel:[0,0] op_sel_hi:[1,0]")
                else: e(f"v_pk_fma_f32 v[{128+k}:{129+k}], v[{128+4*w+k}:{129+4*w+k}], v[{g}:{g+1}], v[{128+k}:{129+k}] {sel}")
        e("v_cvt_pk_bf16_f32 v52, v128, v129\nv_cvt_pk_bf16_f32 v54, v130, v131")
        e.vmem(f"buffer_store_dwordx4 v[52:55], v14, {WS}, s15 offen")
        e(f"v_readfirstlane_b32 s3, v62\ns_cmp_eq_u32 s3, 0\ns_cbranch_scc1 L_bt_nored\ns_add_u32 s15, s15, {SLOW}\nv_mov_b32 v53, s{sT}\nv_mov_b32 v55, s{sT}")
        e(f"buffer_store_dwordx4 v[52:55], v14, {WS}, s15 offen sc1")
        e.label("L_bt_nored")
        self.stamp(8)
        e("s_cmp_lt_u32 s64, 16\ns_cbranch_scc1 L_bt_duty")
        self.exit()
        e.label("L_bt_duty")
        if self.p["NWO"] and self.p["B4B"]: e("s_barrier")
        if self.p["WOLATE"] < 7 and not self.p["NWO"]:
            L = self.lab("wol")
            e(f"s_barrier\ns_sub_u32 s3, s{sW}, {self.p['WOLATE']}\ns_cmp_lt_u32 s3, {7-self.p['WOLATE']}\ns_cbranch_scc0 {L}")
            self.b_woloads()
            e.label(L)
        def g():
            e.vmem(f"buffer_load_dwordx4 v[128:131], v6, {WS}, s68 offen sc1")
            e.vmem(f"buffer_load_dwordx4 v[132:135], v9, {WS}, s68 offen sc1")
        def addrs():
            e.ds(f"ds_read_b32 v60, v63 offset:{LB_F}")
            e.ds(f"ds_read_b32 v61, v63 offset:{LB_F+64}")
            e("s_waitcnt lgkmcnt(0)")
        self.poll(g, [129, 131, 133, 135], 62, "gbo", fast="s68", shadow=addrs)
        self.stamp(11); self.cnt(12)
        for k, (src, f) in enumerate(((128, 60), (132, 61))):
            e(f"v_lshlrev_b32 v136, 16, v{src}\nv_and_b32 v137, 0xffff0000, v{src}\nv_lshlrev_b32 v138, 16, v{src+2}\nv_and_b32 v139, 0xffff0000, v{src+2}")
            for i in range(4):
                e(f"v_mul_f32 v{140+i}, v{f}, v{136+i}" if k == 0 else f"v_fmac_f32 v{140+i}, v{f}, v{136+i}")
        e("v_permlane32_swap_b32 v140, v142\nv_permlane32_swap_b32 v141, v143\nv_add_f32 v140, v140, v142\nv_add_f32 v141, v141, v143")
        e("v_permlane16_swap_b32 v140, v141\nv_add_f32 v140, v140, v141")
        self.rowred([140], "v_add_f32", (8, 4))
        e("v_cvt_pk_bf16_f32 v140, v140, v140")
        for i in range(4):
            for q in range(4): e(f"v_and_b32_dpp v{148+4*i+q}, v140, v{20+q} quad_perm:[{i},{i},{i},{i}] row_mask:0xf bank_mask:0xf")
            if i: e(f"v_mfma_f32_16x16x32_bf16 v[24:27], {vr(144+4*i)}, {vr(self.WO[i-1])}, {'0' if i == 1 else 'v[24:27]'}")
        e(f"v_mfma_f32_16x16x32_bf16 v[24:27], {vr(160)}, {vr(self.WO[3])}, v[24:27]")
        e.ds(f"ds_write_b128 v16, v[24:27] offset:{LB_R5}")
        e("s_waitcnt lgkmcnt(0)")
        self.stamp(13)
        e("s_barrier")
        self.stamp(14)
        e(f"s_cmp_eq_u32 s{sW}, 0\ns_cbranch_scc1 L_bt_fin")
        self.exit()
        e.label("L_bt_fin")
        tk = [e.ds(f"ds_read_b128 {vr(128+4*w)}, v17 offset:{LB_R5+1024*w}") for w in range(4)]
        for w in range(1, 4):
            e.wait_lg(tk[w])
            e(f"v_pk_add_f32 v[128:129], v[128:129], v[{128+4*w}:{129+4*w}]\nv_pk_add_f32 v[130:131], v[130:131], v[{130+4*w}:{131+4*w}]")
        e("v_permlane32_swap_b32 v128, v130\nv_permlane32_swap_b32 v129, v131")
        e("v_add_f32 v56, v128, v130\nv_add_f32 v58, v129, v131")
        e.vmem(f"buffer_store_dwordx4 v[56:59], v18, {WS}, s16 offen sc1")
        self.stamp(9)
        def fin(R):
            self.stamp(15); self.cnt(16)
            self.rowred([R, R + 2], "v_add_f32", (8, 4, 2))
            self.allred_G([R, R + 2], [144, 145], "v_add_f32")
            e(f"v_cvt_pk_bf16_f32 v146, v{R}, v{R+2}")
            self.exec_mask(3, 0)
            e("buffer_store_dword v146, v15, s[48:51], s14 offen")
            if self.p["TIMING"]: self.exec_full(); e("s_waitcnt vmcnt(0)")
            self.exit()
        ld = lambda r: e(f"buffer_load_dwordx4 {vr(r)}, v19, {WS}, s17 offen sc1")
        if self.p["DPOLL"]: self.poll2(ld, 1, 128, 136, 62, "gob", fin)
        else:
            self.poll(lambda: ld(128), [129, 131], 62, "gob")
            fin(128)

    def a_setup(self):
        e = self.e
        e(f"s_lshl_b32 s64, s{sX}, 3\ns_add_u32 s64, s64, s{sSLOT}\ns_lshr_b32 s65, s64, 1\ns_and_b32 s66, s64, 1")
        e(f"s_lshl_b32 s14, s64, 13\ns_lshl_b32 s3, s{sW}, 10\ns_add_u32 s14, s14, s3\ns_mov_b32 s61, 0x80000")
        e(f"s_lshl_b32 s15, s{sW}, 13\ns_add_u32 s15, s15, {WS_QABS}")
        e(f"s_lshl_b32 s67, s{sW}, 14")
        e(f"v_and_b32 v11, 3, v{vC}\nv_lshlrev_b32 v11, 2, v11")
        e(f"v_lshrrev_b32 v12, 2, v{vC}\nv_and_b32 v13, 1, v12\nv_or_b32 v11, v11, v13")
        e(f"v_xor_b32 v12, v12, v{vC}\nv_and_b32 v12, 2, v12\nv_or_b32 v11, v11, v12")
        e(f"v_lshlrev_b32 v11, 4, v11\nv_lshl_add_u32 v11, v{vG}, 8, v11\nv_lshl_add_u32 v11, v{vC}, 10, v11")
        e(f"v_add_u32 v6, s67, v11\nv_add_u32 v7, {LA_Q}, v11")
        e(f"v_add_u32 v9, s67, v10")
        e("s_waitcnt lgkmcnt(0)")
        if self.p["WSOFF"]: e(f"s_add_u32 s42, s42, {self.p['WSOFF'] << 20}\ns_addc_u32 s43, s43, 0")
        e(f"s_load_dword s{sT}, s[42:43], 0")
        self.srd(48, 18, 1 << 24)
    def a_issue(self, depthf, p1at=None):
        e, p = self.e, self.p
        T1, T0, QG = 64, 128, 192
        seq = [("t1", i) for i in range(16)] + [("t0", i) for i in range(16)]
        q = p["QPOS"]
        seq = seq[:q] + [("q", i) for i in range(8)] + seq[q:]
        tok, done = [], 0
        tokof = {}
        def landed_action(it):
            kind, i = it
            if p["ANODS"]: return
            if kind == "t1":
                e(f"v_xor_b32 v12, {16*fswz(i)}, v9")
                e.ds(f"ds_write_b128 v12, {vr(T1+4*i)} offset:{1024*i}")
                if i == 15:
                    e("s_waitcnt lgkmcnt(0)")
                    for ks in range(16):
                        e(f"v_xor_b32 v12, {16*ks}, v6")
                        e.ds(f"ds_read_b128 {vr(T1+4*ks)}, v12")
            elif kind == "t0":
                e(f"v_xor_b32 v12, {16*fswz(i)}, v9")
                e.ds(f"ds_write_b128 v12, {vr(T0+4*i)} offset:{1024*i}")
        def qload(i):
            if i % 4 == 0: e(f"s_add_u32 s12, s15, {1024*i}")
            return e.vmem(f"buffer_load_dwordx4 {vr(QG+4*i)}, v10, {WS}, s12 offen offset:{1024*(i&3)} sc1")
        for n, it in enumerate(seq):
            if n == p1at: e.label('L_arest'); self.selectors(); self.a_addrs(); self.tagmake(); self.stamp(1)
            if p["CPA"] and n == p["CPA"]:
                L = self.lab("cpa")
                e(f"s_cmp_lt_u32 s{sW}, 2\ns_cbranch_scc0 {L}")
                v = e.vm
                self.code_pf("L_acomp", "L_codeend", "L_pca", "v0")
                e.vm = v
                e.label(L)
            D = depthf(n)
            if n >= D:
                e.wait_vm(tok[n - D])
            self.prog(n, 4)
            kind, i = it
            if kind == "q":
                t = qload(i)
            else:
                t = e.vmem(f"buffer_load_dwordx4 {vr((T1 if kind == 't1' else T0)+4*i)}, v10, s[48:51], s14 offen {p['NT']}")
                if not (kind == "t0" and i == 15): e("s_add_u32 s14, s14, s61")
            tok.append(t); tokof[it] = t
            while done <= n - D and done < len(seq) and n >= D:
                landed_action(seq[done]); done += 1
        e.wait_vm(tokof[("q", 7)])
        while done < len(seq) and tok[done] <= tokof[("q", 7)]:
            landed_action(seq[done]); done += 1
        self.stamp(2)
        tags = [QG + 4 * i + k for i in range(8) for k in (1, 3)]
        self.tagcheck(tags, 60)
        R, B = self.lab("aqr"), self.lab("aqb")
        e(f"s_cbranch_vccnz {R}")
        e.label(B)
        def ool():
            e.label(R)
            e("s_mov_b32 s13, 0")
            L = self.lab("aql")
            e.label(L)
            e("s_mov_b32 s4, 0")
            for i in range(8):
                S = self.lab("aqs")
                self.tagcheck([QG + 4 * i + 1, QG + 4 * i + 3], 60)
                e(f"s_cbranch_vccz {S}\ns_add_u32 s12, s15, {1024*i}\ns_mov_b32 s4, 1")
                e(f"buffer_load_dwordx4 {vr(QG+4*i)}, v10, {WS}, s12 offen sc1")
                e.label(S)
            e(f"s_cmp_eq_u32 s4, 0\ns_cbranch_scc1 {B}\ns_add_u32 s13, s13, 1\ns_waitcnt vmcnt(0)\ns_cmp_gt_u32 s13, {p['MAXPOLL']}\ns_cbranch_scc0 {L}\ns_branch {B}")
        self.ool.append(ool)
        self.stamp(3)
        for i in range(8):
            e(f"v_mov_b32 v{QG+4*i+1}, v{QG+4*i+2}")
            if i % 2 == 0: e(f"v_xor_b32 v12, {16*fswz(i>>1)}, v4")
            e.ds(f"ds_write_b64 v12, v[{QG+4*i}:{QG+4*i+1}] offset:{1024*(i>>1)+512*(i&1)}")
        if p["QKE"]:
            FR = (224, 236, 44)
            e("s_waitcnt lgkmcnt(0)\ns_barrier")
            self.stamp(4)
            if p["AKILL"] == 1: self.exit()
            def rd(ks):
                f = FR[ks % 3]
                e(f"v_xor_b32 v13, {16*ks}, v7")
                e.ds(f"ds_read_b128 {vr(f)}, v13")
                return e.ds(f"ds_read_b128 {vr(f+4)}, v13 offset:16384")
            tk = {0: rd(0), 1: rd(1)}
            left = len(seq) - done
            for ks in range(16):
                f = FR[ks % 3]
                e.wait_lg(tk[ks])
                c = lambda r: "0" if ks == 0 else vr(r)
                e(f"v_mfma_f32_16x16x32_bf16 {vr(24)}, {vr(T1+4*ks)}, {vr(f)}, {c(24)}")
                if ks + 2 < 16: tk[ks + 2] = rd(ks + 2)
                e(f"v_mfma_f32_16x16x32_bf16 {vr(28)}, {vr(T1+4*ks)}, {vr(f+4)}, {c(28)}")
                if left and done < len(seq) and (ks + 1) * left >= (done - (len(seq) - left) + 1) * 16:
                    e.wait_vm(tok[done]); landed_action(seq[done]); done += 1
        while done < len(seq):
            e.wait_vm(tok[done]); landed_action(seq[done]); done += 1
        e("s_waitcnt lgkmcnt(0)")

    def a_addrs(self):
        e = self.e
        e(f"v_lshlrev_b32 v250, 5, v{vC}\ns_lshl_b32 s3, s{sW}, 2\nv_add_u32 v250, {LA_MX}, v250\nv_add_u32 v251, s3, v250")
        e(f"v_lshrrev_b32 v252, 1, v{vG}\ns_lshl_b32 s3, s{sW}, 1\nv_add_u32 v252, s3, v252\nv_xor_b32 v252, v252, v{vC}\nv_lshlrev_b32 v252, 4, v252\nv_lshl_add_u32 v252, v{vC}, 9, v252")
        e(f"v_and_b32 v56, 1, v{vG}\nv_lshl_add_u32 v252, v56, 3, v252\nv_add_u32 v252, {LA_P}, v252")
        e(f"v_and_b32 v14, 31, v{vL}\nv_lshrrev_b32 v15, 5, v{vL}")
        e(f"v_xor_b32 v253, v15, v{vC}\nv_lshlrev_b32 v253, 4, v253\nv_lshl_add_u32 v253, v14, 9, v253\nv_add_u32 v253, {LA_P}, v253")
        e(f"v_bfe_u32 v57, v{vL}, 2, 2\nv_lshlrev_b32 v58, 2, v57\nv_lshrrev_b32 v59, 1, v57\nv_xor_b32 v59, v59, v15\nv_lshl_add_u32 v58, v59, 1, v58")
        e(f"v_bfe_u32 v59, v{vL}, 1, 1\nv_lshl_add_u32 v59, v56, 1, v59\ns_and_b32 s3, s{sW}, 1\ns_lshl_b32 s3, s3, 3\nv_add_u32 v59, s3, v59\nv_xor_b32 v58, v58, v59")
        e(f"v_lshlrev_b32 v58, 4, v58\nv_and_b32 v59, 1, v{vL}\nv_lshl_add_u32 v58, v59, 3, v58\nv_lshl_add_u32 v58, v57, 10, v58\nv_lshl_add_u32 v58, v15, 13, v58")
        e(f"s_lshr_b32 s3, s{sW}, 1\ns_lshl_b32 s3, s3, 8\nv_add_u32 v32, s3, v58")
        e("v_xor_b32 v33, 16, v32\nv_add_u32 v33, 0x1000, v33\nv_xor_b32 v34, 64, v32\nv_xor_b32 v35, 64, v33")
        e(f"v_and_b32 v254, 7, v14\nv_lshlrev_b32 v254, 4, v254\nv_lshl_add_u32 v254, v14, 10, v254\nv_lshl_add_u32 v254, v15, 3, v254\ns_lshl_b32 s3, s{sW}, 7\nv_add_u32 v254, s3, v254")
        e(f"s_lshl_b32 s3, s{sW}, 13\nv_add_u32 v255, s3, v10")
        e(f"v_lshlrev_b32 v4, 3, v{vL}\ns_lshl_b32 s3, s{sW}, 12\ns_add_u32 s3, s3, {LA_Q}\nv_add_u32 v4, s3, v4\ns_and_b32 s3, s{sW}, 3\ns_lshl_b32 s3, s3, 4\nv_xor_b32 v4, s3, v4")
        e(f"s_lshl_b32 s16, s{sW}, 19\ns_lshl_b32 s3, s64, 10\ns_add_u32 s16, s16, s3\ns_add_u32 s16, s16, {WS_AO}\ns_mov_b32 s17, 0x10000")
        self.a_wsetup()
    def a_wsetup(self):
        e, nt = self.e, self.p["NT"]
        UV, WO = 160, 192
        self.srd(52, 24, 1 << 22); self.srd(56, 26, 1 << 22)
        e(f"s_lshl_b32 s68, s{sW}, 19\ns_lshl_b32 s3, s65, 8\ns_add_u32 s68, s68, s3\ns_lshl_b32 s3, s66, 7\ns_add_u32 s68, s68, s3")
        e(f"v_bfe_u32 v248, v{vL}, 3, 1\nv_lshlrev_b32 v248, 16, v248\nv_lshl_add_u32 v248, v{vG}, 17, v248\nv_lshl_add_u32 v248, v8, 4, v248")
        e(f"s_lshl_b32 s69, s64, 16\ns_lshr_b32 s3, s{sW}, 2\ns_lshl_b32 s3, s3, 15\ns_add_u32 s69, s69, s3\ns_and_b32 s3, s{sW}, 3\ns_lshl_b32 s3, s3, 8\ns_add_u32 s69, s69, s3")
        e(f"v_lshlrev_b32 v249, 13, v{vG}\nv_lshl_add_u32 v249, v{vC}, 4, v249")
        self.wq = []
        for i in range(8):
            self.wq.append((f"buffer_load_dwordx4 {vr(UV+4*i)}, v248, s[52:55], s68 offen {nt}", "s_addk_i32 s68, 0x2000" if i < 7 else ""))
        for i in range(8):
            self.wq.append((f"buffer_load_dwordx4 {vr(WO+4*i)}, v249, s[56:59], s69 offen offset:{1024*(i&3)} {nt}", "s_addk_i32 s69, 0x1000" if i == 3 else ""))
    def hook(self, k):
        if self.p["TKM"] >> k & 1: self.wtick()
    def wtick(self, n=1, late=False):
        for _ in range(n):
            if self.wq and (late or len(self.wq) > 16 - self.p["NWE"]):
                a, b = self.wq.pop(0)
                self.e.vmem(a); self.e(b)

    def a_tail_addrs(self):
        e = self.e
        e(f"v_and_b32 v20, 1, v{vG}\nv_lshlrev_b32 v252, 5, v20\nv_lshl_add_u32 v252, v{vC}, 6, v252\nv_lshl_add_u32 v252, v15, 4, v252")
        e(f"s_and_b32 s3, s{sW}, 3\ns_lshl_b32 s14, s3, 8\nv_lshrrev_b32 v22, 2, v252\nv_add_u32 v22, s14, v22")
        e(f"s_lshl_b32 s12, s65, 16\ns_add_u32 s12, s12, s14\ns_add_u32 s12, s12, {WS_AO}")
        e(f"v_lshlrev_b32 v15, 10, v{vG}\nv_lshl_add_u32 v15, v{vC}, 4, v15")
        e(f"v_bfe_u32 v16, v{vL}, 3, 1\nv_lshlrev_b32 v17, 7, v16\nv_lshl_add_u32 v17, v{vG}, 5, v17\nv_add_u32 v17, s14, v17")
        e(f"s_lshl_b32 s3, s{sW}, 10\nv_add_u32 v18, s3, v10")
        e(f"v_and_b32 v19, 3, v{vL}\nv_lshlrev_b32 v19, 4, v19\nv_lshrrev_b32 v23, 2, v{vL}\nv_add_u32 v19, v19, v23\nv_lshlrev_b32 v19, 1, v19\nv_add_u32 v19, s14, v19")
        e(f"v_lshlrev_b32 v20, 4, v16\nv_lshl_add_u32 v20, v{vG}, 5, v20\ns_lshl_b32 s3, s{sW}, 7\nv_add_u32 v20, s3, v20")
        e(f"v_lshlrev_b32 v23, 8, v16\nv_lshl_add_u32 v23, v8, 4, v23\nv_lshl_add_u32 v23, v{vG}, 11, v23")
        e(f"v_lshlrev_b32 v250, 3, v16\nv_lshl_add_u32 v250, v8, 4, v250\nv_lshl_add_u32 v250, v{vG}, 1, v250\nv_add_u32 v250, s3, v250")
        e(f"s_lshr_b32 s14, s{sW}, 2\ns_lshl_b32 s14, s14, 6\ns_add_u32 s3, s3, s14\nv_lshlrev_b32 v251, 4, v{vG}\nv_add_u32 v251, s3, v251")
        sh = self.p["AMS"]
        e(f"v_lshlrev_b32 v14, {sh}, v{vL}")
        e(f"s_lshl_b32 s15, s65, {6+sh}\ns_add_u32 s15, s15, {WS_AML if sh == 4 else WS_AML2}\ns_mov_b32 s18, 0x11111111\ns_mov_b32 s19, 0x11111111\ns_mov_b32 s13, 0")
        e(f"s_lshl_b32 s61, s64, 12\ns_lshl_b32 s3, s{sW}, 10\ns_add_u32 s61, s61, s3\ns_add_u32 s61, s61, {WS_OUTA}")

    def a_main(self):
        e, p = self.e, self.p
        T1 = 64
        FR = (224, 236, 44)
        qke = p["QKE"]
        e.label("L_acomp")
        if not qke:
            e("s_barrier")
            self.stamp(4); self.cyc(23)
            if p["AKILL"] == 1: self.exit()
        else: self.stamp(17)
        def rd(ks):
            f = FR[ks % 3]
            e(f"v_xor_b32 v12, {16*ks}, v6\nv_xor_b32 v13, {16*ks}, v7")
            e.ds(f"ds_read_b128 {vr(f)}, v13")
            e.ds(f"ds_read_b128 {vr(f+4)}, v13 offset:16384")
            return e.ds(f"ds_read_b128 {vr(f+8)}, v12")
        tk = {0: rd(0), 1: rd(1)}
        for ks in range(16):
            f = FR[ks % 3]
            e.wait_lg(tk[ks])
            c = lambda r: "0" if ks == 0 else vr(r)
            if not qke:
                e(f"v_mfma_f32_16x16x32_bf16 {vr(24)}, {vr(T1+4*ks)}, {vr(f)}, {c(24)}")
                e(f"v_mfma_f32_16x16x32_bf16 {vr(28)}, {vr(T1+4*ks)}, {vr(f+4)}, {c(28)}")
            else: e(f"v_mfma_f32_16x16x32_bf16 {vr(16)}, {vr(f+8)}, {vr(f)}, {c(16)}")
            if ks + 2 < 16: tk[ks + 2] = rd(ks + 2)
            if ks % p['TQ'] == 0: self.wtick()
            if not qke: e(f"v_mfma_f32_16x16x32_bf16 {vr(16)}, {vr(f+8)}, {vr(f)}, {c(16)}")
            e(f"v_mfma_f32_16x16x32_bf16 {vr(20)}, {vr(f+8)}, {vr(f+4)}, {c(20)}")
        self.hook(0)
        for hh in range(2):
            a, b = 16 + 4 * hh, 24 + 4 * hh
            e(f"v_max3_f32 v{56+hh}, v{a}, v{a+1}, v{a+2}\nv_max3_f32 v{56+hh}, v{56+hh}, v{a+3}, v{b}\nv_max3_f32 v{56+hh}, v{56+hh}, v{b+1}, v{b+2}\nv_max_f32 v{56+hh}, v{56+hh}, v{b+3}")
        self.allred_G([56, 57], [58, 59], "v_max_f32")
        e("s_barrier")
        self.stamp(10)
        self.exec_mask(0xffff, 0)
        e.ds("ds_write_b32 v251, v56")
        e.ds("ds_write_b32 v251, v57 offset:512")
        self.exec_full()
        e("s_waitcnt lgkmcnt(0)\ns_barrier")
        for hh in range(2):
            e.ds(f"ds_read_b128 {vr(224+8*hh)}, v250 offset:{512*hh}")
            e.ds(f"ds_read_b128 {vr(228+8*hh)}, v250 offset:{512*hh+16}")
        e("s_waitcnt lgkmcnt(0)")
        for hh in range(2):
            m = 224 + 8 * hh
            e(f"v_max3_f32 v{56+hh}, v{m}, v{m+1}, v{m+2}\nv_max3_f32 v{56+hh}, v{56+hh}, v{m+3}, v{m+4}\nv_max3_f32 v{56+hh}, v{56+hh}, v{m+5}, v{m+6}\nv_max_f32 v{56+hh}, v{56+hh}, v{m+7}")
            e(f"v_mul_f32 v{56+hh}, {sCS}, v{56+hh}")
        for T in range(2):
            for hh in range(2):
                for r in range(4):
                    s = 16 + 8 * T + 4 * hh + r
                    e(f"v_fma_f32 v{s}, v{s}, {sCS}, -v{56+hh}")
        self.hook(1)
        for s in range(16, 32): e(f"v_exp_f32 v{s}, v{s}")
        for T in range(2):
            for hh in range(2):
                s, d = 16 + 8 * T + 4 * hh, 56 + 4 * T + 2 * hh
                e(f"v_cvt_pk_bf16_f32 v{d}, v{s}, v{s+1}\nv_cvt_pk_bf16_f32 v{d+1}, v{s+2}, v{s+3}")
                e.ds(f"ds_write_b64 v252, v[{d}:{d+1}] offset:{256*T+8192*hh}")
        HI = (4, 5, 11, 13)
        for k in range(4): e(f"v_add_u32 v{HI[k]}, 0x10000, v{32+k}")
        e("s_waitcnt lgkmcnt(0)\ns_barrier")
        self.stamp(5)
        ACC = (128, 144)
        fill = Emit()
        sv, self.e = self.e, fill
        for hh in range(2):
            a, b = 16 + 4 * hh, 24 + 4 * hh
            for s in (a + 1, a + 2, a + 3, b, b + 1, b + 2, b + 3): fill(f"v_add_f32 v{a}, v{a}, v{s}")
        self.allred_G([16, 20], [17, 21], "v_add_f32")
        lsum = list(fill.L); fill.L = []
        fill(f"v_lshlrev_b32 v21, 5, v8\ns_lshl_b32 s3, s{sW}, 8\ns_add_u32 s3, s3, {LA_MX}\nv_add_u32 v21, s3, v21")
        if p["INB"]:
            fill(f"s_and_b32 s22, s{sT}, 0xeeeeeeee\ns_and_b32 s3, s{sT}, 1\ns_mul_i32 s3, s3, 0x1111\ns_or_b32 s22, s22, s3")
            fill(f"s_bfe_u32 s3, s{sT}, 0x10001\ns_mul_i32 s3, s3, 0x11110000\ns_or_b32 s22, s22, s3\ns_mov_b32 s23, 0x00010001")
            fill("v_lshlrev_b32 v63, 1, v15\nv_lshrrev_b32 v63, v63, s22")
            for q in range(4):
                for k in range(2):
                    if (q, k) != (3, 1): fill(f"v_lshrrev_b32 v{56+2*q+k}, {4*q+k}, v63")
            fill("v_lshrrev_b32 v63, 13, v63")
        self.a_tail_addrs()
        taddr = list(fill.L)
        self.e = sv
        def rdp(R, n):
            f = FR[n % 3]
            e(f"v_xor_b32 v12, {32*n}, v253")
            e.ds(f"ds_read_b128 {vr(f)}, v12 offset:{256*R}")
            for t in range(2):
                for nn in range(2):
                    a = 32 + 2 * t + nn if n < 4 else HI[2 * t + nn]
                    tkk = e.ds(f"ds_read_b64_tr_b16 v[{f+4+4*t+2*nn}:{f+5+4*t+2*nn}], v{a} offset:{16384*(n&3)}")
            return tkk
        def half(R, h, tk, write, filler, carry):
            n0 = 4 * h
            for n in range(n0, n0 + 2):
                if n not in tk: tk[n] = rdp(R, n)
            per = -(-len(filler) // 8)
            for n in range(n0, n0 + 4):
                f = FR[n % 3]
                e.wait_lg(tk[n])
                first = (R == 0 and n == 0)
                e(f"v_mfma_f32_32x32x16_bf16 {vr(ACC[0],16)}, {vr(f+4)}, {vr(f)}, {'0' if first else vr(ACC[0],16)}")
                if n + 2 < n0 + 4 or carry: tk[n + 2] = rdp(R, n + 2)
                if n == n0 + 1: self.hook(2 + 2 * (2 * R + h))
                for _ in range(per):
                    if filler: e(filler.pop(0))
                e(f"v_mfma_f32_32x32x16_bf16 {vr(ACC[1],16)}, {vr(f+8)}, {vr(f)}, {'0' if first else vr(ACC[1],16)}")
                if write:
                    for ks in range(4 * (n - n0), 4 * (n - n0) + 4):
                        e(f"v_xor_b32 v12, {16*ks}, v6")
                        e.ds(f"ds_write_b128 v12, {vr(T1+4*ks)}")
                for _ in range(per):
                    if filler: e(filler.pop(0))
        tk = {}
        half(0, 0, tk, False, lsum, True)
        self.exec_mask(0xffff, 0)
        e(f"ds_write_b32 v251, v16 offset:{LA_LS-LA_MX}\nds_write_b32 v251, v20 offset:{LA_LS-LA_MX+512}")
        e.lg += 2
        self.exec_full()
        self.hook(3)
        e("s_barrier")
        self.stamp(11)
        for R, h in ((0, 1), (1, 0)):
            LW, LJ = self.lab("pvw"), self.lab("pvj")
            e(f"s_cmp_lt_u32 s{sW}, 4\ns_cbranch_scc{1 if R == 0 else 0} {LW}")
            lg0, vm0, wq0 = e.lg, e.vm, list(self.wq)
            half(R, h, dict(tk) if R == 0 else {}, False, [], False)
            e(f"s_branch {LJ}")
            e.label(LW)
            e.lg, e.vm, self.wq = lg0, vm0, wq0
            half(R, h, dict(tk) if R == 0 else {}, True, [], False)
            e("s_waitcnt lgkmcnt(0)")
            e.label(LJ)
            self.hook(5 if R == 0 else 7)
            e("s_barrier")
            self.stamp(12 if R == 0 else 25)
        half(1, 1, {}, False, taddr, False)
        e("s_barrier")
        self.stamp(13)
        self.wtick(16)
        e(f"s_cmp_lt_u32 s{sW}, 4\ns_cbranch_scc1 L_ast")
        e(f"buffer_load_dwordx4 v[224:227], v14, {WS}, s15 offen sc1")
        e.label("L_ast")
        for t in range(2):
            for q in range(4):
                a = ACC[t] + 4 * q
                e(f"v_cvt_pk_bf16_f32 v{a}, v{a}, v{a+1}\nv_cvt_pk_bf16_f32 v{a+1}, v{a+2}, v{a+3}\nv_xor_b32 v12, {16*(4*t+q)}, v254")
                if p["INB"]: e(f"v_bfi_b32 v{a}, s23, v{56+2*q}, v{a}\nv_bfi_b32 v{a+1}, s23, v{57+2*q}, v{a+1}")
                e.ds(f"ds_write_b64 v12, v[{a}:{a+1}]")
        e("s_waitcnt lgkmcnt(0)\ns_barrier")
        self.stamp(14); self.cyc(24)
        if p["AKILL"] == 8: self.exit()
        e(f"v_mov_b32 v53, s{sT}\nv_mov_b32 v55, s{sT}\ns_cbranch_scc0 L_agl2")
        tk = []
        for i in range(8):
            e(f"v_xor_b32 v12, {16*i}, v255")
            tk.append(e.ds(f"ds_read_b128 {vr(64+4*i)}, v12 offset:{1024*i}"))
        for k in range(2):
            e.ds(f"ds_read_b128 {vr(96+8*k)}, v21 offset:{1024*k}")
            e.ds(f"ds_read_b128 {vr(100+8*k)}, v21 offset:{1024*k+16}")
        for i in range(8):
            e.wait_lg(tk[i])
            e.vmem(f"buffer_store_dwordx4 {vr(64+4*i)}, v10, {WS}, s16 offen" + ("" if p["AOP"] else " sc1"))
            if i < 7: e("s_add_u32 s16, s16, s17")
        sh = p["AMS"]
        e(f"v_lshlrev_b32 v13, {6+sh}, v8\ns_lshl_b32 s16, s64, {sh}\ns_lshl_b32 s3, s{sW}, {9+sh}\ns_add_u32 s16, s16, s3\ns_add_u32 s16, s16, {WS_AML if sh == 4 else WS_AML2}")
        e("s_waitcnt lgkmcnt(0)")
        e("v_max3_f32 v52, v96, v97, v98\nv_max3_f32 v52, v52, v99, v100\nv_max3_f32 v52, v52, v101, v102\nv_max_f32 v52, v52, v103")
        e(f"v_mul_f32 v52, {sCS}, v52\nv_add_f32 v54, v104, v105")
        for r in range(106, 112): e(f"v_add_f32 v54, v54, v{r}")
        e("s_mov_b64 exec, 0xff" + ("" if p["INB"] else "\ns_waitcnt vmcnt(0)"))
        e(f"buffer_store_dwordx4 v[52:55], v13, {WS}, s16 offen sc1")
        self.exec_full()
        self.stamp(6)
        if p["AKILL"] == 9: self.exit()
        wsave = list(self.wq)
        if p["LPOS"] == 0:
            e("s_barrier")
            self.wtick(16, late=True)
        e("s_branch L_alat")
        e.label("L_agl")
        e(f"buffer_load_dwordx4 v[224:227], v14, {WS}, s15 offen sc1")
        e.label("L_agl2")
        e("s_add_u32 s13, s13, 1\ns_waitcnt vmcnt(0)")
        e(f"v_xor_b32 v60, s{sT}, v225\nv_bitop3_b32 v60, v227, s{sT}, v60 bitop3:0xbe\nv_cmp_eq_u32 vcc, 0, v60")
        e(f"s_cmp_gt_u32 s13, {p['MAXPOLL']}\ns_cselect_b64 vcc, -1, vcc")
        e("s_lshr_b64 s[4:5], vcc, 1\ns_and_b64 s[4:5], s[4:5], vcc\ns_lshr_b64 s[20:21], s[4:5], 2\ns_and_b64 s[4:5], s[4:5], s[20:21]\ns_and_b64 s[4:5], s[4:5], s[18:19]\ns_andn2_b64 s[18:19], s[18:19], s[4:5]")
        for i in range(16):
            L = self.lab("agi")
            e(f"s_bitcmp1_b64 s[4:5], {4*i}\ns_cbranch_scc0 {L}\ns_add_u32 s3, s12, {4096*i}")
            e(f"buffer_load_dwordx4 {vr(64+4*i)}, v15, {WS}, s3 offen sc1")
            e.label(L)
        e("s_cmp_eq_u64 vcc, -1\ns_cbranch_scc0 L_agl")
        self.stamp(7)
        if p["AKILL"] == 9: self.exit()
        if p["LPOS"] == 0: e("s_barrier")
        tg = e.vm
        e(f"s_cmp_eq_u32 s64, 0\ns_cbranch_scc0 L_noep")
        e(f"v_mov_b32 v12, s{sT}\nv_mov_b32 v13, 0")
        self.exec_mask(1, 0)
        e(f"buffer_store_dword v12, v13, {WS}, 0 offen sc1")
        self.exec_full()
        e.label("L_noep")
        e("v_mov_b32 v56, v224")
        self.rowred([56], "v_max_f32", (8, 4, 2, 1))
        self.allred_G([56], [57], "v_max_f32")
        e("v_sub_f32 v224, v224, v56\nv_exp_f32 v224, v224\nv_mul_f32 v226, v226, v224")
        self.rowred([226], "v_add_f32", (8, 4, 2, 1))
        self.allred_G([226], [57], "v_add_f32")
        e("v_rcp_f32 v226, v226\nv_mul_f32 v224, v224, v226\nv_cvt_pk_bf16_f32 v225, v224, v224\nv_and_b32 v226, 0xffff0000, v225\nv_sub_f32 v226, v224, v226\nv_cvt_pk_bf16_f32 v226, v226, v226")
        e.ds(f"ds_write_b16 v19, v225 offset:{LA_F}")
        e.ds(f"ds_write_b16 v19, v226 offset:{LA_F+128}")
        e("s_waitcnt lgkmcnt(0)")
        e.ds(f"ds_read_b128 v[228:231], v17 offset:{LA_F}")
        e.ds(f"ds_read_b128 v[232:235], v17 offset:{LA_F+16}")
        e("s_waitcnt lgkmcnt(0)")
        for i in range(8): self.expand4(128 + 4 * i, 228 + (i >> 1), i & 1)
        if p["INB"]:
            e(f"v_and_b32 v59, 3, v{vL}\nv_lshlrev_b32 v59, 2, v59\nv_lshrrev_b32 v56, v59, s22\nv_lshrrev_b32 v57, 1, v56\nv_lshrrev_b32 v58, 2, v56\nv_lshrrev_b32 v59, 3, v56")
        e.wait_vm(tg)
        if p["INB"]:
            def chk(rows, acc):
                first = True
                for i in rows:
                    for k in range(4):
                        e(f"v_xor_b32 v{acc}, v{56+k}, v{64+4*i+k}" if first else f"v_bitop3_b32 v{acc}, v{64+4*i+k}, v{56+k}, v{acc} bitop3:0xbe")
                        first = False
                e(f"v_and_b32 v{acc}, s23, v{acc}\nv_cmp_ne_u32 vcc, 0, v{acc}")
            chk(range(16), 60)
            e("s_cbranch_vccnz L_aor")
            e.label("L_aob")
            def ool():
                e.label("L_aor")
                e("s_mov_b32 s13, 0")
                e.label("L_aol")
                e("s_mov_b32 s4, 0")
                for i in range(16):
                    S = self.lab("aos")
                    chk([i], 60)
                    e(f"s_cbranch_vccz {S}\ns_add_u32 s3, s12, {4096*i}\ns_mov_b32 s4, 1")
                    e(f"buffer_load_dwordx4 {vr(64+4*i)}, v15, {WS}, s3 offen sc1")
                    e.label(S)
                e(f"s_cmp_eq_u32 s4, 0\ns_cbranch_scc1 L_aob\ns_add_u32 s13, s13, 1\ns_waitcnt vmcnt(0)\ns_cmp_gt_u32 s13, {p['MAXPOLL']}\ns_cbranch_scc0 L_aol\ns_branch L_aob")
            self.ool.append(ool)
        for i in range(16):
            if i < 8: e(f"v_mfma_f32_16x16x32_bf16 v[24:27], {vr(128+4*i)}, {vr(64+4*i)}, {'0' if i == 0 else 'v[24:27]'}")
            else: e(f"v_mfma_f32_16x16x32_bf16 v[24:27], {vr((44,48)[i&1])}, {vr(64+4*i)}, v[24:27]")
            if 6 <= i < 14: self.expand4((44, 48)[i & 1], 228 + ((i + 2) >> 1), i & 1)
        e("v_permlane32_swap_b32 v24, v26\nv_permlane32_swap_b32 v25, v27\nv_add_f32 v24, v24, v26\nv_add_f32 v25, v25, v27\nv_cvt_pk_bf16_f32 v24, v24, v25")
        e.ds(f"ds_write_b32 v22, v24 offset:{LA_LAT}")
        self.wq = wsave
        if p["LPOS"] == 0: self.wtick(16, late=True)
        tkw = e.vm
        e("s_waitcnt lgkmcnt(0)")
        e.label("L_alat")
        e("s_barrier")
        self.stamp(15)
        if p["LPOS"] == 1:
            self.wtick(16, late=True)
            tkw = e.vm
        e.ds(f"ds_read_b128 v[28:31], v20 offset:{LA_LAT}")
        e("s_waitcnt lgkmcnt(0)")
        nlate = 16 - self.p["NWE"]
        wt = lambda k: (tkw - (15 - k)) if (15 - k) < nlate else None
        self.gemv8(24, 28, 160, [wt(k) for k in range(8)])
        e.ds(f"ds_write_b128 v18, v[24:27] offset:{LA_R2}")
        e("s_waitcnt lgkmcnt(0)\ns_barrier")
        self.stamp(16)
        for k in range(4): e.ds(f"ds_read_b128 {vr(64+4*k)}, v23 offset:{LA_R2+1024*(k>>1)+(512+128)*(k&1)}")
        e("s_waitcnt lgkmcnt(0)")
        for k in range(1, 4):
            e(f"v_pk_add_f32 v[64:65], v[64:65], v[{64+4*k}:{65+4*k}]\nv_pk_add_f32 v[66:67], v[66:67], v[{66+4*k}:{67+4*k}]")
        e("v_permlane32_swap_b32 v64, v66\nv_permlane32_swap_b32 v65, v67\nv_add_f32 v64, v64, v66\nv_add_f32 v65, v65, v67")
        e("v_permlane16_swap_b32 v64, v65\nv_add_f32 v64, v64, v65\nv_cvt_pk_bf16_f32 v64, v64, v64")
        e.ds(f"ds_write_b16 v250, v64 offset:{LA_CTX}")
        e("s_waitcnt lgkmcnt(0)")
        e.ds(f"ds_read_b128 v[28:31], v251 offset:{LA_CTX}")
        e("s_waitcnt lgkmcnt(0)")
        self.gemv8(24, 28, 192, [wt(8 + k) for k in range(8)])
        e(f"s_cmp_lt_u32 s{sW}, 4\ns_cbranch_scc1 L_at_o")
        e.ds(f"ds_write_b128 v18, v[24:27] offset:{LA_R1}")
        e("s_waitcnt lgkmcnt(0)\ns_barrier")
        self.exit()
        e.label("L_at_o")
        e("s_barrier")
        e.ds(f"ds_read_b128 v[64:67], v18 offset:{LA_R1+4096}")
        e("s_waitcnt lgkmcnt(0)")
        e("v_pk_add_f32 v[24:25], v[24:25], v[64:65]\nv_pk_add_f32 v[26:27], v[26:27], v[66:67]")
        e(f"v_cndmask_b32 v52, v24, v26, {sHI}\nv_cndmask_b32 v54, v25, v27, {sHI}")
        e(f"buffer_store_dwordx4 v[52:55], v252, {WS}, s61 offen sc1")
        self.stamp(8)
        e(f"s_cmp_eq_u32 s{sW}, 0\ns_cbranch_scc1 L_at_fin")
        self.exit()
        e.label("L_at_fin")
        e(f"s_lshl_b32 s12, s64, 6\ns_add_u32 s12, s12, {WS_OUTA}\nv_lshrrev_b32 v11, 2, v{vL}\nv_lshlrev_b32 v11, 12, v11\nv_and_b32 v12, 3, v{vL}\nv_lshl_add_u32 v11, v12, 4, v11")
        self.srd(48, 38, 2048)
        e(f"s_lshl_b32 s14, s64, 4\nv_lshlrev_b32 v12, 2, v12\ns_mov_b32 s15, 0x10000")
        def g(R):
            e("s_mov_b32 s3, s12")
            for k in range(4):
                e(f"buffer_load_dwordx4 {vr(R+4*k)}, v11, {WS}, s3 offen sc1")
                if k < 3: e("s_add_u32 s3, s3, s15")
        def fin(R):
            for k in range(1, 4): e(f"v_add_f32 v{R}, v{R}, v{R+4*k}\nv_add_f32 v{R+2}, v{R+2}, v{R+4*k+2}")
            self.rowred([R, R + 2], "v_add_f32", (8, 4))
            self.allred_G([R, R + 2], [100, 101], "v_add_f32")
            e(f"v_cvt_pk_bf16_f32 v102, v{R}, v{R+2}")
            self.exec_mask(15, 0)
            e("buffer_store_dword v102, v12, s[48:51], s14 offen")
            if self.p["TIMING"]: self.exec_full(); e("s_waitcnt vmcnt(0)"); self.stamp(9)
            self.exit()
        if self.p["DPOLL"]: self.poll2(g, 4, 64, 80, 60, "goa", fin)
        else:
            self.poll(lambda: g(64), [65, 67, 69, 71, 73, 75, 77, 79], 60, "goa")
            fin(64)

    def build(self):
        e, p = self.e, self.p
        self.prologue()
        vm0 = e.vm
        self.phase1()
        self.b_ctrl()
        e.label("L_notctrl")
        e.vm = vm0
        self.b_stream()
        self.b_tail()
        e.label("L_astream")
        self.role = "A"
        e.vm = 1
        self.a_setup()
        self.a_issue(lambda n: p["D_A1"] if n < p["NA1"] else p["D_A2"], p1at=p["D_A1"])
        self.a_main()
        while self.ool: self.ool.pop(0)()
        if p["TIMING"]:
            e.label("L_exit")
            e("s_mov_b64 exec, -1\ns_memrealtime s[98:99]\ns_getreg_b32 s100, hwreg(HW_REG_XCC_ID)\ns_waitcnt lgkmcnt(0)\nv_mov_b32 v44, 0")
            for i in range(28): e(f"v_writelane_b32 v44, s{70+i}, {i}")
            e("v_writelane_b32 v44, s98, 30\nv_writelane_b32 v44, s100, 31")
            e(f"s_lshl_b32 s3, s2, 3\ns_add_u32 s3, s3, s{sW}\ns_lshl_b32 s3, s3, 7\ns_add_u32 s3, s3, {WS_STAMP}\nv_lshlrev_b32 v45, 2, v{vL}\ns_mov_b32 exec_hi, 0")
            e(f"buffer_store_dword v44, v45, {WS}, s3 offen")
        if p["PAD"]:
            e.label("L_exit")
            if p["PADEV"] == 99:
                e(f"s_cmp_{'lt' if p['PADROLE'] == 'A' else 'ge'}_u32 s{sSLOT}, 8\ns_cbranch_scc0 L_padn\ns_memrealtime s[82:83]\ns_waitcnt lgkmcnt(0)")
                e.label("L_padn")
            e(f"s_cmp_eq_u32 s82, 0\ns_cselect_b32 s80, s80, s82\ns_add_u32 s80, s80, {p['PAD']}")
            e.label("L_padl")
            e("s_sleep 4\ns_memrealtime s[68:69]\ns_waitcnt lgkmcnt(0)\ns_sub_u32 s68, s68, s80\ns_cmp_lt_i32 s68, 0\ns_cbranch_scc1 L_padl")
        e.label("L_end")
        e("s_endpgm")
        e.label("L_codeend")
        if p["NOSLOW"]:
            out, k = [], 0
            for i, l in enumerate(e.L):
                if "store" in l and l.endswith("sc1") and ("s68" in l or ("v11, " in l and "x4" in l) or (p["NOSLOW"] > 1 and "v14, " in l and "x4" in l)): continue
                out.append(l)
            e.L = out
        if p["AINL"]:
            a, b = e.L.index("L_astream:"), e.L.index("L_arest:")
            blk = e.L[a + 1:b]
            del e.L[a:b]
            k = e.L.index("s_cbranch_scc1 L_astream")
            e.L[k:k + 1] = ["s_cbranch_scc0 L_bstart"] + blk + ["s_branch L_arest", "L_bstart:"]
        if p["JIT"]:
            out, k = [], 0
            for l in e.L:
                if l.startswith("s_barrier") or ("store" in l and "v44" not in l) or l.startswith("ds_add") or (l.startswith("ds_write_b32") and "v15," in l):
                    k += 1
                    out += ["s_cselect_b32 s101, 1, 0", "s_memtime s[98:99]", "s_waitcnt lgkmcnt(0)", "s_lshr_b32 s98, s98, 3", f"s_and_b32 s98, s98, {p['JIT']}",
                            f"L_jit{k}:", "s_sleep 8", "s_sub_u32 s98, s98, 1", f"s_cbranch_scc0 L_jit{k}", "s_cmp_eq_u32 s101, 1"]
                out.append(l)
            e.L = out
        gm, sm = p["GM"].replace("_", " "), p["SM"].replace("_", " ")
        e.L = [(l[:-3] + (gm if "load" in l else sm)) if l.endswith(" sc1") else l for l in e.L]
        if p["FSM"]:
            e.L = [l + " " + p["FSM"].replace("_", " ") if ("store" in l and "s[44:47]" in l and not l.endswith("sc1") and "v44" not in l) else l for l in e.L]
        body = pad_hazards(e.L)
        ref = open(f"cdna_kernels/{NAME}.s.ref").read().split("\n")
        head = [l for l in ref if l.startswith(";") and "@launch" not in l]
        out = head + ["; @launch grid=(256,1,1) block=(512,1,1) lds=163840"] + DOC.split("\n") + [
                      '.amdgcn_target "amdgcn-amd-amdhsa--gfx950"', ".text", f".globl {NAME}_kernel", ".p2align 8",
                      f".type {NAME}_kernel,@function", f"{NAME}_kernel:"]
        out += [("" if l.endswith(":") else "    ") + l for l in body]
        out += ['.section .rodata,"a"', ".p2align 6", f".amdhsa_kernel {NAME}_kernel", "  .amdhsa_next_free_vgpr 256",
                "  .amdhsa_next_free_sgpr 102", "  .amdhsa_accum_offset 256", "  .amdhsa_group_segment_fixed_size 0",
                "  .amdhsa_kernarg_size 112", "  .amdhsa_user_sgpr_count 2", "  .amdhsa_user_sgpr_kernarg_segment_ptr 1",
                "  .amdhsa_system_sgpr_workgroup_id_x 1", ".end_amdhsa_kernel", ""]
        return "\n".join(out)

if __name__ == "__main__":
    kw = {}
    for a in sys.argv[2:]:
        k, v = a.split("=")
        kw[k] = (v == "True") if v in ("True", "False") else (int(v) if v.lstrip("-").isdigit() else v)
    open(sys.argv[1], "w").write(K(**kw).build())
```

```python
import sys, struct
from asmlib import Emit, pad_hazards

NAME = "concat_heads__compressed_kv_cla__gqa_block_cached__decode"
DEF = dict(D_B0=3, NB0=20, D_B=5, N1=20, PVK=3, D_A1=4, NA1=6, D_A2=5, QPOS=32, TIMING=False, MAXPOLL=400000,
           NT="nt", PAD=0, PADEV=-1, PADROLE="", NWE=10, LIGHT=False, PROG=False, GDELAY=0, GM="sc1", SM="sc1", SDELAY=0, NFAST=48, CPS=3, D_B2=12, NB2=38, WARMQ=1, WARMO=30, WARMB=0, WOK=23, NDUTY=20, WOLATE=4, NWO=0, B4B=1, ANODS=0, QKE=0, RLATE=1, HROT=2, QBE=1, PVM=0, PRC=1, TKM=250, AOP=0, UK0=24, UKP=0, FSM="", AMS=4, CPA=0, CPB=0, AINL=0, QBW=0, WSOFF=0, INB=0, TQ=4, LPOS=0, CPF=0, JIT=0, CYC=0, TLBP=0, DPOLL=0, PSL=6, ILV1=0, WOSP=1, TOUCH=0, TM="", TPOS=0, TSH=3, NL=0, RK=64, DSLOW=3, NTK=24, LSET=(4, 6, 7, 10), DEEPW=1, DEEPN=1, GSL=0, NU=-1, WQ0=3, PRIO=0, NOSLOW=0, AKILL=0, PTRACE="", WM="nt")

DOC = """;
; Hand-offs go through d_ws as 8-byte {value, tag} pairs (or drained rows behind tagged flags).  The tag is a hash of
; Hand-offs inside an id&7 group use plain stores tagged with the writer's XCC id: a reader accepts them only from its own
;"""

def f32(x): return "0x%08x" % struct.unpack("<I", struct.pack("<f", x))[0]
CS = 1.4426950408889634 * 128 ** -0.5

WS_QP, WS_QABS, WS_QB, WS_BML, WS_AML = 0x10000, 0x90000, 0xA0000, 0xA8000, 0xB0000
WS_BO, WS_OUTB, WS_OUTA, WS_AO, WS_STAMP = 0xC0000, 0x120000, 0x140000, 0x200000, 0x400000
WS_AML2 = 0x180000
WS_SIZE = 0x800000
SLOW = 0x500000
L_PR = 32768
L_PRB = 49152
L_LQ = 40960
LB_Q, LB_MX, LB_LS, LB_F, LB_G, LB_FLAG, LB_R4, LB_R5 = 0, 1024, 1152, 1280, 1408, 1536, 2048, 20480
LA_Q = 131072
LA_P, LA_MX, LA_LS = 131072, 147456, 148480
LA_F, LA_R1, LA_LAT, LA_R2, LA_CTX = 32768, 36864, 49152, 53248, 61440

vL, vC, vG = 1, 2, 3
SELA, SELB = 32, 36
sW, sX, sSLOT, sH1, sJ, sT = 6, 7, 8, 9, 10, 11
WS = "s[44:47]"
sHI = "s[62:63]"
sCS = "s60"
sXC, sTX, sTF, sM, sNC = "s24", "s25", "s26", "s27", "s28"

def fswz(k):
    k0, k1, k2, k3 = k & 1, (k >> 1) & 1, (k >> 2) & 1, (k >> 3) & 1
    return (k1 << 3) | (k0 << 2) | ((k1 ^ k3) << 1) | k2

def vr(a, n=4): return f"v[{a}:{a+n-1}]"

class K:
    def __init__(self, **kw):
        self.p = dict(DEF); self.p.update(kw)
        self.e = Emit()
        self.nlab = 0
        self.role = "B"
        self.ilv = False
        self.ool = []
    def lab(self, s):
        self.nlab += 1
        return f"L_{s}_{self.nlab}"
    def stamp(self, i):
        if self.p["PAD"] and i == self.p["PADEV"] and self.role in self.p["PADROLE"]:
            self.e("s_memrealtime s[82:83]\ns_waitcnt lgkmcnt(0)")
        if self.p["TIMING"] and not self.p["PROG"] and (not self.p["LIGHT"] or i in self.p["LSET"]):
            self.e(f"s_memrealtime s[98:99]\ns_waitcnt lgkmcnt(0)\ns_mov_b32 s{70+i}, s98")
    def cyc(self, i):
        if self.p["TIMING"] and self.p["CYC"]:
            self.e(f"s_memtime s[98:99]\ns_waitcnt lgkmcnt(0)\ns_mov_b32 s{70+i}, s98")
    def prog(self, n, step):
        if self.p["PROG"] and (n + 1) % step == 0 and (n + 1) // step <= 13:
            k = 72 + 2 * ((n + 1) // step - 1)
            self.e(f"s_memrealtime s[{k}:{k+1}]")
    def cnt(self, i):
        if self.p["TIMING"] and not self.p["PROG"]: self.e(f"s_mov_b32 s{70+i}, s13")
    def exit(self):
        self.e("s_branch L_exit" if self.p["TIMING"] or self.p["PAD"] else "s_endpgm")
    def srd(self, s, ptr, size):
        self.e(f"s_mov_b32 s{s}, s{ptr}\ns_mov_b32 s{s+1}, s{ptr+1}\ns_mov_b32 s{s+2}, {size}\ns_mov_b32 s{s+3}, 0x20000")
    def exec_full(self): self.e("s_mov_b64 exec, -1")
    def exec_mask(self, lo, hi): self.e(f"s_mov_b32 exec_lo, {lo:#x}\ns_mov_b32 exec_hi, {hi:#x}")
    def allred_G(self, vals, tmps, op, steps=(32, 16)):
        e = self.e
        for st in steps:
            for v, t in zip(vals, tmps): e(f"v_mov_b32 v{t}, v{v}")
            for v, t in zip(vals, tmps): e(f"v_permlane{st}_swap_b32 v{t}, v{v}")
            for v, t in zip(vals, tmps): e(f"{op} v{v}, v{t}, v{v}")
    def rowred(self, vals, op, rors):
        for r in rors:
            for v in vals: self.e(f"{op}_dpp v{v}, v{v}, v{v} row_ror:{r} row_mask:0xf bank_mask:0xf")
    def tagcheck(self, tags, acc, T=f"s{sT}"):
        e = self.e
        e(f"v_xor_b32 v{acc}, {T}, v{tags[0]}")
        for t in tags[1:]: e(f"v_bitop3_b32 v{acc}, v{t}, {T}, v{acc} bitop3:0xbe")
        e(f"v_cmp_ne_u32 vcc, 0, v{acc}")
    def poll(self, issue, tags, acc, name, fast=None, slowpub=None, shadow=None):
        e = self.e
        L, D, F = self.lab(name), self.lab(name + "d"), self.lab(name + "f")
        e("s_mov_b32 s13, 0")
        if fast: e(f"s_mov_b32 {sTF}, {sTX}")
        if shadow:
            W = self.lab(name + "w")
            issue(); shadow()
            e(f"s_branch {W}")
        e.label(L)
        issue()
        if shadow: e.label(W)
        e(f"s_add_u32 s13, s13, 1\ns_waitcnt vmcnt(0)")
        if self.p["TIMING"] and self.p["PTRACE"] == name:
            e("s_memrealtime s[98:99]\ns_waitcnt lgkmcnt(0)")
            for k in range(1, 7): e(f"s_cmp_eq_u32 s13, {k}\ns_cselect_b32 s{90+k}, s98, s{90+k}")
        self.tagcheck(tags, acc, sTF if fast else f"s{sT}")
        if fast:
            e(f"s_cbranch_vccnz {F}")
            def ool():
                G = self.lab(name + "g")
                e.label(F)
                e(f"s_cmp_gt_u32 s13, {self.p['MAXPOLL']}\ns_cbranch_scc1 {D}\ns_cmp_lt_u32 s13, {self.p['NFAST']}\ns_cbranch_scc1 {L}")
                e(f"s_cmp_eq_u32 s13, {self.p['NFAST']}\ns_cbranch_scc0 {G}")
                if slowpub: slowpub()
                e(f"s_add_u32 {sM}, {fast}, {SLOW}\ns_xor_b32 {sM}, {sM}, {fast}")
                e.label(G)
                e(f"s_xor_b32 {fast}, {fast}, {sM}\ns_xor_b32 {sTF}, {sTF}, {sXC}\ns_branch {L}")
            self.ool.append(ool)
        else:
            e(f"s_cmp_gt_u32 s13, {self.p['MAXPOLL']}\ns_cbranch_scc1 {D}\ns_cbranch_vccnz {L}")
        e.label(D)
    def poll2(self, issue, nl, RA, RB, acc, name, finish):
        e = self.e
        L, DA = self.lab(name), self.lab(name + "a")
        tags = lambda R: [R + 4 * i + k for i in range(nl) for k in (1, 3)]
        e("s_mov_b32 s13, 0")
        issue(RA)
        e(f"s_sleep {self.p['PSL']}")
        e.label(L)
        issue(RB)
        e(f"s_add_u32 s13, s13, 1\ns_waitcnt vmcnt({nl})")
        self.tagcheck(tags(RA), acc)
        e(f"s_cmp_gt_u32 s13, {self.p['MAXPOLL']}\ns_cbranch_scc1 {DA}\ns_cbranch_vccz {DA}")
        issue(RA)
        e(f"s_waitcnt vmcnt({nl})")
        self.tagcheck(tags(RB), acc)
        e(f"s_cbranch_vccnz {L}")
        finish(RB)
        e.label(DA)
        finish(RA)
    def expand4(self, dst, src, pi):
        for q in range(4): self.e(f"v_perm_b32 v{dst+q}, v{src}, v{src}, v{SELB+4*pi+q}")
    def gemv8(self, acc, frag, data, toks, E=(44, 48)):
        e = self.e
        self.expand4(E[0], frag, 0)
        for i in range(8):
            if i + 1 < 8: self.expand4(E[(i + 1) & 1], frag + ((i + 1) >> 1), (i + 1) & 1)
            if toks is not None and toks[i] is not None: e.wait_vm(toks[i])
            e(f"v_mfma_f32_16x16x32_bf16 {vr(acc)}, {vr(E[i&1])}, {vr(data+4*i)}, {'0' if i == 0 else vr(acc)}")

    def prologue(self):
        e, nt = self.e, self.p["NT"]
        e("s_cmp_ge_u32 s2, 256\ns_cbranch_scc1 L_end")
        e("s_load_dwordx16 s[16:31], s[0:1], 0\ns_load_dwordx8 s[32:39], s[0:1], 64\ns_load_dwordx4 s[40:43], s[0:1], 96")
        if self.p["TIMING"]:
            for i in range(72, 98): e(f"s_mov_b32 s{i}, 0")
            e("s_memrealtime s[70:71]")
        if self.p["PAD"]: e("s_memrealtime s[80:81]\ns_mov_b32 s82, 0")
        if self.p["CPF"]:
            e("s_getpc_b64 s[4:5]")
            e.label("L_pc")
        if self.p["CPF"] == 1:
            e("v_lshlrev_b32 v4, 6, v0\nv_min_u32 v4, L_codeend-L_pc-4, v4")
            e.vmem("global_load_dword v5, v4, s[4:5]")
        elif self.p["CPF"] == 2:
            e("v_lshlrev_b32 v4, 7, v0\nv_cmp_gt_u32 vcc, L_codeend-L_pc-4, v4\ns_and_saveexec_b64 s[12:13], vcc\ns_cbranch_execz L_nopf")
            e("global_load_dword v5, v4, s[4:5]")
            e.label("L_nopf")
            e("s_mov_b64 exec, -1")
        elif self.p["CPF"] == 3:
            e("s_cmp_lt_u32 s2, 224\ns_cbranch_scc1 L_nopf")
            e("v_lshlrev_b32 v4, 6, v0\nv_min_u32 v4, L_codeend-L_pc-4, v4")
            e("global_load_dword v5, v4, s[4:5]")
            e.label("L_nopf")
        e(f"v_lshrrev_b32 v6, 6, v0\nv_and_b32 v{vL}, 63, v0\nv_and_b32 v{vC}, 15, v0\nv_bfe_u32 v{vG}, v0, 4, 2")
        e(f"v_readfirstlane_b32 s{sW}, v6")
        e(f"s_and_b32 s{sX}, s2, 7\ns_lshr_b32 s{sSLOT}, s2, 3")
        e(f"v_and_b32 v7, 3, v0\nv_lshlrev_b32 v7, 4, v7\nv_lshl_add_u32 v7, v{vG}, 6, v7\nv_and_b32 v8, 7, v0\nv_lshlrev_b32 v10, 4, v{vL}")
        e(f"s_cmp_lt_u32 s{sSLOT}, 8\ns_cbranch_scc1 L_astream")
        e(f"s_sub_u32 s64, s{sSLOT}, 8\ns_mul_i32 s{sH1}, s64, 43\ns_lshr_b32 s{sH1}, s{sH1}, 8\ns_mul_i32 s3, s{sH1}, 6\ns_sub_u32 s{sJ}, s64, s3\n" + (f"s_add_u32 s{sH1}, s{sH1}, {self.p['HROT']}\ns_and_b32 s{sH1}, s{sH1}, 3\n" if self.p["HROT"] else "") + f"s_lshl_b32 s3, s{sX}, 2\ns_add_u32 s{sH1}, s{sH1}, s3")
        e(f"s_mul_i32 s3, s{sJ}, {96*8192}\ns_lshl_b32 s12, s{sH1}, 8\ns_add_u32 s61, s3, s12")
        e(f"v_lshrrev_b32 v6, 4, v0\nv_lshlrev_b32 v4, 13, v6\nv_lshl_add_u32 v4, v{vC}, 4, v4\nv_add_u32 v4, s61, v4\nv_add_u32 v11, 0x40000, v4\nv_add_u32 v12, 0x80000, v4")
        e(f"s_mul_i32 s12, s{sJ}, 192\nv_lshl_add_u32 v6, v6, 1, s12")
        e("s_mov_b32 s50, 0x400000\ns_mov_b32 s51, 0x20000")
        e("s_movk_i32 s58, 0x400\ns_mov_b32 s59, 0x20000\ns_movk_i32 s46, 0x400\ns_mov_b32 s47, 0x20000")
        if self.p["WSOFF"]:
            e(f"s_waitcnt lgkmcnt(0)\ns_add_u32 s42, s42, {self.p['WSOFF'] << 20}\ns_addc_u32 s43, s43, 0\ns_cmp_eq_u32 s{sW}, 7")
        else: e(f"s_cmp_eq_u32 s{sW}, 7\ns_waitcnt lgkmcnt(0)")
        if self.p["WARMQ"]:
            wm = self.p["WM"].replace("_", " ")
            e("s_cbranch_scc0 L_nowarm")
            e(f"s_lshl_b32 s14, s{sH1}, 14\ns_add_u32 s14, s14, {WS_QP}\ns_add_u32 s4, s42, s14\ns_addc_u32 s5, s43, 0\nv_lshlrev_b32 v9, 3, v10\nv_add_u32 v13, 0x2000, v9")
            e(f"global_load_dword v5, v9, s[4:5] {wm}\ns_mov_b32 exec_hi, 0\nglobal_load_dword v5, v13, s[4:5] {wm}")
            e(f"s_lshl_b32 s14, s{sX}, 11\ns_add_u32 s14, s14, {WS_BML}\ns_add_u32 s4, s42, s14\ns_addc_u32 s5, s43, 0\ns_mov_b32 exec_lo, 0xffff\nglobal_load_dword v5, v9, s[4:5] {wm}\ns_mov_b64 exec, -1\ns_cmp_eq_u32 s{sW}, 7")
            e.label("L_nowarm")
        e("s_mov_b32 s48, s20\ns_mov_b32 s49, s21\ns_mov_b32 s56, s16\ns_mov_b32 s57, s17")
        for i in range(3): e.vmem(f"buffer_load_ushort v{16+i}, v6, s[56:59], 0 offen offset:{64*i}")
        for i in range(3): self.tA = e.vmem(f"buffer_load_dwordx4 {vr(128+4*i)}, v{(4,11,12)[i]}, s[48:51], 0 offen {nt}")
        e("s_mov_b32 s44, s28\ns_mov_b32 s45, s29")
        for i in range(3): e.vmem(f"buffer_load_ushort v{19+i}, v6, s[44:47], 0 offen offset:{64*i}")
        e("v_mov_b32 v22, v4\ns_cbranch_scc0 L_notctrl")

    def wq_load(self, i):
        e = self.e
        if i == 0: self.srd(72, 34, 1 << 22)
        t = e.vmem(f"buffer_load_dwordx4 {vr(140+4*i)}, v22, s[16:19], 0 offen {self.p['NT']}")
        if i < 2: e("v_add_u32 v22, 0x40000, v22")
        return t
    def p1_gemv(self, X, W, dst):
        e = self.e
        for i in range(3): self.expand4(44 + 4 * i, X + i, 0)
        for i in range(3): e(f"v_mfma_f32_16x16x32_bf16 v[152:155], {vr(44+4*i)}, {vr(W+4*i)}, {'0' if i == 0 else 'v[152:155]'}")
        e(f"v_lshlrev_b32 v11, 4, v0")
        e.ds(f"ds_write_b128 v11, v[152:155] offset:{dst}")
    def p1_gemv_b(self, tq):
        e = self.e
        e.wait_vm(tq)
        self.p1_gemv(19, 140, L_PRB)
        e("v_mov_b32 v12, 1\ns_mov_b64 exec, 1")
        e.ds(f"ds_add_u32 v13, v12 offset:{LB_FLAG+12}")
        self.exec_full()
    def p1_reduce(self, src, R, pub):
        e = self.e
        e(f"v_and_b32 v11, 31, v{vL}\nv_lshlrev_b32 v11, 4, v11\nv_lshrrev_b32 v12, 5, v{vL}\nv_lshl_add_u32 v11, v12, 12, v11")
        tk = [e.ds(f"ds_read_b128 {vr(R+4*w)}, v11 offset:{src+1024*w}") for w in range(4)]
        e(f"v_mov_b32 v{pub+1}, {sTX}\nv_mov_b32 v{pub+3}, {sTX}")
        for w in range(1, 4):
            e.wait_lg(tk[w])
            e(f"v_pk_add_f32 v[{R}:{R+1}], v[{R}:{R+1}], v[{R+4*w}:{R+4*w+1}]\nv_pk_add_f32 v[{R+2}:{R+3}], v[{R+2}:{R+3}], v[{R+4*w+2}:{R+4*w+3}]")
        e(f"v_permlane32_swap_b32 v{R}, v{R+2}\nv_permlane32_swap_b32 v{R+1}, v{R+3}\nv_add_f32 v{pub}, v{R}, v{R+2}\nv_add_f32 v{pub+2}, v{R+1}, v{R+3}")

    def code_pf(self, first, last, name, lanes):
        e = self.e
        e("s_getpc_b64 s[4:5]")
        e.label(name)
        e(f"s_add_u32 s4, s4, {first}-{name}\ns_addc_u32 s5, s5, {0 if first != 'L_btail' else 0}")
        e(f"v_lshlrev_b32 v12, 7, {lanes}\nv_min_u32 v12, {last}-{first}-4, v12")
        return e.vmem("global_load_dword v5, v12, s[4:5]")
    def selectors(self):
        e = self.e
        e(f"s_mov_b32 s62, 0\ns_mov_b32 s63, -1\ns_mov_b32 {sCS}, {f32(CS)}")
        self.srd(44, 42, WS_SIZE)
        e("v_and_b32 v15, 3, v0\nv_lshlrev_b32 v15, 4, v15\nv_mov_b32 v13, 0\nv_mov_b32 v11, 0x0c0c0c0c\nv_and_b32 v14, 4, v0\nv_cmp_ne_u32 vcc, 0, v14")
        for pi, d in ((0, 0x0d0c), (1, 0x0f0e)):
            a = SELA + 2 * pi
            e(f"v_mov_b32 v12, {d:#x}\nv_lshlrev_b64 v[{a}:{a+1}], v15, v[12:13]\nv_xor_b32 v{a}, v11, v{a}\nv_xor_b32 v{a+1}, v11, v{a+1}")
            b = SELB + 4 * pi
            e(f"v_cndmask_b32 v{b}, v{a}, v11, vcc\nv_cndmask_b32 v{b+1}, v{a+1}, v11, vcc\nv_cndmask_b32 v{b+2}, v11, v{a}, vcc\nv_cndmask_b32 v{b+3}, v11, v{a+1}, vcc")
    def tagmake(self):
        self.e(f"s_waitcnt lgkmcnt(0)\ns_mul_i32 s{sT}, s{sT}, 0x9e3779b1\ns_add_u32 s{sT}, s{sT}, 0x7f4a7c15")

    def p1_compute(self, ctrl):
        e = self.e
        self.selectors()
        if ctrl:
            self.tagmake()
            e(f"s_getreg_b32 {sXC}, hwreg(HW_REG_XCC_ID, 0, 4)\ns_xor_b32 {sTX}, s{sT}, {sXC}\ns_mov_b32 {sNC}, 0")
            e(f"v_mov_b32 v57, s{sT}\nv_mov_b32 v59, s{sT}")
            e.ds(f"ds_write_b32 v13, v57 offset:{LB_FLAG+8}")
            for k in (0, 4, 12, 16, 20): e.ds(f"ds_write_b32 v13, v13 offset:{LB_FLAG+k}")
        e.wait_vm(self.tA)
        self.p1_gemv(16, 128, L_PR)
        e("s_waitcnt lgkmcnt(0)\ns_barrier")
        self.stamp(1)
        if not ctrl:
            e.ds(f"ds_read_b32 v12, v13 offset:{LB_FLAG+8}")
            tq = [self.wq_load(i) for i in range(self.p["WQ0"])]
            e(f"s_waitcnt lgkmcnt(0)\nv_readfirstlane_b32 s{sT}, v12")
            e(f"s_getreg_b32 {sXC}, hwreg(HW_REG_XCC_ID, 0, 4)\ns_xor_b32 {sTX}, s{sT}, {sXC}")
            if self.p["QBE"]:
                assert self.p["WQ0"] == 3
                self.p1_gemv_b(tq[2])
            e("s_barrier")
            tq += [self.wq_load(i) for i in range(self.p["WQ0"], 3)]
            return tq[2]

    def phase1(self):
        e, nt = self.e, self.p["NT"]
        WQ, WU = 64, 160
        e(f"s_load_dword s{sT}, s[42:43], 0")
        e(f"v_bfe_u32 v14, v0, 2, 2\nv_lshl_add_u32 v9, v14, 15, v7\nv_add_u32 v9, s61, v9\nv_lshl_add_u32 v14, v14, 14, v7\nv_add_u32 v14, s61, v14")
        self.srd(56, 22, 1 << 22)
        tu, ukq = [], []
        for t in range(4):
            for a in range(4):
                ukq.append((f"buffer_load_dwordx4 {vr(WU+16*a+4*t)}, v9, s[56:59], 0 offen {nt}",
                            f"v_add_u32 v9, {0x2000 if a < 3 else 0x20000-0x6000:#x}, v9" if (t, a) != (3, 3) else ""))
        for t in range(4):
            for a in range(2):
                ukq.append((f"buffer_load_dwordx4 {vr(WU+64+16*a+4*t)}, v23, s[56:59], 0 offen {nt}",
                            f"v_add_u32 v23, {0x2000 if a < 1 else 0x10000-0x2000:#x}, v23" if (t, a) != (3, 1) else ""))
        e("v_add_u32 v23, 0x80000, v14")
        def uk(n):
            for _ in range(n):
                if ukq:
                    a, b = ukq.pop(0)
                    tu.append(e.vmem(a)); e(b)
        uk(self.p["UK0"])
        self.p1_compute(True)
        if self.p["UK0"] < 24 and self.p["UKP"] == 0: uk(24)
        e(f"s_lshl_b32 s14, s{sH1}, 14\ns_add_u32 s14, s14, {WS_QP}\ns_lshl_b32 s15, s{sJ}, 11\ns_add_u32 s15, s15, s14")
        self.p1_reduce(L_PR, WQ, 112)
        tst = e.vmem(f"buffer_store_dwordx4 v[112:115], v10, {WS}, s15 offen")
        self.stamp(2)
        uk(24)
        if self.p["QBE"]:
            for i in range(3): tq = self.wq_load(i)
        e(f"s_add_u32 s68, s15, {SLOW}")
        def qp_slow(mats=(0,)):
            for m in mats:
                r = 112 + 4 * m
                e(f"v_mov_b32 v{r+1}, s{sT}\nv_mov_b32 v{r+3}, s{sT}")
                e(f"buffer_store_dwordx4 {vr(r)}, v10, {WS}, s68 offen offset:{1024*m} sc1")
            e(f"s_mov_b32 {sNC}, 1")
        QF = [24, 28, 120, 124]
        for b in QF:
            for r in range(4): e(f"v_mov_b32 v{b+r}, 0")
        e(f"v_and_b32 v9, 1, v{vG}\nv_lshlrev_b32 v9, 3, v9\nv_lshl_add_u32 v9, v{vC}, 4, v9\nv_lshrrev_b32 v12, 1, v{vG}\nv_lshl_add_u32 v9, v12, 2, v9")
        e(f"v_add_u32 v13, {L_LQ}, v9\nv_add_u32 v14, {L_LQ}, v7")
        def gat(base, mat):
            def f():
                for jj in range(6):
                    if jj % 2 == 0: e(f"s_add_u32 s12, {base}, {jj*2048}")
                    t = e.vmem(f"buffer_load_dwordx4 {vr(WQ+4*jj)}, v10, {WS}, s12 offen offset:{(jj&1)*2048+1024*mat} sc1")
                return t
            return f
        tags = [WQ + 4 * jj + k for jj in range(6) for k in (1, 3)]
        def sum6():
            for jj in range(1, 6):
                e(f"v_add_f32 v{WQ}, v{WQ}, v{WQ+4*jj}\nv_add_f32 v{WQ+2}, v{WQ+2}, v{WQ+4*jj+2}")
        if self.p["TIMING"]:
            e.wait_vm(tu[min(23, 23 - self.p["NU"])]); self.stamp(22)
        e.wait_vm(tu[23 - self.p["NU"]] if self.p["NU"] >= 0 else max(tst, tu[23]))
        if self.p["NU"] < 0 and self.p["TIMING"]:
            pass
        self.stamp(21)
        for _ in range(self.p["GSL"]): e("s_sleep 2")
        def qb_publish():
            e.wait_vm(tq)
            self.p1_gemv(19, 140, L_PRB)
            e("v_mov_b32 v15, 0")
            L = self.lab("wqb")
            e.label(L)
            e.ds(f"ds_read_b32 v60, v15 offset:{LB_FLAG+12}")
            e(f"s_waitcnt lgkmcnt(0)\nv_readfirstlane_b32 s3, v60\ns_cmp_lt_u32 s3, 7\ns_cbranch_scc1 {L}")
            self.p1_reduce(L_PRB, 96, 116)
            tb = e.vmem(f"buffer_store_dwordx4 v[116:119], v10, {WS}, s15 offen offset:1024")
            if self.p["QBW"]: e.wait_vm(tb)
        tg = gat("s14", 0)()
        if not self.p["RLATE"]: e("s_barrier")
        if self.p["QBE"]: qb_publish()
        else:
            for i in range(3): tq = self.wq_load(i)
        e.wait_vm(tg)
        self.tagcheck(tags, 60, sTX)
        e("s_cbranch_vccnz L_p1_retry")
        if self.p["TIMING"]: e("s_mov_b32 s13, 0")
        e.label("L_p1_got")
        if self.p["RLATE"]: e("s_barrier")
        def ool():
            e.label("L_p1_retry")
            self.poll(gat("s14", 0), tags, 60, "gqa", fast="s14", slowpub=qp_slow)
            e("s_branch L_p1_got")
        self.ool.append(ool)
        self.stamp(3); self.cnt(20)
        sum6()
        e(f"v_cvt_pk_bf16_f32 v60, v{WQ}, v{WQ+2}")
        e.ds(f"ds_write_b32 v13, v60")
        e("s_waitcnt lgkmcnt(0)")
        for t in range(4):
            m = 0x000f000f << (4 * t)
            self.exec_mask(m, m)
            e.ds(f"ds_read_b128 {vr(QF[t])}, v14")
        self.exec_full()
        e("s_waitcnt lgkmcnt(0)")
        for a in range(6):
            for t in range(4):
                e(f"v_mfma_f32_16x16x32_bf16 {vr(64+4*a)}, {vr(WU+16*a+4*t)}, {vr(QF[t])}, {'0' if t == 0 else vr(64+4*a)}")
        e(f"s_lshl_b32 s12, s{sH1}, 11\ns_mul_i32 s3, s{sJ}, 384\ns_add_u32 s12, s12, s3\ns_add_u32 s12, s12, {WS_QABS}")
        e(f"v_and_b32 v15, 12, v{vC}\nv_add_u32 v15, v15, v{vG}\nv_lshlrev_b32 v14, 3, v15\nv_lshlrev_b32 v15, 4, v15")
        e(f"s_mov_b32 s3, 0x00110011\ns_cmp_lt_u32 s{sJ}, 5\ns_cselect_b32 s3, 0x11111111, s3")
        self.quadsum([(64 + 4 * a, 44 + a) for a in range(6)])
        e(f"v_cvt_pk_bf16_f32 v56, v44, v45\nv_cvt_pk_bf16_f32 v58, v46, v47\nv_cvt_pk_bf16_f32 v62, v48, v49\nv_mov_b32 v63, s{sT}")
        e("s_mov_b32 exec_lo, s3\ns_mov_b32 exec_hi, s3")
        e.vmem(f"buffer_store_dwordx4 v[56:59], v15, {WS}, s12 offen sc1")
        e("s_cbranch_scc0 L_p1done")
        e(f"buffer_store_dwordx2 v[62:63], v14, {WS}, s12 offen offset:256 sc1")
        e.label("L_p1done")
        self.exec_full()
        self.stamp(4)
        if not self.p["QBE"]: qb_publish()
        R = 160
        e(f"s_lshl_b32 s67, s{sX}, 16\ns_add_u32 s67, s67, {WS_QP}")
        def gb():
            for hh in range(4):
                for jj in range(6):
                    if jj % 2 == 0: e(f"s_add_u32 s12, s67, {hh*16384+jj*2048}")
                    e.vmem(f"buffer_load_dwordx4 {vr(R+24*hh+4*jj)}, v10, {WS}, s12 offen offset:{(jj&1)*2048+1024} sc1")
        self.poll(gb, [R + 4 * i + k for i in range(24) for k in (1, 3)], 60, "gqb", fast="s67", slowpub=lambda: qp_slow((0, 1)))
        for jj in range(1, 6):
            for hh in range(4):
                b = R + 24 * hh
                e(f"v_add_f32 v{b}, v{b}, v{b+4*jj}\nv_add_f32 v{b+2}, v{b+2}, v{b+4*jj+2}")
        e(f"v_mov_b32 v15, 0\nv_mov_b32 v61, 1\nv_mov_b32 v62, {sNC}")
        e.ds(f"ds_write_b32 v15, v62 offset:{LB_FLAG+24}")
        for hh in range(4):
            b = R + 24 * hh
            e(f"v_cvt_pk_bf16_f32 v{b}, v{b}, v{b+2}")
            e.ds(f"ds_write_b32 v9, v{b} offset:{LB_Q+256*hh}")
        e.ds(f"ds_write_b32 v15, v61 offset:{LB_FLAG}")
        e("s_waitcnt lgkmcnt(0)")
        self.stamp(18); self.cnt(19)
        if self.p["CPB"]: self.code_pf("L_notctrl", "L_arest", "L_pcb", "v1")
        if self.p["TLBP"]:
            e(f"s_lshl_b32 s3, s{sX}, 22\ns_add_u32 s4, s32, s3\ns_addc_u32 s5, s33, 0\ns_load_dword s12, s[4:5], 0")
            e("s_add_u32 s4, s4, 0x200000\ns_addc_u32 s5, s5, 0\ns_load_dword s12, s[4:5], 0")
            e("s_add_u32 s4, s4, 0x1ffffc\ns_addc_u32 s5, s5, 0\ns_load_dword s12, s[4:5], 0")
            e(f"s_lshl_b32 s3, s{sX}, 19\ns_add_u32 s4, s36, s3\ns_addc_u32 s5, s37, 0\ns_load_dword s12, s[4:5], 0\ns_load_dword s12, s[38:39], 0")
            e(f"s_add_u32 s4, s42, {WS_AO}\ns_addc_u32 s5, s43, 0\ns_load_dword s12, s[4:5], 0\ns_waitcnt lgkmcnt(0)")

    def quadsum(self, pairs):
        e = self.e
        for D, S in pairs: e(f"v_mov_b32_dpp v{S}, v{D} quad_perm:[0,0,0,0] row_mask:0xf bank_mask:0xf")
        for r in range(1, 4):
            for D, S in pairs: e(f"v_add_f32_dpp v{S}, v{D+r}, v{S} quad_perm:[{r},{r},{r},{r}] row_mask:0xf bank_mask:0xf")

    def b_ids(self):
        e = self.e
        e(f"s_lshr_b32 s65, s64, 2\ns_lshl_b32 s3, s{sX}, 2\ns_add_u32 s65, s65, s3\ns_and_b32 s66, s64, 3")
        e(f"v_bfe_u32 v6, v{vL}, 2, 2\nv_lshl_add_u32 v6, v6, 8, v7")
        e(f"s_lshl_b32 s3, s65, 7\ns_and_b32 s12, s{sW}, 3\ns_lshl_b32 s12, s12, 5\ns_add_u32 s3, s3, s12\ns_lshr_b32 s12, s{sW}, 2\ns_lshl_b32 s12, s12, 2\ns_add_u32 s3, s3, s12")
        if self.p["WOSP"]:
            e(f"s_lshl_b32 s3, s3, 10\ns_and_b32 s12, s66, 1\ns_lshl_b32 s12, s12, 8\ns_add_u32 s3, s3, s12\ns_lshr_b32 s12, s66, 1\ns_lshl_b32 s12, s12, 7\ns_add_u32 s69, s3, s12")
            e(f"v_bfe_u32 v4, v{vL}, 3, 1\nv_lshlrev_b32 v4, 9, v4\nv_lshl_add_u32 v4, v{vG}, 10, v4\nv_lshl_add_u32 v4, v8, 4, v4")
        else:
            e(f"s_lshl_b32 s3, s3, 10\ns_lshl_b32 s12, s66, 8\ns_add_u32 s69, s3, s12")
            e(f"v_lshlrev_b32 v4, 10, v{vG}\nv_lshl_add_u32 v4, v{vC}, 4, v4")
        self.srd(48, 30, 1 << 25); self.srd(52, 32, 1 << 25); self.srd(56, 36, 1 << 22)
        e("s_cmp_lt_u32 s64, 16\ns_cselect_b32 s58, s58, 0")
    def bo_addr(self):
        e = self.e
        e(f"s_mul_i32 s68, s65, {24*512}\ns_lshl_b32 s3, s{sW}, 6\ns_add_u32 s68, s68, s3\ns_add_u32 s68, s68, {WS_BO}")
        e(f"v_and_b32 v9, 3, v{vL}\nv_lshlrev_b32 v9, 4, v9\nv_lshrrev_b32 v6, 2, v{vL}\nv_lshl_add_u32 v6, v6, 9, v9\nv_and_b32 v9, 0xfff, v6\nv_add_u32 v9, {16*512}, v9")
    def bo_warm(self):
        e = self.e
        self.bo_addr()
        L = self.lab("bow")
        e(f"s_cmp_lt_u32 s64, 16\ns_cbranch_scc0 {L}")
        e(f"buffer_load_dword v5, v6, {WS}, s68 offen {self.p['WM'].replace('_',' ')}")
        e(f"buffer_load_dword v5, v9, {WS}, s68 offen {self.p['WM'].replace('_',' ')}")
        e.label(L)
    def b_tail_addrs(self):
        e = self.e
        for q in range(4): e(f"v_perm_b32 v{20+q}, -1, -1, v{SELB+q}")
        e(f"s_lshl_b32 s3, s{sW}, 10\nv_add_u32 v16, s3, v10")
        e(f"v_and_b32 v17, 31, v{vL}\nv_lshlrev_b32 v17, 4, v17\nv_lshrrev_b32 v12, 5, v{vL}\nv_lshl_add_u32 v17, v12, 12, v17")
        e(f"s_lshl_b32 s16, s65, 12\ns_lshl_b32 s3, s66, 10\ns_add_u32 s16, s16, s3\ns_add_u32 s16, s16, {WS_OUTB}")
        e(f"v_and_b32 v18, 1, v{vG}\nv_lshlrev_b32 v18, 5, v18\nv_lshl_add_u32 v18, v{vC}, 6, v18\nv_lshl_add_u32 v18, v12, 4, v18\nv_mov_b32 v57, s{sT}\nv_mov_b32 v59, s{sT}")
        e(f"s_lshl_b32 s3, s66, 7\ns_lshl_b32 s14, s65, 2\ns_add_u32 s14, s14, s3\ns_lshl_b32 s17, s14, 3\ns_add_u32 s17, s17, {WS_OUTB}")
        e(f"v_lshrrev_b32 v19, 1, v{vL}\nv_lshlrev_b32 v19, 12, v19\nv_and_b32 v15, 1, v{vL}\nv_lshl_add_u32 v19, v15, 4, v19")
        self.srd(48, 38, 2048)
        if self.p["WOSP"]:
            e(f"s_lshr_b32 s14, s65, 4\ns_lshl_b32 s14, s14, 8\ns_and_b32 s3, s66, 1\ns_lshl_b32 s3, s3, 7\ns_add_u32 s14, s14, s3\ns_lshr_b32 s3, s66, 1\ns_lshl_b32 s3, s3, 6\ns_add_u32 s14, s14, s3\ns_and_b32 s3, s65, 15\ns_lshl_b32 s3, s3, 2\ns_add_u32 s14, s14, s3")
        e(f"s_lshl_b32 s14, s14, 1\ns_add_u32 s14, s14, 1024\nv_lshlrev_b32 v15, 2, v15\nv_and_b32 v63, 60, v{vL}")
    def b_kload(self, KR, t, n):
        return self.e.vmem(f"buffer_load_dwordx4 {vr(KR+16*t+4*n)}, v6, s[48:51], s14 offen offset:{0 if self.ilv else n*1024} {self.p['NT']}")
    def b_vload(self, VR, t, n):
        return self.e.vmem(f"buffer_load_dwordx4 {vr(VR+16*t+4*n)}, v10, s[52:55], s15 offen offset:{0 if self.ilv else n*1024} {self.p['NT']}")
    def b_woloads(self):
        for i in range(4):
            self.e.vmem(f"buffer_load_dwordx4 {vr(self.WO[i])}, v4, s[56:59], s69 offen {self.p['NT']}")
            if i < 3: self.e("s_addk_i32 s69, 0x2000")
    def b_chunks(self, nt, KR, bias, wait_q):
        e = self.e
        ch = []
        def c_q():
            e(f"v_lshrrev_b32 v11, 2, v{vC}\nv_lshl_add_u32 v12, v11, 8, v7")
            e(f"v_lshlrev_b32 v13, 5, v11\ns_lshl_b32 s3, s{sW}, 2\nv_add_u32 v14, s3, v13\nv_mov_b32 v15, 0")
            if wait_q:
                L = self.lab("wq")
                e.label(L)
                e.ds(f"ds_read_b32 v60, v15 offset:{LB_FLAG}")
                e(f"s_waitcnt lgkmcnt(0)\nv_readfirstlane_b32 s3, v60\ns_cmp_eq_u32 s3, 0\ns_cbranch_scc1 {L}")
            self.stamp(5)
            e.ds(f"ds_read_b128 v[16:19], v12 offset:{LB_Q}")
            e("s_waitcnt lgkmcnt(0)")
        ch.append((-1, c_q))
        def c_qk(t):
            def f():
                b = KR + 16 * t
                if t < nt:
                    for i in range(4): e(f"v_mfma_f32_16x16x32_bf16 {vr(44+4*i)}, {vr(b+4*i)}, v[16:19], 0")
                    self.quadsum([(44 + 4 * i, b + i) for i in range(4)])
                    if t == 0: e(f"v_max3_f32 v60, v{b}, v{b+1}, v{b+2}\nv_max_f32 v60, v60, v{b+3}")
                    else: e(f"v_max3_f32 v60, v60, v{b}, v{b+1}\nv_max3_f32 v60, v60, v{b+2}, v{b+3}")
                if t == nt:
                    self.allred_G([60], [61], "v_max_f32")
                    e(f"v_mul_f32 v62, {sCS}, v60")
            return f
        for t in range(nt + 1): ch.append((min(t, nt - 1), c_qk(t)))
        def c_exp(t):
            def f():
                b = KR + 16 * t
                for r in range(4): e(f"v_fma_f32 v{b+r}, v{b+r}, {sCS}, -v62")
                for r in range(4): e(f"v_exp_f32 v{b+r}, v{b+r}")
                if t == 0: e(f"v_add_f32 v63, v{b}, v{b+1}")
                else: e(f"v_add_f32 v63, v63, v{b}\nv_add_f32 v63, v63, v{b+1}")
                e(f"v_cvt_pk_bf16_f32 v{b+4}, v{b}, v{b+1}\nv_add_f32 v63, v63, v{b+2}\nv_cvt_pk_bf16_f32 v{b+5}, v{b+2}, v{b+3}\nv_add_f32 v63, v63, v{b+3}")
            return f
        for t in range(nt): ch.append((nt - 1, c_exp(t)))
        def c_l():
            self.allred_G([63], [61], "v_add_f32")
            if bias: e(f"v_add_f32 v62, {bias}, v62")
            e("v_mov_b32 v61, 1")
            self.exec_mask(0x1111, 0)
            e.ds(f"ds_write_b32 v14, v62 offset:{LB_MX}")
            e.ds(f"ds_write_b32 v14, v63 offset:{LB_LS}")
            e("s_mov_b32 exec_lo, 1")
            e.ds(f"ds_add_u32 v15, v61 offset:{LB_FLAG+4}")
            self.exec_full()
            self.stamp(6)
        ch.append((nt - 1, c_l))
        return ch
    def b_pv_prep(self, KR, n):
        t, i = n >> 2, n & 3
        E = 44 + 2 * (n & 3)
        for q in range(2): self.e(f"v_perm_b32 v{E+q}, v{KR+16*t+4+(i>>1)}, v{KR+16*t+4+(i>>1)}, v{SELA+2*(i&1)+q}")
    def b_pv_mma(self, VR, n):
        t, i = n >> 2, n & 3
        E = 44 + 2 * (n & 3)
        b = VR + 16 * t + 4 * i
        for h in range(2):
            acc = 24 + 4 * h
            self.e(f"v_mfma_f32_16x16x16_bf16 {vr(acc)}, v[{E}:{E+1}], v[{b+2*h}:{b+2*h+1}], {'0' if n == 0 else vr(acc)}")
    def b_owrite(self):
        e = self.e
        e(f"s_lshl_b32 s3, s{sW}, 11\nv_add_u32 v11, s3, v10")
        e.ds(f"ds_write_b128 v11, v[24:27] offset:{LB_R4}")
        e.ds(f"ds_write_b128 v11, v[28:31] offset:{LB_R4+1024}")
        e("s_waitcnt lgkmcnt(0)")
        e("s_branch L_btail")

    def b_ctrl(self):
        e = self.e
        KR, VR = 64, 160
        self.WO = [72, 88, 104, 120]
        self.b_ids()
        e("s_cmp_ge_u32 s64, 16\ns_cselect_b32 s50, s50, 0\ns_cselect_b32 s54, s54, 0")
        e(f"s_cselect_b32 s61, 0, {f32(-1e30)}")
        e(f"s_lshl_b32 s14, s{sX}, 22\ns_lshl_b32 s3, s64, 1\ns_add_u32 s3, s3, {1008-32}\ns_lshl_b32 s3, s3, 12\ns_cmp_ge_u32 s64, 16\ns_cselect_b32 s3, s3, 0\ns_add_u32 s14, s14, s3\ns_mov_b32 s15, s14")
        for t in range(2):
            for n in range(4): self.b_kload(KR, t, n)
            if t == 0: e("s_addk_i32 s14, 0x1000")
        for t in range(2):
            for n in range(4): self.b_vload(VR, t, n)
            if t == 0: e("s_addk_i32 s15, 0x1000")
        e("s_waitcnt vmcnt(0) lgkmcnt(0)")
        for _, f in self.b_chunks(2, KR, "s61", False): f()
        for n in range(8):
            self.b_pv_prep(KR, n)
            self.b_pv_mma(VR, n)
        self.bo_warm() if self.p["WARMB"] else self.bo_addr()
        e(f"s_lshl_b32 s12, s{sX}, 11\ns_lshl_b32 s3, s64, 4\ns_add_u32 s12, s12, s3\ns_add_u32 s12, s12, {WS_BML}")
        e(f"v_lshlrev_b32 v11, 4, v13\nv_mov_b32 v53, {sTX}\nv_mov_b32 v55, {sTX}")
        if self.p["NL"]:
            L = self.lab("wtk")
            e.label(L)
            e("s_sleep 2")
            e.ds(f"ds_read_b32 v60, v15 offset:{LB_FLAG+20}")
            e(f"s_waitcnt lgkmcnt(0)\nv_readfirstlane_b32 s3, v60\ns_cmp_eq_u32 s3, 0\ns_cbranch_scc1 {L}")
            e("v_mov_b32 v144, 1\ns_mov_b64 exec, 1")
            e("global_atomic_add v145, v15, v144, s[40:41] sc0 sc1")
            e(f"s_waitcnt vmcnt(0)\nv_cmp_gt_u32 vcc, {self.p['RK']}, v145\nv_cndmask_b32 v145, 0, 1, vcc")
            e.ds(f"ds_write_b32 v15, v145 offset:{LB_FLAG+16}")
            self.exec_full()
        L = self.lab("wml")
        e.label(L)
        e("s_sleep 2")
        e.ds(f"ds_read_b32 v60, v15 offset:{LB_FLAG+4}")
        e(f"s_waitcnt lgkmcnt(0)\nv_readfirstlane_b32 s3, v60\ns_cmp_lt_u32 s3, 8\ns_cbranch_scc1 {L}")
        e.ds(f"ds_read_b128 v[128:131], v13 offset:{LB_MX}")
        e.ds(f"ds_read_b128 v[132:135], v13 offset:{LB_MX+16}")
        e.ds(f"ds_read_b128 v[136:139], v13 offset:{LB_LS}")
        e.ds(f"ds_read_b128 v[140:143], v13 offset:{LB_LS+16}")
        e("s_waitcnt lgkmcnt(0)")
        e("v_max3_f32 v52, v128, v129, v130\nv_max3_f32 v52, v52, v131, v132\nv_max3_f32 v52, v52, v133, v134\nv_max_f32 v52, v52, v135")
        for r in range(128, 136): e(f"v_sub_f32 v{r}, v{r}, v52")
        for r in range(128, 136): e(f"v_exp_f32 v{r}, v{r}")
        e("v_mul_f32 v54, v128, v136")
        for r in range(1, 8): e(f"v_fmac_f32 v54, v{128+r}, v{136+r}")
        self.exec_mask(0x1111, 0)
        e.ds(f"ds_write_b128 v13, v[128:131] offset:{LB_G}")
        e.ds(f"ds_write_b128 v13, v[132:135] offset:{LB_G+16}")
        e.vmem(f"buffer_store_dwordx4 v[52:55], v11, {WS}, s12 offen")
        e(f"s_cmp_eq_u32 {sNC}, 0\ns_cbranch_scc1 L_bml_ns\ns_add_u32 s12, s12, {SLOW}\nv_mov_b32 v53, s{sT}\nv_mov_b32 v55, s{sT}")
        e(f"buffer_store_dwordx4 v[52:55], v11, {WS}, s12 offen sc1")
        e.label("L_bml_ns")
        self.exec_full()
        e("s_cmp_lt_u32 s64, 16\ns_cbranch_scc0 L_bc_nod")
        if self.p["WOK"] <= 23: self.b_woloads()
        e(f"v_and_b32 v15, 31, v{vL}\nv_min_u32 v11, 23, v15\nv_lshlrev_b32 v11, 4, v11\ns_lshl_b32 s12, s65, 9\ns_add_u32 s12, s12, {WS_BML}")
        def gm(): e.vmem(f"buffer_load_dwordx4 v[52:55], v11, {WS}, s12 offen sc1")
        self.poll(gm, [53, 55], 60, "gml", fast="s12")
        e("v_mov_b32 v56, v52")
        self.rowred([56], "v_max_f32", (8, 4, 2, 1))
        self.allred_G([56], [57], "v_max_f32", steps=(16,))
        e("v_sub_f32 v52, v52, v56\nv_exp_f32 v52, v52\nv_cmp_gt_u32 vcc, 24, v15\nv_cndmask_b32 v52, 0, v52, vcc\nv_mul_f32 v54, v54, v52")
        self.rowred([54], "v_add_f32", (8, 4, 2, 1))
        self.allred_G([54], [57], "v_add_f32", steps=(16,))
        e("v_rcp_f32 v54, v54\nv_lshlrev_b32 v15, 2, v15\nv_mul_f32 v52, v52, v54")
        e.ds(f"ds_write_b32 v15, v52 offset:{LB_F}")
        e.label("L_bc_nod")
        self.b_tail_addrs()
        self.b_owrite()

    def b_stream(self):
        e, p = self.e, self.p
        KR, VR, NT_ = 64, 160, 6
        self.WO = [72, 88, 104, 120]
        self.b_ids()
        e(f"s_mul_i32 s3, s64, 7\ns_add_u32 s3, s3, s{sW}\ns_lshl_b32 s3, s3, {10 if p['ILV1'] else 12}\ns_lshl_b32 s14, s{sX}, 22\ns_add_u32 s14, s14, s3\ns_mov_b32 s15, s14\ns_mov_b32 s67, {168*(1024 if p['ILV1'] else 4096)}")
        self.ilv = bool(p["ILV1"])
        Df = lambda n: p["D_B0"] if n < p["NB0"] else p["D_B"] if n < p["NB2"] else p["D_B2"]
        D = p["D_B"]
        tok = []
        ch = []
        def issue(n, throttle=True):
            if throttle and n >= Df(n):
                if n < p["NDUTY"]:
                    L = self.lab("dty")
                    e(f"s_cbranch_vccnz {L}")
                    e.wait_vm(tok[n - Df(n)])
                    e.label(L)
                    if n > Df(n): e.wait_vm(tok[n - Df(n) - 1])
                elif p["NL"] and n >= p["NL"]:
                    if n == p["NL"]:
                        e(f"s_waitcnt lgkmcnt(0)\nv_readfirstlane_b32 s3, v5\ns_cmp_eq_u32 s3, 0\ns_cselect_b64 vcc, -1, 0")
                    L = self.lab("bal")
                    e(f"s_cbranch_vccnz {L}")
                    e.wait_vm(tok[n - p["DSLOW"]])
                    e.label(L)
                    e.wait_vm(tok[n - Df(n)])
                else: e.wait_vm(tok[n - Df(n)])
            if p["NL"] and n == p["NL"] - 1:
                e.ds(f"ds_read_b32 v5, v15 offset:{LB_FLAG+16}")
            if p["NL"] and n == p["NTK"]:
                assert n > p["N1"]
                L = self.lab("tk")
                e(f"s_cmp_eq_u32 s{sW}, 6\ns_cbranch_scc0 {L}")
                e(f"ds_write_b32 v15, v32 offset:{LB_FLAG+20}")
                e.label(L)
            self.prog(n, 4)
            if n < 24:
                if n and (n % 4 == 0 or self.ilv): e("s_add_u32 s14, s14, s67")
                tok.append(self.b_kload(KR, n >> 2, n & 3))
            elif n < 48:
                m = n - 24
                if m and (m % 4 == 0 or self.ilv): e("s_add_u32 s15, s15, s67")
                tok.append(self.b_vload(VR, m >> 2, m & 3))
        n = 0
        if p["PRIO"]:
            L = self.lab("prio")
            e(f"s_cmp_ge_u32 s{sW}, 4\ns_cbranch_scc0 {L}\ns_setprio {p['PRIO']}")
            e.label(L)
        def touch():
            e(f"s_mul_i32 s3, s64, 7\ns_add_u32 s3, s3, s{sW}\ns_and_b32 s12, s3, 7\ns_lshl_b32 s12, s12, 13\ns_lshr_b32 s3, s3, 3\ns_add_u32 s3, s3, {p['TOUCH']}\ns_lshl_b32 s3, s3, 19\ns_add_u32 s3, s3, s12")
            e(f"s_lshl_b32 s12, s{sX}, 16\ns_add_u32 s3, s3, s12\nv_lshlrev_b32 v12, {p['TSH']}, v10\nv_add_u32 v12, s3, v12")
            for k in range(8 >> p["TSH"]):
                e.vmem(f"buffer_load_dword v5, v12, s[20:23], 0 offen {p['TM']}")
                if k + 1 < 8 >> p["TSH"]: e(f"v_add_u32 v12, {1024 << p['TSH']}, v12")
        if p["TOUCH"]:
            self.srd(20, 18, 1 << 24)
            if p["TPOS"] == 1: touch()
        tq = self.p1_compute(False)
        if p["TOUCH"] and p["TPOS"] == 0: touch()
        while n < p["D_B0"]: issue(n); n += 1
        if not p["QBE"]: self.p1_gemv_b(tq)
        assert p["NDUTY"] <= p["N1"]
        if p["NDUTY"]:
            if p["DEEPW"] < 0: e("s_cmp_lt_u32 s64, 16\ns_cselect_b64 vcc, -1, 0")
            elif p["DEEPW"] == p["DEEPN"]: e(f"s_cmp_ge_u32 s{sW}, {7-p['DEEPW']}\ns_cselect_b64 vcc, -1, 0")
            else: e(f"s_cmp_lt_u32 s64, 16\ns_cselect_b32 s3, {7-p['DEEPW']}, {7-p['DEEPN']}\ns_cmp_ge_u32 s{sW}, s3\ns_cselect_b64 vcc, -1, 0")
        while n < p["N1"]: issue(n); n += 1
        ch += self.b_chunks(NT_, KR, None, True)
        done = 0
        landed = -1
        while n < 48:
            if n == max(p["WARMO"], p["N1"]):
                assert n >= 24
                self.bo_warm() if p["WARMB"] else self.bo_addr()
            issue(n)
            if n == p["NWO"]:
                assert not ch
                self.b_woloads()
            landed = max(landed, n - Df(n))
            k = 0
            while ch and k < p["CPS"] and 4 * ch[0][0] + 3 <= landed:
                ch.pop(0)[1](); k += 1
            k = 0
            while not ch and done < min(landed - 24 + 1, 24) and k < p["PVK"]:
                self.b_pv_prep(KR, done); self.b_pv_mma(VR, done); done += 1; k += 1
            n += 1
        assert not ch
        assert done <= p["WOK"]
        self.b_tail_addrs()
        while done < 24:
            self.b_pv_prep(KR, done)
            e.wait_vm(tok[24 + done])
            if done == p["WOK"] and not p["NWO"]:
                L = self.lab("wol")
                e(f"s_cmp_lt_u32 s{sW}, {p['WOLATE']}\ns_cbranch_scc0 {L}")
                v = e.vm
                self.b_woloads()
                e.vm = v
                e.label(L)
            self.b_pv_mma(VR, done); done += 1
        self.stamp(7)
        self.b_owrite()

    def b_tail(self):
        e = self.e
        e.label("L_btail")
        e("s_barrier")
        self.stamp(10)
        e(f"s_cmp_lt_u32 s{sW}, 2\ns_cbranch_scc0 L_bt_nored")
        e(f"s_lshl_b32 s3, s{sW}, 10\nv_add_u32 v11, s3, v10")
        e(f"v_lshlrev_b32 v13, 5, v{vG}")
        e("v_mov_b32 v12, 0")
        e.ds(f"ds_read_b32 v62, v12 offset:{LB_FLAG+24}")
        e.ds(f"ds_read_b128 v[44:47], v13 offset:{LB_G}")
        e.ds(f"ds_read_b128 v[48:51], v13 offset:{LB_G+16}")
        tk = [e.ds(f"ds_read_b128 {vr(128+4*w)}, v11 offset:{LB_R4+2048*w}") for w in range(8)]
        e(f"s_mul_i32 s15, s{sX}, {4*24*512}\ns_lshl_b32 s3, s64, 9\ns_add_u32 s15, s15, s3\ns_lshl_b32 s3, s{sW}, 8\ns_add_u32 s15, s15, s3\ns_add_u32 s15, s15, {WS_BO}")
        e(f"v_mul_u32_u24 v14, {24*512}, v{vG}\nv_lshl_add_u32 v14, v{vC}, 4, v14\nv_mov_b32 v53, {sTX}\nv_mov_b32 v55, {sTX}")
        for w in range(8):
            e.wait_lg(tk[w])
            g = 44 + (w & ~1)
            sel = f"op_sel:[0,{w&1},0] op_sel_hi:[1,{w&1},1]"
            for k in (0, 2):
                if w == 0: e(f"v_pk_mul_f32 v[{128+k}:{129+k}], v[{128+k}:{129+k}], v[{g}:{g+1}] op_sel:[0,0] op_sel_hi:[1,0]")
                else: e(f"v_pk_fma_f32 v[{128+k}:{129+k}], v[{128+4*w+k}:{129+4*w+k}], v[{g}:{g+1}], v[{128+k}:{129+k}] {sel}")
        e("v_cvt_pk_bf16_f32 v52, v128, v129\nv_cvt_pk_bf16_f32 v54, v130, v131")
        e.vmem(f"buffer_store_dwordx4 v[52:55], v14, {WS}, s15 offen")
        e(f"v_readfirstlane_b32 s3, v62\ns_cmp_eq_u32 s3, 0\ns_cbranch_scc1 L_bt_nored\ns_add_u32 s15, s15, {SLOW}\nv_mov_b32 v53, s{sT}\nv_mov_b32 v55, s{sT}")
        e(f"buffer_store_dwordx4 v[52:55], v14, {WS}, s15 offen sc1")
        e.label("L_bt_nored")
        self.stamp(8)
        e("s_cmp_lt_u32 s64, 16\ns_cbranch_scc1 L_bt_duty")
        self.exit()
        e.label("L_bt_duty")
        if self.p["NWO"] and self.p["B4B"]: e("s_barrier")
        if self.p["WOLATE"] < 7 and not self.p["NWO"]:
            L = self.lab("wol")
            e(f"s_barrier\ns_sub_u32 s3, s{sW}, {self.p['WOLATE']}\ns_cmp_lt_u32 s3, {7-self.p['WOLATE']}\ns_cbranch_scc0 {L}")
            self.b_woloads()
            e.label(L)
        def g():
            e.vmem(f"buffer_load_dwordx4 v[128:131], v6, {WS}, s68 offen sc1")
            e.vmem(f"buffer_load_dwordx4 v[132:135], v9, {WS}, s68 offen sc1")
        def addrs():
            e.ds(f"ds_read_b32 v60, v63 offset:{LB_F}")
            e.ds(f"ds_read_b32 v61, v63 offset:{LB_F+64}")
            e("s_waitcnt lgkmcnt(0)")
        self.poll(g, [129, 131, 133, 135], 62, "gbo", fast="s68", shadow=addrs)
        self.stamp(11); self.cnt(12)
        for k, (src, f) in enumerate(((128, 60), (132, 61))):
            e(f"v_lshlrev_b32 v136, 16, v{src}\nv_and_b32 v137, 0xffff0000, v{src}\nv_lshlrev_b32 v138, 16, v{src+2}\nv_and_b32 v139, 0xffff0000, v{src+2}")
            for i in range(4):
                e(f"v_mul_f32 v{140+i}, v{f}, v{136+i}" if k == 0 else f"v_fmac_f32 v{140+i}, v{f}, v{136+i}")
        e("v_permlane32_swap_b32 v140, v142\nv_permlane32_swap_b32 v141, v143\nv_add_f32 v140, v140, v142\nv_add_f32 v141, v141, v143")
        e("v_permlane16_swap_b32 v140, v141\nv_add_f32 v140, v140, v141")
        self.rowred([140], "v_add_f32", (8, 4))
        e("v_cvt_pk_bf16_f32 v140, v140, v140")
        for i in range(4):
            for q in range(4): e(f"v_and_b32_dpp v{148+4*i+q}, v140, v{20+q} quad_perm:[{i},{i},{i},{i}] row_mask:0xf bank_mask:0xf")
            if i: e(f"v_mfma_f32_16x16x32_bf16 v[24:27], {vr(144+4*i)}, {vr(self.WO[i-1])}, {'0' if i == 1 else 'v[24:27]'}")
        e(f"v_mfma_f32_16x16x32_bf16 v[24:27], {vr(160)}, {vr(self.WO[3])}, v[24:27]")
        e.ds(f"ds_write_b128 v16, v[24:27] offset:{LB_R5}")
        e("s_waitcnt lgkmcnt(0)")
        self.stamp(13)
        e("s_barrier")
        self.stamp(14)
        e(f"s_cmp_eq_u32 s{sW}, 0\ns_cbranch_scc1 L_bt_fin")
        self.exit()
        e.label("L_bt_fin")
        tk = [e.ds(f"ds_read_b128 {vr(128+4*w)}, v17 offset:{LB_R5+1024*w}") for w in range(4)]
        for w in range(1, 4):
            e.wait_lg(tk[w])
            e(f"v_pk_add_f32 v[128:129], v[128:129], v[{128+4*w}:{129+4*w}]\nv_pk_add_f32 v[130:131], v[130:131], v[{130+4*w}:{131+4*w}]")
        e("v_permlane32_swap_b32 v128, v130\nv_permlane32_swap_b32 v129, v131")
        e("v_add_f32 v56, v128, v130\nv_add_f32 v58, v129, v131")
        e.vmem(f"buffer_store_dwordx4 v[56:59], v18, {WS}, s16 offen sc1")
        self.stamp(9)
        def fin(R):
            self.stamp(15); self.cnt(16)
            self.rowred([R, R + 2], "v_add_f32", (8, 4, 2))
            self.allred_G([R, R + 2], [144, 145], "v_add_f32")
            e(f"v_cvt_pk_bf16_f32 v146, v{R}, v{R+2}")
            self.exec_mask(3, 0)
            e("buffer_store_dword v146, v15, s[48:51], s14 offen")
            if self.p["TIMING"]: self.exec_full(); e("s_waitcnt vmcnt(0)")
            self.exit()
        ld = lambda r: e(f"buffer_load_dwordx4 {vr(r)}, v19, {WS}, s17 offen sc1")
        if self.p["DPOLL"]: self.poll2(ld, 1, 128, 136, 62, "gob", fin)
        else:
            self.poll(lambda: ld(128), [129, 131], 62, "gob")
            fin(128)

    def a_setup(self):
        e = self.e
        e(f"s_lshl_b32 s64, s{sX}, 3\ns_add_u32 s64, s64, s{sSLOT}\ns_lshr_b32 s65, s64, 1\ns_and_b32 s66, s64, 1")
        e(f"s_lshl_b32 s14, s64, 13\ns_lshl_b32 s3, s{sW}, 10\ns_add_u32 s14, s14, s3\ns_mov_b32 s61, 0x80000")
        e(f"s_lshl_b32 s15, s{sW}, 13\ns_add_u32 s15, s15, {WS_QABS}")
        e(f"s_lshl_b32 s67, s{sW}, 14")
        e(f"v_and_b32 v11, 3, v{vC}\nv_lshlrev_b32 v11, 2, v11")
        e(f"v_lshrrev_b32 v12, 2, v{vC}\nv_and_b32 v13, 1, v12\nv_or_b32 v11, v11, v13")
        e(f"v_xor_b32 v12, v12, v{vC}\nv_and_b32 v12, 2, v12\nv_or_b32 v11, v11, v12")
        e(f"v_lshlrev_b32 v11, 4, v11\nv_lshl_add_u32 v11, v{vG}, 8, v11\nv_lshl_add_u32 v11, v{vC}, 10, v11")
        e(f"v_add_u32 v6, s67, v11\nv_add_u32 v7, {LA_Q}, v11")
        e(f"v_add_u32 v9, s67, v10")
        e("s_waitcnt lgkmcnt(0)")
        if self.p["WSOFF"]: e(f"s_add_u32 s42, s42, {self.p['WSOFF'] << 20}\ns_addc_u32 s43, s43, 0")
        e(f"s_load_dword s{sT}, s[42:43], 0")
        self.srd(48, 18, 1 << 24)
    def a_issue(self, depthf, p1at=None):
        e, p = self.e, self.p
        T1, T0, QG = 64, 128, 192
        seq = [("t1", i) for i in range(16)] + [("t0", i) for i in range(16)]
        q = p["QPOS"]
        seq = seq[:q] + [("q", i) for i in range(8)] + seq[q:]
        tok, done = [], 0
        tokof = {}
        def landed_action(it):
            kind, i = it
            if p["ANODS"]: return
            if kind == "t1":
                e(f"v_xor_b32 v12, {16*fswz(i)}, v9")
                e.ds(f"ds_write_b128 v12, {vr(T1+4*i)} offset:{1024*i}")
                if i == 15:
                    e("s_waitcnt lgkmcnt(0)")
                    for ks in range(16):
                        e(f"v_xor_b32 v12, {16*ks}, v6")
                        e.ds(f"ds_read_b128 {vr(T1+4*ks)}, v12")
            elif kind == "t0":
                e(f"v_xor_b32 v12, {16*fswz(i)}, v9")
                e.ds(f"ds_write_b128 v12, {vr(T0+4*i)} offset:{1024*i}")
        def qload(i):
            if i % 4 == 0: e(f"s_add_u32 s12, s15, {1024*i}")
            return e.vmem(f"buffer_load_dwordx4 {vr(QG+4*i)}, v10, {WS}, s12 offen offset:{1024*(i&3)} sc1")
        for n, it in enumerate(seq):
            if n == p1at: e.label('L_arest'); self.selectors(); self.a_addrs(); self.tagmake(); self.stamp(1)
            if p["CPA"] and n == p["CPA"]:
                L = self.lab("cpa")
                e(f"s_cmp_lt_u32 s{sW}, 2\ns_cbranch_scc0 {L}")
                v = e.vm
                self.code_pf("L_acomp", "L_codeend", "L_pca", "v0")
                e.vm = v
                e.label(L)
            D = depthf(n)
            if n >= D:
                e.wait_vm(tok[n - D])
            self.prog(n, 4)
            kind, i = it
            if kind == "q":
                t = qload(i)
            else:
                t = e.vmem(f"buffer_load_dwordx4 {vr((T1 if kind == 't1' else T0)+4*i)}, v10, s[48:51], s14 offen {p['NT']}")
                if not (kind == "t0" and i == 15): e("s_add_u32 s14, s14, s61")
            tok.append(t); tokof[it] = t
            while done <= n - D and done < len(seq) and n >= D:
                landed_action(seq[done]); done += 1
        e.wait_vm(tokof[("q", 7)])
        while done < len(seq) and tok[done] <= tokof[("q", 7)]:
            landed_action(seq[done]); done += 1
        self.stamp(2)
        tags = [QG + 4 * i + k for i in range(8) for k in (1, 3)]
        self.tagcheck(tags, 60)
        R, B = self.lab("aqr"), self.lab("aqb")
        e(f"s_cbranch_vccnz {R}")
        e.label(B)
        def ool():
            e.label(R)
            e("s_mov_b32 s13, 0")
            L = self.lab("aql")
            e.label(L)
            e("s_mov_b32 s4, 0")
            for i in range(8):
                S = self.lab("aqs")
                self.tagcheck([QG + 4 * i + 1, QG + 4 * i + 3], 60)
                e(f"s_cbranch_vccz {S}\ns_add_u32 s12, s15, {1024*i}\ns_mov_b32 s4, 1")
                e(f"buffer_load_dwordx4 {vr(QG+4*i)}, v10, {WS}, s12 offen sc1")
                e.label(S)
            e(f"s_cmp_eq_u32 s4, 0\ns_cbranch_scc1 {B}\ns_add_u32 s13, s13, 1\ns_waitcnt vmcnt(0)\ns_cmp_gt_u32 s13, {p['MAXPOLL']}\ns_cbranch_scc0 {L}\ns_branch {B}")
        self.ool.append(ool)
        self.stamp(3)
        for i in range(8):
            e(f"v_mov_b32 v{QG+4*i+1}, v{QG+4*i+2}")
            if i % 2 == 0: e(f"v_xor_b32 v12, {16*fswz(i>>1)}, v4")
            e.ds(f"ds_write_b64 v12, v[{QG+4*i}:{QG+4*i+1}] offset:{1024*(i>>1)+512*(i&1)}")
        if p["QKE"]:
            FR = (224, 236, 44)
            e("s_waitcnt lgkmcnt(0)\ns_barrier")
            self.stamp(4)
            if p["AKILL"] == 1: self.exit()
            def rd(ks):
                f = FR[ks % 3]
                e(f"v_xor_b32 v13, {16*ks}, v7")
                e.ds(f"ds_read_b128 {vr(f)}, v13")
                return e.ds(f"ds_read_b128 {vr(f+4)}, v13 offset:16384")
            tk = {0: rd(0), 1: rd(1)}
            left = len(seq) - done
            for ks in range(16):
                f = FR[ks % 3]
                e.wait_lg(tk[ks])
                c = lambda r: "0" if ks == 0 else vr(r)
                e(f"v_mfma_f32_16x16x32_bf16 {vr(24)}, {vr(T1+4*ks)}, {vr(f)}, {c(24)}")
                if ks + 2 < 16: tk[ks + 2] = rd(ks + 2)
                e(f"v_mfma_f32_16x16x32_bf16 {vr(28)}, {vr(T1+4*ks)}, {vr(f+4)}, {c(28)}")
                if left and done < len(seq) and (ks + 1) * left >= (done - (len(seq) - left) + 1) * 16:
                    e.wait_vm(tok[done]); landed_action(seq[done]); done += 1
        while done < len(seq):
            e.wait_vm(tok[done]); landed_action(seq[done]); done += 1
        e("s_waitcnt lgkmcnt(0)")

    def a_addrs(self):
        e = self.e
        e(f"v_lshlrev_b32 v250, 5, v{vC}\ns_lshl_b32 s3, s{sW}, 2\nv_add_u32 v250, {LA_MX}, v250\nv_add_u32 v251, s3, v250")
        e(f"v_lshrrev_b32 v252, 1, v{vG}\ns_lshl_b32 s3, s{sW}, 1\nv_add_u32 v252, s3, v252\nv_xor_b32 v252, v252, v{vC}\nv_lshlrev_b32 v252, 4, v252\nv_lshl_add_u32 v252, v{vC}, 9, v252")
        e(f"v_and_b32 v56, 1, v{vG}\nv_lshl_add_u32 v252, v56, 3, v252\nv_add_u32 v252, {LA_P}, v252")
        e(f"v_and_b32 v14, 31, v{vL}\nv_lshrrev_b32 v15, 5, v{vL}")
        e(f"v_xor_b32 v253, v15, v{vC}\nv_lshlrev_b32 v253, 4, v253\nv_lshl_add_u32 v253, v14, 9, v253\nv_add_u32 v253, {LA_P}, v253")
        e(f"v_bfe_u32 v57, v{vL}, 2, 2\nv_lshlrev_b32 v58, 2, v57\nv_lshrrev_b32 v59, 1, v57\nv_xor_b32 v59, v59, v15\nv_lshl_add_u32 v58, v59, 1, v58")
        e(f"v_bfe_u32 v59, v{vL}, 1, 1\nv_lshl_add_u32 v59, v56, 1, v59\ns_and_b32 s3, s{sW}, 1\ns_lshl_b32 s3, s3, 3\nv_add_u32 v59, s3, v59\nv_xor_b32 v58, v58, v59")
        e(f"v_lshlrev_b32 v58, 4, v58\nv_and_b32 v59, 1, v{vL}\nv_lshl_add_u32 v58, v59, 3, v58\nv_lshl_add_u32 v58, v57, 10, v58\nv_lshl_add_u32 v58, v15, 13, v58")
        e(f"s_lshr_b32 s3, s{sW}, 1\ns_lshl_b32 s3, s3, 8\nv_add_u32 v32, s3, v58")
        e("v_xor_b32 v33, 16, v32\nv_add_u32 v33, 0x1000, v33\nv_xor_b32 v34, 64, v32\nv_xor_b32 v35, 64, v33")
        e(f"v_and_b32 v254, 7, v14\nv_lshlrev_b32 v254, 4, v254\nv_lshl_add_u32 v254, v14, 10, v254\nv_lshl_add_u32 v254, v15, 3, v254\ns_lshl_b32 s3, s{sW}, 7\nv_add_u32 v254, s3, v254")
        e(f"s_lshl_b32 s3, s{sW}, 13\nv_add_u32 v255, s3, v10")
        e(f"v_lshlrev_b32 v4, 3, v{vL}\ns_lshl_b32 s3, s{sW}, 12\ns_add_u32 s3, s3, {LA_Q}\nv_add_u32 v4, s3, v4\ns_and_b32 s3, s{sW}, 3\ns_lshl_b32 s3, s3, 4\nv_xor_b32 v4, s3, v4")
        e(f"s_lshl_b32 s16, s{sW}, 19\ns_lshl_b32 s3, s64, 10\ns_add_u32 s16, s16, s3\ns_add_u32 s16, s16, {WS_AO}\ns_mov_b32 s17, 0x10000")
        self.a_wsetup()
    def a_wsetup(self):
        e, nt = self.e, self.p["NT"]
        UV, WO = 160, 192
        self.srd(52, 24, 1 << 22); self.srd(56, 26, 1 << 22)
        e(f"s_lshl_b32 s68, s{sW}, 19\ns_lshl_b32 s3, s65, 8\ns_add_u32 s68, s68, s3\ns_lshl_b32 s3, s66, 7\ns_add_u32 s68, s68, s3")
        e(f"v_bfe_u32 v248, v{vL}, 3, 1\nv_lshlrev_b32 v248, 16, v248\nv_lshl_add_u32 v248, v{vG}, 17, v248\nv_lshl_add_u32 v248, v8, 4, v248")
        e(f"s_lshl_b32 s69, s64, 16\ns_lshr_b32 s3, s{sW}, 2\ns_lshl_b32 s3, s3, 15\ns_add_u32 s69, s69, s3\ns_and_b32 s3, s{sW}, 3\ns_lshl_b32 s3, s3, 8\ns_add_u32 s69, s69, s3")
        e(f"v_lshlrev_b32 v249, 13, v{vG}\nv_lshl_add_u32 v249, v{vC}, 4, v249")
        self.wq = []
        for i in range(8):
            self.wq.append((f"buffer_load_dwordx4 {vr(UV+4*i)}, v248, s[52:55], s68 offen {nt}", "s_addk_i32 s68, 0x2000" if i < 7 else ""))
        for i in range(8):
            self.wq.append((f"buffer_load_dwordx4 {vr(WO+4*i)}, v249, s[56:59], s69 offen offset:{1024*(i&3)} {nt}", "s_addk_i32 s69, 0x1000" if i == 3 else ""))
    def hook(self, k):
        if self.p["TKM"] >> k & 1: self.wtick()
    def wtick(self, n=1, late=False):
        for _ in range(n):
            if self.wq and (late or len(self.wq) > 16 - self.p["NWE"]):
                a, b = self.wq.pop(0)
                self.e.vmem(a); self.e(b)

    def a_tail_addrs(self):
        e = self.e
        e(f"v_and_b32 v20, 1, v{vG}\nv_lshlrev_b32 v252, 5, v20\nv_lshl_add_u32 v252, v{vC}, 6, v252\nv_lshl_add_u32 v252, v15, 4, v252")
        e(f"s_and_b32 s3, s{sW}, 3\ns_lshl_b32 s14, s3, 8\nv_lshrrev_b32 v22, 2, v252\nv_add_u32 v22, s14, v22")
        e(f"s_lshl_b32 s12, s65, 16\ns_add_u32 s12, s12, s14\ns_add_u32 s12, s12, {WS_AO}")
        e(f"v_lshlrev_b32 v15, 10, v{vG}\nv_lshl_add_u32 v15, v{vC}, 4, v15")
        e(f"v_bfe_u32 v16, v{vL}, 3, 1\nv_lshlrev_b32 v17, 7, v16\nv_lshl_add_u32 v17, v{vG}, 5, v17\nv_add_u32 v17, s14, v17")
        e(f"s_lshl_b32 s3, s{sW}, 10\nv_add_u32 v18, s3, v10")
        e(f"v_and_b32 v19, 3, v{vL}\nv_lshlrev_b32 v19, 4, v19\nv_lshrrev_b32 v23, 2, v{vL}\nv_add_u32 v19, v19, v23\nv_lshlrev_b32 v19, 1, v19\nv_add_u32 v19, s14, v19")
        e(f"v_lshlrev_b32 v20, 4, v16\nv_lshl_add_u32 v20, v{vG}, 5, v20\ns_lshl_b32 s3, s{sW}, 7\nv_add_u32 v20, s3, v20")
        e(f"v_lshlrev_b32 v23, 8, v16\nv_lshl_add_u32 v23, v8, 4, v23\nv_lshl_add_u32 v23, v{vG}, 11, v23")
        e(f"v_lshlrev_b32 v250, 3, v16\nv_lshl_add_u32 v250, v8, 4, v250\nv_lshl_add_u32 v250, v{vG}, 1, v250\nv_add_u32 v250, s3, v250")
        e(f"s_lshr_b32 s14, s{sW}, 2\ns_lshl_b32 s14, s14, 6\ns_add_u32 s3, s3, s14\nv_lshlrev_b32 v251, 4, v{vG}\nv_add_u32 v251, s3, v251")
        sh = self.p["AMS"]
        e(f"v_lshlrev_b32 v14, {sh}, v{vL}")
        e(f"s_lshl_b32 s15, s65, {6+sh}\ns_add_u32 s15, s15, {WS_AML if sh == 4 else WS_AML2}\ns_mov_b32 s18, 0x11111111\ns_mov_b32 s19, 0x11111111\ns_mov_b32 s13, 0")
        e(f"s_lshl_b32 s61, s64, 12\ns_lshl_b32 s3, s{sW}, 10\ns_add_u32 s61, s61, s3\ns_add_u32 s61, s61, {WS_OUTA}")

    def a_main(self):
        e, p = self.e, self.p
        T1 = 64
        FR = (224, 236, 44)
        qke = p["QKE"]
        e.label("L_acomp")
        if not qke:
            e("s_barrier")
            self.stamp(4); self.cyc(23)
            if p["AKILL"] == 1: self.exit()
        else: self.stamp(17)
        def rd(ks):
            f = FR[ks % 3]
            e(f"v_xor_b32 v12, {16*ks}, v6\nv_xor_b32 v13, {16*ks}, v7")
            e.ds(f"ds_read_b128 {vr(f)}, v13")
            e.ds(f"ds_read_b128 {vr(f+4)}, v13 offset:16384")
            return e.ds(f"ds_read_b128 {vr(f+8)}, v12")
        tk = {0: rd(0), 1: rd(1)}
        for ks in range(16):
            f = FR[ks % 3]
            e.wait_lg(tk[ks])
            c = lambda r: "0" if ks == 0 else vr(r)
            if not qke:
                e(f"v_mfma_f32_16x16x32_bf16 {vr(24)}, {vr(T1+4*ks)}, {vr(f)}, {c(24)}")
                e(f"v_mfma_f32_16x16x32_bf16 {vr(28)}, {vr(T1+4*ks)}, {vr(f+4)}, {c(28)}")
            else: e(f"v_mfma_f32_16x16x32_bf16 {vr(16)}, {vr(f+8)}, {vr(f)}, {c(16)}")
            if ks + 2 < 16: tk[ks + 2] = rd(ks + 2)
            if ks % p['TQ'] == 0: self.wtick()
            if not qke: e(f"v_mfma_f32_16x16x32_bf16 {vr(16)}, {vr(f+8)}, {vr(f)}, {c(16)}")
            e(f"v_mfma_f32_16x16x32_bf16 {vr(20)}, {vr(f+8)}, {vr(f+4)}, {c(20)}")
        self.hook(0)
        for hh in range(2):
            a, b = 16 + 4 * hh, 24 + 4 * hh
            e(f"v_max3_f32 v{56+hh}, v{a}, v{a+1}, v{a+2}\nv_max3_f32 v{56+hh}, v{56+hh}, v{a+3}, v{b}\nv_max3_f32 v{56+hh}, v{56+hh}, v{b+1}, v{b+2}\nv_max_f32 v{56+hh}, v{56+hh}, v{b+3}")
        self.allred_G([56, 57], [58, 59], "v_max_f32")
        e("s_barrier")
        self.stamp(10)
        self.exec_mask(0xffff, 0)
        e.ds("ds_write_b32 v251, v56")
        e.ds("ds_write_b32 v251, v57 offset:512")
        self.exec_full()
        e("s_waitcnt lgkmcnt(0)\ns_barrier")
        for hh in range(2):
            e.ds(f"ds_read_b128 {vr(224+8*hh)}, v250 offset:{512*hh}")
            e.ds(f"ds_read_b128 {vr(228+8*hh)}, v250 offset:{512*hh+16}")
        e("s_waitcnt lgkmcnt(0)")
        for hh in range(2):
            m = 224 + 8 * hh
            e(f"v_max3_f32 v{56+hh}, v{m}, v{m+1}, v{m+2}\nv_max3_f32 v{56+hh}, v{56+hh}, v{m+3}, v{m+4}\nv_max3_f32 v{56+hh}, v{56+hh}, v{m+5}, v{m+6}\nv_max_f32 v{56+hh}, v{56+hh}, v{m+7}")
            e(f"v_mul_f32 v{56+hh}, {sCS}, v{56+hh}")
        for T in range(2):
            for hh in range(2):
                for r in range(4):
                    s = 16 + 8 * T + 4 * hh + r
                    e(f"v_fma_f32 v{s}, v{s}, {sCS}, -v{56+hh}")
        self.hook(1)
        for s in range(16, 32): e(f"v_exp_f32 v{s}, v{s}")
        for T in range(2):
            for hh in range(2):
                s, d = 16 + 8 * T + 4 * hh, 56 + 4 * T + 2 * hh
                e(f"v_cvt_pk_bf16_f32 v{d}, v{s}, v{s+1}\nv_cvt_pk_bf16_f32 v{d+1}, v{s+2}, v{s+3}")
                e.ds(f"ds_write_b64 v252, v[{d}:{d+1}] offset:{256*T+8192*hh}")
        HI = (4, 5, 11, 13)
        for k in range(4): e(f"v_add_u32 v{HI[k]}, 0x10000, v{32+k}")
        def rdc(n):
            f = FR[n % 3]
            for t in range(2):
                for nn in range(2):
                    a = 32 + 2 * t + nn if (n & 7) < 4 else HI[2 * t + nn]
                    tkk = e.ds(f"ds_read_b64_tr_b16 v[{f+4+4*t+2*nn}:{f+5+4*t+2*nn}], v{a} offset:{16384*(n&3)}")
            return tkk
        def rdq(n):
            e(f"v_xor_b32 v12, {32*(n&7)}, v253")
            return e.ds(f"ds_read_b128 {vr(FR[n % 3])}, v12 offset:{256*(n>>3)}")
        if p["PVM"] or p["PRC"]:
            tp = e.lg
            rdc(0); rdc(1)
            e.wait_lg(tp)
            e("s_barrier")
        else: e("s_waitcnt lgkmcnt(0)\ns_barrier")
        self.stamp(5)
        ACC = (128, 144)
        fill = Emit()
        sv, self.e = self.e, fill
        for hh in range(2):
            a, b = 16 + 4 * hh, 24 + 4 * hh
            for s in (a + 1, a + 2, a + 3, b, b + 1, b + 2, b + 3): fill(f"v_add_f32 v{a}, v{a}, v{s}")
        self.allred_G([16, 20], [17, 21], "v_add_f32")
        lsum = list(fill.L); fill.L = []
        fill(f"v_lshlrev_b32 v21, 5, v8\ns_lshl_b32 s3, s{sW}, 8\ns_add_u32 s3, s3, {LA_MX}\nv_add_u32 v21, s3, v21")
        if p["INB"]:
            fill(f"s_and_b32 s22, s{sT}, 0xeeeeeeee\ns_and_b32 s3, s{sT}, 1\ns_mul_i32 s3, s3, 0x1111\ns_or_b32 s22, s22, s3")
            fill(f"s_bfe_u32 s3, s{sT}, 0x10001\ns_mul_i32 s3, s3, 0x11110000\ns_or_b32 s22, s22, s3\ns_mov_b32 s23, 0x00010001")
            fill("v_lshlrev_b32 v63, 1, v15\nv_lshrrev_b32 v63, v63, s22")
            for q in range(4):
                for k in range(2):
                    if (q, k) != (3, 1): fill(f"v_lshrrev_b32 v{56+2*q+k}, {4*q+k}, v63")
            fill("v_lshrrev_b32 v63, 13, v63")
        self.a_tail_addrs()
        taddr = list(fill.L)
        self.e = sv
        def rdp(R, n):
            f = FR[n % 3]
            e(f"v_xor_b32 v12, {32*n}, v253")
            e.ds(f"ds_read_b128 {vr(f)}, v12 offset:{256*R}")
            for t in range(2):
                for nn in range(2):
                    a = 32 + 2 * t + nn if n < 4 else HI[2 * t + nn]
                    tkk = e.ds(f"ds_read_b64_tr_b16 v[{f+4+4*t+2*nn}:{f+5+4*t+2*nn}], v{a} offset:{16384*(n&3)}")
            return tkk
        def half(R, h, tk, write, filler, carry):
            n0 = 4 * h
            for n in range(n0, n0 + 2):
                if n not in tk: tk[n] = rdp(R, n)
            per = -(-len(filler) // 8)
            for n in range(n0, n0 + 4):
                f = FR[n % 3]
                e.wait_lg(tk[n])
                first = (R == 0 and n == 0)
                e(f"v_mfma_f32_32x32x16_bf16 {vr(ACC[0],16)}, {vr(f+4)}, {vr(f)}, {'0' if first else vr(ACC[0],16)}")
                if n + 2 < n0 + 4 or carry: tk[n + 2] = rdp(R, n + 2)
                if n == n0 + 1: self.hook(2 + 2 * (2 * R + h))
                for _ in range(per):
                    if filler: e(filler.pop(0))
                e(f"v_mfma_f32_32x32x16_bf16 {vr(ACC[1],16)}, {vr(f+8)}, {vr(f)}, {'0' if first else vr(ACC[1],16)}")
                if write:
                    for ks in range(4 * (n - n0), 4 * (n - n0) + 4):
                        e(f"v_xor_b32 v12, {16*ks}, v6")
                        e.ds(f"ds_write_b128 v12, {vr(T1+4*ks)}")
                for _ in range(per):
                    if filler: e(filler.pop(0))
        if p["PVM"]:
            e(f"s_lshr_b32 s20, s{sW}, 1")
            tk = {0: rdq(0), 1: rdq(1)}
            for st in range(16):
                f = FR[st % 3]
                filler = lsum if st < 2 else taddr if st >= 12 else []
                per = -(-len(filler) // (2 * ((2 if st < 2 else 16) - st))) if filler else 0
                e.wait_lg(tk[st])
                e(f"v_mfma_f32_32x32x16_bf16 {vr(ACC[0],16)}, {vr(f+4)}, {vr(f)}, {'0' if st == 0 else vr(ACC[0],16)}")
                for k in range(4):
                    if 2 * k + 2 <= st <= 2 * k + 5:
                        L = self.lab("pvw")
                        e(f"s_cmp_eq_u32 s20, {k}\ns_cbranch_scc0 {L}")
                        for ks in range(4 * (st - 2 * k - 2), 4 * (st - 2 * k - 2) + 4):
                            e(f"v_xor_b32 v12, {16*ks}, v6\nds_write_b128 v12, {vr(T1+4*ks)}")
                        e.label(L)
                if st + 2 < 16:
                    rdq(st + 2); tk[st + 2] = rdc(st + 2)
                for _ in range(per):
                    if filler: e(filler.pop(0))
                e(f"v_mfma_f32_32x32x16_bf16 {vr(ACC[1],16)}, {vr(f+8)}, {vr(f)}, {'0' if st == 0 else vr(ACC[1],16)}")
                for _ in range(per):
                    if filler: e(filler.pop(0))
                if st == 1:
                    self.exec_mask(0xffff, 0)
                    e.ds(f"ds_write_b32 v251, v16 offset:{LA_LS-LA_MX}")
                    e.ds(f"ds_write_b32 v251, v20 offset:{LA_LS-LA_MX+512}")
                    self.exec_full()
                if st & 1 and st < 14:
                    self.hook(2 + st // 2)
                    if st < 12:
                        e.wait_lg(tk[st + 1])
                        e("s_barrier")
                    if st in (3, 7, 11): self.stamp({3: 11, 7: 12, 11: 25}[st])
        else:
            tk = {0: rdq(0), 1: rdq(1)} if p["PRC"] else {}
            half(0, 0, tk, False, lsum, True)
            self.exec_mask(0xffff, 0)
            e(f"ds_write_b32 v251, v16 offset:{LA_LS-LA_MX}\nds_write_b32 v251, v20 offset:{LA_LS-LA_MX+512}")
            e.lg += 2
            self.exec_full()
            self.hook(3)
            e("s_barrier")
            self.stamp(11)
            for R, h in ((0, 1), (1, 0)):
                LW, LJ = self.lab("pvw"), self.lab("pvj")
                e(f"s_cmp_lt_u32 s{sW}, 4\ns_cbranch_scc{1 if R == 0 else 0} {LW}")
                lg0, vm0, wq0 = e.lg, e.vm, list(self.wq)
                half(R, h, dict(tk) if R == 0 else {}, False, [], False)
                e(f"s_branch {LJ}")
                e.label(LW)
                e.lg, e.vm, self.wq = lg0, vm0, wq0
                half(R, h, dict(tk) if R == 0 else {}, True, [], False)
                e("s_waitcnt lgkmcnt(0)")
                e.label(LJ)
                self.hook(5 if R == 0 else 7)
                e("s_barrier")
                self.stamp(12 if R == 0 else 25)
            half(1, 1, {}, False, taddr, False)
        e("s_barrier")
        self.stamp(13)
        self.wtick(16)
        e(f"s_cmp_lt_u32 s{sW}, 4\ns_cbranch_scc1 L_ast")
        e(f"buffer_load_dwordx4 v[224:227], v14, {WS}, s15 offen sc1")
        e.label("L_ast")
        for t in range(2):
            for q in range(4):
                a = ACC[t] + 4 * q
                e(f"v_cvt_pk_bf16_f32 v{a}, v{a}, v{a+1}\nv_cvt_pk_bf16_f32 v{a+1}, v{a+2}, v{a+3}\nv_xor_b32 v12, {16*(4*t+q)}, v254")
                if p["INB"]: e(f"v_bfi_b32 v{a}, s23, v{56+2*q}, v{a}\nv_bfi_b32 v{a+1}, s23, v{57+2*q}, v{a+1}")
                e.ds(f"ds_write_b64 v12, v[{a}:{a+1}]")
        e("s_waitcnt lgkmcnt(0)\ns_barrier")
        self.stamp(14); self.cyc(24)
        if p["AKILL"] == 8: self.exit()
        e(f"v_mov_b32 v53, s{sT}\nv_mov_b32 v55, s{sT}\ns_cbranch_scc0 L_agl2")
        tk = []
        for i in range(8):
            e(f"v_xor_b32 v12, {16*i}, v255")
            tk.append(e.ds(f"ds_read_b128 {vr(64+4*i)}, v12 offset:{1024*i}"))
        for k in range(2):
            e.ds(f"ds_read_b128 {vr(96+8*k)}, v21 offset:{1024*k}")
            e.ds(f"ds_read_b128 {vr(100+8*k)}, v21 offset:{1024*k+16}")
        for i in range(8):
            e.wait_lg(tk[i])
            e.vmem(f"buffer_store_dwordx4 {vr(64+4*i)}, v10, {WS}, s16 offen" + ("" if p["AOP"] else " sc1"))
            if i < 7: e("s_add_u32 s16, s16, s17")
        sh = p["AMS"]
        e(f"v_lshlrev_b32 v13, {6+sh}, v8\ns_lshl_b32 s16, s64, {sh}\ns_lshl_b32 s3, s{sW}, {9+sh}\ns_add_u32 s16, s16, s3\ns_add_u32 s16, s16, {WS_AML if sh == 4 else WS_AML2}")
        e("s_waitcnt lgkmcnt(0)")
        e("v_max3_f32 v52, v96, v97, v98\nv_max3_f32 v52, v52, v99, v100\nv_max3_f32 v52, v52, v101, v102\nv_max_f32 v52, v52, v103")
        e(f"v_mul_f32 v52, {sCS}, v52\nv_add_f32 v54, v104, v105")
        for r in range(106, 112): e(f"v_add_f32 v54, v54, v{r}")
        e("s_mov_b64 exec, 0xff" + ("" if p["INB"] else "\ns_waitcnt vmcnt(0)"))
        e(f"buffer_store_dwordx4 v[52:55], v13, {WS}, s16 offen sc1")
        self.exec_full()
        self.stamp(6)
        if p["AKILL"] == 9: self.exit()
        wsave = list(self.wq)
        if p["LPOS"] in (0, 2, 3):
            e("s_barrier")
            self.wtick(16, late=True)
        e("s_branch L_alat")
        e.label("L_agl")
        e(f"buffer_load_dwordx4 v[224:227], v14, {WS}, s15 offen sc1")
        e.label("L_agl2")
        e("s_add_u32 s13, s13, 1\ns_waitcnt vmcnt(0)")
        e(f"v_xor_b32 v60, s{sT}, v225\nv_bitop3_b32 v60, v227, s{sT}, v60 bitop3:0xbe\nv_cmp_eq_u32 vcc, 0, v60")
        e(f"s_cmp_gt_u32 s13, {p['MAXPOLL']}\ns_cselect_b64 vcc, -1, vcc")
        e("s_lshr_b64 s[4:5], vcc, 1\ns_and_b64 s[4:5], s[4:5], vcc\ns_lshr_b64 s[20:21], s[4:5], 2\ns_and_b64 s[4:5], s[4:5], s[20:21]\ns_and_b64 s[4:5], s[4:5], s[18:19]\ns_andn2_b64 s[18:19], s[18:19], s[4:5]")
        for i in range(16):
            L = self.lab("agi")
            e(f"s_bitcmp1_b64 s[4:5], {4*i}\ns_cbranch_scc0 {L}\ns_add_u32 s3, s12, {4096*i}")
            e(f"buffer_load_dwordx4 {vr(64+4*i)}, v15, {WS}, s3 offen sc1")
            e.label(L)
        e("s_cmp_eq_u64 vcc, -1\ns_cbranch_scc0 L_agl")
        self.stamp(7)
        if p["AKILL"] == 9: self.exit()
        if p["LPOS"] in (0, 2): e("s_barrier")
        tg = e.vm
        e(f"s_cmp_eq_u32 s64, 0\ns_cbranch_scc0 L_noep")
        e(f"v_mov_b32 v12, s{sT}\nv_mov_b32 v13, 0")
        self.exec_mask(1, 0)
        e(f"buffer_store_dword v12, v13, {WS}, 0 offen sc1")
        self.exec_full()
        e.label("L_noep")
        e("v_mov_b32 v56, v224")
        self.rowred([56], "v_max_f32", (8, 4, 2, 1))
        self.allred_G([56], [57], "v_max_f32")
        e("v_sub_f32 v224, v224, v56\nv_exp_f32 v224, v224\nv_mul_f32 v226, v226, v224")
        self.rowred([226], "v_add_f32", (8, 4, 2, 1))
        self.allred_G([226], [57], "v_add_f32")
        e("v_rcp_f32 v226, v226\nv_mul_f32 v224, v224, v226\nv_cvt_pk_bf16_f32 v225, v224, v224\nv_and_b32 v226, 0xffff0000, v225\nv_sub_f32 v226, v224, v226\nv_cvt_pk_bf16_f32 v226, v226, v226")
        e.ds(f"ds_write_b16 v19, v225 offset:{LA_F}")
        e.ds(f"ds_write_b16 v19, v226 offset:{LA_F+128}")
        e("s_waitcnt lgkmcnt(0)")
        e.ds(f"ds_read_b128 v[228:231], v17 offset:{LA_F}")
        e.ds(f"ds_read_b128 v[232:235], v17 offset:{LA_F+16}")
        e("s_waitcnt lgkmcnt(0)")
        for i in range(8): self.expand4(128 + 4 * i, 228 + (i >> 1), i & 1)
        if p["INB"]:
            e(f"v_and_b32 v59, 3, v{vL}\nv_lshlrev_b32 v59, 2, v59\nv_lshrrev_b32 v56, v59, s22\nv_lshrrev_b32 v57, 1, v56\nv_lshrrev_b32 v58, 2, v56\nv_lshrrev_b32 v59, 3, v56")
        e.wait_vm(tg)
        if p["LPOS"] == 3: e("s_barrier")
        if p["INB"]:
            def chk(rows, acc):
                first = True
                for i in rows:
                    for k in range(4):
                        e(f"v_xor_b32 v{acc}, v{56+k}, v{64+4*i+k}" if first else f"v_bitop3_b32 v{acc}, v{64+4*i+k}, v{56+k}, v{acc} bitop3:0xbe")
                        first = False
                e(f"v_and_b32 v{acc}, s23, v{acc}\nv_cmp_ne_u32 vcc, 0, v{acc}")
            chk(range(16), 60)
            e("s_cbranch_vccnz L_aor")
            e.label("L_aob")
            def ool():
                e.label("L_aor")
                e("s_mov_b32 s13, 0")
                e.label("L_aol")
                e("s_mov_b32 s4, 0")
                for i in range(16):
                    S = self.lab("aos")
                    chk([i], 60)
                    e(f"s_cbranch_vccz {S}\ns_add_u32 s3, s12, {4096*i}\ns_mov_b32 s4, 1")
                    e(f"buffer_load_dwordx4 {vr(64+4*i)}, v15, {WS}, s3 offen sc1")
                    e.label(S)
                e(f"s_cmp_eq_u32 s4, 0\ns_cbranch_scc1 L_aob\ns_add_u32 s13, s13, 1\ns_waitcnt vmcnt(0)\ns_cmp_gt_u32 s13, {p['MAXPOLL']}\ns_cbranch_scc0 L_aol\ns_branch L_aob")
            self.ool.append(ool)
        for i in range(16):
            if i < 8: e(f"v_mfma_f32_16x16x32_bf16 v[24:27], {vr(128+4*i)}, {vr(64+4*i)}, {'0' if i == 0 else 'v[24:27]'}")
            else: e(f"v_mfma_f32_16x16x32_bf16 v[24:27], {vr((44,48)[i&1])}, {vr(64+4*i)}, v[24:27]")
            if 6 <= i < 14: self.expand4((44, 48)[i & 1], 228 + ((i + 2) >> 1), i & 1)
        e("v_permlane32_swap_b32 v24, v26\nv_permlane32_swap_b32 v25, v27\nv_add_f32 v24, v24, v26\nv_add_f32 v25, v25, v27\nv_cvt_pk_bf16_f32 v24, v24, v25")
        e.ds(f"ds_write_b32 v22, v24 offset:{LA_LAT}")
        self.wq = wsave
        if p["LPOS"] in (0, 3): self.wtick(16, late=True)
        tkw = e.vm
        e("s_waitcnt lgkmcnt(0)")
        e.label("L_alat")
        e("s_barrier")
        self.stamp(15)
        if p["LPOS"] == 1:
            self.wtick(16, late=True)
            tkw = e.vm
        e.ds(f"ds_read_b128 v[28:31], v20 offset:{LA_LAT}")
        e("s_waitcnt lgkmcnt(0)")
        nlate = 16 - self.p["NWE"]
        wt = lambda k: (tkw - (15 - k)) if (15 - k) < nlate else None
        self.gemv8(24, 28, 160, [wt(k) for k in range(8)])
        if p["LPOS"] == 2:
            assert nlate <= 8
            L = self.lab("lat")
            e(f"s_cmp_lt_u32 s{sW}, 4\ns_cbranch_scc1 {L}")
            self.wtick(16, late=True)
            e.label(L)
            tkw = e.vm
        e.ds(f"ds_write_b128 v18, v[24:27] offset:{LA_R2}")
        e("s_waitcnt lgkmcnt(0)\ns_barrier")
        self.stamp(16)
        for k in range(4): e.ds(f"ds_read_b128 {vr(64+4*k)}, v23 offset:{LA_R2+1024*(k>>1)+(512+128)*(k&1)}")
        e("s_waitcnt lgkmcnt(0)")
        for k in range(1, 4):
            e(f"v_pk_add_f32 v[64:65], v[64:65], v[{64+4*k}:{65+4*k}]\nv_pk_add_f32 v[66:67], v[66:67], v[{66+4*k}:{67+4*k}]")
        e("v_permlane32_swap_b32 v64, v66\nv_permlane32_swap_b32 v65, v67\nv_add_f32 v64, v64, v66\nv_add_f32 v65, v65, v67")
        e("v_permlane16_swap_b32 v64, v65\nv_add_f32 v64, v64, v65\nv_cvt_pk_bf16_f32 v64, v64, v64")
        e.ds(f"ds_write_b16 v250, v64 offset:{LA_CTX}")
        e("s_waitcnt lgkmcnt(0)")
        e.ds(f"ds_read_b128 v[28:31], v251 offset:{LA_CTX}")
        e("s_waitcnt lgkmcnt(0)")
        self.gemv8(24, 28, 192, [wt(8 + k) for k in range(8)])
        e(f"s_cmp_lt_u32 s{sW}, 4\ns_cbranch_scc1 L_at_o")
        e.ds(f"ds_write_b128 v18, v[24:27] offset:{LA_R1}")
        e("s_waitcnt lgkmcnt(0)\ns_barrier")
        self.exit()
        e.label("L_at_o")
        e("s_barrier")
        e.ds(f"ds_read_b128 v[64:67], v18 offset:{LA_R1+4096}")
        e("s_waitcnt lgkmcnt(0)")
        e("v_pk_add_f32 v[24:25], v[24:25], v[64:65]\nv_pk_add_f32 v[26:27], v[26:27], v[66:67]")
        e(f"v_cndmask_b32 v52, v24, v26, {sHI}\nv_cndmask_b32 v54, v25, v27, {sHI}")
        e(f"buffer_store_dwordx4 v[52:55], v252, {WS}, s61 offen sc1")
        self.stamp(8)
        e(f"s_cmp_eq_u32 s{sW}, 0\ns_cbranch_scc1 L_at_fin")
        self.exit()
        e.label("L_at_fin")
        e(f"s_lshl_b32 s12, s64, 6\ns_add_u32 s12, s12, {WS_OUTA}\nv_lshrrev_b32 v11, 2, v{vL}\nv_lshlrev_b32 v11, 12, v11\nv_and_b32 v12, 3, v{vL}\nv_lshl_add_u32 v11, v12, 4, v11")
        self.srd(48, 38, 2048)
        e(f"s_lshl_b32 s14, s64, 4\nv_lshlrev_b32 v12, 2, v12\ns_mov_b32 s15, 0x10000")
        def g(R):
            e("s_mov_b32 s3, s12")
            for k in range(4):
                e(f"buffer_load_dwordx4 {vr(R+4*k)}, v11, {WS}, s3 offen sc1")
                if k < 3: e("s_add_u32 s3, s3, s15")
        def fin(R):
            for k in range(1, 4): e(f"v_add_f32 v{R}, v{R}, v{R+4*k}\nv_add_f32 v{R+2}, v{R+2}, v{R+4*k+2}")
            self.rowred([R, R + 2], "v_add_f32", (8, 4))
            self.allred_G([R, R + 2], [100, 101], "v_add_f32")
            e(f"v_cvt_pk_bf16_f32 v102, v{R}, v{R+2}")
            self.exec_mask(15, 0)
            e("buffer_store_dword v102, v12, s[48:51], s14 offen")
            if self.p["TIMING"]: self.exec_full(); e("s_waitcnt vmcnt(0)"); self.stamp(9)
            self.exit()
        if self.p["DPOLL"]: self.poll2(g, 4, 64, 80, 60, "goa", fin)
        else:
            self.poll(lambda: g(64), [65, 67, 69, 71, 73, 75, 77, 79], 60, "goa")
            fin(64)

    def build(self):
        e, p = self.e, self.p
        self.prologue()
        vm0 = e.vm
        self.phase1()
        self.b_ctrl()
        e.label("L_notctrl")
        e.vm = vm0
        self.b_stream()
        self.b_tail()
        e.label("L_astream")
        self.role = "A"
        e.vm = 1
        self.a_setup()
        self.a_issue(lambda n: p["D_A1"] if n < p["NA1"] else p["D_A2"], p1at=p["D_A1"])
        self.a_main()
        while self.ool: self.ool.pop(0)()
        if p["TIMING"]:
            e.label("L_exit")
            e("s_mov_b64 exec, -1\ns_memrealtime s[98:99]\ns_getreg_b32 s100, hwreg(HW_REG_XCC_ID)\ns_waitcnt lgkmcnt(0)\nv_mov_b32 v44, 0")
            for i in range(28): e(f"v_writelane_b32 v44, s{70+i}, {i}")
            e("v_writelane_b32 v44, s98, 30\nv_writelane_b32 v44, s100, 31")
            e(f"s_lshl_b32 s3, s2, 3\ns_add_u32 s3, s3, s{sW}\ns_lshl_b32 s3, s3, 7\ns_add_u32 s3, s3, {WS_STAMP}\nv_lshlrev_b32 v45, 2, v{vL}\ns_mov_b32 exec_hi, 0")
            e(f"buffer_store_dword v44, v45, {WS}, s3 offen")
        if p["PAD"]:
            e.label("L_exit")
            if p["PADEV"] == 99:
                e(f"s_cmp_{'lt' if p['PADROLE'] == 'A' else 'ge'}_u32 s{sSLOT}, 8\ns_cbranch_scc0 L_padn\ns_memrealtime s[82:83]\ns_waitcnt lgkmcnt(0)")
                e.label("L_padn")
            e(f"s_cmp_eq_u32 s82, 0\ns_cselect_b32 s80, s80, s82\ns_add_u32 s80, s80, {p['PAD']}")
            e.label("L_padl")
            e("s_sleep 4\ns_memrealtime s[68:69]\ns_waitcnt lgkmcnt(0)\ns_sub_u32 s68, s68, s80\ns_cmp_lt_i32 s68, 0\ns_cbranch_scc1 L_padl")
        e.label("L_end")
        e("s_endpgm")
        e.label("L_codeend")
        if p["NOSLOW"]:
            out, k = [], 0
            for i, l in enumerate(e.L):
                if "store" in l and l.endswith("sc1") and ("s68" in l or ("v11, " in l and "x4" in l) or (p["NOSLOW"] > 1 and "v14, " in l and "x4" in l)): continue
                out.append(l)
            e.L = out
        if p["AINL"]:
            a, b = e.L.index("L_astream:"), e.L.index("L_arest:")
            blk = e.L[a + 1:b]
            del e.L[a:b]
            k = e.L.index("s_cbranch_scc1 L_astream")
            e.L[k:k + 1] = ["s_cbranch_scc0 L_bstart"] + blk + ["s_branch L_arest", "L_bstart:"]
        if p["JIT"]:
            out, k = [], 0
            for l in e.L:
                if l.startswith("s_barrier") or ("store" in l and "v44" not in l) or l.startswith("ds_add") or (l.startswith("ds_write_b32") and "v15," in l):
                    k += 1
                    out += ["s_cselect_b32 s101, 1, 0", "s_memtime s[98:99]", "s_waitcnt lgkmcnt(0)", "s_lshr_b32 s98, s98, 3", f"s_and_b32 s98, s98, {p['JIT']}",
                            f"L_jit{k}:", "s_sleep 8", "s_sub_u32 s98, s98, 1", f"s_cbranch_scc0 L_jit{k}", "s_cmp_eq_u32 s101, 1"]
                out.append(l)
            e.L = out
        gm, sm = p["GM"].replace("_", " "), p["SM"].replace("_", " ")
        e.L = [(l[:-3] + (gm if "load" in l else sm)) if l.endswith(" sc1") else l for l in e.L]
        if p["FSM"]:
            e.L = [l + " " + p["FSM"].replace("_", " ") if ("store" in l and "s[44:47]" in l and not l.endswith("sc1") and "v44" not in l) else l for l in e.L]
        body = pad_hazards(e.L)
        ref = open(f"cdna_kernels/{NAME}.s.ref").read().split("\n")
        head = [l for l in ref if l.startswith(";") and "@launch" not in l]
        out = head + ["; @launch grid=(256,1,1) block=(512,1,1) lds=163840"] + DOC.split("\n") + [
                      '.amdgcn_target "amdgcn-amd-amdhsa--gfx950"', ".text", f".globl {NAME}_kernel", ".p2align 8",
                      f".type {NAME}_kernel,@function", f"{NAME}_kernel:"]
        out += [("" if l.endswith(":") else "    ") + l for l in body]
        out += ['.section .rodata,"a"', ".p2align 6", f".amdhsa_kernel {NAME}_kernel", "  .amdhsa_next_free_vgpr 256",
                "  .amdhsa_next_free_sgpr 102", "  .amdhsa_accum_offset 256", "  .amdhsa_group_segment_fixed_size 0",
                "  .amdhsa_kernarg_size 112", "  .amdhsa_user_sgpr_count 2", "  .amdhsa_user_sgpr_kernarg_segment_ptr 1",
                "  .amdhsa_system_sgpr_workgroup_id_x 1", ".end_amdhsa_kernel", ""]
        return "\n".join(out)

if __name__ == "__main__":
    kw = {}
    for a in sys.argv[2:]:
        k, v = a.split("=")
        kw[k] = (v == "True") if v in ("True", "False") else (int(v) if v.lstrip("-").isdigit() else v)
    open(sys.argv[1], "w").write(K(**kw).build())
```

```python
import sys, struct
from asmlib import Emit, pad_hazards

NAME = "concat_heads__compressed_kv_cla__gqa_block_cached__decode"
DEF = dict(D_B0=3, NB0=20, D_B=5, N1=20, PVK=3, D_A1=4, NA1=6, D_A2=5, QPOS=32, TIMING=False, MAXPOLL=400000,
           NT="nt", PAD=0, PADEV=-1, PADROLE="", NWE=10, LIGHT=False, PROG=False, GDELAY=0, GM="sc1", SM="sc1", SDELAY=0, NFAST=48, CPS=3, D_B2=12, NB2=38, WARMQ=1, WARMO=30, WARMB=0, WOK=23, NDUTY=20, WOLATE=4, NWO=0, B4B=1, ANODS=0, QKE=0, QKS=3, RLATE=1, HROT=2, QBE=1, PVM=0, PRC=1, TKM=250, AOP=0, UK0=24, UKP=0, FSM="", AMS=4, CPA=0, CPB=0, AINL=0, QBW=0, WSOFF=0, INB=0, TQ=4, LPOS=0, CPF=0, JIT=0, CYC=0, TLBP=0, DPOLL=0, PSL=6, ILV1=0, WOSP=1, TOUCH=0, TM="", TPOS=0, TSH=3, NL=0, RK=64, DSLOW=3, NTK=24, LSET=(4, 6, 7, 10), DEEPW=1, DEEPN=1, GSL=0, NU=-1, WQ0=3, PRIO=0, NOSLOW=0, AKILL=0, PTRACE="", WM="nt")

DOC = """;
; Hand-offs go through d_ws as 8-byte {value, tag} pairs (or drained rows behind tagged flags).  The tag is a hash of
; Hand-offs inside an id&7 group use plain stores tagged with the writer's XCC id: a reader accepts them only from its own
;"""

def f32(x): return "0x%08x" % struct.unpack("<I", struct.pack("<f", x))[0]
CS = 1.4426950408889634 * 128 ** -0.5

WS_QP, WS_QABS, WS_QB, WS_BML, WS_AML = 0x10000, 0x90000, 0xA0000, 0xA8000, 0xB0000
WS_BO, WS_OUTB, WS_OUTA, WS_AO, WS_STAMP = 0xC0000, 0x120000, 0x140000, 0x200000, 0x400000
WS_AML2 = 0x180000
WS_SIZE = 0x800000
SLOW = 0x500000
L_PR = 32768
L_PRB = 49152
L_LQ = 40960
LB_Q, LB_MX, LB_LS, LB_F, LB_G, LB_FLAG, LB_R4, LB_R5 = 0, 1024, 1152, 1280, 1408, 1536, 2048, 20480
LA_Q = 131072
LA_P, LA_MX, LA_LS = 131072, 147456, 148480
LA_F, LA_R1, LA_LAT, LA_R2, LA_CTX = 32768, 36864, 49152, 53248, 61440

vL, vC, vG = 1, 2, 3
SELA, SELB = 32, 36
sW, sX, sSLOT, sH1, sJ, sT = 6, 7, 8, 9, 10, 11
WS = "s[44:47]"
sHI = "s[62:63]"
sCS = "s60"
sXC, sTX, sTF, sM, sNC = "s24", "s25", "s26", "s27", "s28"

def fswz(k):
    k0, k1, k2, k3 = k & 1, (k >> 1) & 1, (k >> 2) & 1, (k >> 3) & 1
    return (k1 << 3) | (k0 << 2) | ((k1 ^ k3) << 1) | k2

def vr(a, n=4): return f"v[{a}:{a+n-1}]"

class K:
    def __init__(self, **kw):
        self.p = dict(DEF); self.p.update(kw)
        self.e = Emit()
        self.nlab = 0
        self.role = "B"
        self.ilv = False
        self.ool = []
    def lab(self, s):
        self.nlab += 1
        return f"L_{s}_{self.nlab}"
    def stamp(self, i):
        if self.p["PAD"] and i == self.p["PADEV"] and self.role in self.p["PADROLE"]:
            self.e("s_memrealtime s[82:83]\ns_waitcnt lgkmcnt(0)")
        if self.p["TIMING"] and not self.p["PROG"] and (not self.p["LIGHT"] or i in self.p["LSET"]):
            self.e(f"s_memrealtime s[98:99]\ns_waitcnt lgkmcnt(0)\ns_mov_b32 s{70+i}, s98")
    def cyc(self, i):
        if self.p["TIMING"] and self.p["CYC"]:
            self.e(f"s_memtime s[98:99]\ns_waitcnt lgkmcnt(0)\ns_mov_b32 s{70+i}, s98")
    def prog(self, n, step):
        if self.p["PROG"] and (n + 1) % step == 0 and (n + 1) // step <= 13:
            k = 72 + 2 * ((n + 1) // step - 1)
            self.e(f"s_memrealtime s[{k}:{k+1}]")
    def cnt(self, i):
        if self.p["TIMING"] and not self.p["PROG"]: self.e(f"s_mov_b32 s{70+i}, s13")
    def exit(self):
        self.e("s_branch L_exit" if self.p["TIMING"] or self.p["PAD"] else "s_endpgm")
    def srd(self, s, ptr, size):
        self.e(f"s_mov_b32 s{s}, s{ptr}\ns_mov_b32 s{s+1}, s{ptr+1}\ns_mov_b32 s{s+2}, {size}\ns_mov_b32 s{s+3}, 0x20000")
    def exec_full(self): self.e("s_mov_b64 exec, -1")
    def exec_mask(self, lo, hi): self.e(f"s_mov_b32 exec_lo, {lo:#x}\ns_mov_b32 exec_hi, {hi:#x}")
    def allred_G(self, vals, tmps, op, steps=(32, 16)):
        e = self.e
        for st in steps:
            for v, t in zip(vals, tmps): e(f"v_mov_b32 v{t}, v{v}")
            for v, t in zip(vals, tmps): e(f"v_permlane{st}_swap_b32 v{t}, v{v}")
            for v, t in zip(vals, tmps): e(f"{op} v{v}, v{t}, v{v}")
    def rowred(self, vals, op, rors):
        for r in rors:
            for v in vals: self.e(f"{op}_dpp v{v}, v{v}, v{v} row_ror:{r} row_mask:0xf bank_mask:0xf")
    def tagcheck(self, tags, acc, T=f"s{sT}"):
        e = self.e
        e(f"v_xor_b32 v{acc}, {T}, v{tags[0]}")
        for t in tags[1:]: e(f"v_bitop3_b32 v{acc}, v{t}, {T}, v{acc} bitop3:0xbe")
        e(f"v_cmp_ne_u32 vcc, 0, v{acc}")
    def poll(self, issue, tags, acc, name, fast=None, slowpub=None, shadow=None):
        e = self.e
        L, D, F = self.lab(name), self.lab(name + "d"), self.lab(name + "f")
        e("s_mov_b32 s13, 0")
        if fast: e(f"s_mov_b32 {sTF}, {sTX}")
        if shadow:
            W = self.lab(name + "w")
            issue(); shadow()
            e(f"s_branch {W}")
        e.label(L)
        issue()
        if shadow: e.label(W)
        e(f"s_add_u32 s13, s13, 1\ns_waitcnt vmcnt(0)")
        if self.p["TIMING"] and self.p["PTRACE"] == name:
            e("s_memrealtime s[98:99]\ns_waitcnt lgkmcnt(0)")
            for k in range(1, 7): e(f"s_cmp_eq_u32 s13, {k}\ns_cselect_b32 s{90+k}, s98, s{90+k}")
        self.tagcheck(tags, acc, sTF if fast else f"s{sT}")
        if fast:
            e(f"s_cbranch_vccnz {F}")
            def ool():
                G = self.lab(name + "g")
                e.label(F)
                e(f"s_cmp_gt_u32 s13, {self.p['MAXPOLL']}\ns_cbranch_scc1 {D}\ns_cmp_lt_u32 s13, {self.p['NFAST']}\ns_cbranch_scc1 {L}")
                e(f"s_cmp_eq_u32 s13, {self.p['NFAST']}\ns_cbranch_scc0 {G}")
                if slowpub: slowpub()
                e(f"s_add_u32 {sM}, {fast}, {SLOW}\ns_xor_b32 {sM}, {sM}, {fast}")
                e.label(G)
                e(f"s_xor_b32 {fast}, {fast}, {sM}\ns_xor_b32 {sTF}, {sTF}, {sXC}\ns_branch {L}")
            self.ool.append(ool)
        else:
            e(f"s_cmp_gt_u32 s13, {self.p['MAXPOLL']}\ns_cbranch_scc1 {D}\ns_cbranch_vccnz {L}")
        e.label(D)
    def poll2(self, issue, nl, RA, RB, acc, name, finish):
        e = self.e
        L, DA = self.lab(name), self.lab(name + "a")
        tags = lambda R: [R + 4 * i + k for i in range(nl) for k in (1, 3)]
        e("s_mov_b32 s13, 0")
        issue(RA)
        e(f"s_sleep {self.p['PSL']}")
        e.label(L)
        issue(RB)
        e(f"s_add_u32 s13, s13, 1\ns_waitcnt vmcnt({nl})")
        self.tagcheck(tags(RA), acc)
        e(f"s_cmp_gt_u32 s13, {self.p['MAXPOLL']}\ns_cbranch_scc1 {DA}\ns_cbranch_vccz {DA}")
        issue(RA)
        e(f"s_waitcnt vmcnt({nl})")
        self.tagcheck(tags(RB), acc)
        e(f"s_cbranch_vccnz {L}")
        finish(RB)
        e.label(DA)
        finish(RA)
    def expand4(self, dst, src, pi):
        for q in range(4): self.e(f"v_perm_b32 v{dst+q}, v{src}, v{src}, v{SELB+4*pi+q}")
    def gemv8(self, acc, frag, data, toks, E=(44, 48)):
        e = self.e
        self.expand4(E[0], frag, 0)
        for i in range(8):
            if i + 1 < 8: self.expand4(E[(i + 1) & 1], frag + ((i + 1) >> 1), (i + 1) & 1)
            if toks is not None and toks[i] is not None: e.wait_vm(toks[i])
            e(f"v_mfma_f32_16x16x32_bf16 {vr(acc)}, {vr(E[i&1])}, {vr(data+4*i)}, {'0' if i == 0 else vr(acc)}")

    def prologue(self):
        e, nt = self.e, self.p["NT"]
        e("s_cmp_ge_u32 s2, 256\ns_cbranch_scc1 L_end")
        e("s_load_dwordx16 s[16:31], s[0:1], 0\ns_load_dwordx8 s[32:39], s[0:1], 64\ns_load_dwordx4 s[40:43], s[0:1], 96")
        if self.p["TIMING"]:
            for i in range(72, 98): e(f"s_mov_b32 s{i}, 0")
            e("s_memrealtime s[70:71]")
        if self.p["PAD"]: e("s_memrealtime s[80:81]\ns_mov_b32 s82, 0")
        if self.p["CPF"]:
            e("s_getpc_b64 s[4:5]")
            e.label("L_pc")
        if self.p["CPF"] == 1:
            e("v_lshlrev_b32 v4, 6, v0\nv_min_u32 v4, L_codeend-L_pc-4, v4")
            e.vmem("global_load_dword v5, v4, s[4:5]")
        elif self.p["CPF"] == 2:
            e("v_lshlrev_b32 v4, 7, v0\nv_cmp_gt_u32 vcc, L_codeend-L_pc-4, v4\ns_and_saveexec_b64 s[12:13], vcc\ns_cbranch_execz L_nopf")
            e("global_load_dword v5, v4, s[4:5]")
            e.label("L_nopf")
            e("s_mov_b64 exec, -1")
        elif self.p["CPF"] == 3:
            e("s_cmp_lt_u32 s2, 224\ns_cbranch_scc1 L_nopf")
            e("v_lshlrev_b32 v4, 6, v0\nv_min_u32 v4, L_codeend-L_pc-4, v4")
            e("global_load_dword v5, v4, s[4:5]")
            e.label("L_nopf")
        e(f"v_lshrrev_b32 v6, 6, v0\nv_and_b32 v{vL}, 63, v0\nv_and_b32 v{vC}, 15, v0\nv_bfe_u32 v{vG}, v0, 4, 2")
        e(f"v_readfirstlane_b32 s{sW}, v6")
        e(f"s_and_b32 s{sX}, s2, 7\ns_lshr_b32 s{sSLOT}, s2, 3")
        e(f"v_and_b32 v7, 3, v0\nv_lshlrev_b32 v7, 4, v7\nv_lshl_add_u32 v7, v{vG}, 6, v7\nv_and_b32 v8, 7, v0\nv_lshlrev_b32 v10, 4, v{vL}")
        e(f"s_cmp_lt_u32 s{sSLOT}, 8\ns_cbranch_scc1 L_astream")
        e(f"s_sub_u32 s64, s{sSLOT}, 8\ns_mul_i32 s{sH1}, s64, 43\ns_lshr_b32 s{sH1}, s{sH1}, 8\ns_mul_i32 s3, s{sH1}, 6\ns_sub_u32 s{sJ}, s64, s3\n" + (f"s_add_u32 s{sH1}, s{sH1}, {self.p['HROT']}\ns_and_b32 s{sH1}, s{sH1}, 3\n" if self.p["HROT"] else "") + f"s_lshl_b32 s3, s{sX}, 2\ns_add_u32 s{sH1}, s{sH1}, s3")
        e(f"s_mul_i32 s3, s{sJ}, {96*8192}\ns_lshl_b32 s12, s{sH1}, 8\ns_add_u32 s61, s3, s12")
        e(f"v_lshrrev_b32 v6, 4, v0\nv_lshlrev_b32 v4, 13, v6\nv_lshl_add_u32 v4, v{vC}, 4, v4\nv_add_u32 v4, s61, v4\nv_add_u32 v11, 0x40000, v4\nv_add_u32 v12, 0x80000, v4")
        e(f"s_mul_i32 s12, s{sJ}, 192\nv_lshl_add_u32 v6, v6, 1, s12")
        e("s_mov_b32 s50, 0x400000\ns_mov_b32 s51, 0x20000")
        e("s_movk_i32 s58, 0x400\ns_mov_b32 s59, 0x20000\ns_movk_i32 s46, 0x400\ns_mov_b32 s47, 0x20000")
        if self.p["WSOFF"]:
            e(f"s_waitcnt lgkmcnt(0)\ns_add_u32 s42, s42, {self.p['WSOFF'] << 20}\ns_addc_u32 s43, s43, 0\ns_cmp_eq_u32 s{sW}, 7")
        else: e(f"s_cmp_eq_u32 s{sW}, 7\ns_waitcnt lgkmcnt(0)")
        if self.p["WARMQ"]:
            wm = self.p["WM"].replace("_", " ")
            e("s_cbranch_scc0 L_nowarm")
            e(f"s_lshl_b32 s14, s{sH1}, 14\ns_add_u32 s14, s14, {WS_QP}\ns_add_u32 s4, s42, s14\ns_addc_u32 s5, s43, 0\nv_lshlrev_b32 v9, 3, v10\nv_add_u32 v13, 0x2000, v9")
            e(f"global_load_dword v5, v9, s[4:5] {wm}\ns_mov_b32 exec_hi, 0\nglobal_load_dword v5, v13, s[4:5] {wm}")
            e(f"s_lshl_b32 s14, s{sX}, 11\ns_add_u32 s14, s14, {WS_BML}\ns_add_u32 s4, s42, s14\ns_addc_u32 s5, s43, 0\ns_mov_b32 exec_lo, 0xffff\nglobal_load_dword v5, v9, s[4:5] {wm}\ns_mov_b64 exec, -1\ns_cmp_eq_u32 s{sW}, 7")
            e.label("L_nowarm")
        e("s_mov_b32 s48, s20\ns_mov_b32 s49, s21\ns_mov_b32 s56, s16\ns_mov_b32 s57, s17")
        for i in range(3): e.vmem(f"buffer_load_ushort v{16+i}, v6, s[56:59], 0 offen offset:{64*i}")
        for i in range(3): self.tA = e.vmem(f"buffer_load_dwordx4 {vr(128+4*i)}, v{(4,11,12)[i]}, s[48:51], 0 offen {nt}")
        e("s_mov_b32 s44, s28\ns_mov_b32 s45, s29")
        for i in range(3): e.vmem(f"buffer_load_ushort v{19+i}, v6, s[44:47], 0 offen offset:{64*i}")
        e("v_mov_b32 v22, v4\ns_cbranch_scc0 L_notctrl")

    def wq_load(self, i):
        e = self.e
        if i == 0: self.srd(72, 34, 1 << 22)
        t = e.vmem(f"buffer_load_dwordx4 {vr(140+4*i)}, v22, s[16:19], 0 offen {self.p['NT']}")
        if i < 2: e("v_add_u32 v22, 0x40000, v22")
        return t
    def p1_gemv(self, X, W, dst):
        e = self.e
        for i in range(3): self.expand4(44 + 4 * i, X + i, 0)
        for i in range(3): e(f"v_mfma_f32_16x16x32_bf16 v[152:155], {vr(44+4*i)}, {vr(W+4*i)}, {'0' if i == 0 else 'v[152:155]'}")
        e(f"v_lshlrev_b32 v11, 4, v0")
        e.ds(f"ds_write_b128 v11, v[152:155] offset:{dst}")
    def p1_gemv_b(self, tq):
        e = self.e
        e.wait_vm(tq)
        self.p1_gemv(19, 140, L_PRB)
        e("v_mov_b32 v12, 1\ns_mov_b64 exec, 1")
        e.ds(f"ds_add_u32 v13, v12 offset:{LB_FLAG+12}")
        self.exec_full()
    def p1_reduce(self, src, R, pub):
        e = self.e
        e(f"v_and_b32 v11, 31, v{vL}\nv_lshlrev_b32 v11, 4, v11\nv_lshrrev_b32 v12, 5, v{vL}\nv_lshl_add_u32 v11, v12, 12, v11")
        tk = [e.ds(f"ds_read_b128 {vr(R+4*w)}, v11 offset:{src+1024*w}") for w in range(4)]
        e(f"v_mov_b32 v{pub+1}, {sTX}\nv_mov_b32 v{pub+3}, {sTX}")
        for w in range(1, 4):
            e.wait_lg(tk[w])
            e(f"v_pk_add_f32 v[{R}:{R+1}], v[{R}:{R+1}], v[{R+4*w}:{R+4*w+1}]\nv_pk_add_f32 v[{R+2}:{R+3}], v[{R+2}:{R+3}], v[{R+4*w+2}:{R+4*w+3}]")
        e(f"v_permlane32_swap_b32 v{R}, v{R+2}\nv_permlane32_swap_b32 v{R+1}, v{R+3}\nv_add_f32 v{pub}, v{R}, v{R+2}\nv_add_f32 v{pub+2}, v{R+1}, v{R+3}")

    def code_pf(self, first, last, name, lanes):
        e = self.e
        e("s_getpc_b64 s[4:5]")
        e.label(name)
        e(f"s_add_u32 s4, s4, {first}-{name}\ns_addc_u32 s5, s5, {0 if first != 'L_btail' else 0}")
        e(f"v_lshlrev_b32 v12, 7, {lanes}\nv_min_u32 v12, {last}-{first}-4, v12")
        return e.vmem("global_load_dword v5, v12, s[4:5]")
    def selectors(self):
        e = self.e
        e(f"s_mov_b32 s62, 0\ns_mov_b32 s63, -1\ns_mov_b32 {sCS}, {f32(CS)}")
        self.srd(44, 42, WS_SIZE)
        e("v_and_b32 v15, 3, v0\nv_lshlrev_b32 v15, 4, v15\nv_mov_b32 v13, 0\nv_mov_b32 v11, 0x0c0c0c0c\nv_and_b32 v14, 4, v0\nv_cmp_ne_u32 vcc, 0, v14")
        for pi, d in ((0, 0x0d0c), (1, 0x0f0e)):
            a = SELA + 2 * pi
            e(f"v_mov_b32 v12, {d:#x}\nv_lshlrev_b64 v[{a}:{a+1}], v15, v[12:13]\nv_xor_b32 v{a}, v11, v{a}\nv_xor_b32 v{a+1}, v11, v{a+1}")
            b = SELB + 4 * pi
            e(f"v_cndmask_b32 v{b}, v{a}, v11, vcc\nv_cndmask_b32 v{b+1}, v{a+1}, v11, vcc\nv_cndmask_b32 v{b+2}, v11, v{a}, vcc\nv_cndmask_b32 v{b+3}, v11, v{a+1}, vcc")
    def tagmake(self):
        self.e(f"s_waitcnt lgkmcnt(0)\ns_mul_i32 s{sT}, s{sT}, 0x9e3779b1\ns_add_u32 s{sT}, s{sT}, 0x7f4a7c15")

    def p1_compute(self, ctrl):
        e = self.e
        self.selectors()
        if ctrl:
            self.tagmake()
            e(f"s_getreg_b32 {sXC}, hwreg(HW_REG_XCC_ID, 0, 4)\ns_xor_b32 {sTX}, s{sT}, {sXC}\ns_mov_b32 {sNC}, 0")
            e(f"v_mov_b32 v57, s{sT}\nv_mov_b32 v59, s{sT}")
            e.ds(f"ds_write_b32 v13, v57 offset:{LB_FLAG+8}")
            for k in (0, 4, 12, 16, 20): e.ds(f"ds_write_b32 v13, v13 offset:{LB_FLAG+k}")
        e.wait_vm(self.tA)
        self.p1_gemv(16, 128, L_PR)
        e("s_waitcnt lgkmcnt(0)\ns_barrier")
        self.stamp(1)
        if not ctrl:
            e.ds(f"ds_read_b32 v12, v13 offset:{LB_FLAG+8}")
            tq = [self.wq_load(i) for i in range(self.p["WQ0"])]
            e(f"s_waitcnt lgkmcnt(0)\nv_readfirstlane_b32 s{sT}, v12")
            e(f"s_getreg_b32 {sXC}, hwreg(HW_REG_XCC_ID, 0, 4)\ns_xor_b32 {sTX}, s{sT}, {sXC}")
            if self.p["QBE"]:
                assert self.p["WQ0"] == 3
                self.p1_gemv_b(tq[2])
            e("s_barrier")
            tq += [self.wq_load(i) for i in range(self.p["WQ0"], 3)]
            return tq[2]

    def phase1(self):
        e, nt = self.e, self.p["NT"]
        WQ, WU = 64, 160
        e(f"s_load_dword s{sT}, s[42:43], 0")
        e(f"v_bfe_u32 v14, v0, 2, 2\nv_lshl_add_u32 v9, v14, 15, v7\nv_add_u32 v9, s61, v9\nv_lshl_add_u32 v14, v14, 14, v7\nv_add_u32 v14, s61, v14")
        self.srd(56, 22, 1 << 22)
        tu, ukq = [], []
        for t in range(4):
            for a in range(4):
                ukq.append((f"buffer_load_dwordx4 {vr(WU+16*a+4*t)}, v9, s[56:59], 0 offen {nt}",
                            f"v_add_u32 v9, {0x2000 if a < 3 else 0x20000-0x6000:#x}, v9" if (t, a) != (3, 3) else ""))
        for t in range(4):
            for a in range(2):
                ukq.append((f"buffer_load_dwordx4 {vr(WU+64+16*a+4*t)}, v23, s[56:59], 0 offen {nt}",
                            f"v_add_u32 v23, {0x2000 if a < 1 else 0x10000-0x2000:#x}, v23" if (t, a) != (3, 1) else ""))
        e("v_add_u32 v23, 0x80000, v14")
        def uk(n):
            for _ in range(n):
                if ukq:
                    a, b = ukq.pop(0)
                    tu.append(e.vmem(a)); e(b)
        uk(self.p["UK0"])
        self.p1_compute(True)
        if self.p["UK0"] < 24 and self.p["UKP"] == 0: uk(24)
        e(f"s_lshl_b32 s14, s{sH1}, 14\ns_add_u32 s14, s14, {WS_QP}\ns_lshl_b32 s15, s{sJ}, 11\ns_add_u32 s15, s15, s14")
        self.p1_reduce(L_PR, WQ, 112)
        tst = e.vmem(f"buffer_store_dwordx4 v[112:115], v10, {WS}, s15 offen")
        self.stamp(2)
        uk(24)
        if self.p["QBE"]:
            for i in range(3): tq = self.wq_load(i)
        e(f"s_add_u32 s68, s15, {SLOW}")
        def qp_slow(mats=(0,)):
            for m in mats:
                r = 112 + 4 * m
                e(f"v_mov_b32 v{r+1}, s{sT}\nv_mov_b32 v{r+3}, s{sT}")
                e(f"buffer_store_dwordx4 {vr(r)}, v10, {WS}, s68 offen offset:{1024*m} sc1")
            e(f"s_mov_b32 {sNC}, 1")
        QF = [24, 28, 120, 124]
        for b in QF:
            for r in range(4): e(f"v_mov_b32 v{b+r}, 0")
        e(f"v_and_b32 v9, 1, v{vG}\nv_lshlrev_b32 v9, 3, v9\nv_lshl_add_u32 v9, v{vC}, 4, v9\nv_lshrrev_b32 v12, 1, v{vG}\nv_lshl_add_u32 v9, v12, 2, v9")
        e(f"v_add_u32 v13, {L_LQ}, v9\nv_add_u32 v14, {L_LQ}, v7")
        def gat(base, mat):
            def f():
                for jj in range(6):
                    if jj % 2 == 0: e(f"s_add_u32 s12, {base}, {jj*2048}")
                    t = e.vmem(f"buffer_load_dwordx4 {vr(WQ+4*jj)}, v10, {WS}, s12 offen offset:{(jj&1)*2048+1024*mat} sc1")
                return t
            return f
        tags = [WQ + 4 * jj + k for jj in range(6) for k in (1, 3)]
        def sum6():
            for jj in range(1, 6):
                e(f"v_add_f32 v{WQ}, v{WQ}, v{WQ+4*jj}\nv_add_f32 v{WQ+2}, v{WQ+2}, v{WQ+4*jj+2}")
        if self.p["TIMING"]:
            e.wait_vm(tu[min(23, 23 - self.p["NU"])]); self.stamp(22)
        e.wait_vm(tu[23 - self.p["NU"]] if self.p["NU"] >= 0 else max(tst, tu[23]))
        if self.p["NU"] < 0 and self.p["TIMING"]:
            pass
        self.stamp(21)
        for _ in range(self.p["GSL"]): e("s_sleep 2")
        def qb_publish():
            e.wait_vm(tq)
            self.p1_gemv(19, 140, L_PRB)
            e("v_mov_b32 v15, 0")
            L = self.lab("wqb")
            e.label(L)
            e.ds(f"ds_read_b32 v60, v15 offset:{LB_FLAG+12}")
            e(f"s_waitcnt lgkmcnt(0)\nv_readfirstlane_b32 s3, v60\ns_cmp_lt_u32 s3, 7\ns_cbranch_scc1 {L}")
            self.p1_reduce(L_PRB, 96, 116)
            tb = e.vmem(f"buffer_store_dwordx4 v[116:119], v10, {WS}, s15 offen offset:1024")
            if self.p["QBW"]: e.wait_vm(tb)
        tg = gat("s14", 0)()
        if not self.p["RLATE"]: e("s_barrier")
        if self.p["QBE"]: qb_publish()
        else:
            for i in range(3): tq = self.wq_load(i)
        e.wait_vm(tg)
        self.tagcheck(tags, 60, sTX)
        e("s_cbranch_vccnz L_p1_retry")
        if self.p["TIMING"]: e("s_mov_b32 s13, 0")
        e.label("L_p1_got")
        if self.p["RLATE"]: e("s_barrier")
        def ool():
            e.label("L_p1_retry")
            self.poll(gat("s14", 0), tags, 60, "gqa", fast="s14", slowpub=qp_slow)
            e("s_branch L_p1_got")
        self.ool.append(ool)
        self.stamp(3); self.cnt(20)
        sum6()
        e(f"v_cvt_pk_bf16_f32 v60, v{WQ}, v{WQ+2}")
        e.ds(f"ds_write_b32 v13, v60")
        e("s_waitcnt lgkmcnt(0)")
        for t in range(4):
            m = 0x000f000f << (4 * t)
            self.exec_mask(m, m)
            e.ds(f"ds_read_b128 {vr(QF[t])}, v14")
        self.exec_full()
        e("s_waitcnt lgkmcnt(0)")
        for a in range(6):
            for t in range(4):
                e(f"v_mfma_f32_16x16x32_bf16 {vr(64+4*a)}, {vr(WU+16*a+4*t)}, {vr(QF[t])}, {'0' if t == 0 else vr(64+4*a)}")
        e(f"s_lshl_b32 s12, s{sH1}, 11\ns_mul_i32 s3, s{sJ}, 384\ns_add_u32 s12, s12, s3\ns_add_u32 s12, s12, {WS_QABS}")
        e(f"v_and_b32 v15, 12, v{vC}\nv_add_u32 v15, v15, v{vG}\nv_lshlrev_b32 v14, 3, v15\nv_lshlrev_b32 v15, 4, v15")
        e(f"s_mov_b32 s3, 0x00110011\ns_cmp_lt_u32 s{sJ}, 5\ns_cselect_b32 s3, 0x11111111, s3")
        self.quadsum([(64 + 4 * a, 44 + a) for a in range(6)])
        e(f"v_cvt_pk_bf16_f32 v56, v44, v45\nv_cvt_pk_bf16_f32 v58, v46, v47\nv_cvt_pk_bf16_f32 v62, v48, v49\nv_mov_b32 v63, s{sT}")
        e("s_mov_b32 exec_lo, s3\ns_mov_b32 exec_hi, s3")
        e.vmem(f"buffer_store_dwordx4 v[56:59], v15, {WS}, s12 offen sc1")
        e("s_cbranch_scc0 L_p1done")
        e(f"buffer_store_dwordx2 v[62:63], v14, {WS}, s12 offen offset:256 sc1")
        e.label("L_p1done")
        self.exec_full()
        self.stamp(4)
        if not self.p["QBE"]: qb_publish()
        R = 160
        e(f"s_lshl_b32 s67, s{sX}, 16\ns_add_u32 s67, s67, {WS_QP}")
        def gb():
            for hh in range(4):
                for jj in range(6):
                    if jj % 2 == 0: e(f"s_add_u32 s12, s67, {hh*16384+jj*2048}")
                    e.vmem(f"buffer_load_dwordx4 {vr(R+24*hh+4*jj)}, v10, {WS}, s12 offen offset:{(jj&1)*2048+1024} sc1")
        self.poll(gb, [R + 4 * i + k for i in range(24) for k in (1, 3)], 60, "gqb", fast="s67", slowpub=lambda: qp_slow((0, 1)))
        for jj in range(1, 6):
            for hh in range(4):
                b = R + 24 * hh
                e(f"v_add_f32 v{b}, v{b}, v{b+4*jj}\nv_add_f32 v{b+2}, v{b+2}, v{b+4*jj+2}")
        e(f"v_mov_b32 v15, 0\nv_mov_b32 v61, 1\nv_mov_b32 v62, {sNC}")
        e.ds(f"ds_write_b32 v15, v62 offset:{LB_FLAG+24}")
        for hh in range(4):
            b = R + 24 * hh
            e(f"v_cvt_pk_bf16_f32 v{b}, v{b}, v{b+2}")
            e.ds(f"ds_write_b32 v9, v{b} offset:{LB_Q+256*hh}")
        e.ds(f"ds_write_b32 v15, v61 offset:{LB_FLAG}")
        e("s_waitcnt lgkmcnt(0)")
        self.stamp(18); self.cnt(19)
        if self.p["CPB"]: self.code_pf("L_notctrl", "L_arest", "L_pcb", "v1")
        if self.p["TLBP"]:
            e(f"s_lshl_b32 s3, s{sX}, 22\ns_add_u32 s4, s32, s3\ns_addc_u32 s5, s33, 0\ns_load_dword s12, s[4:5], 0")
            e("s_add_u32 s4, s4, 0x200000\ns_addc_u32 s5, s5, 0\ns_load_dword s12, s[4:5], 0")
            e("s_add_u32 s4, s4, 0x1ffffc\ns_addc_u32 s5, s5, 0\ns_load_dword s12, s[4:5], 0")
            e(f"s_lshl_b32 s3, s{sX}, 19\ns_add_u32 s4, s36, s3\ns_addc_u32 s5, s37, 0\ns_load_dword s12, s[4:5], 0\ns_load_dword s12, s[38:39], 0")
            e(f"s_add_u32 s4, s42, {WS_AO}\ns_addc_u32 s5, s43, 0\ns_load_dword s12, s[4:5], 0\ns_waitcnt lgkmcnt(0)")

    def quadsum(self, pairs):
        e = self.e
        for D, S in pairs: e(f"v_mov_b32_dpp v{S}, v{D} quad_perm:[0,0,0,0] row_mask:0xf bank_mask:0xf")
        for r in range(1, 4):
            for D, S in pairs: e(f"v_add_f32_dpp v{S}, v{D+r}, v{S} quad_perm:[{r},{r},{r},{r}] row_mask:0xf bank_mask:0xf")

    def b_ids(self):
        e = self.e
        e(f"s_lshr_b32 s65, s64, 2\ns_lshl_b32 s3, s{sX}, 2\ns_add_u32 s65, s65, s3\ns_and_b32 s66, s64, 3")
        e(f"v_bfe_u32 v6, v{vL}, 2, 2\nv_lshl_add_u32 v6, v6, 8, v7")
        e(f"s_lshl_b32 s3, s65, 7\ns_and_b32 s12, s{sW}, 3\ns_lshl_b32 s12, s12, 5\ns_add_u32 s3, s3, s12\ns_lshr_b32 s12, s{sW}, 2\ns_lshl_b32 s12, s12, 2\ns_add_u32 s3, s3, s12")
        if self.p["WOSP"]:
            e(f"s_lshl_b32 s3, s3, 10\ns_and_b32 s12, s66, 1\ns_lshl_b32 s12, s12, 8\ns_add_u32 s3, s3, s12\ns_lshr_b32 s12, s66, 1\ns_lshl_b32 s12, s12, 7\ns_add_u32 s69, s3, s12")
            e(f"v_bfe_u32 v4, v{vL}, 3, 1\nv_lshlrev_b32 v4, 9, v4\nv_lshl_add_u32 v4, v{vG}, 10, v4\nv_lshl_add_u32 v4, v8, 4, v4")
        else:
            e(f"s_lshl_b32 s3, s3, 10\ns_lshl_b32 s12, s66, 8\ns_add_u32 s69, s3, s12")
            e(f"v_lshlrev_b32 v4, 10, v{vG}\nv_lshl_add_u32 v4, v{vC}, 4, v4")
        self.srd(48, 30, 1 << 25); self.srd(52, 32, 1 << 25); self.srd(56, 36, 1 << 22)
        e("s_cmp_lt_u32 s64, 16\ns_cselect_b32 s58, s58, 0")
    def bo_addr(self):
        e = self.e
        e(f"s_mul_i32 s68, s65, {24*512}\ns_lshl_b32 s3, s{sW}, 6\ns_add_u32 s68, s68, s3\ns_add_u32 s68, s68, {WS_BO}")
        e(f"v_and_b32 v9, 3, v{vL}\nv_lshlrev_b32 v9, 4, v9\nv_lshrrev_b32 v6, 2, v{vL}\nv_lshl_add_u32 v6, v6, 9, v9\nv_and_b32 v9, 0xfff, v6\nv_add_u32 v9, {16*512}, v9")
    def bo_warm(self):
        e = self.e
        self.bo_addr()
        L = self.lab("bow")
        e(f"s_cmp_lt_u32 s64, 16\ns_cbranch_scc0 {L}")
        e(f"buffer_load_dword v5, v6, {WS}, s68 offen {self.p['WM'].replace('_',' ')}")
        e(f"buffer_load_dword v5, v9, {WS}, s68 offen {self.p['WM'].replace('_',' ')}")
        e.label(L)
    def b_tail_addrs(self):
        e = self.e
        for q in range(4): e(f"v_perm_b32 v{20+q}, -1, -1, v{SELB+q}")
        e(f"s_lshl_b32 s3, s{sW}, 10\nv_add_u32 v16, s3, v10")
        e(f"v_and_b32 v17, 31, v{vL}\nv_lshlrev_b32 v17, 4, v17\nv_lshrrev_b32 v12, 5, v{vL}\nv_lshl_add_u32 v17, v12, 12, v17")
        e(f"s_lshl_b32 s16, s65, 12\ns_lshl_b32 s3, s66, 10\ns_add_u32 s16, s16, s3\ns_add_u32 s16, s16, {WS_OUTB}")
        e(f"v_and_b32 v18, 1, v{vG}\nv_lshlrev_b32 v18, 5, v18\nv_lshl_add_u32 v18, v{vC}, 6, v18\nv_lshl_add_u32 v18, v12, 4, v18\nv_mov_b32 v57, s{sT}\nv_mov_b32 v59, s{sT}")
        e(f"s_lshl_b32 s3, s66, 7\ns_lshl_b32 s14, s65, 2\ns_add_u32 s14, s14, s3\ns_lshl_b32 s17, s14, 3\ns_add_u32 s17, s17, {WS_OUTB}")
        e(f"v_lshrrev_b32 v19, 1, v{vL}\nv_lshlrev_b32 v19, 12, v19\nv_and_b32 v15, 1, v{vL}\nv_lshl_add_u32 v19, v15, 4, v19")
        self.srd(48, 38, 2048)
        if self.p["WOSP"]:
            e(f"s_lshr_b32 s14, s65, 4\ns_lshl_b32 s14, s14, 8\ns_and_b32 s3, s66, 1\ns_lshl_b32 s3, s3, 7\ns_add_u32 s14, s14, s3\ns_lshr_b32 s3, s66, 1\ns_lshl_b32 s3, s3, 6\ns_add_u32 s14, s14, s3\ns_and_b32 s3, s65, 15\ns_lshl_b32 s3, s3, 2\ns_add_u32 s14, s14, s3")
        e(f"s_lshl_b32 s14, s14, 1\ns_add_u32 s14, s14, 1024\nv_lshlrev_b32 v15, 2, v15\nv_and_b32 v63, 60, v{vL}")
    def b_kload(self, KR, t, n):
        return self.e.vmem(f"buffer_load_dwordx4 {vr(KR+16*t+4*n)}, v6, s[48:51], s14 offen offset:{0 if self.ilv else n*1024} {self.p['NT']}")
    def b_vload(self, VR, t, n):
        return self.e.vmem(f"buffer_load_dwordx4 {vr(VR+16*t+4*n)}, v10, s[52:55], s15 offen offset:{0 if self.ilv else n*1024} {self.p['NT']}")
    def b_woloads(self):
        for i in range(4):
            self.e.vmem(f"buffer_load_dwordx4 {vr(self.WO[i])}, v4, s[56:59], s69 offen {self.p['NT']}")
            if i < 3: self.e("s_addk_i32 s69, 0x2000")
    def b_chunks(self, nt, KR, bias, wait_q):
        e = self.e
        ch = []
        def c_q():
            e(f"v_lshrrev_b32 v11, 2, v{vC}\nv_lshl_add_u32 v12, v11, 8, v7")
            e(f"v_lshlrev_b32 v13, 5, v11\ns_lshl_b32 s3, s{sW}, 2\nv_add_u32 v14, s3, v13\nv_mov_b32 v15, 0")
            if wait_q:
                L = self.lab("wq")
                e.label(L)
                e.ds(f"ds_read_b32 v60, v15 offset:{LB_FLAG}")
                e(f"s_waitcnt lgkmcnt(0)\nv_readfirstlane_b32 s3, v60\ns_cmp_eq_u32 s3, 0\ns_cbranch_scc1 {L}")
            self.stamp(5)
            e.ds(f"ds_read_b128 v[16:19], v12 offset:{LB_Q}")
            e("s_waitcnt lgkmcnt(0)")
        ch.append((-1, c_q))
        def c_qk(t):
            def f():
                b = KR + 16 * t
                if t < nt:
                    for i in range(4): e(f"v_mfma_f32_16x16x32_bf16 {vr(44+4*i)}, {vr(b+4*i)}, v[16:19], 0")
                    self.quadsum([(44 + 4 * i, b + i) for i in range(4)])
                    if t == 0: e(f"v_max3_f32 v60, v{b}, v{b+1}, v{b+2}\nv_max_f32 v60, v60, v{b+3}")
                    else: e(f"v_max3_f32 v60, v60, v{b}, v{b+1}\nv_max3_f32 v60, v60, v{b+2}, v{b+3}")
                if t == nt:
                    self.allred_G([60], [61], "v_max_f32")
                    e(f"v_mul_f32 v62, {sCS}, v60")
            return f
        for t in range(nt + 1): ch.append((min(t, nt - 1), c_qk(t)))
        def c_exp(t):
            def f():
                b = KR + 16 * t
                for r in range(4): e(f"v_fma_f32 v{b+r}, v{b+r}, {sCS}, -v62")
                for r in range(4): e(f"v_exp_f32 v{b+r}, v{b+r}")
                if t == 0: e(f"v_add_f32 v63, v{b}, v{b+1}")
                else: e(f"v_add_f32 v63, v63, v{b}\nv_add_f32 v63, v63, v{b+1}")
                e(f"v_cvt_pk_bf16_f32 v{b+4}, v{b}, v{b+1}\nv_add_f32 v63, v63, v{b+2}\nv_cvt_pk_bf16_f32 v{b+5}, v{b+2}, v{b+3}\nv_add_f32 v63, v63, v{b+3}")
            return f
        for t in range(nt): ch.append((nt - 1, c_exp(t)))
        def c_l():
            self.allred_G([63], [61], "v_add_f32")
            if bias: e(f"v_add_f32 v62, {bias}, v62")
            e("v_mov_b32 v61, 1")
            self.exec_mask(0x1111, 0)
            e.ds(f"ds_write_b32 v14, v62 offset:{LB_MX}")
            e.ds(f"ds_write_b32 v14, v63 offset:{LB_LS}")
            e("s_mov_b32 exec_lo, 1")
            e.ds(f"ds_add_u32 v15, v61 offset:{LB_FLAG+4}")
            self.exec_full()
            self.stamp(6)
        ch.append((nt - 1, c_l))
        return ch
    def b_pv_prep(self, KR, n):
        t, i = n >> 2, n & 3
        E = 44 + 2 * (n & 3)
        for q in range(2): self.e(f"v_perm_b32 v{E+q}, v{KR+16*t+4+(i>>1)}, v{KR+16*t+4+(i>>1)}, v{SELA+2*(i&1)+q}")
    def b_pv_mma(self, VR, n):
        t, i = n >> 2, n & 3
        E = 44 + 2 * (n & 3)
        b = VR + 16 * t + 4 * i
        for h in range(2):
            acc = 24 + 4 * h
            self.e(f"v_mfma_f32_16x16x16_bf16 {vr(acc)}, v[{E}:{E+1}], v[{b+2*h}:{b+2*h+1}], {'0' if n == 0 else vr(acc)}")
    def b_owrite(self):
        e = self.e
        e(f"s_lshl_b32 s3, s{sW}, 11\nv_add_u32 v11, s3, v10")
        e.ds(f"ds_write_b128 v11, v[24:27] offset:{LB_R4}")
        e.ds(f"ds_write_b128 v11, v[28:31] offset:{LB_R4+1024}")
        e("s_waitcnt lgkmcnt(0)")
        e("s_branch L_btail")

    def b_ctrl(self):
        e = self.e
        KR, VR = 64, 160
        self.WO = [72, 88, 104, 120]
        self.b_ids()
        e("s_cmp_ge_u32 s64, 16\ns_cselect_b32 s50, s50, 0\ns_cselect_b32 s54, s54, 0")
        e(f"s_cselect_b32 s61, 0, {f32(-1e30)}")
        e(f"s_lshl_b32 s14, s{sX}, 22\ns_lshl_b32 s3, s64, 1\ns_add_u32 s3, s3, {1008-32}\ns_lshl_b32 s3, s3, 12\ns_cmp_ge_u32 s64, 16\ns_cselect_b32 s3, s3, 0\ns_add_u32 s14, s14, s3\ns_mov_b32 s15, s14")
        for t in range(2):
            for n in range(4): self.b_kload(KR, t, n)
            if t == 0: e("s_addk_i32 s14, 0x1000")
        for t in range(2):
            for n in range(4): self.b_vload(VR, t, n)
            if t == 0: e("s_addk_i32 s15, 0x1000")
        e("s_waitcnt vmcnt(0) lgkmcnt(0)")
        for _, f in self.b_chunks(2, KR, "s61", False): f()
        for n in range(8):
            self.b_pv_prep(KR, n)
            self.b_pv_mma(VR, n)
        self.bo_warm() if self.p["WARMB"] else self.bo_addr()
        e(f"s_lshl_b32 s12, s{sX}, 11\ns_lshl_b32 s3, s64, 4\ns_add_u32 s12, s12, s3\ns_add_u32 s12, s12, {WS_BML}")
        e(f"v_lshlrev_b32 v11, 4, v13\nv_mov_b32 v53, {sTX}\nv_mov_b32 v55, {sTX}")
        if self.p["NL"]:
            L = self.lab("wtk")
            e.label(L)
            e("s_sleep 2")
            e.ds(f"ds_read_b32 v60, v15 offset:{LB_FLAG+20}")
            e(f"s_waitcnt lgkmcnt(0)\nv_readfirstlane_b32 s3, v60\ns_cmp_eq_u32 s3, 0\ns_cbranch_scc1 {L}")
            e("v_mov_b32 v144, 1\ns_mov_b64 exec, 1")
            e("global_atomic_add v145, v15, v144, s[40:41] sc0 sc1")
            e(f"s_waitcnt vmcnt(0)\nv_cmp_gt_u32 vcc, {self.p['RK']}, v145\nv_cndmask_b32 v145, 0, 1, vcc")
            e.ds(f"ds_write_b32 v15, v145 offset:{LB_FLAG+16}")
            self.exec_full()
        L = self.lab("wml")
        e.label(L)
        e("s_sleep 2")
        e.ds(f"ds_read_b32 v60, v15 offset:{LB_FLAG+4}")
        e(f"s_waitcnt lgkmcnt(0)\nv_readfirstlane_b32 s3, v60\ns_cmp_lt_u32 s3, 8\ns_cbranch_scc1 {L}")
        e.ds(f"ds_read_b128 v[128:131], v13 offset:{LB_MX}")
        e.ds(f"ds_read_b128 v[132:135], v13 offset:{LB_MX+16}")
        e.ds(f"ds_read_b128 v[136:139], v13 offset:{LB_LS}")
        e.ds(f"ds_read_b128 v[140:143], v13 offset:{LB_LS+16}")
        e("s_waitcnt lgkmcnt(0)")
        e("v_max3_f32 v52, v128, v129, v130\nv_max3_f32 v52, v52, v131, v132\nv_max3_f32 v52, v52, v133, v134\nv_max_f32 v52, v52, v135")
        for r in range(128, 136): e(f"v_sub_f32 v{r}, v{r}, v52")
        for r in range(128, 136): e(f"v_exp_f32 v{r}, v{r}")
        e("v_mul_f32 v54, v128, v136")
        for r in range(1, 8): e(f"v_fmac_f32 v54, v{128+r}, v{136+r}")
        self.exec_mask(0x1111, 0)
        e.ds(f"ds_write_b128 v13, v[128:131] offset:{LB_G}")
        e.ds(f"ds_write_b128 v13, v[132:135] offset:{LB_G+16}")
        e.vmem(f"buffer_store_dwordx4 v[52:55], v11, {WS}, s12 offen")
        e(f"s_cmp_eq_u32 {sNC}, 0\ns_cbranch_scc1 L_bml_ns\ns_add_u32 s12, s12, {SLOW}\nv_mov_b32 v53, s{sT}\nv_mov_b32 v55, s{sT}")
        e(f"buffer_store_dwordx4 v[52:55], v11, {WS}, s12 offen sc1")
        e.label("L_bml_ns")
        self.exec_full()
        e("s_cmp_lt_u32 s64, 16\ns_cbranch_scc0 L_bc_nod")
        if self.p["WOK"] <= 23: self.b_woloads()
        e(f"v_and_b32 v15, 31, v{vL}\nv_min_u32 v11, 23, v15\nv_lshlrev_b32 v11, 4, v11\ns_lshl_b32 s12, s65, 9\ns_add_u32 s12, s12, {WS_BML}")
        def gm(): e.vmem(f"buffer_load_dwordx4 v[52:55], v11, {WS}, s12 offen sc1")
        self.poll(gm, [53, 55], 60, "gml", fast="s12")
        e("v_mov_b32 v56, v52")
        self.rowred([56], "v_max_f32", (8, 4, 2, 1))
        self.allred_G([56], [57], "v_max_f32", steps=(16,))
        e("v_sub_f32 v52, v52, v56\nv_exp_f32 v52, v52\nv_cmp_gt_u32 vcc, 24, v15\nv_cndmask_b32 v52, 0, v52, vcc\nv_mul_f32 v54, v54, v52")
        self.rowred([54], "v_add_f32", (8, 4, 2, 1))
        self.allred_G([54], [57], "v_add_f32", steps=(16,))
        e("v_rcp_f32 v54, v54\nv_lshlrev_b32 v15, 2, v15\nv_mul_f32 v52, v52, v54")
        e.ds(f"ds_write_b32 v15, v52 offset:{LB_F}")
        e.label("L_bc_nod")
        self.b_tail_addrs()
        self.b_owrite()

    def b_stream(self):
        e, p = self.e, self.p
        KR, VR, NT_ = 64, 160, 6
        self.WO = [72, 88, 104, 120]
        self.b_ids()
        e(f"s_mul_i32 s3, s64, 7\ns_add_u32 s3, s3, s{sW}\ns_lshl_b32 s3, s3, {10 if p['ILV1'] else 12}\ns_lshl_b32 s14, s{sX}, 22\ns_add_u32 s14, s14, s3\ns_mov_b32 s15, s14\ns_mov_b32 s67, {168*(1024 if p['ILV1'] else 4096)}")
        self.ilv = bool(p["ILV1"])
        Df = lambda n: p["D_B0"] if n < p["NB0"] else p["D_B"] if n < p["NB2"] else p["D_B2"]
        D = p["D_B"]
        tok = []
        ch = []
        def issue(n, throttle=True):
            if throttle and n >= Df(n):
                if n < p["NDUTY"]:
                    L = self.lab("dty")
                    e(f"s_cbranch_vccnz {L}")
                    e.wait_vm(tok[n - Df(n)])
                    e.label(L)
                    if n > Df(n): e.wait_vm(tok[n - Df(n) - 1])
                elif p["NL"] and n >= p["NL"]:
                    if n == p["NL"]:
                        e(f"s_waitcnt lgkmcnt(0)\nv_readfirstlane_b32 s3, v5\ns_cmp_eq_u32 s3, 0\ns_cselect_b64 vcc, -1, 0")
                    L = self.lab("bal")
                    e(f"s_cbranch_vccnz {L}")
                    e.wait_vm(tok[n - p["DSLOW"]])
                    e.label(L)
                    e.wait_vm(tok[n - Df(n)])
                else: e.wait_vm(tok[n - Df(n)])
            if p["NL"] and n == p["NL"] - 1:
                e.ds(f"ds_read_b32 v5, v15 offset:{LB_FLAG+16}")
            if p["NL"] and n == p["NTK"]:
                assert n > p["N1"]
                L = self.lab("tk")
                e(f"s_cmp_eq_u32 s{sW}, 6\ns_cbranch_scc0 {L}")
                e(f"ds_write_b32 v15, v32 offset:{LB_FLAG+20}")
                e.label(L)
            self.prog(n, 4)
            if n < 24:
                if n and (n % 4 == 0 or self.ilv): e("s_add_u32 s14, s14, s67")
                tok.append(self.b_kload(KR, n >> 2, n & 3))
            elif n < 48:
                m = n - 24
                if m and (m % 4 == 0 or self.ilv): e("s_add_u32 s15, s15, s67")
                tok.append(self.b_vload(VR, m >> 2, m & 3))
        n = 0
        if p["PRIO"]:
            L = self.lab("prio")
            e(f"s_cmp_ge_u32 s{sW}, 4\ns_cbranch_scc0 {L}\ns_setprio {p['PRIO']}")
            e.label(L)
        def touch():
            e(f"s_mul_i32 s3, s64, 7\ns_add_u32 s3, s3, s{sW}\ns_and_b32 s12, s3, 7\ns_lshl_b32 s12, s12, 13\ns_lshr_b32 s3, s3, 3\ns_add_u32 s3, s3, {p['TOUCH']}\ns_lshl_b32 s3, s3, 19\ns_add_u32 s3, s3, s12")
            e(f"s_lshl_b32 s12, s{sX}, 16\ns_add_u32 s3, s3, s12\nv_lshlrev_b32 v12, {p['TSH']}, v10\nv_add_u32 v12, s3, v12")
            for k in range(8 >> p["TSH"]):
                e.vmem(f"buffer_load_dword v5, v12, s[20:23], 0 offen {p['TM']}")
                if k + 1 < 8 >> p["TSH"]: e(f"v_add_u32 v12, {1024 << p['TSH']}, v12")
        if p["TOUCH"]:
            self.srd(20, 18, 1 << 24)
            if p["TPOS"] == 1: touch()
        tq = self.p1_compute(False)
        if p["TOUCH"] and p["TPOS"] == 0: touch()
        while n < p["D_B0"]: issue(n); n += 1
        if not p["QBE"]: self.p1_gemv_b(tq)
        assert p["NDUTY"] <= p["N1"]
        if p["NDUTY"]:
            if p["DEEPW"] < 0: e("s_cmp_lt_u32 s64, 16\ns_cselect_b64 vcc, -1, 0")
            elif p["DEEPW"] == p["DEEPN"]: e(f"s_cmp_ge_u32 s{sW}, {7-p['DEEPW']}\ns_cselect_b64 vcc, -1, 0")
            else: e(f"s_cmp_lt_u32 s64, 16\ns_cselect_b32 s3, {7-p['DEEPW']}, {7-p['DEEPN']}\ns_cmp_ge_u32 s{sW}, s3\ns_cselect_b64 vcc, -1, 0")
        while n < p["N1"]: issue(n); n += 1
        ch += self.b_chunks(NT_, KR, None, True)
        done = 0
        landed = -1
        while n < 48:
            if n == max(p["WARMO"], p["N1"]):
                assert n >= 24
                self.bo_warm() if p["WARMB"] else self.bo_addr()
            issue(n)
            if n == p["NWO"]:
                assert not ch
                self.b_woloads()
            landed = max(landed, n - Df(n))
            k = 0
            while ch and k < p["CPS"] and 4 * ch[0][0] + 3 <= landed:
                ch.pop(0)[1](); k += 1
            k = 0
            while not ch and done < min(landed - 24 + 1, 24) and k < p["PVK"]:
                self.b_pv_prep(KR, done); self.b_pv_mma(VR, done); done += 1; k += 1
            n += 1
        assert not ch
        assert done <= p["WOK"]
        self.b_tail_addrs()
        while done < 24:
            self.b_pv_prep(KR, done)
            e.wait_vm(tok[24 + done])
            if done == p["WOK"] and not p["NWO"]:
                L = self.lab("wol")
                e(f"s_cmp_lt_u32 s{sW}, {p['WOLATE']}\ns_cbranch_scc0 {L}")
                v = e.vm
                self.b_woloads()
                e.vm = v
                e.label(L)
            self.b_pv_mma(VR, done); done += 1
        self.stamp(7)
        self.b_owrite()

    def b_tail(self):
        e = self.e
        e.label("L_btail")
        e("s_barrier")
        self.stamp(10)
        e(f"s_cmp_lt_u32 s{sW}, 2\ns_cbranch_scc0 L_bt_nored")
        e(f"s_lshl_b32 s3, s{sW}, 10\nv_add_u32 v11, s3, v10")
        e(f"v_lshlrev_b32 v13, 5, v{vG}")
        e("v_mov_b32 v12, 0")
        e.ds(f"ds_read_b32 v62, v12 offset:{LB_FLAG+24}")
        e.ds(f"ds_read_b128 v[44:47], v13 offset:{LB_G}")
        e.ds(f"ds_read_b128 v[48:51], v13 offset:{LB_G+16}")
        tk = [e.ds(f"ds_read_b128 {vr(128+4*w)}, v11 offset:{LB_R4+2048*w}") for w in range(8)]
        e(f"s_mul_i32 s15, s{sX}, {4*24*512}\ns_lshl_b32 s3, s64, 9\ns_add_u32 s15, s15, s3\ns_lshl_b32 s3, s{sW}, 8\ns_add_u32 s15, s15, s3\ns_add_u32 s15, s15, {WS_BO}")
        e(f"v_mul_u32_u24 v14, {24*512}, v{vG}\nv_lshl_add_u32 v14, v{vC}, 4, v14\nv_mov_b32 v53, {sTX}\nv_mov_b32 v55, {sTX}")
        for w in range(8):
            e.wait_lg(tk[w])
            g = 44 + (w & ~1)
            sel = f"op_sel:[0,{w&1},0] op_sel_hi:[1,{w&1},1]"
            for k in (0, 2):
                if w == 0: e(f"v_pk_mul_f32 v[{128+k}:{129+k}], v[{128+k}:{129+k}], v[{g}:{g+1}] op_sel:[0,0] op_sel_hi:[1,0]")
                else: e(f"v_pk_fma_f32 v[{128+k}:{129+k}], v[{128+4*w+k}:{129+4*w+k}], v[{g}:{g+1}], v[{128+k}:{129+k}] {sel}")
        e("v_cvt_pk_bf16_f32 v52, v128, v129\nv_cvt_pk_bf16_f32 v54, v130, v131")
        e.vmem(f"buffer_store_dwordx4 v[52:55], v14, {WS}, s15 offen")
        e(f"v_readfirstlane_b32 s3, v62\ns_cmp_eq_u32 s3, 0\ns_cbranch_scc1 L_bt_nored\ns_add_u32 s15, s15, {SLOW}\nv_mov_b32 v53, s{sT}\nv_mov_b32 v55, s{sT}")
        e(f"buffer_store_dwordx4 v[52:55], v14, {WS}, s15 offen sc1")
        e.label("L_bt_nored")
        self.stamp(8)
        e("s_cmp_lt_u32 s64, 16\ns_cbranch_scc1 L_bt_duty")
        self.exit()
        e.label("L_bt_duty")
        if self.p["NWO"] and self.p["B4B"]: e("s_barrier")
        if self.p["WOLATE"] < 7 and not self.p["NWO"]:
            L = self.lab("wol")
            e(f"s_barrier\ns_sub_u32 s3, s{sW}, {self.p['WOLATE']}\ns_cmp_lt_u32 s3, {7-self.p['WOLATE']}\ns_cbranch_scc0 {L}")
            self.b_woloads()
            e.label(L)
        def g():
            e.vmem(f"buffer_load_dwordx4 v[128:131], v6, {WS}, s68 offen sc1")
            e.vmem(f"buffer_load_dwordx4 v[132:135], v9, {WS}, s68 offen sc1")
        def addrs():
            e.ds(f"ds_read_b32 v60, v63 offset:{LB_F}")
            e.ds(f"ds_read_b32 v61, v63 offset:{LB_F+64}")
            e("s_waitcnt lgkmcnt(0)")
        self.poll(g, [129, 131, 133, 135], 62, "gbo", fast="s68", shadow=addrs)
        self.stamp(11); self.cnt(12)
        for k, (src, f) in enumerate(((128, 60), (132, 61))):
            e(f"v_lshlrev_b32 v136, 16, v{src}\nv_and_b32 v137, 0xffff0000, v{src}\nv_lshlrev_b32 v138, 16, v{src+2}\nv_and_b32 v139, 0xffff0000, v{src+2}")
            for i in range(4):
                e(f"v_mul_f32 v{140+i}, v{f}, v{136+i}" if k == 0 else f"v_fmac_f32 v{140+i}, v{f}, v{136+i}")
        e("v_permlane32_swap_b32 v140, v142\nv_permlane32_swap_b32 v141, v143\nv_add_f32 v140, v140, v142\nv_add_f32 v141, v141, v143")
        e("v_permlane16_swap_b32 v140, v141\nv_add_f32 v140, v140, v141")
        self.rowred([140], "v_add_f32", (8, 4))
        e("v_cvt_pk_bf16_f32 v140, v140, v140")
        for i in range(4):
            for q in range(4): e(f"v_and_b32_dpp v{148+4*i+q}, v140, v{20+q} quad_perm:[{i},{i},{i},{i}] row_mask:0xf bank_mask:0xf")
            if i: e(f"v_mfma_f32_16x16x32_bf16 v[24:27], {vr(144+4*i)}, {vr(self.WO[i-1])}, {'0' if i == 1 else 'v[24:27]'}")
        e(f"v_mfma_f32_16x16x32_bf16 v[24:27], {vr(160)}, {vr(self.WO[3])}, v[24:27]")
        e.ds(f"ds_write_b128 v16, v[24:27] offset:{LB_R5}")
        e("s_waitcnt lgkmcnt(0)")
        self.stamp(13)
        e("s_barrier")
        self.stamp(14)
        e(f"s_cmp_eq_u32 s{sW}, 0\ns_cbranch_scc1 L_bt_fin")
        self.exit()
        e.label("L_bt_fin")
        tk = [e.ds(f"ds_read_b128 {vr(128+4*w)}, v17 offset:{LB_R5+1024*w}") for w in range(4)]
        for w in range(1, 4):
            e.wait_lg(tk[w])
            e(f"v_pk_add_f32 v[128:129], v[128:129], v[{128+4*w}:{129+4*w}]\nv_pk_add_f32 v[130:131], v[130:131], v[{130+4*w}:{131+4*w}]")
        e("v_permlane32_swap_b32 v128, v130\nv_permlane32_swap_b32 v129, v131")
        e("v_add_f32 v56, v128, v130\nv_add_f32 v58, v129, v131")
        e.vmem(f"buffer_store_dwordx4 v[56:59], v18, {WS}, s16 offen sc1")
        self.stamp(9)
        def fin(R):
            self.stamp(15); self.cnt(16)
            self.rowred([R, R + 2], "v_add_f32", (8, 4, 2))
            self.allred_G([R, R + 2], [144, 145], "v_add_f32")
            e(f"v_cvt_pk_bf16_f32 v146, v{R}, v{R+2}")
            self.exec_mask(3, 0)
            e("buffer_store_dword v146, v15, s[48:51], s14 offen")
            if self.p["TIMING"]: self.exec_full(); e("s_waitcnt vmcnt(0)")
            self.exit()
        ld = lambda r: e(f"buffer_load_dwordx4 {vr(r)}, v19, {WS}, s17 offen sc1")
        if self.p["DPOLL"]: self.poll2(ld, 1, 128, 136, 62, "gob", fin)
        else:
            self.poll(lambda: ld(128), [129, 131], 62, "gob")
            fin(128)

    def a_setup(self):
        e = self.e
        e(f"s_lshl_b32 s64, s{sX}, 3\ns_add_u32 s64, s64, s{sSLOT}\ns_lshr_b32 s65, s64, 1\ns_and_b32 s66, s64, 1")
        e(f"s_lshl_b32 s14, s64, 13\ns_lshl_b32 s3, s{sW}, 10\ns_add_u32 s14, s14, s3\ns_mov_b32 s61, 0x80000")
        e(f"s_lshl_b32 s15, s{sW}, 13\ns_add_u32 s15, s15, {WS_QABS}")
        e(f"s_lshl_b32 s67, s{sW}, 14")
        e(f"v_and_b32 v11, 3, v{vC}\nv_lshlrev_b32 v11, 2, v11")
        e(f"v_lshrrev_b32 v12, 2, v{vC}\nv_and_b32 v13, 1, v12\nv_or_b32 v11, v11, v13")
        e(f"v_xor_b32 v12, v12, v{vC}\nv_and_b32 v12, 2, v12\nv_or_b32 v11, v11, v12")
        e(f"v_lshlrev_b32 v11, 4, v11\nv_lshl_add_u32 v11, v{vG}, 8, v11\nv_lshl_add_u32 v11, v{vC}, 10, v11")
        e(f"v_add_u32 v6, s67, v11\nv_add_u32 v7, {LA_Q}, v11")
        e(f"v_add_u32 v9, s67, v10")
        e("s_waitcnt lgkmcnt(0)")
        if self.p["WSOFF"]: e(f"s_add_u32 s42, s42, {self.p['WSOFF'] << 20}\ns_addc_u32 s43, s43, 0")
        e(f"s_load_dword s{sT}, s[42:43], 0")
        self.srd(48, 18, 1 << 24)
    def a_issue(self, depthf, p1at=None):
        e, p = self.e, self.p
        T1, T0, QG = 64, 128, 192
        seq = [("t1", i) for i in range(16)] + [("t0", i) for i in range(16)]
        q = p["QPOS"]
        seq = seq[:q] + [("q", i) for i in range(8)] + seq[q:]
        tok, done = [], 0
        tokof = {}
        def landed_action(it):
            kind, i = it
            if p["ANODS"]: return
            if kind == "t1":
                e(f"v_xor_b32 v12, {16*fswz(i)}, v9")
                e.ds(f"ds_write_b128 v12, {vr(T1+4*i)} offset:{1024*i}")
                if i == 15:
                    e("s_waitcnt lgkmcnt(0)")
                    for ks in range(16):
                        e(f"v_xor_b32 v12, {16*ks}, v6")
                        e.ds(f"ds_read_b128 {vr(T1+4*ks)}, v12")
            elif kind == "t0":
                e(f"v_xor_b32 v12, {16*fswz(i)}, v9")
                e.ds(f"ds_write_b128 v12, {vr(T0+4*i)} offset:{1024*i}")
        def qload(i):
            if i % 4 == 0: e(f"s_add_u32 s12, s15, {1024*i}")
            return e.vmem(f"buffer_load_dwordx4 {vr(QG+4*i)}, v10, {WS}, s12 offen offset:{1024*(i&3)} sc1")
        tags = [QG + 4 * i + k for i in range(8) for k in (1, 3)]
        def qstage():
            self.stamp(2)
            self.tagcheck(tags, 60)
            R, B = self.lab("aqr"), self.lab("aqb")
            e(f"s_cbranch_vccnz {R}")
            e.label(B)
            def ool():
                e.label(R)
                e("s_mov_b32 s13, 0")
                L = self.lab("aql")
                e.label(L)
                e("s_mov_b32 s4, 0")
                for i in range(8):
                    S = self.lab("aqs")
                    self.tagcheck([QG + 4 * i + 1, QG + 4 * i + 3], 60)
                    e(f"s_cbranch_vccz {S}\ns_add_u32 s12, s15, {1024*i}\ns_mov_b32 s4, 1")
                    e(f"buffer_load_dwordx4 {vr(QG+4*i)}, v10, {WS}, s12 offen sc1")
                    e.label(S)
                e(f"s_cmp_eq_u32 s4, 0\ns_cbranch_scc1 {B}\ns_add_u32 s13, s13, 1\ns_waitcnt vmcnt(0)\ns_cmp_gt_u32 s13, {p['MAXPOLL']}\ns_cbranch_scc0 {L}\ns_branch {B}")
            self.ool.append(ool)
            self.stamp(3)
            for i in range(8):
                e(f"v_mov_b32 v{QG+4*i+1}, v{QG+4*i+2}")
                if i % 2 == 0: e(f"v_xor_b32 v12, {16*fswz(i>>1)}, v4")
                e.ds(f"ds_write_b64 v12, v[{QG+4*i}:{QG+4*i+1}] offset:{1024*(i>>1)+512*(i&1)}")
        FR = (224, 236, 44)
        tk, qk = {}, []
        def rd(ks):
            f = FR[ks % 3]
            e(f"v_xor_b32 v13, {16*ks}, v7")
            e.ds(f"ds_read_b128 {vr(f)}, v13")
            return e.ds(f"ds_read_b128 {vr(f+4)}, v13 offset:16384")
        def qkstart():
            e("s_waitcnt lgkmcnt(0)\ns_barrier")
            self.stamp(4)
            if p["AKILL"] == 1: self.exit()
            tk[0] = rd(0); tk[1] = rd(1)
            qk.extend(range(16))
        def qkstep(k=1):
            for _ in range(k):
                if not qk: return
                ks = qk.pop(0)
                f = FR[ks % 3]
                e.wait_lg(tk[ks])
                c = lambda r: "0" if ks == 0 else vr(r)
                e(f"v_mfma_f32_16x16x32_bf16 {vr(24)}, {vr(T1+4*ks)}, {vr(f)}, {c(24)}")
                if ks + 2 < 16: tk[ks + 2] = rd(ks + 2)
                e(f"v_mfma_f32_16x16x32_bf16 {vr(28)}, {vr(T1+4*ks)}, {vr(f+4)}, {c(28)}")
        qdone = False
        for n, it in enumerate(seq):
            if n == p1at: e.label('L_arest'); self.selectors(); self.a_addrs(); self.tagmake(); self.stamp(1)
            if p["CPA"] and n == p["CPA"]:
                L = self.lab("cpa")
                e(f"s_cmp_lt_u32 s{sW}, 2\ns_cbranch_scc0 {L}")
                v = e.vm
                self.code_pf("L_acomp", "L_codeend", "L_pca", "v0")
                e.vm = v
                e.label(L)
            D = depthf(n)
            if n >= D:
                e.wait_vm(tok[n - D])
            self.prog(n, 4)
            kind, i = it
            if kind == "q":
                t = qload(i)
            else:
                t = e.vmem(f"buffer_load_dwordx4 {vr((T1 if kind == 't1' else T0)+4*i)}, v10, s[48:51], s14 offen {p['NT']}")
                if not (kind == "t0" and i == 15): e("s_add_u32 s14, s14, s61")
            tok.append(t); tokof[it] = t
            while done <= n - D and done < len(seq) and n >= D:
                landed_action(seq[done]); done += 1
            if p["QKE"] == 2:
                if qdone: qkstep(p["QKS"])
                elif done > q + 7:
                    qstage(); qkstart(); qdone = True
        if not qdone:
            e.wait_vm(tokof[("q", 7)])
            while done < len(seq) and tok[done] <= tokof[("q", 7)]:
                landed_action(seq[done]); done += 1
            qstage()
            if p["QKE"]: qkstart()
        while done < len(seq):
            qkstep(p["QKS"])
            e.wait_vm(tok[done]); landed_action(seq[done]); done += 1
        qkstep(16)
        e("s_waitcnt lgkmcnt(0)")

    def a_addrs(self):
        e = self.e
        e(f"v_lshlrev_b32 v250, 5, v{vC}\ns_lshl_b32 s3, s{sW}, 2\nv_add_u32 v250, {LA_MX}, v250\nv_add_u32 v251, s3, v250")
        e(f"v_lshrrev_b32 v252, 1, v{vG}\ns_lshl_b32 s3, s{sW}, 1\nv_add_u32 v252, s3, v252\nv_xor_b32 v252, v252, v{vC}\nv_lshlrev_b32 v252, 4, v252\nv_lshl_add_u32 v252, v{vC}, 9, v252")
        e(f"v_and_b32 v56, 1, v{vG}\nv_lshl_add_u32 v252, v56, 3, v252\nv_add_u32 v252, {LA_P}, v252")
        e(f"v_and_b32 v14, 31, v{vL}\nv_lshrrev_b32 v15, 5, v{vL}")
        e(f"v_xor_b32 v253, v15, v{vC}\nv_lshlrev_b32 v253, 4, v253\nv_lshl_add_u32 v253, v14, 9, v253\nv_add_u32 v253, {LA_P}, v253")
        e(f"v_bfe_u32 v57, v{vL}, 2, 2\nv_lshlrev_b32 v58, 2, v57\nv_lshrrev_b32 v59, 1, v57\nv_xor_b32 v59, v59, v15\nv_lshl_add_u32 v58, v59, 1, v58")
        e(f"v_bfe_u32 v59, v{vL}, 1, 1\nv_lshl_add_u32 v59, v56, 1, v59\ns_and_b32 s3, s{sW}, 1\ns_lshl_b32 s3, s3, 3\nv_add_u32 v59, s3, v59\nv_xor_b32 v58, v58, v59")
        e(f"v_lshlrev_b32 v58, 4, v58\nv_and_b32 v59, 1, v{vL}\nv_lshl_add_u32 v58, v59, 3, v58\nv_lshl_add_u32 v58, v57, 10, v58\nv_lshl_add_u32 v58, v15, 13, v58")
        e(f"s_lshr_b32 s3, s{sW}, 1\ns_lshl_b32 s3, s3, 8\nv_add_u32 v32, s3, v58")
        e("v_xor_b32 v33, 16, v32\nv_add_u32 v33, 0x1000, v33\nv_xor_b32 v34, 64, v32\nv_xor_b32 v35, 64, v33")
        e(f"v_and_b32 v254, 7, v14\nv_lshlrev_b32 v254, 4, v254\nv_lshl_add_u32 v254, v14, 10, v254\nv_lshl_add_u32 v254, v15, 3, v254\ns_lshl_b32 s3, s{sW}, 7\nv_add_u32 v254, s3, v254")
        e(f"s_lshl_b32 s3, s{sW}, 13\nv_add_u32 v255, s3, v10")
        e(f"v_lshlrev_b32 v4, 3, v{vL}\ns_lshl_b32 s3, s{sW}, 12\ns_add_u32 s3, s3, {LA_Q}\nv_add_u32 v4, s3, v4\ns_and_b32 s3, s{sW}, 3\ns_lshl_b32 s3, s3, 4\nv_xor_b32 v4, s3, v4")
        e(f"s_lshl_b32 s16, s{sW}, 19\ns_lshl_b32 s3, s64, 10\ns_add_u32 s16, s16, s3\ns_add_u32 s16, s16, {WS_AO}\ns_mov_b32 s17, 0x10000")
        self.a_wsetup()
    def a_wsetup(self):
        e, nt = self.e, self.p["NT"]
        UV, WO = 160, 192
        self.srd(52, 24, 1 << 22); self.srd(56, 26, 1 << 22)
        e(f"s_lshl_b32 s68, s{sW}, 19\ns_lshl_b32 s3, s65, 8\ns_add_u32 s68, s68, s3\ns_lshl_b32 s3, s66, 7\ns_add_u32 s68, s68, s3")
        e(f"v_bfe_u32 v248, v{vL}, 3, 1\nv_lshlrev_b32 v248, 16, v248\nv_lshl_add_u32 v248, v{vG}, 17, v248\nv_lshl_add_u32 v248, v8, 4, v248")
        e(f"s_lshl_b32 s69, s64, 16\ns_lshr_b32 s3, s{sW}, 2\ns_lshl_b32 s3, s3, 15\ns_add_u32 s69, s69, s3\ns_and_b32 s3, s{sW}, 3\ns_lshl_b32 s3, s3, 8\ns_add_u32 s69, s69, s3")
        e(f"v_lshlrev_b32 v249, 13, v{vG}\nv_lshl_add_u32 v249, v{vC}, 4, v249")
        self.wq = []
        for i in range(8):
            self.wq.append((f"buffer_load_dwordx4 {vr(UV+4*i)}, v248, s[52:55], s68 offen {nt}", "s_addk_i32 s68, 0x2000" if i < 7 else ""))
        for i in range(8):
            self.wq.append((f"buffer_load_dwordx4 {vr(WO+4*i)}, v249, s[56:59], s69 offen offset:{1024*(i&3)} {nt}", "s_addk_i32 s69, 0x1000" if i == 3 else ""))
    def hook(self, k):
        if self.p["TKM"] >> k & 1: self.wtick()
    def wtick(self, n=1, late=False):
        for _ in range(n):
            if self.wq and (late or len(self.wq) > 16 - self.p["NWE"]):
                a, b = self.wq.pop(0)
                self.e.vmem(a); self.e(b)

    def a_tail_addrs(self):
        e = self.e
        e(f"v_and_b32 v20, 1, v{vG}\nv_lshlrev_b32 v252, 5, v20\nv_lshl_add_u32 v252, v{vC}, 6, v252\nv_lshl_add_u32 v252, v15, 4, v252")
        e(f"s_and_b32 s3, s{sW}, 3\ns_lshl_b32 s14, s3, 8\nv_lshrrev_b32 v22, 2, v252\nv_add_u32 v22, s14, v22")
        e(f"s_lshl_b32 s12, s65, 16\ns_add_u32 s12, s12, s14\ns_add_u32 s12, s12, {WS_AO}")
        e(f"v_lshlrev_b32 v15, 10, v{vG}\nv_lshl_add_u32 v15, v{vC}, 4, v15")
        e(f"v_bfe_u32 v16, v{vL}, 3, 1\nv_lshlrev_b32 v17, 7, v16\nv_lshl_add_u32 v17, v{vG}, 5, v17\nv_add_u32 v17, s14, v17")
        e(f"s_lshl_b32 s3, s{sW}, 10\nv_add_u32 v18, s3, v10")
        e(f"v_and_b32 v19, 3, v{vL}\nv_lshlrev_b32 v19, 4, v19\nv_lshrrev_b32 v23, 2, v{vL}\nv_add_u32 v19, v19, v23\nv_lshlrev_b32 v19, 1, v19\nv_add_u32 v19, s14, v19")
        e(f"v_lshlrev_b32 v20, 4, v16\nv_lshl_add_u32 v20, v{vG}, 5, v20\ns_lshl_b32 s3, s{sW}, 7\nv_add_u32 v20, s3, v20")
        e(f"v_lshlrev_b32 v23, 8, v16\nv_lshl_add_u32 v23, v8, 4, v23\nv_lshl_add_u32 v23, v{vG}, 11, v23")
        e(f"v_lshlrev_b32 v250, 3, v16\nv_lshl_add_u32 v250, v8, 4, v250\nv_lshl_add_u32 v250, v{vG}, 1, v250\nv_add_u32 v250, s3, v250")
        e(f"s_lshr_b32 s14, s{sW}, 2\ns_lshl_b32 s14, s14, 6\ns_add_u32 s3, s3, s14\nv_lshlrev_b32 v251, 4, v{vG}\nv_add_u32 v251, s3, v251")
        sh = self.p["AMS"]
        e(f"v_lshlrev_b32 v14, {sh}, v{vL}")
        e(f"s_lshl_b32 s15, s65, {6+sh}\ns_add_u32 s15, s15, {WS_AML if sh == 4 else WS_AML2}\ns_mov_b32 s18, 0x11111111\ns_mov_b32 s19, 0x11111111\ns_mov_b32 s13, 0")
        e(f"s_lshl_b32 s61, s64, 12\ns_lshl_b32 s3, s{sW}, 10\ns_add_u32 s61, s61, s3\ns_add_u32 s61, s61, {WS_OUTA}")

    def a_main(self):
        e, p = self.e, self.p
        T1 = 64
        FR = (224, 236, 44)
        qke = p["QKE"]
        e.label("L_acomp")
        if not qke:
            e("s_barrier")
            self.stamp(4); self.cyc(23)
            if p["AKILL"] == 1: self.exit()
        else: self.stamp(17)
        def rd(ks):
            f = FR[ks % 3]
            e(f"v_xor_b32 v12, {16*ks}, v6\nv_xor_b32 v13, {16*ks}, v7")
            e.ds(f"ds_read_b128 {vr(f)}, v13")
            e.ds(f"ds_read_b128 {vr(f+4)}, v13 offset:16384")
            return e.ds(f"ds_read_b128 {vr(f+8)}, v12")
        tk = {0: rd(0), 1: rd(1)}
        for ks in range(16):
            f = FR[ks % 3]
            e.wait_lg(tk[ks])
            c = lambda r: "0" if ks == 0 else vr(r)
            if not qke:
                e(f"v_mfma_f32_16x16x32_bf16 {vr(24)}, {vr(T1+4*ks)}, {vr(f)}, {c(24)}")
                e(f"v_mfma_f32_16x16x32_bf16 {vr(28)}, {vr(T1+4*ks)}, {vr(f+4)}, {c(28)}")
            else: e(f"v_mfma_f32_16x16x32_bf16 {vr(16)}, {vr(f+8)}, {vr(f)}, {c(16)}")
            if ks + 2 < 16: tk[ks + 2] = rd(ks + 2)
            if ks % p['TQ'] == 0: self.wtick()
            if not qke: e(f"v_mfma_f32_16x16x32_bf16 {vr(16)}, {vr(f+8)}, {vr(f)}, {c(16)}")
            e(f"v_mfma_f32_16x16x32_bf16 {vr(20)}, {vr(f+8)}, {vr(f+4)}, {c(20)}")
        self.hook(0)
        for hh in range(2):
            a, b = 16 + 4 * hh, 24 + 4 * hh
            e(f"v_max3_f32 v{56+hh}, v{a}, v{a+1}, v{a+2}\nv_max3_f32 v{56+hh}, v{56+hh}, v{a+3}, v{b}\nv_max3_f32 v{56+hh}, v{56+hh}, v{b+1}, v{b+2}\nv_max_f32 v{56+hh}, v{56+hh}, v{b+3}")
        self.allred_G([56, 57], [58, 59], "v_max_f32")
        e("s_barrier")
        self.stamp(10)
        self.exec_mask(0xffff, 0)
        e.ds("ds_write_b32 v251, v56")
        e.ds("ds_write_b32 v251, v57 offset:512")
        self.exec_full()
        e("s_waitcnt lgkmcnt(0)\ns_barrier")
        for hh in range(2):
            e.ds(f"ds_read_b128 {vr(224+8*hh)}, v250 offset:{512*hh}")
            e.ds(f"ds_read_b128 {vr(228+8*hh)}, v250 offset:{512*hh+16}")
        e("s_waitcnt lgkmcnt(0)")
        for hh in range(2):
            m = 224 + 8 * hh
            e(f"v_max3_f32 v{56+hh}, v{m}, v{m+1}, v{m+2}\nv_max3_f32 v{56+hh}, v{56+hh}, v{m+3}, v{m+4}\nv_max3_f32 v{56+hh}, v{56+hh}, v{m+5}, v{m+6}\nv_max_f32 v{56+hh}, v{56+hh}, v{m+7}")
            e(f"v_mul_f32 v{56+hh}, {sCS}, v{56+hh}")
        for T in range(2):
            for hh in range(2):
                for r in range(4):
                    s = 16 + 8 * T + 4 * hh + r
                    e(f"v_fma_f32 v{s}, v{s}, {sCS}, -v{56+hh}")
        self.hook(1)
        for s in range(16, 32): e(f"v_exp_f32 v{s}, v{s}")
        for T in range(2):
            for hh in range(2):
                s, d = 16 + 8 * T + 4 * hh, 56 + 4 * T + 2 * hh
                e(f"v_cvt_pk_bf16_f32 v{d}, v{s}, v{s+1}\nv_cvt_pk_bf16_f32 v{d+1}, v{s+2}, v{s+3}")
                e.ds(f"ds_write_b64 v252, v[{d}:{d+1}] offset:{256*T+8192*hh}")
        HI = (4, 5, 11, 13)
        for k in range(4): e(f"v_add_u32 v{HI[k]}, 0x10000, v{32+k}")
        def rdc(n):
            f = FR[n % 3]
            for t in range(2):
                for nn in range(2):
                    a = 32 + 2 * t + nn if (n & 7) < 4 else HI[2 * t + nn]
                    tkk = e.ds(f"ds_read_b64_tr_b16 v[{f+4+4*t+2*nn}:{f+5+4*t+2*nn}], v{a} offset:{16384*(n&3)}")
            return tkk
        def rdq(n):
            e(f"v_xor_b32 v12, {32*(n&7)}, v253")
            return e.ds(f"ds_read_b128 {vr(FR[n % 3])}, v12 offset:{256*(n>>3)}")
        if p["PVM"] or p["PRC"]:
            tp = e.lg
            rdc(0); rdc(1)
            e.wait_lg(tp)
            e("s_barrier")
        else: e("s_waitcnt lgkmcnt(0)\ns_barrier")
        self.stamp(5)
        ACC = (128, 144)
        fill = Emit()
        sv, self.e = self.e, fill
        for hh in range(2):
            a, b = 16 + 4 * hh, 24 + 4 * hh
            for s in (a + 1, a + 2, a + 3, b, b + 1, b + 2, b + 3): fill(f"v_add_f32 v{a}, v{a}, v{s}")
        self.allred_G([16, 20], [17, 21], "v_add_f32")
        lsum = list(fill.L); fill.L = []
        fill(f"v_lshlrev_b32 v21, 5, v8\ns_lshl_b32 s3, s{sW}, 8\ns_add_u32 s3, s3, {LA_MX}\nv_add_u32 v21, s3, v21")
        if p["INB"]:
            fill(f"s_and_b32 s22, s{sT}, 0xeeeeeeee\ns_and_b32 s3, s{sT}, 1\ns_mul_i32 s3, s3, 0x1111\ns_or_b32 s22, s22, s3")
            fill(f"s_bfe_u32 s3, s{sT}, 0x10001\ns_mul_i32 s3, s3, 0x11110000\ns_or_b32 s22, s22, s3\ns_mov_b32 s23, 0x00010001")
            fill("v_lshlrev_b32 v63, 1, v15\nv_lshrrev_b32 v63, v63, s22")
            for q in range(4):
                for k in range(2):
                    if (q, k) != (3, 1): fill(f"v_lshrrev_b32 v{56+2*q+k}, {4*q+k}, v63")
            fill("v_lshrrev_b32 v63, 13, v63")
        self.a_tail_addrs()
        taddr = list(fill.L)
        self.e = sv
        def rdp(R, n):
            f = FR[n % 3]
            e(f"v_xor_b32 v12, {32*n}, v253")
            e.ds(f"ds_read_b128 {vr(f)}, v12 offset:{256*R}")
            for t in range(2):
                for nn in range(2):
                    a = 32 + 2 * t + nn if n < 4 else HI[2 * t + nn]
                    tkk = e.ds(f"ds_read_b64_tr_b16 v[{f+4+4*t+2*nn}:{f+5+4*t+2*nn}], v{a} offset:{16384*(n&3)}")
            return tkk
        def half(R, h, tk, write, filler, carry):
            n0 = 4 * h
            for n in range(n0, n0 + 2):
                if n not in tk: tk[n] = rdp(R, n)
            per = -(-len(filler) // 8)
            for n in range(n0, n0 + 4):
                f = FR[n % 3]
                e.wait_lg(tk[n])
                first = (R == 0 and n == 0)
                e(f"v_mfma_f32_32x32x16_bf16 {vr(ACC[0],16)}, {vr(f+4)}, {vr(f)}, {'0' if first else vr(ACC[0],16)}")
                if n + 2 < n0 + 4 or carry: tk[n + 2] = rdp(R, n + 2)
                if n == n0 + 1: self.hook(2 + 2 * (2 * R + h))
                for _ in range(per):
                    if filler: e(filler.pop(0))
                e(f"v_mfma_f32_32x32x16_bf16 {vr(ACC[1],16)}, {vr(f+8)}, {vr(f)}, {'0' if first else vr(ACC[1],16)}")
                if write:
                    for ks in range(4 * (n - n0), 4 * (n - n0) + 4):
                        e(f"v_xor_b32 v12, {16*ks}, v6")
                        e.ds(f"ds_write_b128 v12, {vr(T1+4*ks)}")
                for _ in range(per):
                    if filler: e(filler.pop(0))
        if p["PVM"]:
            e(f"s_lshr_b32 s20, s{sW}, 1")
            tk = {0: rdq(0), 1: rdq(1)}
            for st in range(16):
                f = FR[st % 3]
                filler = lsum if st < 2 else taddr if st >= 12 else []
                per = -(-len(filler) // (2 * ((2 if st < 2 else 16) - st))) if filler else 0
                e.wait_lg(tk[st])
                e(f"v_mfma_f32_32x32x16_bf16 {vr(ACC[0],16)}, {vr(f+4)}, {vr(f)}, {'0' if st == 0 else vr(ACC[0],16)}")
                for k in range(4):
                    if 2 * k + 2 <= st <= 2 * k + 5:
                        L = self.lab("pvw")
                        e(f"s_cmp_eq_u32 s20, {k}\ns_cbranch_scc0 {L}")
                        for ks in range(4 * (st - 2 * k - 2), 4 * (st - 2 * k - 2) + 4):
                            e(f"v_xor_b32 v12, {16*ks}, v6\nds_write_b128 v12, {vr(T1+4*ks)}")
                        e.label(L)
                if st + 2 < 16:
                    rdq(st + 2); tk[st + 2] = rdc(st + 2)
                for _ in range(per):
                    if filler: e(filler.pop(0))
                e(f"v_mfma_f32_32x32x16_bf16 {vr(ACC[1],16)}, {vr(f+8)}, {vr(f)}, {'0' if st == 0 else vr(ACC[1],16)}")
                for _ in range(per):
                    if filler: e(filler.pop(0))
                if st == 1:
                    self.exec_mask(0xffff, 0)
                    e.ds(f"ds_write_b32 v251, v16 offset:{LA_LS-LA_MX}")
                    e.ds(f"ds_write_b32 v251, v20 offset:{LA_LS-LA_MX+512}")
                    self.exec_full()
                if st & 1 and st < 14:
                    self.hook(2 + st // 2)
                    if st < 12:
                        e.wait_lg(tk[st + 1])
                        e("s_barrier")
                    if st in (3, 7, 11): self.stamp({3: 11, 7: 12, 11: 25}[st])
        else:
            tk = {0: rdq(0), 1: rdq(1)} if p["PRC"] else {}
            half(0, 0, tk, False, lsum, True)
            self.exec_mask(0xffff, 0)
            e(f"ds_write_b32 v251, v16 offset:{LA_LS-LA_MX}\nds_write_b32 v251, v20 offset:{LA_LS-LA_MX+512}")
            e.lg += 2
            self.exec_full()
            self.hook(3)
            e("s_barrier")
            self.stamp(11)
            for R, h in ((0, 1), (1, 0)):
                LW, LJ = self.lab("pvw"), self.lab("pvj")
                e(f"s_cmp_lt_u32 s{sW}, 4\ns_cbranch_scc{1 if R == 0 else 0} {LW}")
                lg0, vm0, wq0 = e.lg, e.vm, list(self.wq)
                half(R, h, dict(tk) if R == 0 else {}, False, [], False)
                e(f"s_branch {LJ}")
                e.label(LW)
                e.lg, e.vm, self.wq = lg0, vm0, wq0
                half(R, h, dict(tk) if R == 0 else {}, True, [], False)
                e("s_waitcnt lgkmcnt(0)")
                e.label(LJ)
                self.hook(5 if R == 0 else 7)
                e("s_barrier")
                self.stamp(12 if R == 0 else 25)
            half(1, 1, {}, False, taddr, False)
        e("s_barrier")
        self.stamp(13)
        self.wtick(16)
        e(f"s_cmp_lt_u32 s{sW}, 4\ns_cbranch_scc1 L_ast")
        e(f"buffer_load_dwordx4 v[224:227], v14, {WS}, s15 offen sc1")
        e.label("L_ast")
        for t in range(2):
            for q in range(4):
                a = ACC[t] + 4 * q
                e(f"v_cvt_pk_bf16_f32 v{a}, v{a}, v{a+1}\nv_cvt_pk_bf16_f32 v{a+1}, v{a+2}, v{a+3}\nv_xor_b32 v12, {16*(4*t+q)}, v254")
                if p["INB"]: e(f"v_bfi_b32 v{a}, s23, v{56+2*q}, v{a}\nv_bfi_b32 v{a+1}, s23, v{57+2*q}, v{a+1}")
                e.ds(f"ds_write_b64 v12, v[{a}:{a+1}]")
        e("s_waitcnt lgkmcnt(0)\ns_barrier")
        self.stamp(14); self.cyc(24)
        if p["AKILL"] == 8: self.exit()
        e(f"v_mov_b32 v53, s{sT}\nv_mov_b32 v55, s{sT}\ns_cbranch_scc0 L_agl2")
        tk = []
        for i in range(8):
            e(f"v_xor_b32 v12, {16*i}, v255")
            tk.append(e.ds(f"ds_read_b128 {vr(64+4*i)}, v12 offset:{1024*i}"))
        for k in range(2):
            e.ds(f"ds_read_b128 {vr(96+8*k)}, v21 offset:{1024*k}")
            e.ds(f"ds_read_b128 {vr(100+8*k)}, v21 offset:{1024*k+16}")
        for i in range(8):
            e.wait_lg(tk[i])
            e.vmem(f"buffer_store_dwordx4 {vr(64+4*i)}, v10, {WS}, s16 offen" + ("" if p["AOP"] else " sc1"))
            if i < 7: e("s_add_u32 s16, s16, s17")
        sh = p["AMS"]
        e(f"v_lshlrev_b32 v13, {6+sh}, v8\ns_lshl_b32 s16, s64, {sh}\ns_lshl_b32 s3, s{sW}, {9+sh}\ns_add_u32 s16, s16, s3\ns_add_u32 s16, s16, {WS_AML if sh == 4 else WS_AML2}")
        e("s_waitcnt lgkmcnt(0)")
        e("v_max3_f32 v52, v96, v97, v98\nv_max3_f32 v52, v52, v99, v100\nv_max3_f32 v52, v52, v101, v102\nv_max_f32 v52, v52, v103")
        e(f"v_mul_f32 v52, {sCS}, v52\nv_add_f32 v54, v104, v105")
        for r in range(106, 112): e(f"v_add_f32 v54, v54, v{r}")
        e("s_mov_b64 exec, 0xff" + ("" if p["INB"] else "\ns_waitcnt vmcnt(0)"))
        e(f"buffer_store_dwordx4 v[52:55], v13, {WS}, s16 offen sc1")
        self.exec_full()
        self.stamp(6)
        if p["AKILL"] == 9: self.exit()
        wsave = list(self.wq)
        if p["LPOS"] in (0, 2, 3):
            e("s_barrier")
            self.wtick(16, late=True)
        e("s_branch L_alat")
        e.label("L_agl")
        e(f"buffer_load_dwordx4 v[224:227], v14, {WS}, s15 offen sc1")
        e.label("L_agl2")
        e("s_add_u32 s13, s13, 1\ns_waitcnt vmcnt(0)")
        e(f"v_xor_b32 v60, s{sT}, v225\nv_bitop3_b32 v60, v227, s{sT}, v60 bitop3:0xbe\nv_cmp_eq_u32 vcc, 0, v60")
        e(f"s_cmp_gt_u32 s13, {p['MAXPOLL']}\ns_cselect_b64 vcc, -1, vcc")
        e("s_lshr_b64 s[4:5], vcc, 1\ns_and_b64 s[4:5], s[4:5], vcc\ns_lshr_b64 s[20:21], s[4:5], 2\ns_and_b64 s[4:5], s[4:5], s[20:21]\ns_and_b64 s[4:5], s[4:5], s[18:19]\ns_andn2_b64 s[18:19], s[18:19], s[4:5]")
        for i in range(16):
            L = self.lab("agi")
            e(f"s_bitcmp1_b64 s[4:5], {4*i}\ns_cbranch_scc0 {L}\ns_add_u32 s3, s12, {4096*i}")
            e(f"buffer_load_dwordx4 {vr(64+4*i)}, v15, {WS}, s3 offen sc1")
            e.label(L)
        e("s_cmp_eq_u64 vcc, -1\ns_cbranch_scc0 L_agl")
        self.stamp(7)
        if p["AKILL"] == 9: self.exit()
        if p["LPOS"] in (0, 2): e("s_barrier")
        tg = e.vm
        e(f"s_cmp_eq_u32 s64, 0\ns_cbranch_scc0 L_noep")
        e(f"v_mov_b32 v12, s{sT}\nv_mov_b32 v13, 0")
        self.exec_mask(1, 0)
        e(f"buffer_store_dword v12, v13, {WS}, 0 offen sc1")
        self.exec_full()
        e.label("L_noep")
        e("v_mov_b32 v56, v224")
        self.rowred([56], "v_max_f32", (8, 4, 2, 1))
        self.allred_G([56], [57], "v_max_f32")
        e("v_sub_f32 v224, v224, v56\nv_exp_f32 v224, v224\nv_mul_f32 v226, v226, v224")
        self.rowred([226], "v_add_f32", (8, 4, 2, 1))
        self.allred_G([226], [57], "v_add_f32")
        e("v_rcp_f32 v226, v226\nv_mul_f32 v224, v224, v226\nv_cvt_pk_bf16_f32 v225, v224, v224\nv_and_b32 v226, 0xffff0000, v225\nv_sub_f32 v226, v224, v226\nv_cvt_pk_bf16_f32 v226, v226, v226")
        e.ds(f"ds_write_b16 v19, v225 offset:{LA_F}")
        e.ds(f"ds_write_b16 v19, v226 offset:{LA_F+128}")
        e("s_waitcnt lgkmcnt(0)")
        e.ds(f"ds_read_b128 v[228:231], v17 offset:{LA_F}")
        e.ds(f"ds_read_b128 v[232:235], v17 offset:{LA_F+16}")
        e("s_waitcnt lgkmcnt(0)")
        for i in range(8): self.expand4(128 + 4 * i, 228 + (i >> 1), i & 1)
        if p["INB"]:
            e(f"v_and_b32 v59, 3, v{vL}\nv_lshlrev_b32 v59, 2, v59\nv_lshrrev_b32 v56, v59, s22\nv_lshrrev_b32 v57, 1, v56\nv_lshrrev_b32 v58, 2, v56\nv_lshrrev_b32 v59, 3, v56")
        e.wait_vm(tg)
        if p["LPOS"] == 3: e("s_barrier")
        if p["INB"]:
            def chk(rows, acc):
                first = True
                for i in rows:
                    for k in range(4):
                        e(f"v_xor_b32 v{acc}, v{56+k}, v{64+4*i+k}" if first else f"v_bitop3_b32 v{acc}, v{64+4*i+k}, v{56+k}, v{acc} bitop3:0xbe")
                        first = False
                e(f"v_and_b32 v{acc}, s23, v{acc}\nv_cmp_ne_u32 vcc, 0, v{acc}")
            chk(range(16), 60)
            e("s_cbranch_vccnz L_aor")
            e.label("L_aob")
            def ool():
                e.label("L_aor")
                e("s_mov_b32 s13, 0")
                e.label("L_aol")
                e("s_mov_b32 s4, 0")
                for i in range(16):
                    S = self.lab("aos")
                    chk([i], 60)
                    e(f"s_cbranch_vccz {S}\ns_add_u32 s3, s12, {4096*i}\ns_mov_b32 s4, 1")
                    e(f"buffer_load_dwordx4 {vr(64+4*i)}, v15, {WS}, s3 offen sc1")
                    e.label(S)
                e(f"s_cmp_eq_u32 s4, 0\ns_cbranch_scc1 L_aob\ns_add_u32 s13, s13, 1\ns_waitcnt vmcnt(0)\ns_cmp_gt_u32 s13, {p['MAXPOLL']}\ns_cbranch_scc0 L_aol\ns_branch L_aob")
            self.ool.append(ool)
        for i in range(16):
            if i < 8: e(f"v_mfma_f32_16x16x32_bf16 v[24:27], {vr(128+4*i)}, {vr(64+4*i)}, {'0' if i == 0 else 'v[24:27]'}")
            else: e(f"v_mfma_f32_16x16x32_bf16 v[24:27], {vr((44,48)[i&1])}, {vr(64+4*i)}, v[24:27]")
            if 6 <= i < 14: self.expand4((44, 48)[i & 1], 228 + ((i + 2) >> 1), i & 1)
        e("v_permlane32_swap_b32 v24, v26\nv_permlane32_swap_b32 v25, v27\nv_add_f32 v24, v24, v26\nv_add_f32 v25, v25, v27\nv_cvt_pk_bf16_f32 v24, v24, v25")
        e.ds(f"ds_write_b32 v22, v24 offset:{LA_LAT}")
        self.wq = wsave
        if p["LPOS"] in (0, 3): self.wtick(16, late=True)
        tkw = e.vm
        e("s_waitcnt lgkmcnt(0)")
        e.label("L_alat")
        e("s_barrier")
        self.stamp(15)
        if p["LPOS"] == 1:
            self.wtick(16, late=True)
            tkw = e.vm
        e.ds(f"ds_read_b128 v[28:31], v20 offset:{LA_LAT}")
        e("s_waitcnt lgkmcnt(0)")
        nlate = 16 - self.p["NWE"]
        wt = lambda k: (tkw - (15 - k)) if (15 - k) < nlate else None
        self.gemv8(24, 28, 160, [wt(k) for k in range(8)])
        if p["LPOS"] == 2:
            assert nlate <= 8
            L = self.lab("lat")
            e(f"s_cmp_lt_u32 s{sW}, 4\ns_cbranch_scc1 {L}")
            self.wtick(16, late=True)
            e.label(L)
            tkw = e.vm
        e.ds(f"ds_write_b128 v18, v[24:27] offset:{LA_R2}")
        e("s_waitcnt lgkmcnt(0)\ns_barrier")
        self.stamp(16)
        for k in range(4): e.ds(f"ds_read_b128 {vr(64+4*k)}, v23 offset:{LA_R2+1024*(k>>1)+(512+128)*(k&1)}")
        e("s_waitcnt lgkmcnt(0)")
        for k in range(1, 4):
            e(f"v_pk_add_f32 v[64:65], v[64:65], v[{64+4*k}:{65+4*k}]\nv_pk_add_f32 v[66:67], v[66:67], v[{66+4*k}:{67+4*k}]")
        e("v_permlane32_swap_b32 v64, v66\nv_permlane32_swap_b32 v65, v67\nv_add_f32 v64, v64, v66\nv_add_f32 v65, v65, v67")
        e("v_permlane16_swap_b32 v64, v65\nv_add_f32 v64, v64, v65\nv_cvt_pk_bf16_f32 v64, v64, v64")
        e.ds(f"ds_write_b16 v250, v64 offset:{LA_CTX}")
        e("s_waitcnt lgkmcnt(0)")
        e.ds(f"ds_read_b128 v[28:31], v251 offset:{LA_CTX}")
        e("s_waitcnt lgkmcnt(0)")
        self.gemv8(24, 28, 192, [wt(8 + k) for k in range(8)])
        e(f"s_cmp_lt_u32 s{sW}, 4\ns_cbranch_scc1 L_at_o")
        e.ds(f"ds_write_b128 v18, v[24:27] offset:{LA_R1}")
        e("s_waitcnt lgkmcnt(0)\ns_barrier")
        self.exit()
        e.label("L_at_o")
        e("s_barrier")
        e.ds(f"ds_read_b128 v[64:67], v18 offset:{LA_R1+4096}")
        e("s_waitcnt lgkmcnt(0)")
        e("v_pk_add_f32 v[24:25], v[24:25], v[64:65]\nv_pk_add_f32 v[26:27], v[26:27], v[66:67]")
        e(f"v_cndmask_b32 v52, v24, v26, {sHI}\nv_cndmask_b32 v54, v25, v27, {sHI}")
        e(f"buffer_store_dwordx4 v[52:55], v252, {WS}, s61 offen sc1")
        self.stamp(8)
        e(f"s_cmp_eq_u32 s{sW}, 0\ns_cbranch_scc1 L_at_fin")
        self.exit()
        e.label("L_at_fin")
        e(f"s_lshl_b32 s12, s64, 6\ns_add_u32 s12, s12, {WS_OUTA}\nv_lshrrev_b32 v11, 2, v{vL}\nv_lshlrev_b32 v11, 12, v11\nv_and_b32 v12, 3, v{vL}\nv_lshl_add_u32 v11, v12, 4, v11")
        self.srd(48, 38, 2048)
        e(f"s_lshl_b32 s14, s64, 4\nv_lshlrev_b32 v12, 2, v12\ns_mov_b32 s15, 0x10000")
        def g(R):
            e("s_mov_b32 s3, s12")
            for k in range(4):
                e(f"buffer_load_dwordx4 {vr(R+4*k)}, v11, {WS}, s3 offen sc1")
                if k < 3: e("s_add_u32 s3, s3, s15")
        def fin(R):
            for k in range(1, 4): e(f"v_add_f32 v{R}, v{R}, v{R+4*k}\nv_add_f32 v{R+2}, v{R+2}, v{R+4*k+2}")
            self.rowred([R, R + 2], "v_add_f32", (8, 4))
            self.allred_G([R, R + 2], [100, 101], "v_add_f32")
            e(f"v_cvt_pk_bf16_f32 v102, v{R}, v{R+2}")
            self.exec_mask(15, 0)
            e("buffer_store_dword v102, v12, s[48:51], s14 offen")
            if self.p["TIMING"]: self.exec_full(); e("s_waitcnt vmcnt(0)"); self.stamp(9)
            self.exit()
        if self.p["DPOLL"]: self.poll2(g, 4, 64, 80, 60, "goa", fin)
        else:
            self.poll(lambda: g(64), [65, 67, 69, 71, 73, 75, 77, 79], 60, "goa")
            fin(64)

    def build(self):
        e, p = self.e, self.p
        self.prologue()
        vm0 = e.vm
        self.phase1()
        self.b_ctrl()
        e.label("L_notctrl")
        e.vm = vm0
        self.b_stream()
        self.b_tail()
        e.label("L_astream")
        self.role = "A"
        e.vm = 1
        self.a_setup()
        self.a_issue(lambda n: p["D_A1"] if n < p["NA1"] else p["D_A2"], p1at=p["D_A1"])
        self.a_main()
        while self.ool: self.ool.pop(0)()
        if p["TIMING"]:
            e.label("L_exit")
            e("s_mov_b64 exec, -1\ns_memrealtime s[98:99]\ns_getreg_b32 s100, hwreg(HW_REG_XCC_ID)\ns_waitcnt lgkmcnt(0)\nv_mov_b32 v44, 0")
            for i in range(28): e(f"v_writelane_b32 v44, s{70+i}, {i}")
            e("v_writelane_b32 v44, s98, 30\nv_writelane_b32 v44, s100, 31")
            e(f"s_lshl_b32 s3, s2, 3\ns_add_u32 s3, s3, s{sW}\ns_lshl_b32 s3, s3, 7\ns_add_u32 s3, s3, {WS_STAMP}\nv_lshlrev_b32 v45, 2, v{vL}\ns_mov_b32 exec_hi, 0")
            e(f"buffer_store_dword v44, v45, {WS}, s3 offen")
        if p["PAD"]:
            e.label("L_exit")
            if p["PADEV"] == 99:
                e(f"s_cmp_{'lt' if p['PADROLE'] == 'A' else 'ge'}_u32 s{sSLOT}, 8\ns_cbranch_scc0 L_padn\ns_memrealtime s[82:83]\ns_waitcnt lgkmcnt(0)")
                e.label("L_padn")
            e(f"s_cmp_eq_u32 s82, 0\ns_cselect_b32 s80, s80, s82\ns_add_u32 s80, s80, {p['PAD']}")
            e.label("L_padl")
            e("s_sleep 4\ns_memrealtime s[68:69]\ns_waitcnt lgkmcnt(0)\ns_sub_u32 s68, s68, s80\ns_cmp_lt_i32 s68, 0\ns_cbranch_scc1 L_padl")
        e.label("L_end")
        e("s_endpgm")
        e.label("L_codeend")
        if p["NOSLOW"]:
            out, k = [], 0
            for i, l in enumerate(e.L):
                if "store" in l and l.endswith("sc1") and ("s68" in l or ("v11, " in l and "x4" in l) or (p["NOSLOW"] > 1 and "v14, " in l and "x4" in l)): continue
                out.append(l)
            e.L = out
        if p["AINL"]:
            a, b = e.L.index("L_astream:"), e.L.index("L_arest:")
            blk = e.L[a + 1:b]
            del e.L[a:b]
            k = e.L.index("s_cbranch_scc1 L_astream")
            e.L[k:k + 1] = ["s_cbranch_scc0 L_bstart"] + blk + ["s_branch L_arest", "L_bstart:"]
        if p["JIT"]:
            out, k = [], 0
            for l in e.L:
                if l.startswith("s_barrier") or ("store" in l and "v44" not in l) or l.startswith("ds_add") or (l.startswith("ds_write_b32") and "v15," in l):
                    k += 1
                    out += ["s_cselect_b32 s101, 1, 0", "s_memtime s[98:99]", "s_waitcnt lgkmcnt(0)", "s_lshr_b32 s98, s98, 3", f"s_and_b32 s98, s98, {p['JIT']}",
                            f"L_jit{k}:", "s_sleep 8", "s_sub_u32 s98, s98, 1", f"s_cbranch_scc0 L_jit{k}", "s_cmp_eq_u32 s101, 1"]
                out.append(l)
            e.L = out
        gm, sm = p["GM"].replace("_", " "), p["SM"].replace("_", " ")
        e.L = [(l[:-3] + (gm if "load" in l else sm)) if l.endswith(" sc1") else l for l in e.L]
        if p["FSM"]:
            e.L = [l + " " + p["FSM"].replace("_", " ") if ("store" in l and "s[44:47]" in l and not l.endswith("sc1") and "v44" not in l) else l for l in e.L]
        body = pad_hazards(e.L)
        ref = open(f"cdna_kernels/{NAME}.s.ref").read().split("\n")
        head = [l for l in ref if l.startswith(";") and "@launch" not in l]
        out = head + ["; @launch grid=(256,1,1) block=(512,1,1) lds=163840"] + DOC.split("\n") + [
                      '.amdgcn_target "amdgcn-amd-amdhsa--gfx950"', ".text", f".globl {NAME}_kernel", ".p2align 8",
                      f".type {NAME}_kernel,@function", f"{NAME}_kernel:"]
        out += [("" if l.endswith(":") else "    ") + l for l in body]
        out += ['.section .rodata,"a"', ".p2align 6", f".amdhsa_kernel {NAME}_kernel", "  .amdhsa_next_free_vgpr 256",
                "  .amdhsa_next_free_sgpr 102", "  .amdhsa_accum_offset 256", "  .amdhsa_group_segment_fixed_size 0",
                "  .amdhsa_kernarg_size 112", "  .amdhsa_user_sgpr_count 2", "  .amdhsa_user_sgpr_kernarg_segment_ptr 1",
                "  .amdhsa_system_sgpr_workgroup_id_x 1", ".end_amdhsa_kernel", ""]
        return "\n".join(out)

if __name__ == "__main__":
    kw = {}
    for a in sys.argv[2:]:
        k, v = a.split("=")
        kw[k] = (v == "True") if v in ("True", "False") else (int(v) if v.lstrip("-").isdigit() else v)
    open(sys.argv[1], "w").write(K(**kw).build())
```
